```python
import torch

def _softmax(x, axis=-1):
    return torch.softmax(x, dim=axis)
def _gelu(x):
    return torch.nn.functional.gelu(x, approximate="tanh")
def _silu(x):
    return torch.nn.functional.silu(x)
def _sigmoid(x):
    return torch.sigmoid(x)
def _layernorm(x, axis=-1, eps=1e-5):
    m = x.mean(dim=axis, keepdim=True)
    v = x.var(dim=axis, keepdim=True, unbiased=False)
    return (x - m) / torch.sqrt(v + eps)
def _scatter_add(tgt, idx, src, axis=0):
    return tgt.clone().index_add_(axis, idx, src)
def _segment_sum(src, seg, n):
    out = torch.zeros((n,) + src.shape[1:], dtype=src.dtype)
    return out.index_add_(0, seg, src)
def _pad(x, pw):
    flat = tuple(v for pair in reversed(pw) for v in pair)
    return torch.nn.functional.pad(x, flat)

kernel_name = 'parallel_sum__sliding_local_dilated__glu_gated_bilinear__prompt'

def setup_inputs():

    _w = (lambda a: (lambda t: t.to(torch.bfloat16) if t.is_floating_point() else t)(torch.as_tensor(a)))
    def _A_setup():
        B, S, D = 1, 2048, 1024
        return {
            "x": _w((lambda *s: torch.randn(*s, dtype=torch.bfloat16) * 0.05)(B, S, D)),
            "wqkv": _w((lambda *s: torch.randn(*s, dtype=torch.bfloat16) * 0.05)(D, 3 * D)),
            "wo": _w((lambda *s: torch.randn(*s, dtype=torch.bfloat16) * 0.05)(D, D)),
        }
    _A_in = _A_setup()

    def _B_setup():
        B, S, D, F = 1, 2048, 1024, 3584
        return {
            "x": _w((lambda *s: torch.randn(*s, dtype=torch.bfloat16) * 0.05)(B, S, D)),
            "w_gate": _w((lambda *s: torch.randn(*s, dtype=torch.bfloat16) * 0.8)(D, F) * (D ** -0.5)),
            "w_up": _w((lambda *s: torch.randn(*s, dtype=torch.bfloat16) * 0.8)(D, F) * (D ** -0.5)),
            "w_down": _w((lambda *s: torch.randn(*s, dtype=torch.bfloat16) * 0.8)(F, D) * (F ** -0.5)),
        }
    _B_in = _B_setup()

    return {
        "A_x": _A_in["x"],
        "A_wqkv": _A_in["wqkv"],
        "A_wo": _A_in["wo"],
        "B_x": _B_in["x"],
        "B_w_gate": _B_in["w_gate"],
        "B_w_up": _B_in["w_up"],
        "B_w_down": _B_in["w_down"],
    }

def reference(A_x, A_wqkv, A_wo, B_x, B_w_gate, B_w_up, B_w_down):
    def _A_ref(x, wqkv, wo):
        B, S, D = x.shape
        H = 32; Dh = D // H
        W, dil = 8, 2
        qkv = (lambda x, *d: x.permute(*d))((x @ wqkv).reshape(B, S, 3, H, Dh), 2, 0, 3, 1, 4)
        q, k, v = qkv[0], qkv[1], qkv[2]
        scale = Dh ** -0.5
        pos = torch.arange(S)
        off = torch.arange(W) * dil
        idx = pos[:, None] - off[None, :]
        mask = idx >= 0
        idx_c = torch.where(mask, idx, 0).reshape(-1)
        kg = k[:, :, idx_c, :].reshape(B, H, S, W, Dh)
        vg = v[:, :, idx_c, :].reshape(B, H, S, W, Dh)
        logits = torch.einsum("bhsd,bhswd->bhsw", q, kg) * scale
        logits = torch.where(mask[None, None, :, :], logits, -1e9)
        attn = _softmax(logits, axis=-1)
        o = torch.einsum("bhsw,bhswd->bhsd", attn, vg)
        return (lambda x, *d: x.permute(*d))(o, 0, 2, 1, 3).reshape(B, S, D) @ wo

    def _B_ref(x, w_gate, w_up, w_down):
        g = torch.einsum("bsd,df->bsf", x, w_gate)
        u = torch.einsum("bsd,df->bsf", x, w_up)
        h = g * u
        return torch.einsum("bsf,fd->bsd", h, w_down)

    x = A_x
    xn = _layernorm(x, axis=-1)
    return x + _A_ref(xn, A_wqkv, A_wo) + _B_ref(xn, B_w_gate, B_w_up, B_w_down)
```

```python
import re

_REG = re.compile(r'^(-|abs\()?([vas])(\d+)\)?$')
_RNG = re.compile(r'^(-)?([vas])\[(\d+):(\d+)\]$')

def regs_of(tok):
    tok = tok.strip()
    if tok in ('vcc', 'exec', 'm0', 'scc'):
        return [tok]
    if tok in ('vcc_lo', 'vcc_hi'): return ['vcc']
    if tok in ('exec_lo', 'exec_hi'): return ['exec']
    m = _REG.match(tok)
    if m: return [m.group(2) + m.group(3)]
    m = _RNG.match(tok)
    if m: return [m.group(2) + str(i) for i in range(int(m.group(3)), int(m.group(4)) + 1)]
    return []

TRANS = ('v_exp_f32', 'v_log_f32', 'v_rcp_f32', 'v_rsq_f32', 'v_sqrt_f32', 'v_sin_f32', 'v_cos_f32', 'v_rcp_iflag_f32')

class Ins:
    __slots__ = ('text', 'op', 'kind', 'dst', 'src', 'srcA', 'srcB', 'srcC', 'passes', 'label', 'target', 'nop', 'dpp', 'lds', 'data', 'cond')
    def __init__(self, text):
        self.text = text
        self.label = None; self.target = None; self.nop = 0; self.dpp = False; self.lds = False
        self.dst = []; self.src = []; self.srcA = []; self.srcB = []; self.srcC = []; self.passes = 0; self.data = []
        self.cond = True
        t = text.split(';')[0].strip()
        if t.endswith(':'):
            self.kind = 'label'; self.label = t[:-1]; self.op = ''; return
        if not t or t.startswith('.'):
            self.kind = 'dir'; self.op = ''; return
        parts = t.split(None, 1)
        op = parts[0]; self.op = op
        rest = parts[1] if len(parts) > 1 else ''
        ops = [o.strip() for o in rest.split(',')] if rest else []
        mods = []
        if ops:
            joined = []
            depth = 0; cur = ''
            for ch in rest:
                if ch == '[': depth += 1
                if ch == ']': depth -= 1
                if ch == ',' and depth == 0:
                    joined.append(cur.strip()); cur = ''
                else: cur += ch
            joined.append(cur.strip())
            ops = joined
            last = ops[-1].split()
            ops[-1] = last[0] if last else ''
            mods = last[1:]
        self.dpp = op.endswith('_dpp') or any(m.startswith(('quad_perm', 'row_', 'wave_')) for m in mods)
        R = [regs_of(o) for o in ops]
        if op.startswith('v_mfma') or op.startswith('v_smfmac'):
            self.kind = 'mfma'
            self.dst = R[0]; self.srcA = R[1]; self.srcB = R[2]; self.srcC = R[3]
            self.src = R[1] + R[2] + R[3]
            self.passes = 8 if '32x32' in op else 4
        elif op.startswith('v_cmp'):
            self.kind = 'valu'; self.dst = R[0]; self.src = sum(R[1:], [])
            if op.startswith('v_cmpx'): self.dst = self.dst + ['exec']
        elif op in ('v_readfirstlane_b32', 'v_readlane_b32'):
            self.kind = 'valu'; self.dst = R[0]; self.src = sum(R[1:], [])
        elif op.startswith('v_permlane') and 'swap' in op:
            self.kind = 'valu'; self.dst = R[0] + R[1]; self.src = R[0] + R[1]
        elif op.startswith(('v_add_co', 'v_sub_co', 'v_addc_co', 'v_subb_co', 'v_subrev_co', 'v_mad_u64_u32', 'v_div_scale')):
            self.kind = 'valu'; self.dst = R[0] + R[1]; self.src = sum(R[2:], [])
        elif op.startswith('v_'):
            self.kind = 'valu'; self.dst = R[0]; self.src = sum(R[1:], [])
            if op.startswith(('v_fmac', 'v_dot2c', 'v_pk_fmac', 'v_writelane')): self.src = self.src + R[0]
            if op.startswith('v_cndmask') and len(ops) == 3: self.src = self.src + ['vcc']
            if op == 'v_nop': self.dst = []; self.src = []
        elif op.startswith(('buffer_load', 'global_load', 'flat_load')):
            self.kind = 'vmem'
            self.lds = ('lds' in mods) or ('_lds_' in op)
            if self.lds:
                self.src = sum(R, []) + ['m0']
            else:
                self.dst = R[0]; self.src = sum(R[1:], [])
        elif op.startswith(('buffer_store', 'buffer_atomic')):
            self.kind = 'vmem'; self.src = sum(R, []); self.data = R[0]
            if 'atomic' in op and 'sc0' in mods: self.dst = R[0]
        elif op.startswith(('global_store', 'global_atomic')):
            self.kind = 'vmem'; self.src = sum(R, []); self.data = R[1]
        elif op.startswith(('buffer_inv', 'buffer_wbl2')):
            self.kind = 'vmem'
        elif op.startswith('ds_'):
            self.kind = 'ds'
            if op.startswith(('ds_read', 'ds_bpermute', 'ds_permute', 'ds_swizzle')) or '_rtn' in op:
                self.dst = R[0]; self.src = sum(R[1:], [])
            else:
                self.src = sum(R, []); self.data = sum(R[1:], [])
        elif op == 's_nop':
            self.kind = 'nop'; self.nop = int(ops[0], 0) + 1
        elif op in ('s_branch',) or op.startswith('s_cbranch'):
            self.kind = 'branch'; self.target = ops[0]; self.cond = op != 's_branch'
            if 'vcc' in op: self.src = ['vcc']
            if 'exec' in op: self.src = ['exec']
        elif op == 's_endpgm':
            self.kind = 'end'
        elif op.startswith(('s_load', 's_memtime', 's_memrealtime', 's_buffer_load')):
            self.kind = 'smem'; self.dst = R[0]; self.src = sum(R[1:], [])
        elif op.startswith('s_'):
            self.kind = 'salu'
            if op.startswith(('s_cmp', 's_waitcnt', 's_barrier', 's_sleep', 's_setprio', 's_bitcmp')):
                self.src = sum(R, [])
            else:
                self.dst = R[0] if R else []; self.src = sum(R[1:], [])
                if 'saveexec' in op: self.dst = self.dst + ['exec']
        else:
            raise ValueError('unknown instr: ' + text)

    def ws(self):
        if self.kind in ('label', 'dir'): return 0
        if self.kind == 'nop': return self.nop
        return 1

def need(P, C):
    n = 0
    pd = set(P.dst)
    if P.kind == 'valu':
        vd = {r for r in pd if r[0] in 'va' and r not in ('vcc',)}
        sd = {r for r in pd if r[0] == 's' or r == 'vcc'}
        cs = set(C.src)
        if C.kind == 'mfma' and vd & cs: n = max(n, 2)
        if C.kind == 'mfma' and 'exec' in pd: n = max(n, 4)
        if C.kind == 'vmem' and sd & cs: n = max(n, 5)
        if C.kind == 'valu':
            if sd & cs: n = max(n, 4 if C.op in ('v_readlane_b32', 'v_writelane_b32') else 2)
            if vd & cs:
                if C.op in ('v_readfirstlane_b32', 'v_readlane_b32'): n = max(n, 1)
                if C.dpp or C.op.startswith('v_permlane'): n = max(n, 2)
                if P.op.replace('_e32', '').replace('_e64', '') in TRANS: n = max(n, 1)
                if 'sdwa' in P.op or 'op_sel' in P.text: n = max(n, 1)
            if 'exec' in pd: n = max(n, 5)
        if C.kind in ('salu', 'branch', 'smem') and (sd | ({'exec'} & pd)) & cs: n = max(n, 5 if C.kind == 'branch' else 2)
    if P.kind == 'mfma':
        big = {4: 8, 8: 12}[P.passes]
        if C.kind == 'mfma':
            if pd & (set(C.srcA) | set(C.srcB)): n = max(n, big)
            if pd & set(C.srcC):
                if not (C.srcC == P.dst and C.passes == P.passes): n = max(n, {4: 6, 8: 10}[P.passes])
            elif pd & set(C.dst):
                n = max(n, big)
        elif C.kind in ('valu', 'vmem', 'ds'):
            if pd & (set(C.src) | set(C.dst)): n = max(n, big)
        if C.kind == 'valu' and set(P.srcC) & set(C.dst): n = max(n, {4: 3, 8: 7}[P.passes])
    if P.kind == 'salu' and 'm0' in pd and 'm0' in C.src and C.kind in ('vmem', 'ds'): n = max(n, 1)
    if P.kind in ('vmem', 'ds') and len(P.data) >= 3 and set(P.data) & set(C.dst):
        n = max(n, 2 if C.kind in ('valu', 'mfma') else 1)
    return n

MAXLOOK = 13

class Asm:
    def __init__(self):
        self.ins = []
    def e(self, text):
        for line in text.split('\n'):
            line = line.strip()
            if line and not line.startswith(';'):
                self.ins.append(Ins(line))
    def label(self, name): self.e(name + ':')
    def fix(self):
        ins = self.ins
        n = len(ins)
        labels = {x.label: i for i, x in enumerate(ins) if x.kind == 'label'}
        preds = [[] for _ in range(n)]
        for i, x in enumerate(ins):
            if i > 0:
                p = ins[i-1]
                if not (p.kind == 'end' or (p.kind == 'branch' and not p.cond)):
                    preds[i].append(i-1)
            if x.kind == 'branch' and x.target in labels:
                preds[labels[x.target]].append(i)
        extra = [0]*n
        for i, C in enumerate(ins):
            if C.kind in ('label', 'dir', 'nop'): continue
            worst = 0
            stack = [(j, 0) for j in preds[i]]
            seen = set()
            while stack:
                j, d = stack.pop()
                if d >= MAXLOOK or (j, d) in seen: continue
                seen.add((j, d))
                P = ins[j]
                if P.kind not in ('label', 'dir', 'nop'):
                    k = need(P, C)
                    if k > d: worst = max(worst, k - d)
                nd = d + P.ws() + extra[j]
                for q in preds[j]: stack.append((q, nd))
            extra[i] = worst
        out = []
        self.nops_inserted = 0
        for i, C in enumerate(ins):
            if extra[i]:
                out.append(Ins(f's_nop {extra[i]-1}')); self.nops_inserted += 1
            out.append(C)
        self.ins = out
    def text(self):
        o = []
        for x in self.ins:
            if x.kind == 'label' or x.text.startswith('.'): o.append(x.text)
            else: o.append('    ' + x.text)
        return '\n'.join(o) + '\n'


def vr(b, n=1): return f'v{b}' if n == 1 else f'v[{b}:{b+n-1}]'
def ar(b, n=1): return f'a{b}' if n == 1 else f'a[{b}:{b+n-1}]'
def sr(b, n=1): return f's{b}' if n == 1 else f's[{b}:{b+n-1}]'
```

```python
import sys
sys.path.insert(0, 'dev')
from asmlib import *

NAME = 'parallel_sum__sliding_local_dilated__glu_gated_bilinear__prompt'
XN_OFF = 0
XN_BYTES = 32*128*1024
ACT2_OFF = 4 << 20
ACT2_BYTES = 144*128*1024
PART_OFF = 24 << 20
PART_BYTES = 128*65536
FLAG_OFF = 32 << 20
FLAG_BYTES = 128*128
STAMP_OFF = 40 << 20

class Cfg:
    stamps = False
    k2_n0 = 32
    def __init__(self, **kw):
        for k, v in kw.items(): setattr(self, k, v)

def srd(a, d, lo, hi, nbytes, off=0):
    if off:
        a.e(f's_add_u32 s{d}, s{lo}, {off}')
        a.e(f's_addc_u32 s{d+1}, s{hi}, 0')
    else:
        a.e(f's_mov_b32 s{d}, s{lo}')
        a.e(f's_mov_b32 s{d+1}, s{hi}')
    a.e(f's_mov_b32 s{d+2}, {nbytes}')
    a.e(f's_mov_b32 s{d+3}, 0x20000')

def kdesc(name, nvgpr, accum, nsgpr=102):
    return f'''.p2align 6
.amdhsa_kernel {name}
  .amdhsa_next_free_vgpr {nvgpr}
  .amdhsa_next_free_sgpr {nsgpr}
  .amdhsa_accum_offset {accum}
  .amdhsa_group_segment_fixed_size 0
  .amdhsa_kernarg_size 80
  .amdhsa_user_sgpr_count 2
  .amdhsa_user_sgpr_kernarg_segment_ptr 1
  .amdhsa_system_sgpr_workgroup_id_x 1
.end_amdhsa_kernel
'''

def khead(a, name):
    a.e(f'.globl {name}'); a.e('.p2align 8'); a.e(f'.type {name},@function'); a.label(name)

class Stamper:
    def __init__(self, a, on, base, kid):
        self.a = a; self.on = on; self.base = base; self.n = 0; self.kid = kid
    def at(self, i):
        if not self.on: return
        self.a.e(f's_memrealtime s[{self.base+2*i}:{self.base+2*i+1}]')
        self.n = max(self.n, i+1)
    def flush(self, ws_lo, ws_hi, wave_sreg, vt0, vt1, stmp, n=None):
        if not self.on: return
        a = self.a
        n = n or self.n
        a.e('s_waitcnt lgkmcnt(0)')
        srd(a, stmp, ws_lo, ws_hi, 1 << 20, STAMP_OFF + self.kid*(256*4*64))
        a.e(f's_lshl_b32 s{stmp+4}, s2, 8')
        a.e(f's_lshl_b32 s{stmp+5}, s{wave_sreg}, 6')
        a.e(f's_add_u32 s{stmp+4}, s{stmp+4}, s{stmp+5}')
        a.e(f'v_mov_b32 v{vt0}, s{stmp+4}')
        a.e('s_mov_b64 exec, 1')
        for i in range(n):
            a.e(f'v_mov_b32 v{vt1}, s{self.base+2*i}')
            a.e(f'buffer_store_dword v{vt1}, v{vt0}, s[{stmp}:{stmp+3}], 0 offen offset:{4*i}')
        a.e('s_mov_b64 exec, -1')

def gen_k0(a, cfg):
    name = 'ln_kernel'
    khead(a, name)
    a.e('s_cmp_ge_u32 s2, 256'); a.e('s_cbranch_scc1 L0_end')
    a.e('s_load_dwordx2 s[4:5], s[0:1], 0')
    a.e('s_load_dwordx2 s[6:7], s[0:1], 72')
    a.e('v_and_b32 v1, 63, v0')
    a.e('v_lshrrev_b32 v2, 6, v0')
    a.e('v_lshrrev_b32 v3, 3, v1')
    a.e('v_and_b32 v4, 7, v1')
    a.e('s_lshl_b32 s3, s2, 14')
    a.e('v_lshlrev_b32 v5, 11, v3')
    a.e('v_lshl_add_u32 v5, v2, 9, v5')
    a.e('v_lshl_add_u32 v5, v4, 4, v5')
    a.e('v_add_u32 v5, s3, v5')
    a.e('v_lshrrev_b32 v6, 2, v4')
    a.e('v_lshl_add_u32 v6, v2, 3, v6')
    a.e('v_lshlrev_b32 v6, 17, v6')
    a.e('v_and_b32 v7, 3, v4')
    a.e('v_lshl_add_u32 v6, v7, 8, v6')
    a.e('v_lshl_add_u32 v6, v3, 4, v6')
    a.e('s_lshr_b32 s16, s2, 1'); a.e('s_lshl_b32 s16, s16, 10')
    a.e('s_and_b32 s17, s2, 1'); a.e('s_lshl_b32 s17, s17, 7'); a.e('s_add_u32 s16, s16, s17')
    a.e('v_add_u32 v6, s16, v6')
    a.e('v_lshlrev_b32 v8, 5, v3')
    a.e('v_lshl_add_u32 v9, v2, 3, v8')
    a.e('s_waitcnt lgkmcnt(0)')
    srd(a, 8, 4, 5, 2048*1024*2)
    srd(a, 12, 6, 7, XN_BYTES, XN_OFF)
    for it in range(4):
        a.e(f'buffer_load_dwordx4 v[{16+4*it}:{19+4*it}], v5, s[8:11], 0 offen offset:{it*128}')
    a.e('s_cmp_lg_u32 s2, 0'); a.e('s_cbranch_scc1 L0_noflag')
    srd(a, 20, 6, 7, FLAG_BYTES, FLAG_OFF)
    a.e('v_lshlrev_b32 v10, 7, v0'); a.e('v_mov_b32 v11, 0')
    a.e('buffer_store_dword v11, v10, s[20:23], 0 offen')
    a.label('L0_noflag')
    a.e('s_mov_b32 s24, 0xffff0000')
    a.e('s_mov_b32 s25, 262144'); a.e('s_mov_b32 s26, 524288'); a.e('s_mov_b32 s27, 786432')
    a.e('s_waitcnt vmcnt(0)')
    X = 32
    for i in range(16):
        a.e(f'v_lshlrev_b32 v{X+2*i}, 16, v{16+i}')
        a.e(f'v_and_b32 v{X+2*i+1}, s24, v{16+i}')
    T = 64
    def tree(srcs, op):
        cur = list(srcs); k = 0
        while len(cur) > 1:
            nxt = []
            for i in range(0, len(cur) - 1, 2):
                d = T + (k % 16); k += 1
                a.e(f'{op} v{d}, v{cur[i]}, v{cur[i+1]}'); nxt.append(d)
            if len(cur) % 2: nxt.append(cur[-1])
            cur = nxt
        return cur[0]
    def red8(r):
        a.e(f'v_add_f32_dpp v{r}, v{r}, v{r} quad_perm:[1,0,3,2] row_mask:0xf bank_mask:0xf')
        a.e(f'v_add_f32_dpp v{r}, v{r}, v{r} quad_perm:[2,3,0,1] row_mask:0xf bank_mask:0xf')
        a.e(f'v_add_f32_dpp v{r}, v{r}, v{r} row_half_mirror row_mask:0xf bank_mask:0xf')
    for i in range(16): a.e(f'v_add_f32 v{T+i}, v{X+2*i}, v{X+2*i+1}')
    for st in (8, 4, 2, 1):
        for i in range(st): a.e(f'v_add_f32 v{T+i}, v{T+i}, v{T+i+st}')
    red8(T)
    a.e(f'v_mul_f32 v12, 0x3b800000, v{T}')
    for i in range(32): a.e(f'v_sub_f32 v{X+i}, v{X+i}, v12')
    for i in range(16): a.e(f'v_mul_f32 v{T+i}, v{X+2*i}, v{X+2*i}')
    for i in range(16): a.e(f'v_fmac_f32 v{T+i}, v{X+2*i+1}, v{X+2*i+1}')
    for st in (8, 4, 2, 1):
        for i in range(st): a.e(f'v_add_f32 v{T+i}, v{T+i}, v{T+i+st}')
    red8(T)
    a.e(f'v_mov_b32 v13, v{T}')
    a.e('ds_write_b64 v9, v[12:13]')
    a.e('s_waitcnt lgkmcnt(0)'); a.e('s_barrier')
    a.e('ds_read_b128 v[80:83], v8'); a.e('ds_read_b128 v[84:87], v8 offset:16')
    a.e('s_waitcnt lgkmcnt(0)')
    a.e('v_add_f32 v88, v80, v82'); a.e('v_add_f32 v89, v84, v86'); a.e('v_add_f32 v88, v88, v89')
    a.e('v_mul_f32 v88, 0.25, v88') if False else a.e('v_mul_f32 v88, 0x3e800000, v88')
    a.e('v_add_f32 v90, v81, v83'); a.e('v_add_f32 v91, v85, v87'); a.e('v_add_f32 v90, v90, v91')
    for r in (80, 82, 84, 86): a.e(f'v_sub_f32 v{r}, v{r}, v88')
    a.e('v_mul_f32 v91, v80, v80')
    for r in (82, 84, 86): a.e(f'v_fmac_f32 v91, v{r}, v{r}')
    a.e('v_mov_b32 v92, 0x43800000')
    a.e('v_fmac_f32 v90, v91, v92')
    a.e('v_mov_b32 v93, 0x3727c5ac')
    a.e('v_mov_b32 v92, 0x3a800000')
    a.e('v_fmac_f32 v93, v90, v92')
    a.e('v_rsq_f32 v93, v93')
    a.e('v_sub_f32 v94, v12, v88')
    a.e('v_mul_f32 v94, v94, v93')
    for i in range(32): a.e(f'v_fma_f32 v{X+i}, v{X+i}, v93, v94')
    for i in range(16): a.e(f'v_cvt_pk_bf16_f32 v{16+i}, v{X+2*i}, v{X+2*i+1}')
    so = ['0', 's25', 's26', 's27']
    for it in range(4):
        a.e(f'buffer_store_dwordx4 v[{16+4*it}:{19+4*it}], v6, s[12:15], {so[it]} offen')
    a.label('L0_end')
    a.e('s_endpgm')
    return name, (256, 256, 512), kdesc(name, 96, 96, 32)

class LgkmTracker:
    def __init__(self, a):
        self.a = a
        self.q = []
    def read(self, text):
        ins = Ins(text)
        self.a.e(text)
        self.q.append(set(ins.dst))
    def other(self):
        self.q.append(set())
    def need(self, regs):
        regs = set(regs)
        last = -1
        for i, d in enumerate(self.q):
            if d & regs: last = i
        if last < 0: return
        n = len(self.q) - 1 - last
        n = min(n, 15)
        self.a.e(f's_waitcnt lgkmcnt({n})')
        self.q = self.q[len(self.q) - n:] if n else []
    def drain(self):
        self.q = []
    def state(self):
        return [tuple(sorted(x)) for x in self.q]

L1_ACT = 0; L1_W = 65536; L1_HALO = 147456; L1_TOTAL = 151552
def gen_k1(a, cfg):
    name = NAME + '_kernel'
    khead(a, name)
    st = Stamper(a, cfg.stamps, 70, 1)
    S_XN = 8; S_W = 12; S_O = 32
    sACT = 36; sWO = 37; sWS = 42; sM_ACT = 47; sM_W = 48; sM_H = 49; sCNT = 50; sWAVE = 51; sWM = 52; sRB = 54; sJ = 55
    vLANE = 1; vDA = 2; vDH = 3; vDW = 4
    vA = 9; vHA = 10; vGU = 11; vQa = 13; vQb = 15; vHW = 17
    vT = 20
    a.e('s_cmp_ge_u32 s2, 256'); a.e('s_cbranch_scc1 L1_end')
    st.at(0)
    a.e('s_load_dwordx2 s[4:5], s[0:1], 8')
    a.e('s_load_dwordx4 s[56:59], s[0:1], 32')
    a.e('s_load_dwordx2 s[6:7], s[0:1], 72')
    a.e(f'v_lshrrev_b32 v{vT}, 6, v0')
    a.e(f'v_and_b32 v{vLANE}, 63, v0')
    a.e(f'v_readfirstlane_b32 s{sWAVE}, v{vT}')
    a.e(f's_and_b32 s{sJ}, s2, 7'); a.e(f's_lshl_b32 s{sJ}, s{sJ}, 2')
    a.e('s_lshr_b32 s3, s2, 3')
    a.e(f's_lshr_b32 s{sRB}, s3, 2'); a.e('s_and_b32 s3, s3, 3'); a.e(f's_add_u32 s{sJ}, s{sJ}, s3')
    a.e(f's_lshr_b32 s{sWM}, s{sWAVE}, 1')
    a.e(f's_lshl_b32 s60, s{sRB}, 14'); a.e(f's_lshl_b32 s61, s{sWAVE}, 12'); a.e('s_add_u32 s61, s61, s60')
    a.e(f'v_lshl_add_u32 v{vDA}, v{vLANE}, 4, s61')
    a.e('s_max_u32 s60, s60, 1024'); a.e('s_sub_u32 s60, s60, 1024')
    a.e(f's_lshl_b32 s61, s{sWAVE}, 8'); a.e('s_add_u32 s61, s61, s60')
    a.e(f'v_lshl_add_u32 v{vDH}, v{vLANE}, 2, s61')
    a.e(f's_lshl_b32 s{sM_ACT}, s{sWAVE}, 12')
    a.e(f's_mul_i32 s{sM_W}, s{sWAVE}, 5120'); a.e(f's_add_u32 s{sM_W}, s{sM_W}, {L1_W}')
    a.e(f's_lshl_b32 s{sM_H}, s{sWAVE}, 8'); a.e(f's_add_u32 s{sM_H}, s{sM_H}, {L1_HALO}')
    a.e(f's_mov_b32 s{sACT}, 0')
    for d in range(5): a.e(f's_mov_b32 s{sWO+d}, 0')
    a.e(f's_lshl_b32 s62, s{sJ}, 6')
    a.e(f's_mul_i32 s63, s{sJ}, 224')
    a.e(f's_and_b32 s64, s{sJ}, 1'); a.e('s_lshl_b32 s64, s64, 1')
    a.e('s_movk_i32 s65, 6144'); a.e('s_movk_i32 s66, 7168')
    a.e(f's_cmp_eq_u32 s{sWAVE}, 1'); a.e('s_cbranch_scc1 L1_set1')
    a.e(f's_cmp_eq_u32 s{sWAVE}, 2'); a.e('s_cbranch_scc1 L1_set2')
    a.e(f's_cmp_eq_u32 s{sWAVE}, 3'); a.e('s_cbranch_scc1 L1_set3')
    for w in range(4):
        if w: a.label(f'L1_set{w}')
        kinds = []
        for d in range(5):
            p = 5*w + d
            if p < 6: kind, pl, C, magic = 'q', p, 12, 5462
            elif p < 13: kind, pl, C, magic = 'g', p-6, 14, 4682
            else: kind, pl, C, magic = 'u', p-13, 14, 4682
            kinds.append(kind)
            t0, t1, t2, t3 = vT, vT+1, vT+2, vT+3
            a.e(f'v_add_u32 v{t0}, {64*pl}, v{vLANE}')
            a.e(f'v_mul_u32_u24 v{t1}, {magic}, v{t0}')
            a.e(f'v_lshrrev_b32 v{t1}, 16, v{t1}')
            a.e(f'v_mul_u32_u24 v{t2}, {C}, v{t1}')
            a.e(f'v_sub_u32 v{t0}, v{t0}, v{t2}')
            if kind == 'q':
                a.e(f'v_lshrrev_b32 v{t2}, 1, v{t1}'); a.e(f'v_and_b32 v{t2}, 2, v{t2}')
                a.e(f'v_xor_b32 v{t0}, v{t0}, v{t2}')
                a.e(f'v_lshrrev_b32 v{t2}, 2, v{t0}'); a.e(f'v_lshlrev_b32 v{t2}, 11, v{t2}')
                a.e(f'v_and_b32 v{t0}, 3, v{t0}')
                a.e(f'v_lshl_add_u32 v{t0}, v{t0}, 4, v{t2}')
                a.e(f'v_add_u32 v{t0}, s62, v{t0}')
            else:
                a.e(f'v_add_u32 v{t0}, s64, v{t0}')
                a.e(f'v_subrev_u32 v{t2}, 14, v{t0}')
                a.e(f'v_min_u32 v{t0}, v{t0}, v{t2}')
                a.e(f'v_lshlrev_b32 v{t0}, 4, v{t0}')
                a.e(f'v_add_u32 v{t0}, s63, v{t0}')
            a.e(f'v_and_b32 v{t2}, 3, v{t1}')
            a.e(f'v_bfe_u32 v{t3}, v{t1}, 2, 2')
            a.e(f'v_lshl_add_u32 v{t2}, v{t3}, 3, v{t2}')
            a.e(f'v_lshrrev_b32 v{t3}, 4, v{t1}')
            a.e(f'v_lshl_add_u32 v{t2}, v{t3}, 2, v{t2}')
            a.e(f'v_mad_u32_u24 v{vDW+d}, v{t2}, s{65 if kind == "q" else 66}, v{t0}')
        a.e('s_waitcnt lgkmcnt(0)')
        for d in range(5):
            kind = kinds[d]
            if kind == 'q': srd(a, S_W+4*d, 4, 5, 1024*3072*2); a.e(f's_mov_b32 s{sWS+d}, {32*6144}')
            elif kind == 'g': srd(a, S_W+4*d, 56, 57, 1024*3584*2); a.e(f's_mov_b32 s{sWS+d}, {32*7168}')
            else: srd(a, S_W+4*d, 58, 59, 1024*3584*2); a.e(f's_mov_b32 s{sWS+d}, {32*7168}')
        if w < 3: a.e('s_branch L1_setdone')
    a.label('L1_setdone')
    srd(a, S_XN, 6, 7, XN_BYTES, XN_OFF)

    def dma_list(slot):
        L = []
        for d in range(5):
            L.append((f's_add_u32 m0, s{sM_W}, {slot*20480 + d*1024}',
                      f'buffer_load_dwordx4 v{vDW+d}, s[{S_W+4*d}:{S_W+4*d+3}], s{sWO+d} offen lds',
                      f's_add_u32 s{sWO+d}, s{sWO+d}, s{sWS+d}'))
        for d in range(4):
            L.append((f's_add_u32 m0, s{sM_ACT}, {slot*16384}' if d == 0 else None,
                      f'buffer_load_dwordx4 v{vDA}, s[{S_XN}:{S_XN+3}], s{sACT} offen offset:{d*1024} lds', None))
        L.append((f's_add_u32 m0, s{sM_H}, {slot*1024}',
                  f'buffer_load_dword v{vDH}, s[{S_XN}:{S_XN+3}], s{sACT} offen lds',
                  f's_add_u32 s{sACT}, s{sACT}, 131072'))
        return L
    for s in range(3):
        for pre, ins, post in dma_list(s):
            if pre: a.e(pre)
            a.e(ins)
            if post: a.e(post)
    st.at(1)
    srd(a, S_O, 6, 7, ACT2_BYTES, ACT2_OFF)
    t0, t1, t2 = vT, vT+1, vT+2
    a.e(f's_lshl_b32 s60, s{sWM}, 13')
    a.e(f'v_lshl_add_u32 v{vA}, v{vLANE}, 4, s60')
    a.e(f'v_lshlrev_b32 v{vHA}, 4, v{vLANE}'); a.e(f'v_add_u32 v{vHA}, {L1_HALO}, v{vHA}')
    a.e(f'v_lshrrev_b32 v{t0}, 2, v{vLANE}')
    a.e(f'v_and_b32 v{t1}, 3, v{vLANE}'); a.e(f'v_lshlrev_b32 v{t1}, 3, v{t1}')
    a.e(f'v_add_u32 v{t1}, {L1_W}, v{t1}')
    a.e(f'v_mul_u32_u24 v{t2}, 224, v{t0}'); a.e(f'v_add_u32 v{vGU}, v{t2}, v{t1}')
    a.e(f'v_add_u32 v{vGU+1}, 40960, v{vGU}')
    a.e(f'v_mul_u32_u24 v{t2}, 192, v{t0}'); a.e(f'v_add_u32 v{t2}, v{t2}, v{t1}')
    a.e(f'v_lshlrev_b32 v{t0}, 1, v{vLANE}'); a.e(f'v_and_b32 v{t0}, 32, v{t0}')
    a.e(f'v_add_u32 v{vQa}, v{t2}, v{t0}'); a.e(f'v_sub_u32 v{vQb}, v{t2}, v{t0}')
    a.e(f'v_add_u32 v{vQa+1}, 40960, v{vQa}'); a.e(f'v_add_u32 v{vQb+1}, 40960, v{vQb}')
    a.e(f's_lshl_b32 s60, s{sWAVE}, 5'); a.e('s_add_u32 s60, s60, 64')
    a.e(f'v_xor_b32 v{t0}, s60, v{t0}')
    a.e(f'v_add_u32 v{vHW}, v{t2}, v{t0}'); a.e(f'v_add_u32 v{vHW+1}, 40960, v{vHW}')
    for i in range(32, 256): a.e(f'v_mov_b32 v{i}, 0')
    for i in range(96, 196): a.e(f'v_accvgpr_write_b32 a{i}, 0')
    a.e(f's_mov_b32 s{sCNT}, 0')
    a.e(f's_and_b32 s60, s{sWAVE}, 1'); a.e('s_cmp_eq_u32 s60, 1'); a.e('s_cbranch_scc1 L1_wn1')

    aACT = 0; aHA = 64; aW = 72; aHW = 88; aACC = 96
    NW = 4; PF = 3
    for wn in range(2):
        if wn == 1: a.label('L1_wn1')
        if wn == 0:
            units = [('q', 0), ('q', 2), ('q', 4), ('q', 6), ('q', 8), ('q', 10), ('g', 0), ('g', 2), ('u', 0), ('u', 2)]
            names = ['q0', 'q1', 'k0', 'k1', 'v0', 'v1', 'g0', 'g1', 'u0', 'u1']
            order_v = ['g0', 'g1', 'u0', 'u1', 'q0', 'q1', 'k0']; order_a = ['k1', 'v0', 'v1']
        else:
            units = [('g', 4+2*i) for i in range(5)] + [('u', 4+2*i) for i in range(5)]
            names = [f'g{i}' for i in range(2, 7)] + [f'u{i}' for i in range(2, 7)]
            order_v = ['g2', 'g3', 'g4', 'g5', 'g6', 'u2', 'u3']; order_a = ['u4', 'u5', 'u6']
        acc = {}
        for i, nm in enumerate(order_v):
            for m in range(8): acc[(nm, m)] = ('v', 32 + (i*8+m)*4)
        for i, nm in enumerate(order_a):
            for m in range(8): acc[(nm, m)] = ('a', aACC + (i*8+m)*4)
        acc['halo'] = ('a', aACC + 96)
        def R(x): return f'{x[0]}[{x[1]}:{x[1]+3}]'
        def wread(slot, n, buf):
            kind, c0 = units[n]
            half = slot >> 1
            out = []
            for h in range(2):
                if kind == 'q':
                    base = (vQa if c0 % 4 == 0 else vQb) + half
                    off = (slot & 1)*20480 + c0*16 + h*3072
                else:
                    base = vGU + half
                    off = (slot & 1)*20480 + (6144 if kind == 'g' else 13312) + c0*16 + h*3584
                out.append(f'ds_read_b64_tr_b16 a[{aW+4*buf+2*h}:{aW+4*buf+2*h+1}], v{base} offset:{off}')
            return out
        def aread(slot, par, m):
            return f'ds_read_b128 a[{aACT+par*32+4*m}:{aACT+par*32+4*m+3}], v{vA} offset:{slot*16384+m*1024}'
        def hreads(slot):
            half = slot >> 1
            return [f'ds_read_b128 a[{aHA}:{aHA+3}], v{vHA} offset:{slot*1024}'] + \
                   [f'ds_read_b64_tr_b16 a[{aHW+2*h}:{aHW+2*h+1}], v{vHW+half} offset:{(slot&1)*20480+h*3072}' for h in range(2)]
        tr = LgkmTracker(a)
        def tail_reads(nslot, npar, wbase):
            sched = {}
            for k in range(PF):
                r = wread(nslot, k, (wbase + 10 + k) % NW)
                sched.setdefault((7+k)*8 + 0, []).append(r[0]); sched.setdefault((7+k)*8 + 1, []).append(r[1])
            extra = [aread(nslot, npar, m) for m in range(8)] + hreads(nslot)
            pos = [58, 59, 60, 61, 62, 63, 66, 67, 68, 69, 70]
            for p, r in zip(pos, extra): sched.setdefault(p, []).append(r)
            return sched
        a.e('s_waitcnt vmcnt(20)'); a.e('s_barrier')
        st.at(2)
        if st.on: a.e('s_waitcnt lgkmcnt(0)')
        sched = tail_reads(0, 0, -10)
        for p in sorted(sched):
            for r in sched[p]: tr.read(r)
        entry_state = tr.state()
        a.label(f'L1_loop{wn}')
        for u in range(4):
            slot = u; par = u & 1; wbase = (10*u) % NW
            sched = {}
            for n in range(7):
                r = wread(slot, n+PF, (wbase + n + PF) % NW)
                sched.setdefault(n*8 + 0, []).append(r[0]); sched.setdefault(n*8 + 1, []).append(r[1])
            for p, l in tail_reads((slot+1) % 4, par ^ 1, wbase).items(): sched.setdefault(p, []).extend(l)
            misc = {}
            dl = dma_list((slot+3) % 4)
            for i, (pre, ins, post) in enumerate(dl):
                p = 3 + 5*i
                if pre: misc.setdefault(p-1, []).append(pre)
                misc.setdefault(p, []).append(ins)
                if post: misc.setdefault(p, []).append(post)
            for n in range(10):
                nm = names[n]
                wreg = f'a[{aW+4*((wbase+n)%NW)}:{aW+4*((wbase+n)%NW)+3}]'
                for m in range(8):
                    i = n*8 + m
                    if i == 56:
                        a.e('s_waitcnt vmcnt(20) lgkmcnt(0)'); tr.drain(); a.e('s_barrier')
                    areg = f'a[{aACT+par*32+4*m}:{aACT+par*32+4*m+3}]'
                    tr.need(regs_of(wreg) + regs_of(areg))
                    d = R(acc[(nm, m)])
                    if nm[0] == 'v': a.e(f'v_mfma_f32_16x16x32_bf16 {d}, {areg}, {wreg}, {d}')
                    else: a.e(f'v_mfma_f32_16x16x32_bf16 {d}, {wreg}, {areg}, {d}')
                    for r in sched.get(i, []): tr.read(r)
                    for x in misc.get(i, []): a.e(x)
                    if i == 12:
                        tr.need(regs_of(f'a[{aHA}:{aHA+3}]') + regs_of(f'a[{aHW}:{aHW+3}]'))
                        d = R(acc['halo'])
                        a.e(f'v_mfma_f32_16x16x32_bf16 {d}, a[{aHW}:{aHW+3}], a[{aHA}:{aHA+3}], {d}')
                    if u == 3 and i == 76:
                        a.e(f's_add_u32 s{sCNT}, s{sCNT}, 1'); a.e(f's_cmp_lt_u32 s{sCNT}, 8')
        assert tr.state() == entry_state, (tr.state(), entry_state)
        a.e(f's_cbranch_scc1 L1_loop{wn}')
        st.at(3)
        a.e('s_waitcnt vmcnt(0) lgkmcnt(0)'); a.e('s_barrier')
        vO = vDA
        a.e(f's_lshl_b32 s60, s{sRB}, 14'); a.e(f's_lshl_b32 s61, s{sWM}, 13'); a.e('s_add_u32 s60, s60, s61')
        a.e(f'v_lshl_add_u32 v{vO}, v{vLANE}, 4, s60')
        a.e(f'v_add_u32 v{vO+1}, 4096, v{vO}')
        a.e(f's_mul_i32 s62, s{sJ}, 7'); a.e(f's_and_b32 s63, s{sJ}, 1'); a.e('s_add_u32 s62, s62, s63'); a.e('s_lshr_b32 s62, s62, 1')
        a.e('s_add_u32 s62, s62, 32'); a.e('s_lshl_b32 s62, s62, 17')
        def fetch(x, tmp):
            if x[0] == 'v': return x[1]
            for r in range(4): a.e(f'v_accvgpr_read_b32 v{tmp+r}, a{x[1]+r}')
            return tmp
        def hmul(g, u_, m, dst, tmp):
            gb = fetch(acc[(g, m)], tmp); ub = fetch(acc[(u_, m)], tmp+4)
            a.e(f'v_pk_mul_f32 v[{gb}:{gb+1}], v[{gb}:{gb+1}], v[{ub}:{ub+1}]')
            a.e(f'v_pk_mul_f32 v[{gb+2}:{gb+3}], v[{gb+2}:{gb+3}], v[{ub+2}:{ub+3}]')
            a.e(f'v_cvt_pk_bf16_f32 v{dst}, v{gb}, v{gb+1}')
            a.e(f'v_cvt_pk_bf16_f32 v{dst+1}, v{gb+2}, v{gb+3}')
        def ostore(src, m, soff, n=4, vbase=None):
            vb = (vbase if vbase is not None else vO) + (m >> 2)
            op = {4: 'buffer_store_dwordx4', 2: 'buffer_store_dwordx2'}[n]
            a.e(f'{op} v[{src}:{src+n-1}], v{vb}, s[{S_O}:{S_O+3}], {soff} offen offset:{(m&3)*1024}')
        vX = vDW
        hb = fetch(acc['halo'], vT)
        a.e(f'v_cvt_pk_bf16_f32 v{vT+4}, v{hb}, v{hb+1}'); a.e(f'v_cvt_pk_bf16_f32 v{vT+5}, v{hb+2}, v{hb+3}')
        a.e(f's_cmp_eq_u32 s{sWM}, 1'); a.e(f's_cbranch_scc1 L1_hv{wn}')
        a.e(f'v_lshlrev_b32 v{vX}, 4, v{vLANE}')
        a.e(f'ds_write_b64 v{vX}, v[{vT+4}:{vT+5}] offset:{8*wn}')
        a.e(f's_branch L1_hd{wn}')
        a.label(f'L1_hv{wn}')
        a.e(f'v_lshrrev_b32 v{vX}, 4, v{vLANE}'); a.e(f'v_lshlrev_b32 v{vX}, 7, v{vX}')
        a.e(f'v_and_b32 v{vX+1}, 15, v{vLANE}'); a.e(f'v_lshl_add_u32 v{vX}, v{vX+1}, 1, v{vX}')
        o = 1024 + wn*512
        a.e(f'ds_write_b16 v{vX}, v{vT+4} offset:{o}'); a.e(f'ds_write_b16_d16_hi v{vX}, v{vT+4} offset:{o+32}')
        a.e(f'ds_write_b16 v{vX}, v{vT+5} offset:{o+64}'); a.e(f'ds_write_b16_d16_hi v{vX}, v{vT+5} offset:{o+96}')
        a.label(f'L1_hd{wn}')
        if wn == 1:
            a.e('s_waitcnt lgkmcnt(0)'); a.e('s_barrier')
            a.e('s_add_u32 s64, s62, 131072'); a.e('s_add_u32 s65, s62, 262144')
            a.e('s_add_u32 s66, s62, 393216'); a.e('s_sub_u32 s67, s62, 131072'); a.e('s_add_u32 s67, s67, 8')
            a.e('s_cmp_eq_u32 s63, 1'); a.e('s_cselect_b32 s66, s67, s66')
            for m in range(8):
                for (ga, ua, gb_, ub_, so) in (('g2', 'u2', 'g3', 'u3', 's64'), ('g4', 'u4', 'g5', 'u5', 's65')):
                    dst = acc[(ga, m)][1]
                    tmp = vT + (0 if so == 's64' else 0)
                    hmul(ga, ua, m, dst, vT)
                    hmul(gb_, ub_, m, dst+2, vT)
                    ostore(dst, m, so)
                dst = acc[('g6', m)][1]
                hmul('g6', 'u6', m, dst, vT)
                ostore(dst, m, 's66', n=2)
            st.at(4)
        else:
            def packqk(n0, n1, m):
                d = acc[(n0, m)][1]
                b1 = fetch(acc[(n1, m)], vT)
                a.e(f'v_cvt_pk_bf16_f32 v{d}, v{d}, v{d+1}'); a.e(f'v_cvt_pk_bf16_f32 v{d+1}, v{d+2}, v{d+3}')
                a.e(f'v_cvt_pk_bf16_f32 v{d+2}, v{b1}, v{b1+1}'); a.e(f'v_cvt_pk_bf16_f32 v{d+3}, v{b1+2}, v{b1+3}')
                return d
            for m in range(8): packqk('k0', 'k1', m)
            for m in range(8):
                dst = acc[('g0', m)][1]
                hmul('g0', 'u0', m, dst, vT); hmul('g1', 'u1', m, dst+2, vT)
                ostore(dst, m, 's62')
            PV0 = acc[('u0', 0)][1]; PV1 = PV0 + 18
            KP = PV0 + 36
            BI = KP + 4
            for m in range(8):
                for (nm, P) in (('v0', PV0), ('v1', PV1)):
                    b = fetch(acc[(nm, m)], vT)
                    a.e(f'v_cvt_pk_bf16_f32 v{P+2+2*m}, v{b}, v{b+1}'); a.e(f'v_cvt_pk_bf16_f32 v{P+3+2*m}, v{b+2}, v{b+3}')
            a.e(f's_add_u32 s64, s{sWM}, 1'); a.e('s_lshl_b32 s64, s64, 11')
            a.e(f'v_lshl_add_u32 v{vX}, v{vLANE}, 4, s64')
            k7 = acc[('k0', 7)][1]
            a.e(f'ds_write_b128 v{vX}, v[{k7}:{k7+3}]')
            a.e(f'v_and_b32 v{vX+1}, 15, v{vLANE}'); a.e(f'v_lshlrev_b32 v{vX+1}, 5, v{vX+1}')
            a.e(f'v_lshrrev_b32 v{vX+2}, 4, v{vLANE}'); a.e(f'v_lshl_add_u32 v{vX+1}, v{vX+2}, 3, v{vX+1}')
            a.e(f'v_add_u32 v{vX+2}, s64, v{vX+1}')
            a.e(f'ds_write_b64 v{vX+2}, v[{PV0+16}:{PV0+17}] offset:1024')
            a.e(f'ds_write_b64 v{vX+2}, v[{PV1+16}:{PV1+17}] offset:1536')
            a.e('s_waitcnt lgkmcnt(0)'); a.e('s_barrier')
            a.e(f'v_subrev_u32 v{vX}, 2048, v{vX}'); a.e(f'v_subrev_u32 v{vX+2}, 2048, v{vX+2}')
            a.e(f'ds_read_b128 v[{KP}:{KP+3}], v{vX}')
            a.e(f'ds_read_b64 v[{PV0}:{PV0+1}], v{vX+2} offset:1024')
            a.e(f'ds_read_b64 v[{PV1}:{PV1+1}], v{vX+2} offset:1536')
            for m in range(8): packqk('q0', 'q1', m)
            a.e(f'v_and_b32 v{vT}, 15, v{vLANE}'); a.e(f'v_lshrrev_b32 v{vT+1}, 4, v{vLANE}'); a.e(f'v_lshlrev_b32 v{vT+1}, 2, v{vT+1}')
            a.e(f'v_sub_u32 v{vT}, v{vT}, v{vT+1}')
            a.e(f'v_mov_b32 v{vT+3}, 0xf149f2ca')
            for isprev in range(2):
                for r in range(4):
                    a.e(f'v_add_u32 v{vT+1}, {16*isprev - r}, v{vT}')
                    a.e(f'v_and_b32 v{vT+2}, 0xfffffff1, v{vT+1}')
                    a.e(f'v_cmp_eq_u32 vcc, 0, v{vT+2}')
                    a.e(f'v_cndmask_b32 v{BI+4*isprev+r}, v{vT+3}, 0, vcc') if False else a.e(f'v_cndmask_b32_e64 v{BI+4*isprev+r}, v{vT+3}, 0, vcc')
            a.e(f's_or_b32 s64, s{sRB}, s{sWM}'); a.e('s_cmp_eq_u32 s64, 0'); a.e('s_cselect_b64 vcc, -1, 0')
            for r in range(4): a.e(f'v_cndmask_b32 v{BI+8+r}, v{BI+4+r}, v{vT+3}, vcc')
            ONES = BI + 12
            for r in range(4): a.e(f'v_mov_b32 v{ONES+r}, 0x3f803f80')
            a.e('s_mov_b32 s65, 0x3e8293ee')
            a.e(f's_lshl_b32 s66, s{sJ}, 17')
            a.e('s_waitcnt lgkmcnt(0)')
            W1 = acc[('q1', 0)][1]; W2 = acc[('g1', 0)][1]
            def blk_regs(i): return (W1 + 16*i, W2 + 16*i)
            for m0 in range(0, 8, 2):
                for i in range(2):
                    m = m0 + i; Sx, Ox = blk_regs(i)
                    q = acc[('q0', m)][1]; kc = acc[('k0', m)][1]; kp = acc[('k0', m-1)][1] if m else KP
                    a.e(f'v_mfma_f32_16x16x32_bf16 v[{Sx}:{Sx+3}], v[{kp}:{kp+3}], v[{q}:{q+3}], 0')
                    a.e(f'v_mfma_f32_16x16x32_bf16 v[{Sx+4}:{Sx+7}], v[{kc}:{kc+3}], v[{q}:{q+3}], 0')
                for i in range(2):
                    m = m0 + i; Sx, Ox = blk_regs(i)
                    bp = BI + (8 if m == 0 else 4)
                    for r in range(4): a.e(f'v_fma_f32 v{Sx+r}, v{Sx+r}, s65, v{bp+r}')
                    for r in range(4): a.e(f'v_fma_f32 v{Sx+4+r}, v{Sx+4+r}, s65, v{BI+r}')
                    M = Sx + 8
                    a.e(f'v_max3_f32 v{M}, v{Sx}, v{Sx+1}, v{Sx+2}'); a.e(f'v_max3_f32 v{M+1}, v{Sx+3}, v{Sx+4}, v{Sx+5}')
                    a.e(f'v_max3_f32 v{M}, v{M}, v{Sx+6}, v{Sx+7}'); a.e(f'v_max_f32 v{M}, v{M}, v{M+1}')
                    a.e(f'v_mov_b32 v{M+1}, v{M}')
                for i in range(2):
                    Sx, Ox = blk_regs(i); M = Sx + 8
                    a.e(f'v_permlane32_swap_b32 v{M}, v{M+1}')
                for i in range(2):
                    Sx, Ox = blk_regs(i); M = Sx + 8
                    a.e(f'v_max_f32 v{M}, v{M}, v{M+1}'); a.e(f'v_mov_b32 v{M+1}, v{M}')
                for i in range(2):
                    Sx, Ox = blk_regs(i); M = Sx + 8
                    a.e(f'v_permlane16_swap_b32 v{M}, v{M+1}')
                for i in range(2):
                    Sx, Ox = blk_regs(i); M = Sx + 8
                    a.e(f'v_max_f32 v{M}, v{M}, v{M+1}')
                    for r in range(8): a.e(f'v_sub_f32 v{Sx+r}, v{Sx+r}, v{M}')
                for i in range(2):
                    Sx, Ox = blk_regs(i)
                    for r in range(8): a.e(f'v_exp_f32 v{Sx+r}, v{Sx+r}')
                for i in range(2):
                    Sx, Ox = blk_regs(i); P = Sx + 12
                    for r in range(4): a.e(f'v_cvt_pk_bf16_f32 v{P+r}, v{Sx+2*r}, v{Sx+2*r+1}')
                for i in range(2):
                    m = m0 + i; Sx, Ox = blk_regs(i); P = Sx + 12
                    a.e(f'v_mfma_f32_16x16x32_bf16 v[{Ox+8}:{Ox+11}], v[{ONES}:{ONES+3}], v[{P}:{P+3}], 0')
                    a.e(f'v_mfma_f32_16x16x32_bf16 v[{Ox}:{Ox+3}], v[{PV0+2*m}:{PV0+2*m+3}], v[{P}:{P+3}], 0')
                    a.e(f'v_mfma_f32_16x16x32_bf16 v[{Ox+4}:{Ox+7}], v[{PV1+2*m}:{PV1+2*m+3}], v[{P}:{P+3}], 0')
                for i in range(2):
                    Sx, Ox = blk_regs(i)
                    a.e(f'v_rcp_f32 v{Ox+8}, v{Ox+8}')
                for i in range(2):
                    m = m0 + i; Sx, Ox = blk_regs(i)
                    for r in range(8): a.e(f'v_mul_f32 v{Ox+r}, v{Ox+r}, v{Ox+8}')
                    q = acc[('q0', m)][1]
                    for r in range(4): a.e(f'v_cvt_pk_bf16_f32 v{q+r}, v{Ox+2*r}, v{Ox+2*r+1}')
                    ostore(q, m, 's66')
            st.at(4)
        if st.on: a.e('s_waitcnt vmcnt(0)')
        st.at(5)
        st.flush(6, 7, sWAVE, vT, vT+1, 92)
        if wn == 0: a.e('s_endpgm')
    a.label('L1_end')
    a.e('s_endpgm')
    return name, (256, 256, L1_TOTAL), kdesc(name, 512, 256)

def gen_k2(a, cfg):
    name = 'gemm2_kernel'
    khead(a, name)
    st = Stamper(a, cfg.stamps, 70, 2)
    N0 = cfg.k2_n0
    S_A = 8; S_W = 12; S_P = 16; S_X = 20; S_OUT = 24; S_F = 28
    sACT = 32; sWO = 33; sM_A = 34; sM_W = 35; sU = 36; sEND = 37; sWAVE = 38; sPART = 39; sRB = 40; sCB = 41; sLOADU = 42; sTILE = 43
    vLANE = 1; vDA = 2; vDW = 3; vA = 7; vW = 8; vT = 12; vXO = 20
    XR = 24
    ACC = 64
    FR = 128
    a.e('s_cmp_ge_u32 s2, 256'); a.e('s_cbranch_scc1 L2_end')
    st.at(0)
    a.e('s_load_dwordx2 s[4:5], s[0:1], 0')
    a.e('s_load_dwordx2 s[6:7], s[0:1], 72')
    a.e('s_load_dwordx2 s[44:45], s[0:1], 16')
    a.e('s_load_dwordx4 s[48:51], s[0:1], 48')
    a.e(f'v_lshrrev_b32 v{vT}, 6, v0')
    a.e(f'v_and_b32 v{vLANE}, 63, v0')
    a.e(f'v_readfirstlane_b32 s{sWAVE}, v{vT}')
    a.e('s_and_b32 s3, s2, 7'); a.e(f's_lshr_b32 s{sPART}, s3, 2'); a.e('s_and_b32 s3, s3, 3'); a.e('s_lshl_b32 s3, s3, 2')
    a.e('s_lshr_b32 s52, s2, 3'); a.e(f's_and_b32 s{sCB}, s52, 7'); a.e('s_lshr_b32 s52, s52, 3'); a.e(f's_add_u32 s{sRB}, s3, s52')
    a.e(f's_lshl_b32 s{sTILE}, s{sRB}, 3'); a.e(f's_add_u32 s{sTILE}, s{sTILE}, s{sCB}')
    a.e(f's_cmp_eq_u32 s{sPART}, 0')
    a.e(f's_cselect_b32 s{sU}, 0, {N0}'); a.e(f's_cselect_b32 s{sEND}, {N0}, 72')
    a.e(f's_mov_b32 s{sLOADU}, s{sU}')
    a.e(f's_lshr_b32 s52, s{sWAVE}, 1'); a.e('s_lshl_b32 s52, s52, 17')
    a.e(f's_and_b32 s53, s{sWAVE}, 1'); a.e('s_lshl_b32 s54, s53, 12'); a.e('s_add_u32 s52, s52, s54')
    a.e(f's_lshl_b32 s54, s{sRB}, 13'); a.e('s_add_u32 s52, s52, s54')
    a.e(f'v_lshl_add_u32 v{vDA}, v{vLANE}, 4, s52')
    a.e(f's_lshl_b32 s{sACT}, s{sU}, 18')
    a.e(f's_lshl_b32 s{sM_A}, s{sWAVE}, 12'); a.e(f's_add_u32 s{sM_W}, s{sM_A}, 65536')
    a.e(f'v_lshrrev_b32 v{vT}, 4, v{vLANE}'); a.e(f'v_and_b32 v{vT+1}, 15, v{vLANE}')
    a.e(f's_lshl_b32 s52, s{sWAVE}, 15'); a.e(f's_lshl_b32 s54, s{sCB}, 8'); a.e('s_add_u32 s52, s52, s54')
    for d in range(4):
        a.e(f'v_lshlrev_b32 v{vT+2}, 1, v{vT}')
        if d & 1: a.e(f'v_add_u32 v{vT+2}, 8, v{vT+2}')
        a.e(f'v_xor_b32 v{vT+2}, v{vT+2}, v{vT+1}')
        a.e(f'v_lshlrev_b32 v{vT+2}, 4, v{vT+2}')
        a.e(f'v_lshl_add_u32 v{vT+2}, v{vT}, 11, v{vT+2}')
        a.e(f'v_add_u32 v{vT+2}, {d*8192}, v{vT+2}')
        a.e(f'v_add_u32 v{vDW+d}, s52, v{vT+2}')
    a.e('s_waitcnt lgkmcnt(0)')
    srd(a, S_A, 6, 7, ACT2_BYTES, ACT2_OFF)
    assert N0 >= 16
    a.e(f's_cmp_eq_u32 s{sPART}, 0')
    a.e(f's_cselect_b32 s{S_W}, s44, s48'); a.e(f's_cselect_b32 s{S_W+1}, s45, s49')
    a.e(f's_mov_b32 s55, {1024*1024*2}'); a.e(f's_mov_b32 s56, {3584*1024*2}')
    a.e(f's_cselect_b32 s{S_W+2}, s55, s56'); a.e(f's_mov_b32 s{S_W+3}, 0x20000')
    a.e(f's_cselect_b32 s{sWO}, 0, {(N0-16)*131072}')
    def dma_list(slot):
        L = []
        for d in range(4):
            L.append(([f's_add_u32 m0, s{sM_W}, {slot*16384 + d*1024}'],
                      f'buffer_load_dwordx4 v{vDW+d}, s[{S_W}:{S_W+3}], s{sWO} offen lds', []))
        for d in range(4):
            L.append(([f's_add_u32 m0, s{sM_A}, {slot*16384}'] if d == 0 else [],
                      f'buffer_load_dwordx4 v{vDA}, s[{S_A}:{S_A+3}], s{sACT} offen offset:{d*1024} lds', []))
        post = [f's_add_u32 s{sACT}, s{sACT}, 262144', f's_add_u32 s{sWO}, s{sWO}, 131072', f's_add_u32 s{sLOADU}, s{sLOADU}, 1',
                f's_cmp_eq_u32 s{sLOADU}, 16',
                f's_cselect_b32 s{S_W}, s48, s{S_W}', f's_cselect_b32 s{S_W+1}, s49, s{S_W+1}', f's_cselect_b32 s{S_W+2}, s56, s{S_W+2}',
                f's_cselect_b32 s{sWO}, 0, s{sWO}',
                f's_cmp_ge_u32 s{sLOADU}, s{sEND}',
                f's_cselect_b32 s{S_W+2}, 0, s{S_W+2}', f's_cselect_b32 s{S_A+2}, 0, s{S_A+2}']
        L[-1] = (L[-1][0], L[-1][1], post)
        return L
    for s in range(4):
        for pre, ins, post in dma_list(s):
            for x in pre: a.e(x)
            a.e(ins)
            for x in post: a.e(x)
    st.at(1)
    srd(a, S_X, 4, 5, 2048*1024*2); srd(a, S_OUT, 50, 51, 2048*1024*2)
    srd(a, S_P, 6, 7, PART_BYTES, PART_OFF); srd(a, S_F, 6, 7, FLAG_BYTES, FLAG_OFF)
    a.e(f's_lshr_b32 s57, s{sWAVE}, 1'); a.e(f's_and_b32 s58, s{sWAVE}, 1')
    a.e(f's_lshl_b32 s52, s{sRB}, 18'); a.e('s_lshl_b32 s53, s57, 17'); a.e('s_add_u32 s52, s52, s53')
    a.e(f's_lshl_b32 s53, s{sCB}, 8'); a.e('s_add_u32 s52, s52, s53'); a.e('s_lshl_b32 s53, s58, 7'); a.e('s_add_u32 s52, s52, s53')
    a.e(f'v_and_b32 v{vT+1}, 15, v{vLANE}'); a.e(f'v_lshlrev_b32 v{vT+1}, 11, v{vT+1}'); a.e(f'v_add_u32 v{vT+1}, s52, v{vT+1}')
    a.e(f'v_lshrrev_b32 v{vT}, 4, v{vLANE}')
    a.e(f'v_lshl_add_u32 v{vXO}, v{vT}, 3, v{vT+1}')
    a.e(f'v_and_b32 v{vT+2}, 1, v{vT}'); a.e(f'v_lshl_add_u32 v{vT+1}, v{vT+2}, 5, v{vT+1}')
    a.e(f'v_lshrrev_b32 v{vT+2}, 1, v{vT}'); a.e(f'v_lshl_add_u32 v{vXO+1}, v{vT+2}, 4, v{vT+1}')
    for m in range(4): a.e(f's_mov_b32 s{60+m}, {m*32768}')
    a.e('s_lshl_b32 s52, s57, 12')
    a.e(f'v_lshl_add_u32 v{vA}, v{vLANE}, 4, s52')
    a.e(f'v_lshrrev_b32 v{vT}, 2, v{vLANE}')
    a.e(f'v_and_b32 v{vT+1}, 7, v{vT}'); a.e(f'v_lshlrev_b32 v{vT+1}, 5, v{vT+1}')
    a.e(f'v_and_b32 v{vT+2}, 3, v{vLANE}'); a.e(f'v_lshlrev_b32 v{vT+2}, 3, v{vT+2}')
    a.e(f'v_lshl_add_u32 v{vT+2}, v{vT}, 8, v{vT+2}'); a.e(f'v_add_u32 v{vT+2}, 65536, v{vT+2}')
    a.e('s_lshl_b32 s52, s58, 7')
    for n in range(4):
        a.e(f's_add_u32 s53, s52, {32*n}')
        a.e(f'v_xor_b32 v{vT+3}, s53, v{vT+1}')
        a.e(f'v_add_u32 v{vW+n}, v{vT+3}, v{vT+2}')
    for i in range(64): a.e(f'v_mov_b32 v{ACC+i}, 0')
    def areg(par, ks, m): return FR + par*64 + ks*16 + m*4
    def wreg(par, ks, n): return FR + par*64 + 32 + ks*16 + n*4
    def reads(slot, par):
        L = []
        def ar_(ks, m): return [f'ds_read_b128 v[{areg(par,ks,m)}:{areg(par,ks,m)+3}], v{vA} offset:{slot*16384 + ks*8192 + m*1024}']
        def wr_(ks, n): return [f'ds_read_b64_tr_b16 v[{wreg(par,ks,n)+2*h}:{wreg(par,ks,n)+2*h+1}], v{vW+n} offset:{slot*16384 + ks*8192 + h*4096}' for h in range(2)]
        L += wr_(0, 0) + ar_(0, 0) + wr_(1, 0) + ar_(1, 0)
        for m in range(1, 4): L += ar_(0, m) + ar_(1, m)
        for n in range(1, 4): L += wr_(0, n) + wr_(1, n)
        return L
    tr = LgkmTracker(a)
    a.e('s_waitcnt vmcnt(24)'); a.e('s_barrier')
    st.at(2)
    if st.on: a.e('s_waitcnt lgkmcnt(0)')
    for r in reads(0, 0): tr.read(r)
    a.label('L2_loop')
    for u in range(4):
        slot = u; par = u & 1
        a.e('s_waitcnt vmcnt(16) lgkmcnt(0)'); tr.drain(); a.e('s_barrier')
        rl = reads((slot+1) % 4, par ^ 1)
        dl = dma_list(slot)
        sched = {}
        for i, r in enumerate(rl): sched.setdefault(i, []).append(('r', r))
        for i, (pre, ins, post) in enumerate(dl):
            p = 2 + 3*i
            for x in pre: sched.setdefault(p-1, []).append(('x', x))
            sched.setdefault(p, []).append(('x', ins))
            for k, x in enumerate(post): sched.setdefault(24 + k//2, []).append(('x', x))
        sched.setdefault(30, []).append(('x', f's_add_u32 s{sU}, s{sU}, 1'))
        sched.setdefault(31, []).append(('x', f's_cmp_ge_u32 s{sU}, s{sEND}'))
        i = 0
        for n in range(4):
            for m in range(4):
                for ks in range(2):
                    d = ACC + (n*4+m)*4
                    a.e(f'v_mfma_f32_16x16x32_bf16 v[{d}:{d+3}], v[{wreg(par,ks,n)}:{wreg(par,ks,n)+3}], v[{areg(par,ks,m)}:{areg(par,ks,m)+3}], v[{d}:{d+3}]')
                    for kind, x in sched.get(i, []):
                        if kind == 'r': tr.read(x)
                        else: a.e(x)
                    i += 1
        if u < 3: a.e('s_cbranch_scc1 L2_done')
        else: a.e('s_cbranch_scc0 L2_loop')
    a.label('L2_done')
    st.at(3)
    a.e('s_waitcnt lgkmcnt(0)')
    a.e(f's_lshl_b32 s52, s{sTILE}, 16'); a.e(f's_lshl_b32 s53, s{sWAVE}, 14'); a.e('s_add_u32 s52, s52, s53')
    a.e(f'v_lshl_add_u32 v{vT}, v{vLANE}, 4, s52')
    a.e(f's_lshl_b32 s53, s{sTILE}, 7'); a.e(f'v_mov_b32 v{vT+1}, s53')
    for k in range(1, 4): a.e(f's_mov_b32 s{64+k}, {k*4096}')
    so = ['0', 's65', 's66', 's67']
    a.e(f's_cmp_eq_u32 s{sPART}, 1'); a.e('s_cbranch_scc1 L2_final')
    for t in range(16):
        a.e(f'buffer_store_dwordx4 v[{ACC+4*t}:{ACC+4*t+3}], v{vT}, s[{S_P}:{S_P+3}], {so[t>>2]} offen offset:{(t&3)*1024} sc1')
    a.e('s_waitcnt vmcnt(0)'); a.e('s_barrier')
    a.e(f's_cmp_lg_u32 s{sWAVE}, 0'); a.e('s_cbranch_scc1 L2_p0done')
    a.e(f'v_mov_b32 v{vT+2}, 1')
    a.e('s_mov_b64 exec, 1')
    a.e(f'buffer_store_dword v{vT+2}, v{vT+1}, s[{S_F}:{S_F+3}], 0 offen sc1')
    a.e('s_mov_b64 exec, -1')
    a.label('L2_p0done')
    st.at(4); st.at(5)
    st.flush(6, 7, sWAVE, vT, vT+1, 92)
    a.e('s_endpgm')
    a.label('L2_final')
    for m in range(4):
        for n in range(4):
            r = XR + (n*4+m)*2
            a.e(f'buffer_load_dwordx2 v[{r}:{r+1}], v{vXO}, s[{S_X}:{S_X+3}], s{60+m} offen offset:{n*32}')
    a.e(f's_cmp_lg_u32 s{sWAVE}, 0'); a.e('s_cbranch_scc1 L2_polled')
    a.e('s_mov_b32 s54, 0')
    a.label('L2_poll')
    a.e('s_add_u32 s54, s54, 1'); a.e('s_cmp_gt_u32 s54, 0x40000'); a.e('s_cbranch_scc1 L2_polled')
    a.e(f'buffer_load_dword v{vT+2}, v{vT+1}, s[{S_F}:{S_F+3}], 0 offen sc1')
    a.e('s_waitcnt vmcnt(0)')
    a.e(f'v_readfirstlane_b32 s53, v{vT+2}')
    a.e('s_cmp_eq_u32 s53, 1'); a.e('s_cbranch_scc1 L2_polled')
    a.e('s_sleep 1'); a.e('s_branch L2_poll')
    a.label('L2_polled')
    a.e('s_barrier')
    st.at(4)
    for t in range(16):
        a.e(f'buffer_load_dwordx4 v[{FR+4*t}:{FR+4*t+3}], v{vT}, s[{S_P}:{S_P+3}], {so[t>>2]} offen offset:{(t&3)*1024} sc1')
    a.e('s_mov_b32 s53, 0xffff0000')
    for m in range(4):
        for np_ in range(2):
            for n in (2*np_, 2*np_+1):
                t = n*4 + m
                a.e(f's_waitcnt vmcnt({15 - t})') if False else None
    a.e('s_waitcnt vmcnt(0)')
    for np_ in range(2):
        for m in range(4):
            o = FR + 64 + (np_*4+m)*4
            for k, n in enumerate((2*np_, 2*np_+1)):
                t = n*4 + m; c = ACC + 4*t; p = FR + 4*t; x = XR + 2*t
                a.e(f'v_pk_add_f32 v[{c}:{c+1}], v[{c}:{c+1}], v[{p}:{p+1}]')
                a.e(f'v_pk_add_f32 v[{c+2}:{c+3}], v[{c+2}:{c+3}], v[{p+2}:{p+3}]')
                a.e(f'v_lshlrev_b32 v{p}, 16, v{x}'); a.e(f'v_and_b32 v{p+1}, s53, v{x}')
                a.e(f'v_lshlrev_b32 v{p+2}, 16, v{x+1}'); a.e(f'v_and_b32 v{p+3}, s53, v{x+1}')
                a.e(f'v_pk_add_f32 v[{c}:{c+1}], v[{c}:{c+1}], v[{p}:{p+1}]')
                a.e(f'v_pk_add_f32 v[{c+2}:{c+3}], v[{c+2}:{c+3}], v[{p+2}:{p+3}]')
                a.e(f'v_cvt_pk_bf16_f32 v{o+2*k}, v{c}, v{c+1}'); a.e(f'v_cvt_pk_bf16_f32 v{o+2*k+1}, v{c+2}, v{c+3}')
            a.e(f'v_permlane16_swap_b32 v{o}, v{o+2}'); a.e(f'v_permlane16_swap_b32 v{o+1}, v{o+3}')
            a.e(f'buffer_store_dwordx4 v[{o}:{o+3}], v{vXO+1}, s[{S_OUT}:{S_OUT+3}], s{60+m} offen offset:{np_*64}')
    if st.on: a.e('s_waitcnt vmcnt(0)')
    st.at(5)
    st.flush(6, 7, sWAVE, vT, vT+1, 92)
    a.label('L2_end')
    a.e('s_endpgm')
    return name, (256, 256, 131072), kdesc(name, 256, 256)

def build(cfg):
    a = Asm()
    a.e('.amdgcn_target "amdgcn-amd-amdhsa--gfx950"'); a.e('.text')
    ks = [gen_k0(a, cfg), gen_k1(a, cfg), gen_k2(a, cfg)]
    a.fix()
    head = open('cdna_kernels/' + NAME + '.s.ref').read().split('\n')
    hdr = [l for l in head[:13] if l.startswith(';') and '@launch' not in l and 'Override' not in l and 'grid=ceil' not in l]
    out = '\n'.join(hdr) + '\n'
    for nm, (g, b, lds), _ in ks:
        out += f'; @launch kernel={nm} grid=({g},1,1) block=({b},1,1) lds={lds}\n'
    out += a.text()
    out += '.section .rodata,"a"\n'
    for _, _, kd in ks: out += kd
    return out

if __name__ == '__main__':
    cfg = Cfg()
    outp = sys.argv[1] if len(sys.argv) > 1 else 'cdna_kernels/' + NAME + '.s'
    for kv in sys.argv[2:]:
        k, v = kv.split('='); setattr(cfg, k, int(v))
    open(outp, 'w').write(build(cfg))
    print('wrote', outp)
```

```python
import sys
sys.path.insert(0, 'dev')
from asmlib import *

NAME = 'parallel_sum__sliding_local_dilated__glu_gated_bilinear__prompt'
XN_OFF = 0
XN_BYTES = 32*128*1024
ACT2_OFF = 4 << 20
ACT2_BYTES = 144*128*1024
PART_OFF = 24 << 20
PART_BYTES = 128*65536
FLAG_OFF = 32 << 20
FLAG_BYTES = 1024*128
STAMP_OFF = 40 << 20

class Cfg:
    stamps = False
    k2_n0 = 32
    pf = 1
    k2_noadv = 0
    k1_stm = 8
    pfa = 0
    k1_v2 = 1
    k2_ra = 0
    k2_rb = 0
    k2_rc = 0
    k2_rm = 31
    k2_ns = 5
    k2_dbg = 0
    k1_wb = 0
    k1_st = 3
    k0_st = 0
    cpf = 1
    pf0 = 6
    k2_nox = 0
    k2_swap = 0
    k2_pf = 0
    k2_pfd = 6
    k2_early = 0
    k2_rd0 = 0
    k2_dstep = 6
    pfd = 8
    def __init__(self, **kw):
        for k, v in kw.items(): setattr(self, k, v)

def srd(a, d, lo, hi, nbytes, off=0):
    if off:
        a.e(f's_add_u32 s{d}, s{lo}, {off}')
        a.e(f's_addc_u32 s{d+1}, s{hi}, 0')
    else:
        a.e(f's_mov_b32 s{d}, s{lo}')
        a.e(f's_mov_b32 s{d+1}, s{hi}')
    a.e(f's_mov_b32 s{d+2}, {nbytes}')
    a.e(f's_mov_b32 s{d+3}, 0x20000')

def kdesc(name, nvgpr, accum, nsgpr=102):
    return f'''.p2align 6
.amdhsa_kernel {name}
  .amdhsa_next_free_vgpr {nvgpr}
  .amdhsa_next_free_sgpr {nsgpr}
  .amdhsa_accum_offset {accum}
  .amdhsa_group_segment_fixed_size 0
  .amdhsa_kernarg_size 80
  .amdhsa_user_sgpr_count 2
  .amdhsa_user_sgpr_kernarg_segment_ptr 1
  .amdhsa_system_sgpr_workgroup_id_x 1
.end_amdhsa_kernel
'''

def code_pf(a, start, end, vlane, vtmp, vdum, spc, nins):
    a.e(f's_getpc_b64 s[{spc}:{spc+1}]')
    lab = f'Lpc_{start}'
    a.label(lab)
    a.e(f's_add_u32 s{spc}, s{spc}, {start}-{lab}')
    a.e(f's_addc_u32 s{spc+1}, s{spc+1}, 0' if False else f's_addc_u32 s{spc+1}, s{spc+1}, ({start}-{lab})>>63')
    for i in range(nins):
        a.e(f'v_lshlrev_b32 v{vtmp}, 7, v{vlane}')
        if i: a.e(f'v_add_u32 v{vtmp}, {i*8192}, v{vtmp}')
        a.e(f'v_min_u32 v{vtmp}, {end}-{start}-4, v{vtmp}')
        a.e(f'global_load_dword v{vdum}, v{vtmp}, s[{spc}:{spc+1}]')

def khead(a, name):
    a.e(f'.globl {name}'); a.e('.p2align 8'); a.e(f'.type {name},@function'); a.label(name)

class Stamper:
    def __init__(self, a, on, base, kid):
        self.a = a; self.on = on; self.base = base; self.n = 0; self.kid = kid; self.cbase = 98 if False else base + 12
    def at(self, i):
        if not self.on: return
        self.a.e(f's_memrealtime s[{self.base+2*i}:{self.base+2*i+1}]')
        if i in (2, 3):
            self.a.e(f's_memtime s[{98+2*(i-2)}:{99+2*(i-2)}]') if False else None
            j = 6 + (i-2)
            self.a.e(f's_memtime s[{self.cbase+2*(i-2)}:{self.cbase+2*(i-2)+1}]')
        self.n = max(self.n, i+1)
    def flush(self, ws_lo, ws_hi, wave_sreg, vt0, vt1, stmp, n=None):
        if not self.on: return
        a = self.a
        n = n or self.n
        a.e('s_waitcnt lgkmcnt(0)')
        srd(a, stmp, ws_lo, ws_hi, 1 << 20, STAMP_OFF + self.kid*(256*4*64))
        a.e(f's_lshl_b32 s{stmp+4}, s2, 8')
        a.e(f's_lshl_b32 s{stmp+5}, s{wave_sreg}, 6')
        a.e(f's_add_u32 s{stmp+4}, s{stmp+4}, s{stmp+5}')
        a.e(f'v_mov_b32 v{vt0}, s{stmp+4}')
        a.e('s_mov_b64 exec, 1')
        for i in range(8):
            a.e(f'v_mov_b32 v{vt1}, s{self.base+2*i}')
            a.e(f'buffer_store_dword v{vt1}, v{vt0}, s[{stmp}:{stmp+3}], 0 offen offset:{4*i}')
        a.e('s_mov_b64 exec, -1')

def gen_k0(a, cfg):
    name = 'ln_kernel'
    khead(a, name)
    st = Stamper(a, cfg.stamps, 70, 0)
    a.e('s_cmp_ge_u32 s2, 256'); a.e('s_cbranch_scc1 L0_end')
    st.at(0)
    a.e('s_load_dwordx2 s[4:5], s[0:1], 0')
    a.e('s_load_dwordx2 s[6:7], s[0:1], 72')
    if cfg.pf:
        a.e('s_load_dwordx2 s[28:29], s[0:1], 8')
        a.e('s_load_dwordx4 s[32:35], s[0:1], 32')
    a.e('v_lshrrev_b32 v2, 6, v0')
    a.e('v_bfe_u32 v3, v0, 3, 3')
    a.e('v_and_b32 v4, 7, v0')
    a.e('v_readfirstlane_b32 s36, v2')
    a.e('s_lshl_b32 s3, s2, 14')
    a.e('v_lshl_add_u32 v5, v3, 11, s3')
    a.e('v_lshl_add_u32 v5, v2, 8, v5')
    a.e('v_lshl_add_u32 v5, v4, 4, v5')
    a.e('s_mov_b32 s10, 0x400000'); a.e('s_mov_b32 s11, 0x20000')
    a.e('s_waitcnt lgkmcnt(0)')
    st.at(1)
    a.e('s_mov_b32 s8, s4'); a.e('s_mov_b32 s9, s5')
    for it in range(2):
        a.e(f'buffer_load_dwordx4 v[{16+4*it}:{19+4*it}], v5, s[8:11], 0 offen offset:{it*128}')
    nafter = 0
    if cfg.pf:
        a.e('s_cmp_gt_u32 s36, 2'); a.e('s_cbranch_scc1 L0_pfd')
        a.e('s_and_b32 s37, s2, 7'); a.e('s_lshr_b32 s38, s2, 3')
        a.e(f'v_min_u32 v12, {cfg.pf0-1}, v3')
        a.e('s_cmp_eq_u32 s36, 0'); a.e('s_cbranch_scc1 L0_pfq')
        a.e('s_cmp_eq_u32 s36, 1')
        a.e('s_cselect_b32 s40, s32, s34'); a.e('s_cselect_b32 s41, s33, s35'); a.e(f's_mov_b32 s42, {1024*3584*2}'); a.e('s_mov_b32 s43, 0x20000')
        a.e(f's_mul_i32 s39, s38, {7168*cfg.pf0}'); a.e('s_mul_i32 s37, s37, 896'); a.e('s_add_u32 s39, s39, s37')
        a.e('v_mul_u32_u24 v10, 7168, v12'); a.e('v_min_u32 v11, 6, v4'); a.e('v_lshl_add_u32 v10, v11, 7, v10')
        a.e('buffer_load_dword v14, v10, s[40:43], s39 offen')
        a.e('s_branch L0_pfd')
        a.label('L0_pfq')
        srd(a, 40, 28, 29, 1024*3072*2)
        a.e(f's_mul_i32 s39, s38, {6144*cfg.pf0}'); a.e('s_lshl_b32 s37, s37, 8'); a.e('s_add_u32 s39, s39, s37')
        a.e('v_mul_u32_u24 v10, 6144, v12'); a.e('v_min_u32 v11, 5, v4')
        a.e('v_lshrrev_b32 v13, 1, v11'); a.e('v_lshl_add_u32 v10, v13, 11, v10')
        a.e('v_and_b32 v13, 1, v11'); a.e('v_lshl_add_u32 v10, v13, 7, v10')
        a.e('buffer_load_dword v14, v10, s[40:43], s39 offen')
        a.label('L0_pfd')
    a.e('s_cmp_gt_u32 s2, 7'); a.e('s_cbranch_scc1 L0_noflag')
    a.e('s_cmp_lt_u32 s36, 6'); a.e('s_cbranch_scc1 L0_noflag')
    srd(a, 20, 6, 7, FLAG_BYTES, FLAG_OFF)
    a.e('s_lshl_b32 s19, s2, 14')
    a.e('v_subrev_u32 v10, 384, v0'); a.e('v_lshlrev_b32 v10, 7, v10'); a.e('v_mov_b32 v11, 0')
    a.e('buffer_store_dword v11, v10, s[20:23], s19 offen')
    a.label('L0_noflag')
    srd(a, 12, 6, 7, XN_BYTES, XN_OFF)
    a.e('v_lshrrev_b32 v6, 2, v4')
    a.e('v_lshl_add_u32 v6, v2, 2, v6')
    a.e('v_lshlrev_b32 v6, 17, v6')
    a.e('v_and_b32 v7, 3, v4')
    a.e('v_lshl_add_u32 v6, v7, 8, v6')
    a.e('v_lshl_add_u32 v6, v3, 4, v6')
    a.e('s_lshr_b32 s16, s2, 1'); a.e('s_lshl_b32 s16, s16, 10')
    a.e('s_and_b32 s17, s2, 1'); a.e('s_lshl_b32 s17, s17, 7'); a.e('s_add_u32 s16, s16, s17')
    a.e('v_add_u32 v6, s16, v6')
    a.e('v_lshlrev_b32 v8, 6, v3')
    a.e('v_lshl_add_u32 v9, v2, 3, v8')
    a.e('s_mov_b32 s24, 0xffff0000'); a.e('s_mov_b32 s25, 262144')
    a.e('v_mov_b32 v60, 0x43000000')
    a.e('v_mov_b32 v61, 0x3727c5ac')
    a.e('v_mov_b32 v62, 0x3a800000')
    a.e('s_cmp_gt_u32 s36, 2'); a.e('s_cbranch_scc1 L0_w0')
    a.e('s_waitcnt vmcnt(1)' if cfg.pf else 's_waitcnt vmcnt(0)'); a.e('s_branch L0_w2')
    a.label('L0_w0')
    a.e('s_waitcnt vmcnt(0)')
    a.label('L0_w2')
    st.at(2)
    X = 24
    for i in range(8):
        a.e(f'v_lshlrev_b32 v{X+2*i}, 16, v{16+i}')
        a.e(f'v_and_b32 v{X+2*i+1}, s24, v{16+i}')
    T = 40
    def P(r): return f'v[{r}:{r+1}]'
    def red8(r):
        a.e(f'v_add_f32_dpp v{r}, v{r}, v{r} quad_perm:[1,0,3,2] row_mask:0xf bank_mask:0xf')
        a.e(f'v_add_f32_dpp v{r}, v{r}, v{r} quad_perm:[2,3,0,1] row_mask:0xf bank_mask:0xf')
        a.e(f'v_add_f32_dpp v{r}, v{r}, v{r} row_half_mirror row_mask:0xf bank_mask:0xf')
    for i in range(4): a.e(f'v_pk_add_f32 {P(T+2*i)}, {P(X+4*i)}, {P(X+4*i+2)}')
    a.e(f'v_pk_add_f32 {P(T)}, {P(T)}, {P(T+2)}'); a.e(f'v_pk_add_f32 {P(T+4)}, {P(T+4)}, {P(T+6)}')
    a.e(f'v_pk_add_f32 {P(T)}, {P(T)}, {P(T+4)}')
    a.e(f'v_add_f32 v{T}, v{T}, v{T+1}')
    red8(T)
    a.e(f'v_mul_f32 v12, 0xbc000000, v{T}')
    a.e('v_mov_b32 v13, v12')
    for i in range(8): a.e(f'v_pk_add_f32 {P(X+2*i)}, {P(X+2*i)}, v[12:13]')
    for i in range(4): a.e(f'v_pk_mul_f32 {P(T+2*i)}, {P(X+4*i)}, {P(X+4*i)}')
    for i in range(4): a.e(f'v_pk_fma_f32 {P(T+2*i)}, {P(X+4*i+2)}, {P(X+4*i+2)}, {P(T+2*i)}')
    a.e(f'v_pk_add_f32 {P(T)}, {P(T)}, {P(T+2)}'); a.e(f'v_pk_add_f32 {P(T+4)}, {P(T+4)}, {P(T+6)}')
    a.e(f'v_pk_add_f32 {P(T)}, {P(T)}, {P(T+4)}')
    a.e(f'v_add_f32 v13, v{T}, v{T+1}')
    red8(13)
    a.e('ds_write_b64 v9, v[12:13]')
    a.e('s_waitcnt lgkmcnt(0)'); a.e('s_barrier')
    for i in range(4): a.e(f'ds_read_b128 v[{44+4*i}:{47+4*i}], v8 offset:{16*i}')
    a.e('s_waitcnt lgkmcnt(0)')
    a.e(f'v_pk_add_f32 {P(T)}, v[44:45], v[46:47]'); a.e(f'v_pk_add_f32 {P(T+2)}, v[48:49], v[50:51]')
    a.e(f'v_pk_add_f32 {P(16)}, v[52:53], v[54:55]'); a.e(f'v_pk_add_f32 {P(18)}, v[56:57], v[58:59]')
    a.e(f'v_pk_add_f32 {P(T)}, {P(T)}, {P(T+2)}'); a.e(f'v_pk_add_f32 {P(16)}, {P(16)}, {P(18)}')
    a.e(f'v_pk_add_f32 {P(T)}, {P(T)}, {P(16)}')
    a.e(f'v_mul_f32 v{T}, 0x3e000000, v{T}')
    for r in range(44, 60, 2): a.e(f'v_sub_f32 v{r}, v{r}, v{T}')
    a.e('v_mul_f32 v16, v44, v44'); a.e('v_mul_f32 v17, v46, v46')
    for r in range(48, 60, 2): a.e(f'v_fmac_f32 v{16 + (r//2) % 2}, v{r}, v{r}')
    a.e('v_add_f32 v16, v16, v17')
    a.e(f'v_fmac_f32 v{T+1}, v16, v60')
    a.e(f'v_fmac_f32 v61, v{T+1}, v62')
    a.e('v_rsq_f32 v60, v61')
    a.e(f'v_sub_f32 v62, v{T}, v12')
    a.e('v_mov_b32 v61, v60')
    a.e('v_mul_f32 v62, v62, v60')
    a.e('v_mov_b32 v63, v62')
    for i in range(8): a.e(f'v_pk_fma_f32 {P(X+2*i)}, {P(X+2*i)}, v[60:61], v[62:63]')
    for i in range(8): a.e(f'v_cvt_pk_bf16_f32 v{16+i}, v{X+2*i}, v{X+2*i+1}')
    st.at(3)
    a.e('buffer_store_dwordx4 v[16:19], v6, s[12:15], 0 offen' + ['', ' sc1', ' nt', ' sc0 sc1', ' sc1 nt'][cfg.k0_st])
    a.e('buffer_store_dwordx4 v[20:23], v6, s[12:15], s25 offen' + ['', ' sc1', ' nt', ' sc0 sc1', ' sc1 nt'][cfg.k0_st])
    st.at(4)
    if st.on:
        a.e('s_waitcnt vmcnt(0)'); a.e('s_and_b32 s36, s36, 3')
    st.at(5)
    st.flush(6, 7, 36, 10, 11, 92)
    a.label('L0_end')
    a.e('s_endpgm')
    return name, (256, 512, 512), kdesc(name, 64, 64, 102 if cfg.stamps else 48)

class LgkmTracker:
    def __init__(self, a):
        self.a = a
        self.q = []
    def read(self, text):
        ins = Ins(text)
        self.a.e(text)
        self.q.append(set(ins.dst))
    def other(self):
        self.q.append(set())
    def need(self, regs):
        regs = set(regs)
        last = -1
        for i, d in enumerate(self.q):
            if d & regs: last = i
        if last < 0: return
        n = len(self.q) - 1 - last
        n = min(n, 15)
        self.a.e(f's_waitcnt lgkmcnt({n})')
        self.q = self.q[len(self.q) - n:] if n else []
    def drain(self):
        self.q = []
    def state(self):
        return [tuple(sorted(x)) for x in self.q]

L1_ACT = 0; L1_W = 65536; L1_HALO = 147456; L1_TOTAL = 151552
def gen_k1(a, cfg):
    name = NAME + '_kernel'
    khead(a, name)
    st = Stamper(a, cfg.stamps, 70, 1)
    S_XN = 8; S_W = 12; S_O = 32
    sACT = 36; sWO = 37; sWS = 42; sM_ACT = 47; sM_W = 48; sM_H = 49; sCNT = 50; sWAVE = 51; sWM = 52; sRB = 54; sJ = 55
    vLANE = 1; vDA = 2; vDH = 3; vDW = 4
    vA = 9; vHA = 10; vGU = 11; vQa = 13; vQb = 15; vHW = 17
    vT = 20
    a.e('s_cmp_ge_u32 s2, 256'); a.e('s_cbranch_scc1 L1_end')
    st.at(0)
    a.e('s_load_dwordx2 s[4:5], s[0:1], 8')
    a.e('s_load_dwordx4 s[56:59], s[0:1], 32')
    a.e('s_load_dwordx2 s[6:7], s[0:1], 72')
    a.e('s_load_dwordx2 s[68:69], s[0:1], 48')
    S_PF = 88; sPFO = 86; sPFS = 87; vPF = 19; vDUM = 31; aBI = 200
    a.e('s_load_dwordx2 s[92:93], s[0:1], 16')
    a.e(f'v_lshrrev_b32 v{vT}, 6, v0')
    a.e(f'v_and_b32 v{vLANE}, 63, v0')
    a.e(f'v_readfirstlane_b32 s{sWAVE}, v{vT}')
    a.e(f's_and_b32 s{sJ}, s2, 7'); a.e(f's_lshl_b32 s{sJ}, s{sJ}, 2')
    a.e('s_lshr_b32 s3, s2, 3')
    a.e(f's_lshr_b32 s{sRB}, s3, 2'); a.e('s_and_b32 s3, s3, 3'); a.e(f's_add_u32 s{sJ}, s{sJ}, s3')
    a.e(f's_lshr_b32 s{sWM}, s{sWAVE}, 1')
    a.e(f's_lshl_b32 s60, s{sRB}, 14'); a.e(f's_lshl_b32 s61, s{sWAVE}, 12'); a.e('s_add_u32 s61, s61, s60')
    a.e(f'v_lshl_add_u32 v{vDA}, v{vLANE}, 4, s61')
    a.e('s_max_u32 s60, s60, 1024'); a.e('s_sub_u32 s60, s60, 1024')
    a.e(f's_lshl_b32 s61, s{sWAVE}, 8'); a.e('s_add_u32 s61, s61, s60')
    a.e(f'v_lshl_add_u32 v{vDH}, v{vLANE}, 2, s61')
    vPFA = 28
    if cfg.pfa:
        a.e(f's_lshl_b32 s60, s{sRB}, 14'); a.e('s_lshl_b32 s61, s3, 12'); a.e('s_add_u32 s60, s60, s61')
        a.e(f's_lshl_b32 s61, s{sWAVE}, 10'); a.e('s_add_u32 s60, s60, s61'); a.e(f's_add_u32 s60, s60, {cfg.pfa*131072}')
        a.e(f'v_min_u32 v{vPFA}, 7, v{vLANE}'); a.e(f'v_lshl_add_u32 v{vPFA}, v{vPFA}, 7, s60')
    a.e(f's_lshl_b32 s{sM_ACT}, s{sWAVE}, 12')
    a.e(f's_mul_i32 s{sM_W}, s{sWAVE}, 5120'); a.e(f's_add_u32 s{sM_W}, s{sM_W}, {L1_W}')
    a.e(f's_lshl_b32 s{sM_H}, s{sWAVE}, 8'); a.e(f's_add_u32 s{sM_H}, s{sM_H}, {L1_HALO}')
    a.e(f's_mov_b32 s{sACT}, 0')
    for d in range(5): a.e(f's_mov_b32 s{sWO+d}, 0')
    a.e(f's_lshl_b32 s62, s{sJ}, 6')
    a.e(f's_mul_i32 s63, s{sJ}, 224')
    a.e(f's_and_b32 s64, s{sJ}, 1'); a.e('s_lshl_b32 s64, s64, 1')
    a.e('s_movk_i32 s65, 6144'); a.e('s_movk_i32 s66, 7168')
    a.e(f's_cmp_eq_u32 s{sWAVE}, 1'); a.e('s_cbranch_scc1 L1_set1')
    a.e(f's_cmp_eq_u32 s{sWAVE}, 2'); a.e('s_cbranch_scc1 L1_set2')
    a.e(f's_cmp_eq_u32 s{sWAVE}, 3'); a.e('s_cbranch_scc1 L1_set3')
    for w in range(4):
        if w: a.label(f'L1_set{w}')
        kinds = []
        if cfg.cpf and w == 3: code_pf(a, 'L1_setdone', 'L1_end', vLANE, vT, vDUM, 94, 3)
        for d in range(5):
            p = 5*w + d
            if p < 6: kind, pl, C, magic = 'q', p, 12, 5462
            elif p < 13: kind, pl, C, magic = 'g', p-6, 14, 4682
            else: kind, pl, C, magic = 'u', p-13, 14, 4682
            kinds.append(kind)
            t0, t1, t2, t3 = vT, vT+1, vT+2, vT+3
            a.e(f'v_add_u32 v{t0}, {64*pl}, v{vLANE}')
            a.e(f'v_mul_u32_u24 v{t1}, {magic}, v{t0}')
            a.e(f'v_lshrrev_b32 v{t1}, 16, v{t1}')
            a.e(f'v_mul_u32_u24 v{t2}, {C}, v{t1}')
            a.e(f'v_sub_u32 v{t0}, v{t0}, v{t2}')
            if kind == 'q':
                a.e(f'v_lshrrev_b32 v{t2}, 1, v{t1}'); a.e(f'v_and_b32 v{t2}, 2, v{t2}')
                a.e(f'v_xor_b32 v{t0}, v{t0}, v{t2}')
                a.e(f'v_lshrrev_b32 v{t2}, 2, v{t0}'); a.e(f'v_lshlrev_b32 v{t2}, 11, v{t2}')
                a.e(f'v_and_b32 v{t0}, 3, v{t0}')
                a.e(f'v_lshl_add_u32 v{t0}, v{t0}, 4, v{t2}')
                a.e(f'v_add_u32 v{t0}, s62, v{t0}')
            else:
                a.e(f'v_add_u32 v{t0}, s64, v{t0}')
                a.e(f'v_subrev_u32 v{t2}, 14, v{t0}')
                a.e(f'v_min_u32 v{t0}, v{t0}, v{t2}')
                a.e(f'v_lshlrev_b32 v{t0}, 4, v{t0}')
                a.e(f'v_add_u32 v{t0}, s63, v{t0}')
            a.e(f'v_and_b32 v{t2}, 3, v{t1}')
            a.e(f'v_bfe_u32 v{t3}, v{t1}, 2, 2')
            a.e(f'v_lshl_add_u32 v{t2}, v{t3}, 3, v{t2}')
            a.e(f'v_lshrrev_b32 v{t3}, 4, v{t1}')
            a.e(f'v_lshl_add_u32 v{t2}, v{t3}, 2, v{t2}')
            a.e(f'v_mad_u32_u24 v{vDW+d}, v{t2}, s{65 if kind == "q" else 66}, v{t0}')
        if cfg.pf:
            t0, t1, t2 = vT, vT+1, vT+2
            if w < 3:
                a.e(f'v_mul_u32_u24 v{t0}, 21846, v{vLANE}'); a.e(f'v_lshrrev_b32 v{t0}, 16, v{t0}')
                a.e(f'v_mul_u32_u24 v{t1}, 3, v{t0}'); a.e(f'v_sub_u32 v{t1}, v{vLANE}, v{t1}')
                a.e(f's_lshl_b32 s60, s{sRB}, 2'); a.e(f'v_add_u32 v{t0}, s60, v{t0}')
                if w == 0:
                    a.e(f'v_lshlrev_b32 v{t1}, 11, v{t1}'); a.e(f'v_add_u32 v{t1}, s62, v{t1}')
                else:
                    a.e(f'v_lshlrev_b32 v{t1}, 7, v{t1}'); a.e(f'v_min_u32 v{t1}, 220, v{t1}'); a.e(f'v_add_u32 v{t1}, s63, v{t1}')
                a.e(f'v_mad_u32_u24 v{vPF}, v{t0}, s{65 if w == 0 else 66}, v{t1}')
                nl = 12
                step = 32*(6144 if w == 0 else 7168)
                a.e(f's_mov_b32 s{sPFS}, {step}'); a.e(f's_mov_b32 s{sPFO}, {step*(cfg.pfd-3)}')
            else:
                a.e(f'v_lshlrev_b32 v{vPF}, 7, v{vLANE}')
                nl = 7
                a.e(f's_mov_b32 s{sPFS}, 896'); a.e(f's_mul_i32 s{sPFO}, s2, {224*128}')
            a.e(f'v_mov_b32 v{t2}, 0x80000000')
            a.e(f'v_cmp_gt_u32 vcc, {nl}, v{vLANE}')
            a.e(f'v_cndmask_b32 v{vPF}, v{t2}, v{vPF}, vcc')
        if cfg.stamps == 2: st.at(4)
        a.e('s_waitcnt lgkmcnt(0)')
        if cfg.stamps == 2: st.at(5)
        if cfg.pf:
            if w == 0: srd(a, S_PF, 4, 5, 1024*3072*2)
            elif w == 1: srd(a, S_PF, 56, 57, 1024*3584*2)
            elif w == 2: srd(a, S_PF, 58, 59, 1024*3584*2)
            else: srd(a, S_PF, 68, 69, 1024*3584*2)
        for d in range(5):
            kind = kinds[d]
            if kind == 'q': srd(a, S_W+4*d, 4, 5, 1024*3072*2); a.e(f's_mov_b32 s{sWS+d}, {32*6144}')
            elif kind == 'g': srd(a, S_W+4*d, 56, 57, 1024*3584*2); a.e(f's_mov_b32 s{sWS+d}, {32*7168}')
            else: srd(a, S_W+4*d, 58, 59, 1024*3584*2); a.e(f's_mov_b32 s{sWS+d}, {32*7168}')
        if w < 3: a.e('s_branch L1_setdone')
    a.label('L1_setdone')
    srd(a, S_XN, 6, 7, XN_BYTES, XN_OFF)

    def dma_list(slot):
        L = []
        for d in range(5):
            L.append((f's_add_u32 m0, s{sM_W}, {slot*20480 + d*1024}',
                      f'buffer_load_dwordx4 v{vDW+d}, s[{S_W+4*d}:{S_W+4*d+3}], s{sWO+d} offen lds',
                      f's_add_u32 s{sWO+d}, s{sWO+d}, s{sWS+d}'))
        for d in range(4):
            L.append((f's_add_u32 m0, s{sM_ACT}, {slot*16384}' if d == 0 else None,
                      f'buffer_load_dwordx4 v{vDA}, s[{S_XN}:{S_XN+3}], s{sACT} offen offset:{d*1024} lds', None))
        L.append((f's_add_u32 m0, s{sM_H}, {slot*1024}',
                  f'buffer_load_dword v{vDH}, s[{S_XN}:{S_XN+3}], s{sACT} offen lds',
                  f's_add_u32 s{sACT}, s{sACT}, 131072'))
        if cfg.pf:
            L.append((None, f'buffer_load_dword v{vDUM}, v{vPF}, s[{S_PF}:{S_PF+3}], s{sPFO} offen',
                      f's_add_u32 s{sPFO}, s{sPFO}, s{sPFS}'))
        if cfg.pfa:
            L.append((None, f'buffer_load_dword v{vDUM}, v{vPFA}, s[{S_XN}:{S_XN+3}], s{sACT} offen', None))
        return L
    VMW = 23 if cfg.pf else 20
    if cfg.k1_v2: VMW = 10 + 2*(cfg.pf + (1 if cfg.pfa else 0))
    else: assert not cfg.pfa
    for pre, ins, post in dma_list(0):
        if pre: a.e(pre)
        a.e(ins)
        if post: a.e(post)
    if cfg.stamps == 2: st.at(3)
    b = Asm()
    srd(b, S_O, 6, 7, ACT2_BYTES, ACT2_OFF)
    t0, t1, t2 = vT, vT+1, vT+2
    b.e(f's_lshl_b32 s60, s{sWM}, 13')
    b.e(f'v_lshl_add_u32 v{vA}, v{vLANE}, 4, s60')
    b.e(f'v_lshlrev_b32 v{vHA}, 4, v{vLANE}'); b.e(f'v_add_u32 v{vHA}, {L1_HALO}, v{vHA}')
    b.e(f'v_lshrrev_b32 v{t0}, 2, v{vLANE}')
    b.e(f'v_and_b32 v{t1}, 3, v{vLANE}'); b.e(f'v_lshlrev_b32 v{t1}, 3, v{t1}')
    b.e(f'v_add_u32 v{t1}, {L1_W}, v{t1}')
    b.e(f'v_mul_u32_u24 v{t2}, 224, v{t0}'); b.e(f'v_add_u32 v{vGU}, v{t2}, v{t1}')
    b.e(f'v_add_u32 v{vGU+1}, 40960, v{vGU}')
    b.e(f'v_mul_u32_u24 v{t2}, 192, v{t0}'); b.e(f'v_add_u32 v{t2}, v{t2}, v{t1}')
    b.e(f'v_lshlrev_b32 v{t0}, 1, v{vLANE}'); b.e(f'v_and_b32 v{t0}, 32, v{t0}')
    b.e(f'v_add_u32 v{vQa}, v{t2}, v{t0}'); b.e(f'v_sub_u32 v{vQb}, v{t2}, v{t0}')
    b.e(f'v_add_u32 v{vQa+1}, 40960, v{vQa}'); b.e(f'v_add_u32 v{vQb+1}, 40960, v{vQb}')
    b.e(f's_lshl_b32 s60, s{sWAVE}, 5'); b.e('s_add_u32 s60, s60, 64')
    b.e(f'v_xor_b32 v{t0}, s60, v{t0}')
    b.e(f'v_add_u32 v{vHW}, v{t2}, v{t0}'); b.e(f'v_add_u32 v{vHW+1}, 40960, v{vHW}')
    b.e(f'v_and_b32 v{t0}, 15, v{vLANE}'); b.e(f'v_lshrrev_b32 v{t1}, 4, v{vLANE}'); b.e(f'v_lshlrev_b32 v{t1}, 2, v{t1}')
    b.e(f'v_sub_u32 v{t0}, v{t0}, v{t1}')
    b.e(f'v_mov_b32 v{vT+3}, 0xf149f2ca')
    b.e(f's_or_b32 s60, s{sRB}, s{sWM}'); b.e('s_cmp_eq_u32 s60, 0'); b.e('s_cselect_b64 s[60:61], -1, 0')
    for isprev in range(2):
        for r in range(4):
            b.e(f'v_add_u32 v{t1}, {16*isprev - r}, v{t0}')
            b.e(f'v_and_b32 v{t2}, 0xfffffff1, v{t1}')
            b.e(f'v_cmp_eq_u32 vcc, 0, v{t2}')
            b.e(f'v_cndmask_b32_e64 v{vT+4}, v{vT+3}, 0, vcc')
            b.e(f'v_accvgpr_write_b32 a{aBI+4*isprev+r}, v{vT+4}')
            if isprev:
                b.e(f'v_cndmask_b32_e64 v{vT+4}, v{vT+4}, v{vT+3}, s[60:61]')
                b.e(f'v_accvgpr_write_b32 a{aBI+8+r}, v{vT+4}')
    b.e(f'v_mov_b32 v{vT+4}, 0x3f803f80')
    for r in range(4): b.e(f'v_accvgpr_write_b32 a{aBI+12+r}, v{vT+4}')
    if not cfg.k1_v2:
        for i in range(32, 256): b.e(f'v_mov_b32 v{i}, 0')
        for i in range(96, 196): b.e(f'v_accvgpr_write_b32 a{i}, 0')
    fill = [x.text for x in b.ins]
    dl = dma_list(1) + ([] if cfg.k1_v2 else dma_list(2))
    per = len(fill) // len(dl)
    k = 0
    for n_, (pre, ins, post) in enumerate(dl):
        if pre: a.e(pre)
        stop = (n_+1)*per if n_ < len(dl)-1 else len(fill)
        half = k + (stop - k)//2
        def run(upto):
            nonlocal k
            while k < upto or (k < len(fill) and fill[k].startswith(('s_cselect', 's_addc'))):
                a.e(fill[k]); k += 1
        run(k+1)
        a.e(ins)
        if post: a.e(post)
        run(stop)
    st.at(1)
    a.e(f's_mov_b32 s{sCNT}, 0')
    a.e(f's_and_b32 s60, s{sWAVE}, 1'); a.e('s_cmp_eq_u32 s60, 1'); a.e('s_cbranch_scc1 L1_wn1')

    aACT = 0; aHA = 64; aW = 72; aHW = 88; aACC = 96
    NW = 4; PF = 3
    for wn in range(2):
        if wn == 1: a.label('L1_wn1')
        if wn == 0:
            units = [('q', 0), ('q', 2), ('q', 4), ('q', 6), ('q', 8), ('q', 10), ('g', 0), ('g', 2), ('u', 0), ('u', 2)]
            names = ['q0', 'q1', 'k0', 'k1', 'v0', 'v1', 'g0', 'g1', 'u0', 'u1']
            order_v = ['g0', 'g1', 'u0', 'u1', 'q0', 'q1', 'k0']; order_a = ['k1', 'v0', 'v1']
        else:
            units = [('g', 4+2*i) for i in range(5)] + [('u', 4+2*i) for i in range(5)]
            names = [f'g{i}' for i in range(2, 7)] + [f'u{i}' for i in range(2, 7)]
            order_v = ['g2', 'g3', 'g4', 'g5', 'g6', 'u2', 'u3']; order_a = ['u4', 'u5', 'u6']
        acc = {}
        for i, nm in enumerate(order_v):
            for m in range(8): acc[(nm, m)] = ('v', 32 + (i*8+m)*4)
        for i, nm in enumerate(order_a):
            for m in range(8): acc[(nm, m)] = ('a', aACC + (i*8+m)*4)
        acc['halo'] = ('a', aACC + 96)
        def R(x): return f'{x[0]}[{x[1]}:{x[1]+3}]'
        def wread(slot, n, buf):
            kind, c0 = units[n]
            half = slot >> 1
            out = []
            for h in range(2):
                if kind == 'q':
                    base = (vQa if c0 % 4 == 0 else vQb) + half
                    off = (slot & 1)*20480 + c0*16 + h*3072
                else:
                    base = vGU + half
                    off = (slot & 1)*20480 + (6144 if kind == 'g' else 13312) + c0*16 + h*3584
                out.append(f'ds_read_b64_tr_b16 a[{aW+4*buf+2*h}:{aW+4*buf+2*h+1}], v{base} offset:{off}')
            return out
        def aread(slot, par, m):
            return f'ds_read_b128 a[{aACT+par*32+4*m}:{aACT+par*32+4*m+3}], v{vA} offset:{slot*16384+m*1024}'
        def hreads(slot):
            half = slot >> 1
            return [f'ds_read_b128 a[{aHA}:{aHA+3}], v{vHA} offset:{slot*1024}'] + \
                   [f'ds_read_b64_tr_b16 a[{aHW+2*h}:{aHW+2*h+1}], v{vHW+half} offset:{(slot&1)*20480+h*3072}' for h in range(2)]
        tr = LgkmTracker(a)
        def tail_reads(nslot, npar, wbase):
            sched = {}
            for k in range(PF):
                r = wread(nslot, k, (wbase + 10 + k) % NW)
                sched.setdefault((7+k)*8 + 0, []).append(r[0]); sched.setdefault((7+k)*8 + 1, []).append(r[1])
            extra = [aread(nslot, npar, m) for m in range(8)] + hreads(nslot)
            pos = [58, 59, 60, 61, 62, 63, 66, 67, 68, 69, 70]
            for p, r in zip(pos, extra): sched.setdefault(p, []).append(r)
            return sched
        if cfg.k1_v2:
            def wfrag(slot, n, reg):
                kind, c0 = units[n]
                half = slot >> 1
                out = []
                for h_ in range(2):
                    if kind == 'q':
                        base = (vQa if c0 % 4 == 0 else vQb) + half
                        off = (slot & 1)*20480 + c0*16 + h_*3072
                    else:
                        base = vGU + half
                        off = (slot & 1)*20480 + (6144 if kind == 'g' else 13312) + c0*16 + h_*3584
                    out.append(f'ds_read_b64_tr_b16 a[{reg+2*h_}:{reg+2*h_+1}], v{base} offset:{off}')
                return out
            aW2 = 216
            def wr(p, n, second): return aW2 + 8*((5*p + n) & 3) + 4*second
            def areg_(stage, m): return aACT + (stage & 1)*32 + 4*m
            def AR(r): return f'a[{r}:{r+3}]'
            carry = []
            def flat(dl):
                out = []
                for pre, ins, post in dl:
                    if pre: out.append(pre)
                    out.append(ins)
                    if post: out.append(post)
                return out
            def period(h, kind):
                nonlocal carry
                p = h + 1
                first = kind != 'P'; second = kind != 'Q'
                g0 = 0 if h % 2 == 0 else 5
                gn = 5 - g0
                secs = [x for x in (0, 1) if (first if x == 0 else second)]
                mf = [(n, m, sec) for n in range(3) for m in range(8) for sec in secs]
                L = 8*len(secs)
                T0 = len(mf)
                mf += [(n, m, sec) for m in range(8) for n in (3, 4) for sec in secs]
                N = len(mf)
                gaps = [[] for _ in range(N)]
                def place(item, lo, hi, cap=1):
                    for g in range(lo, hi+1):
                        if len(gaps[g]) < cap:
                            gaps[g].append(item); return g
                    return None
                def wf(n):
                    return (wfrag(h % 4, g0+n, wr(p, n, 0)) if first else []) + (wfrag((h+1) % 4, g0+n, wr(p, n, 1)) if second else [])
                for n, lst in ((0, wf(1)), (1, wf(2) ), (2, wf(3) + wf(4))):
                    for k_, r in enumerate(lst): gaps[n*L + k_].append(('r', r))
                if kind != 'Q':
                    cap = 1 if first else 2
                    cur = 1
                    for x in carry:
                        g = place(('x', x), cur, T0-1, cap)
                        assert g is not None
                        cur = g + (1 if (first or x.startswith('s_add_u32 m0')) else 0)
                    per = 2*len(secs)
                    for m in range(8):
                        g = T0 + per*m + (per - 2 if first else 0)
                        gaps[g].append(('r', f'ds_read_b128 {AR(areg_(h+2, m))}, v{vA} offset:{((h+2) % 4)*16384 + m*1024}'))
                    tail = wfrag((h+1) % 4, gn, wr(p+1, 0, 0)) + wfrag((h+2) % 4, gn, wr(p+1, 0, 1)) + hreads((h+2) % 4)
                    for k_, r in enumerate(tail):
                        g = place(('r', r), T0 + (per*k_ if first else 2*k_), N-1, 1); assert g is not None
                    items = flat(dma_list(h % 4))
                    cur = T0
                    hi = N-1 if not (kind == 'H' and h % 4 == 2) else N-4
                    while items:
                        g = place(('x', items[0]), cur, hi, 1)
                        if g is None: break
                        cur = g + 1; items.pop(0)
                    carry = items
                    if kind == 'H' and h % 4 == 2:
                        gaps[N-3].append(('x', f's_add_u32 s{sCNT}, s{sCNT}, 1')); gaps[N-2].append(('x', f's_cmp_eq_u32 s{sCNT}, 8'))
                for i, (n, m, sec) in enumerate(mf):
                    nm = names[g0+n]
                    if kind != 'Q' and i == T0:
                        if cfg.stamps == 3: a.e('s_memtime s[96:97]')
                        a.e(f's_waitcnt vmcnt({VMW}) lgkmcnt(0)'); tr.drain(); a.e('s_barrier')
                        if cfg.stamps == 3:
                            if kind == 'P': a.e('s_mov_b32 s98, 0')
                            a.e('v_mov_b32 v29, s96'); a.e(f'v_cmp_eq_u32 vcc, s98, v{vLANE}'); a.e('v_cndmask_b32 v30, v30, v29, vcc')
                            a.e('s_add_u32 s98, s98, 1')
                    wreg = AR(wr(p, n, sec)); areg = AR(areg_(h+sec, m))
                    tr.need(regs_of(wreg) + regs_of(areg) + (regs_of(AR(wr(p, n, 1))) if (n > 0 and second) else []))
                    d = R(acc[(nm, m)])
                    c = '0' if (kind == 'P' or (kind == 'H0' and sec == 0)) else d
                    if nm[0] == 'v': a.e(f'v_mfma_f32_16x16x32_bf16 {d}, {areg}, {wreg}, {c}')
                    else: a.e(f'v_mfma_f32_16x16x32_bf16 {d}, {wreg}, {areg}, {c}')
                    for k_, x in gaps[i]:
                        if k_ == 'r': tr.read(x)
                        else: a.e(x)
                    if kind != 'Q' and i == L + 5:
                        tr.need(regs_of(AR(aHA)) + regs_of(AR(aHW)))
                        d = R(acc['halo'])
                        a.e(f'v_mfma_f32_16x16x32_bf16 {d}, {AR(aHW)}, {AR(aHA)}, {"0" if kind == "P" else d}')
            carry = flat(dma_list(2))
            a.e(f's_waitcnt vmcnt({VMW})'); a.e('s_barrier')
            st.at(2)
            if st.on: a.e('s_waitcnt lgkmcnt(0)')
            for r in wfrag(0, 5, wr(0, 0, 1)) + [f'ds_read_b128 {AR(areg_(0, m))}, v{vA} offset:{m*1024}' for m in range(8)] + hreads(0): tr.read(r)
            period(-1, 'P')
            period(0, 'H0')
            entry_state = tr.state(); entry_carry = list(carry)
            a.label(f'L1_loop{wn}')
            period(1, 'H'); period(2, 'H')
            exit_q = list(tr.q)
            a.e(f's_cbranch_scc1 L1_tail{wn}')
            period(3, 'H'); period(4, 'H')
            assert tr.state() == entry_state, (tr.state(), entry_state)
            assert carry == entry_carry, (carry, entry_carry)
            a.e(f's_branch L1_loop{wn}')
            a.label(f'L1_tail{wn}')
            tr.q = exit_q
            period(31, 'Q')
        else:
            a.e(f's_waitcnt vmcnt({VMW})'); a.e('s_barrier')
            st.at(2)
            if st.on: a.e('s_waitcnt lgkmcnt(0)')
            sched = tail_reads(0, 0, -10)
            for p in sorted(sched):
                for r in sched[p]: tr.read(r)
            entry_state = tr.state()
            a.label(f'L1_loop{wn}')
            for u in range(4):
                slot = u; par = u & 1; wbase = (10*u) % NW
                sched = {}
                for n in range(7):
                    r = wread(slot, n+PF, (wbase + n + PF) % NW)
                    sched.setdefault(n*8 + 0, []).append(r[0]); sched.setdefault(n*8 + 1, []).append(r[1])
                for p, l in tail_reads((slot+1) % 4, par ^ 1, wbase).items(): sched.setdefault(p, []).extend(l)
                misc = {}
                dl = dma_list((slot+3) % 4)
                for i, (pre, ins, post) in enumerate(dl):
                    p = 3 + 5*i
                    if pre: misc.setdefault(p-1, []).append(pre)
                    misc.setdefault(p, []).append(ins)
                    if post: misc.setdefault(p, []).append(post)
                for n in range(10):
                    nm = names[n]
                    wreg = f'a[{aW+4*((wbase+n)%NW)}:{aW+4*((wbase+n)%NW)+3}]'
                    for m in range(8):
                        i = n*8 + m
                        if i == 56:
                            if cfg.stamps == 3: a.e('s_memtime s[96:97]')
                            a.e(f's_waitcnt vmcnt({VMW}) lgkmcnt(0)'); tr.drain(); a.e('s_barrier')
                            if cfg.stamps == 3:
                                a.e(f's_lshl_b32 s97, s{sCNT}, 2'); a.e(f's_add_u32 s97, s97, {u}')
                                a.e('v_mov_b32 v29, s96'); a.e(f'v_cmp_eq_u32 vcc, s97, v{vLANE}'); a.e('v_cndmask_b32 v30, v30, v29, vcc')
                        areg = f'a[{aACT+par*32+4*m}:{aACT+par*32+4*m+3}]'
                        tr.need(regs_of(wreg) + regs_of(areg))
                        d = R(acc[(nm, m)])
                        if nm[0] == 'v': a.e(f'v_mfma_f32_16x16x32_bf16 {d}, {areg}, {wreg}, {d}')
                        else: a.e(f'v_mfma_f32_16x16x32_bf16 {d}, {wreg}, {areg}, {d}')
                        for r in sched.get(i, []): tr.read(r)
                        for x in misc.get(i, []): a.e(x)
                        if i == 12:
                            tr.need(regs_of(f'a[{aHA}:{aHA+3}]') + regs_of(f'a[{aHW}:{aHW+3}]'))
                            d = R(acc['halo'])
                            a.e(f'v_mfma_f32_16x16x32_bf16 {d}, a[{aHW}:{aHW+3}], a[{aHA}:{aHA+3}], {d}')
                        if u == 3 and i == 76:
                            a.e(f's_add_u32 s{sCNT}, s{sCNT}, 1'); a.e(f's_cmp_lt_u32 s{sCNT}, 8')
            assert tr.state() == entry_state, (tr.state(), entry_state)
            a.e(f's_cbranch_scc1 L1_loop{wn}')
        if cfg.stamps != 2: st.at(3)
        a.e('s_waitcnt vmcnt(0) lgkmcnt(0)'); a.e('s_barrier')
        if cfg.stamps == 4: st.at(0)
        vO = vDA
        a.e(f's_lshl_b32 s60, s{sRB}, 14'); a.e(f's_lshl_b32 s61, s{sWM}, 13'); a.e('s_add_u32 s60, s60, s61')
        a.e(f'v_lshl_add_u32 v{vO}, v{vLANE}, 4, s60')
        a.e(f'v_add_u32 v{vO+1}, 4096, v{vO}')
        a.e(f's_mul_i32 s62, s{sJ}, 7'); a.e(f's_and_b32 s63, s{sJ}, 1'); a.e('s_add_u32 s62, s62, s63'); a.e('s_lshr_b32 s62, s62, 1')
        a.e('s_add_u32 s62, s62, 32'); a.e('s_lshl_b32 s62, s62, 17')
        def fetch(x, tmp):
            if x[0] == 'v': return x[1]
            for r in range(4): a.e(f'v_accvgpr_read_b32 v{tmp+r}, a{x[1]+r}')
            return tmp
        def hmul(g, u_, m, dst, tmp):
            gb = fetch(acc[(g, m)], tmp); ub = fetch(acc[(u_, m)], tmp+4)
            a.e(f'v_pk_mul_f32 v[{gb}:{gb+1}], v[{gb}:{gb+1}], v[{ub}:{ub+1}]')
            a.e(f'v_pk_mul_f32 v[{gb+2}:{gb+3}], v[{gb+2}:{gb+3}], v[{ub+2}:{ub+3}]')
            a.e(f'v_cvt_pk_bf16_f32 v{dst}, v{gb}, v{gb+1}')
            a.e(f'v_cvt_pk_bf16_f32 v{dst+1}, v{gb+2}, v{gb+3}')
        def ostore(src, m, soff, n=4, vbase=None, cls=0):
            vb = (vbase if vbase is not None else vO) + (m >> 2)
            op = {4: 'buffer_store_dwordx4', 2: 'buffer_store_dwordx2'}[n]
            a.e(f'{op} v[{src}:{src+n-1}], v{vb}, s[{S_O}:{S_O+3}], {soff} offen offset:{(m&3)*1024}' + (' sc1' if (cfg.k1_st >> cls) & 1 and (cls != 0 or m < cfg.k1_stm) else ''))
        if cfg.pf:
            a.e('s_mov_b32 s94, 0x200000'); a.e('s_mov_b32 s95, 0x20000')
            a.e(f's_lshl_b32 s64, s2, 13'); a.e(f's_lshl_b32 s65, s{sWAVE}, 11'); a.e('s_add_u32 s64, s64, s65')
            a.e(f'v_lshlrev_b32 v{vPF}, 5, v{vLANE}')
            a.e(f'buffer_load_dword v{vDUM}, v{vPF}, s[92:95], s64 offen')
        vX = vDW
        a.e(f'v_lshlrev_b32 v{vX}, 4, v{vLANE}')
        a.e(f'v_and_b32 v{vX+1}, 15, v{vLANE}'); a.e(f'v_lshlrev_b32 v{vX+1}, 5, v{vX+1}')
        a.e(f'v_lshrrev_b32 v{vX+2}, 4, v{vLANE}'); a.e(f'v_lshl_add_u32 v{vX+1}, v{vX+2}, 3, v{vX+1}')
        hb = fetch(acc['halo'], vT)
        a.e(f'v_cvt_pk_bf16_f32 v{vT+4}, v{hb}, v{hb+1}'); a.e(f'v_cvt_pk_bf16_f32 v{vT+5}, v{hb+2}, v{hb+3}')
        a.e(f's_cmp_eq_u32 s{sWM}, 1'); a.e(f's_cbranch_scc1 L1_hv{wn}')
        a.e(f'ds_write_b64 v{vX}, v[{vT+4}:{vT+5}] offset:{8*wn}')
        a.e(f's_branch L1_hd{wn}')
        a.label(f'L1_hv{wn}')
        a.e(f'v_lshlrev_b32 v{vX+2}, 7, v{vX+2}')
        a.e(f'v_and_b32 v{vX+3}, 15, v{vLANE}'); a.e(f'v_lshl_add_u32 v{vX+2}, v{vX+3}, 1, v{vX+2}')
        o = 1024 + wn*512
        a.e(f'ds_write_b16 v{vX+2}, v{vT+4} offset:{o}'); a.e(f'ds_write_b16_d16_hi v{vX+2}, v{vT+4} offset:{o+32}')
        a.e(f'ds_write_b16 v{vX+2}, v{vT+5} offset:{o+64}'); a.e(f'ds_write_b16_d16_hi v{vX+2}, v{vT+5} offset:{o+96}')
        a.label(f'L1_hd{wn}')
        a.e(f's_lshl_b32 s64, s{sWM}, 14'); a.e('s_add_u32 s64, s64, 4096')
        a.e(f'v_add_u32 v{vX+2}, s64, v{vX}'); a.e(f'v_add_u32 v{vX+3}, s64, v{vX+1}')
        a.e('s_mov_b32 s68, 0x3e8293ee'); a.e('s_mov_b32 s69, 0x3e8293ee')
        a.e(f's_lshl_b32 s67, s{sJ}, 17')
        def P2(r): return f'v[{r}:{r+1}]'
        def attention(blocks, BI, W1, W2):
            ONES = f'a[{aBI+12}:{aBI+15}]'
            for g0 in range(0, len(blocks), 2):
                grp = [(blk, W1 + 16*i, W2 + 16*i) for i, blk in enumerate(blocks[g0:g0+2])]
                for (m, q, kp, kc, v0w, v1w, first), Sx, Ox in grp:
                    a.e(f'v_mfma_f32_16x16x32_bf16 v[{Sx}:{Sx+3}], v[{kp}:{kp+3}], v[{q}:{q+3}], 0')
                    a.e(f'v_mfma_f32_16x16x32_bf16 v[{Sx+4}:{Sx+7}], v[{kc}:{kc+3}], v[{q}:{q+3}], 0')
                for (m, q, kp, kc, v0w, v1w, first), Sx, Ox in grp:
                    bp = BI + (8 if first else 4)
                    for r in (0, 2): a.e(f'v_pk_fma_f32 {P2(Sx+r)}, {P2(Sx+r)}, s[68:69], {P2(bp+r)}')
                    for r in (0, 2): a.e(f'v_pk_fma_f32 {P2(Sx+4+r)}, {P2(Sx+4+r)}, s[68:69], {P2(BI+r)}')
                    M = Sx + 8
                    a.e(f'v_max3_f32 v{M}, v{Sx}, v{Sx+1}, v{Sx+2}'); a.e(f'v_max3_f32 v{M+1}, v{Sx+3}, v{Sx+4}, v{Sx+5}')
                    a.e(f'v_max3_f32 v{M}, v{M}, v{Sx+6}, v{Sx+7}'); a.e(f'v_max_f32 v{M}, v{M}, v{M+1}')
                    a.e(f'v_mov_b32 v{M+1}, v{M}')
                for _, Sx, Ox in grp: a.e(f'v_permlane32_swap_b32 v{Sx+8}, v{Sx+9}')
                for _, Sx, Ox in grp:
                    a.e(f'v_max_f32 v{Sx+8}, v{Sx+8}, v{Sx+9}'); a.e(f'v_mov_b32 v{Sx+9}, v{Sx+8}')
                for _, Sx, Ox in grp: a.e(f'v_permlane16_swap_b32 v{Sx+8}, v{Sx+9}')
                for _, Sx, Ox in grp:
                    a.e(f'v_max_f32 v{Sx+8}, v{Sx+8}, v{Sx+9}'); a.e(f'v_mov_b32 v{Sx+9}, v{Sx+8}')
                    for r in (0, 2, 4, 6): a.e(f'v_pk_add_f32 {P2(Sx+r)}, {P2(Sx+r)}, {P2(Sx+8)} neg_lo:[0,1] neg_hi:[0,1]')
                for _, Sx, Ox in grp:
                    for r in range(8): a.e(f'v_exp_f32 v{Sx+r}, v{Sx+r}')
                for _, Sx, Ox in grp:
                    for r in range(4): a.e(f'v_cvt_pk_bf16_f32 v{Sx+12+r}, v{Sx+2*r}, v{Sx+2*r+1}')
                for (m, q, kp, kc, v0w, v1w, first), Sx, Ox in grp:
                    Pp = Sx + 12
                    a.e(f'v_mfma_f32_16x16x32_bf16 v[{Ox+8}:{Ox+11}], {ONES}, v[{Pp}:{Pp+3}], 0')
                    a.e(f'v_mfma_f32_16x16x32_bf16 v[{Ox}:{Ox+3}], v[{v0w}:{v0w+3}], v[{Pp}:{Pp+3}], 0')
                    a.e(f'v_mfma_f32_16x16x32_bf16 v[{Ox+4}:{Ox+7}], v[{v1w}:{v1w+3}], v[{Pp}:{Pp+3}], 0')
                for _, Sx, Ox in grp:
                    a.e(f'v_rcp_f32 v{Ox+8}, v{Ox+8}')
                for _, Sx, Ox in grp:
                    a.e(f'v_mov_b32 v{Ox+9}, v{Ox+8}')
                for (m, q, kp, kc, v0w, v1w, first), Sx, Ox in grp:
                    for r in (0, 2, 4, 6): a.e(f'v_pk_mul_f32 {P2(Ox+r)}, {P2(Ox+r)}, {P2(Ox+8)}')
                    for r in range(4): a.e(f'v_cvt_pk_bf16_f32 v{q+r}, v{Ox+2*r}, v{Ox+2*r+1}')
                    ostore(q, m, 's67', cls=3)
        if wn == 1:
            a.e('s_add_u32 s64, s62, 131072'); a.e('s_add_u32 s65, s62, 262144')
            a.e('s_add_u32 s66, s62, 393216'); a.e('s_sub_u32 s61, s62, 131072'); a.e('s_add_u32 s61, s61, 8')
            a.e('s_cmp_eq_u32 s63, 1'); a.e('s_cselect_b32 s66, s61, s66')
            for m in range(8):
                for (ga, ua, gb_, ub_, so) in (('g2', 'u2', 'g3', 'u3', 's64'), ('g4', 'u4', 'g5', 'u5', 's65')):
                    dst = acc[(ga, m)][1]
                    hmul(ga, ua, m, dst, vT)
                    hmul(gb_, ub_, m, dst+2, vT)
                    ostore(dst, m, so)
                dst = acc[('g6', m)][1]
                hmul('g6', 'u6', m, dst, vT)
                ostore(dst, m, 's66', n=2, cls=2)
            if cfg.k1_wb == 1: a.e('buffer_wbl2 sc1')
            if cfg.k1_wb == 2:
                a.e(f's_cmp_lg_u32 s{sWAVE}, 1'); a.e('s_cbranch_scc1 L1_nowb')
                a.e('s_waitcnt vmcnt(0)'); a.e('buffer_wbl2 sc1')
                a.label('L1_nowb')
            if cfg.k1_wb == 3:
                a.e(f's_cmp_lg_u32 s{sWAVE}, 1'); a.e('s_cbranch_scc1 L1_nowb')
                a.e(f's_cmp_lg_u32 s{sRB}, 0'); a.e('s_cbranch_scc1 L1_nowb')
                a.e('s_waitcnt vmcnt(0)'); a.e('buffer_wbl2 sc1')
                a.label('L1_nowb')
            F = acc[('u2', 0)][1]
            KR = F; V0 = F + 20; V1 = F + 30; QR = F + 40; BI = acc[('g3', 0)][1]
            W1 = acc[('g5', 0)][1]; W2 = W1 - 64 + 0
            W2 = BI + 0
            W2 = acc[('g3', 0)][1]; BI = F + 56
            for r in range(8): a.e(f'v_accvgpr_read_b32 v{BI+r}, a{aBI+r}')
            if cfg.stamps == 4: st.at(1)
            a.e('s_waitcnt lgkmcnt(0)'); a.e('s_barrier')
            if cfg.stamps == 4: st.at(2)
            for i in range(5):
                a.e(f'ds_read_b128 v[{KR+4*i}:{KR+4*i+3}], v{vX+2} offset:{i*2048}')
                if i: a.e(f'ds_read_b128 v[{QR+4*(i-1)}:{QR+4*(i-1)+3}], v{vX+2} offset:{10240+(i-1)*1024}')
            for i in range(5):
                a.e(f'ds_read_b64 v[{V0+2*i}:{V0+2*i+1}], v{vX+3} offset:{i*2048+1024}')
                a.e(f'ds_read_b64 v[{V1+2*i}:{V1+2*i+1}], v{vX+3} offset:{i*2048+1536}')
            a.e('s_waitcnt lgkmcnt(0)')
            attention([(4+i, QR+4*i, KR+4*i, KR+4*i+4, V0+2*i, V1+2*i, False) for i in range(4)], BI, W1, W2)
            if cfg.stamps != 2: st.at(4)
        else:
            def packqk(n0, n1, m):
                d = acc[(n0, m)][1]
                b1 = fetch(acc[(n1, m)], vT)
                a.e(f'v_cvt_pk_bf16_f32 v{d}, v{d}, v{d+1}'); a.e(f'v_cvt_pk_bf16_f32 v{d+1}, v{d+2}, v{d+3}')
                a.e(f'v_cvt_pk_bf16_f32 v{d+2}, v{b1}, v{b1+1}'); a.e(f'v_cvt_pk_bf16_f32 v{d+3}, v{b1+2}, v{b1+3}')
                return d
            for m in range(8):
                dst = acc[('g0', m)][1]
                hmul('g0', 'u0', m, dst, vT); hmul('g1', 'u1', m, dst+2, vT)
                ostore(dst, m, 's62', cls=1)
            PV0 = acc[('u0', 0)][1]; PV1 = PV0 + 18
            KP = PV0 + 36; BI = KP + 4
            for m in (3, 4, 5, 6, 7, 0, 1, 2):
                d = packqk('k0', 'k1', m)
                if m >= 3: a.e(f'ds_write_b128 v{vX+2}, v[{d}:{d+3}] offset:{(m-3)*2048}')
                for (nm, Pv, o) in (('v0', PV0, 1024), ('v1', PV1, 1536)):
                    b_ = fetch(acc[(nm, m)], vT+4)
                    a.e(f'v_cvt_pk_bf16_f32 v{Pv+2+2*m}, v{b_}, v{b_+1}'); a.e(f'v_cvt_pk_bf16_f32 v{Pv+3+2*m}, v{b_+2}, v{b_+3}')
                    if m >= 3: a.e(f'ds_write_b64 v{vX+3}, v[{Pv+2+2*m}:{Pv+3+2*m}] offset:{(m-3)*2048+o}')
                if m >= 4:
                    d = packqk('q0', 'q1', m)
                    a.e(f'ds_write_b128 v{vX+2}, v[{d}:{d+3}] offset:{10240+(m-4)*1024}')
                if m == 7:
                    if cfg.stamps == 4: st.at(1)
                    a.e('s_waitcnt lgkmcnt(0)'); a.e('s_barrier')
                    if cfg.stamps == 4: st.at(2)
                    a.e(f's_mul_i32 s64, s{sWM}, 12288')
                    a.e(f'v_add_u32 v{vX}, s64, v{vX}'); a.e(f'v_add_u32 v{vX+1}, s64, v{vX+1}')
                    a.e(f'ds_read_b128 v[{KP}:{KP+3}], v{vX}')
                    a.e(f'ds_read_b64 v[{PV0}:{PV0+1}], v{vX+1} offset:1024')
                    a.e(f'ds_read_b64 v[{PV1}:{PV1+1}], v{vX+1} offset:1536')
            for m in range(4): packqk('q0', 'q1', m)
            for r in range(12): a.e(f'v_accvgpr_read_b32 v{BI+r}, a{aBI+r}')
            a.e('s_waitcnt lgkmcnt(0)')
            W1 = acc[('q1', 0)][1]; W2 = acc[('g1', 0)][1]
            attention([(m, acc[('q0', m)][1], acc[('k0', m-1)][1] if m else KP, acc[('k0', m)][1], PV0+2*m, PV1+2*m, m == 0) for m in range(4)], BI, W1, W2)
            if cfg.stamps != 2: st.at(4)
        if st.on: a.e('s_waitcnt vmcnt(0)')
        if cfg.stamps != 2: st.at(5)
        st.flush(6, 7, sWAVE, vT, vT+1, 92)
        if cfg.stamps == 3:
            srd(a, 92, 6, 7, 1 << 20, STAMP_OFF + (1 << 19))
            a.e(f's_lshl_b32 s96, s2, 10'); a.e(f's_lshl_b32 s97, s{sWAVE}, 8'); a.e('s_add_u32 s96, s96, s97')
            a.e(f'v_lshl_add_u32 v{vT}, v{vLANE}, 2, s96')
            a.e(f'buffer_store_dword v30, v{vT}, s[92:95], 0 offen')
        if wn == 0: a.e('s_endpgm')
    a.label('L1_end')
    a.e('s_endpgm')
    return name, (256, 256, L1_TOTAL), kdesc(name, 512, 256)

def gen_k2(a, cfg):
    name = 'gemm2_kernel'
    khead(a, name)
    st = Stamper(a, cfg.stamps, 70, 2)
    NS = cfg.k2_ns
    N0 = 36
    WB = NS*16384
    S_A = 8; S_W = 12; S_P = 16; S_X = 20; S_OUT = 24; S_F = 28
    sACT = 32; sWO = 33; sM_A = 34; sM_W = 35; sU = 36; sEND = 37; sWAVE = 38; sPART = 39; sRB = 40; sCB = 41; sLOADU = 42; sTILE = 43
    vLANE = 1; vDA = 2; vDW = 3; vA = 7; vW = 9; vT = 20; vXO = 17; vDUM = 18; vFLG = 19
    vPS = 28; vPL = 29; vFS = 30; vFL = 31
    XR = 32
    ACC = 64
    FR = 128
    a.e('s_cmp_ge_u32 s2, 256'); a.e('s_cbranch_scc1 L2_end')
    st.at(0)
    a.e('s_load_dwordx2 s[6:7], s[0:1], 72')
    a.e('s_load_dwordx2 s[44:45], s[0:1], 16')
    a.e('s_load_dwordx4 s[48:51], s[0:1], 48')
    a.e('s_load_dwordx2 s[4:5], s[0:1], 0')
    a.e(f'v_lshrrev_b32 v{vT}, 6, v0')
    a.e(f'v_and_b32 v{vLANE}, 63, v0')
    a.e(f'v_readfirstlane_b32 s{sWAVE}, v{vT}')
    a.e('s_and_b32 s3, s2, 7'); a.e(f's_lshr_b32 s{sPART}, s3, 2'); a.e('s_and_b32 s3, s3, 3'); a.e('s_lshl_b32 s3, s3, 2')
    a.e('s_lshr_b32 s52, s2, 3'); a.e(f's_and_b32 s{sCB}, s52, 7'); a.e('s_lshr_b32 s52, s52, 3'); a.e(f's_add_u32 s{sRB}, s3, s52')
    a.e(f's_cmp_eq_u32 s{sPART}, 0')
    sBEG = 66; sLCNT = 67
    a.e(f's_cselect_b32 s{sBEG}, 0, {N0}'); a.e(f's_cselect_b32 s{sEND}, {N0}, 72')
    a.e(f's_mul_i32 s53, s{sCB}, {cfg.k2_ra}'); a.e(f's_mul_i32 s54, s52, {cfg.k2_rb}'); a.e('s_add_u32 s53, s53, s54')
    a.e(f's_mul_i32 s54, s3, {cfg.k2_rc}'); a.e('s_lshr_b32 s54, s54, 2'); a.e('s_add_u32 s53, s53, s54'); a.e(f's_and_b32 s53, s53, {cfg.k2_rm}')
    a.e(f's_add_u32 s{sLOADU}, s{sBEG}, s53')
    a.e(f's_mov_b32 s{sU}, 0'); a.e(f's_mov_b32 s{sLCNT}, 0')
    a.e(f's_sub_u32 s{sWO}, s{sLOADU}, 16'); a.e(f's_cselect_b32 s{sWO}, s{sLOADU}, s{sWO}'); a.e(f's_lshl_b32 s{sWO}, s{sWO}, 17')
    a.e(f's_lshr_b32 s57, s{sWAVE}, 1'); a.e(f's_and_b32 s58, s{sWAVE}, 1')
    a.e('s_lshl_b32 s52, s57, 17')
    a.e('s_lshl_b32 s54, s58, 12'); a.e('s_add_u32 s52, s52, s54')
    a.e(f's_lshl_b32 s54, s{sRB}, 13'); a.e('s_add_u32 s52, s52, s54')
    a.e(f'v_lshl_add_u32 v{vDA}, v{vLANE}, 4, s52')
    a.e(f's_lshl_b32 s{sACT}, s{sLOADU}, 18')
    a.e(f's_lshl_b32 s{sM_A}, s{sWAVE}, 12'); a.e(f's_add_u32 s{sM_W}, s{sM_A}, {WB}')
    a.e(f'v_lshrrev_b32 v{vT}, 4, v{vLANE}'); a.e(f'v_and_b32 v{vT+1}, 15, v{vLANE}')
    a.e(f's_lshl_b32 s52, s{sWAVE}, 15'); a.e(f's_lshl_b32 s54, s{sCB}, 8'); a.e('s_add_u32 s52, s52, s54')
    a.e(f'v_lshl_add_u32 v{vT+3}, v{vT}, 11, s52')
    a.e(f'v_lshlrev_b32 v{vT+2}, 1, v{vT}')
    a.e(f'v_xor_b32 v{vT+2}, v{vT+2}, v{vT+1}')
    a.e(f'v_lshl_add_u32 v{vDW}, v{vT+2}, 4, v{vT+3}')
    a.e(f'v_xor_b32 v{vDW+1}, 128, v{vDW}'); a.e(f'v_add_u32 v{vDW+1}, 8192, v{vDW+1}')
    a.e(f'v_add_u32 v{vDW+2}, 16384, v{vDW}'); a.e(f'v_add_u32 v{vDW+3}, 16384, v{vDW+1}')
    a.e(f's_mov_b32 s55, {1024*1024*2}'); a.e(f's_mov_b32 s56, {3584*1024*2}')
    a.e(f's_mov_b32 s{S_W+3}, 0x20000'); a.e(f's_mov_b32 s{S_A+2}, {ACT2_BYTES}'); a.e(f's_mov_b32 s{S_A+3}, 0x20000')
    a.e('s_waitcnt lgkmcnt(0)')
    a.e(f's_add_u32 s{S_A}, s6, {ACT2_OFF}'); a.e(f's_addc_u32 s{S_A+1}, s7, 0')
    a.e(f's_cmp_lt_u32 s{sLOADU}, 16')
    a.e(f's_cselect_b32 s{S_W}, s44, s48'); a.e(f's_cselect_b32 s{S_W+1}, s45, s49')
    a.e(f's_cselect_b32 s{S_W+2}, s55, s56')
    def dma_list(slot):
        L = []
        for d in range(4):
            L.append(([f's_add_u32 m0, s{sM_W}, {slot*16384 + d*1024}'],
                      f'buffer_load_dwordx4 v{vDW+d}, s[{S_W}:{S_W+3}], s{sWO} offen lds', []))
        for d in range(4):
            L.append(([f's_add_u32 m0, s{sM_A}, {slot*16384}'] if d == 0 else [],
                      f'buffer_load_dwordx4 v{vDA}, s[{S_A}:{S_A+3}], s{sACT} offen offset:{d*1024} lds', []))
        post = [f's_add_u32 s{sLOADU}, s{sLOADU}, {0 if cfg.k2_noadv else 1}',
                f's_cmp_eq_u32 s{sLOADU}, s{sEND}', f's_cselect_b32 s{sLOADU}, s{sBEG}, s{sLOADU}',
                f's_lshl_b32 s{sACT}, s{sLOADU}, 18',
                f's_sub_u32 s{sWO}, s{sLOADU}, 16',
                f's_cselect_b32 s{sWO}, s{sLOADU}, s{sWO}',
                f's_cselect_b32 s{S_W}, s44, s48', f's_cselect_b32 s{S_W+1}, s45, s49', f's_cselect_b32 s{S_W+2}, s55, s56',
                f's_lshl_b32 s{sWO}, s{sWO}, 17',
                f's_add_u32 s{sLCNT}, s{sLCNT}, 1',
                f's_cmp_ge_u32 s{sLCNT}, {N0}',
                f's_cselect_b32 s{S_W+2}, 0, s{S_W+2}', f's_cselect_b32 s{S_A+2}, 0, s{S_A+2}']
        L[-1] = (L[-1][0], L[-1][1], post)
        return L
    VMW = 8*(NS-2)
    for pre, ins, post in dma_list(0):
        for x in pre: a.e(x)
        a.e(ins)
        for x in post: a.e(x)
    if cfg.cpf:
        a.e(f's_cmp_lg_u32 s{sWAVE}, 3'); a.e('s_cbranch_scc1 L2_nocpf')
        a.e(f's_cmp_gt_u32 s2, 31'); a.e('s_cbranch_scc1 L2_nocpf')
        code_pf(a, 'L2_nocpf', 'L2_end', vLANE, vT+2, vDUM, 94, 2)
        a.label('L2_nocpf')
    b = Asm()
    b.e(f's_lshl_b32 s{sTILE}, s{sRB}, 3'); b.e(f's_add_u32 s{sTILE}, s{sTILE}, s{sCB}')
    b.e('s_lshl_b32 s52, s57, 12')
    b.e(f'v_lshl_add_u32 v{vA}, v{vLANE}, 4, s52'); b.e(f'v_add_u32 v{vA+1}, 65536, v{vA}')
    b.e(f'v_lshrrev_b32 v{vT}, 2, v{vLANE}')
    b.e(f'v_and_b32 v{vT+1}, 7, v{vT}'); b.e(f'v_lshlrev_b32 v{vT+1}, 5, v{vT+1}')
    b.e(f'v_and_b32 v{vT+2}, 3, v{vLANE}'); b.e(f'v_lshlrev_b32 v{vT+2}, 3, v{vT+2}')
    b.e(f'v_lshl_add_u32 v{vT+2}, v{vT}, 8, v{vT+2}'); b.e(f'v_add_u32 v{vT+2}, {WB}, v{vT+2}')
    b.e('s_lshl_b32 s52, s58, 7'); b.e(f's_lshl_b32 s59, s{sPART}, 6')
    for n in range(4):
        b.e(f's_xor_b32 s53, s59, {32*n}'); b.e('s_add_u32 s53, s53, s52')
        b.e(f'v_xor_b32 v{vT+3}, s53, v{vT+1}')
        b.e(f'v_add_u32 v{vW+n}, v{vT+3}, v{vT+2}'); b.e(f'v_add_u32 v{vW+4+n}, 65536, v{vW+n}')
    srd(b, S_X, 4, 5, 2048*1024*2); srd(b, S_OUT, 50, 51, 2048*1024*2)
    srd(b, S_P, 6, 7, PART_BYTES, PART_OFF); srd(b, S_F, 6, 7, FLAG_BYTES, FLAG_OFF)
    b.e(f's_lshl_b32 s52, s{sRB}, 18'); b.e('s_lshl_b32 s53, s57, 17'); b.e('s_add_u32 s52, s52, s53')
    b.e(f's_lshl_b32 s53, s{sCB}, 8'); b.e('s_add_u32 s52, s52, s53'); b.e('s_lshl_b32 s53, s58, 7'); b.e('s_add_u32 s52, s52, s53')
    b.e('s_add_u32 s52, s52, s59')
    b.e(f'v_and_b32 v{vT+1}, 15, v{vLANE}'); b.e(f'v_lshl_add_u32 v{vT+1}, v{vT+1}, 11, s52')
    b.e(f'v_lshrrev_b32 v{vT}, 4, v{vLANE}')
    b.e(f'v_and_b32 v{vT+2}, 1, v{vT}'); b.e(f'v_lshl_add_u32 v{vT+1}, v{vT+2}, 5, v{vT+1}')
    b.e(f'v_lshrrev_b32 v{vT+2}, 1, v{vT}'); b.e(f'v_lshl_add_u32 v{vXO}, v{vT+2}, 4, v{vT+1}')
    for m in range(4): b.e(f's_mov_b32 s{60+m}, {m*32768}')
    b.e(f's_lshl_b32 s52, s{sTILE}, 1'); b.e(f's_add_u32 s52, s52, s{sPART}'); b.e('s_lshl_b32 s52, s52, 2'); b.e(f's_add_u32 s52, s52, s{sWAVE}')
    b.e('s_xor_b32 s53, s52, 4')
    b.e('s_lshl_b32 s54, s52, 7'); b.e(f'v_mov_b32 v{vFS}, s54')
    b.e('s_lshl_b32 s54, s53, 7'); b.e(f'v_mov_b32 v{vFL}, s54')
    b.e('s_lshl_b32 s52, s52, 13'); b.e('s_lshl_b32 s53, s53, 13')
    b.e(f'v_lshl_add_u32 v{vPS}, v{vLANE}, 4, s52'); b.e(f'v_lshl_add_u32 v{vPL}, v{vLANE}, 4, s53')
    b.e('s_movk_i32 s65, 4096')
    for i in range(32): b.e(f'v_mov_b64 v[{ACC+2*i}:{ACC+2*i+1}], 0')
    fill = [x.text for x in b.ins]
    dl = sum([dma_list(s_) for s_ in range(1, NS)], [])
    per = len(fill) // len(dl) + 1
    k = 0
    def run(upto):
        nonlocal k
        while k < len(fill) and (k < upto or fill[k].startswith(('s_cselect', 's_addc'))):
            a.e(fill[k]); k += 1
    for n_, (pre, ins, post) in enumerate(dl):
        for x in pre: a.e(x)
        run(k+1)
        a.e(ins)
        for x in post: a.e(x)
        run((n_+1)*per)
    run(len(fill))
    st.at(1)
    so = ['0', 's65']
    def areg(par, ks, m): return FR + par*64 + ks*16 + m*4
    def wreg(par, ks, n): return FR + par*64 + 32 + ks*16 + n*4
    def reads(slot, par):
        L = []
        hi = 1 if slot >= 4 else 0
        base = (slot & 3)*16384
        def ar_(ks, m): return [f'ds_read_b128 v[{areg(par,ks,m)}:{areg(par,ks,m)+3}], v{vA+hi} offset:{base + ks*8192 + m*1024}']
        def wr_(ks, n): return [f'ds_read_b64_tr_b16 v[{wreg(par,ks,n)+2*h}:{wreg(par,ks,n)+2*h+1}], v{vW+4*hi+n} offset:{base + ks*8192 + h*4096}' for h in range(2)]
        L += wr_(0, 0) + ar_(0, 0) + wr_(1, 0) + ar_(1, 0)
        for m in range(1, 4): L += ar_(0, m) + ar_(1, m)
        for n in range(1, 4): L += wr_(0, n) + wr_(1, n)
        return L
    a.e(f's_waitcnt vmcnt({VMW + 8})'); a.e('s_barrier')
    st.at(2)
    if st.on: a.e('s_waitcnt lgkmcnt(0)')
    for r in reads(0, 0): a.e(r)
    a.label('L2_loop')
    UN = NS if NS % 2 == 0 else 2*NS
    for u in range(UN):
        slot = u % NS; par = u & 1
        a.e(f's_waitcnt vmcnt({VMW}) lgkmcnt(0)'); a.e('s_barrier')
        rl = reads((slot+1) % NS, par ^ 1)
        dl = dma_list(slot)
        sched = {}
        for i, r in enumerate(rl if cfg.k2_dbg < 1 else []): sched.setdefault(cfg.k2_rd0 + i, []).append(r)
        for i, (pre, ins, post) in enumerate(dl):
            p = 1 + (cfg.k2_dstep*i)//2
            for x in pre: sched.setdefault(p-1, []).append(x)
            sched.setdefault(p, []).append(ins)
            for k_, x in enumerate(post): sched.setdefault(min(29, p + 1 + k_//3), []).append(x)
        sched.setdefault(30, []).append(f's_add_u32 s{sU}, s{sU}, 1')
        sched.setdefault(31, []).append(f's_cmp_ge_u32 s{sU}, {N0}')
        i = 0
        for n in range(4):
            for m in range(4):
                for ks in range(2):
                    d = ACC + (n*4+m)*4
                    if cfg.k2_dbg < 2: a.e(f'v_mfma_f32_16x16x32_bf16 v[{d}:{d+3}], v[{wreg(par,ks,n)}:{wreg(par,ks,n)+3}], v[{areg(par,ks,m)}:{areg(par,ks,m)+3}], v[{d}:{d+3}]')
                    for x in sched.get(i, []): a.e(x)
                    i += 1
        if u < UN-1: a.e('s_cbranch_scc1 L2_done')
        else: a.e('s_cbranch_scc0 L2_loop')
    a.label('L2_done')
    st.at(3)
    for t in range(8):
        a.e(f'buffer_store_dwordx4 v[{ACC+32+4*t}:{ACC+32+4*t+3}], v{vPS}, s[{S_P}:{S_P+3}], {so[t>>2]} offen offset:{(t&3)*1024} sc1')
    for m in range(4):
        a.e(f'buffer_load_dwordx4 v[{XR+4*m}:{XR+4*m+3}], v{vXO}, s[{S_X}:{S_X+3}], s{60+m} offen')
    a.e(f'v_mov_b32 v{vT+2}, 1')
    a.e('s_mov_b32 s53, 0xffff0000')
    a.e('s_waitcnt vmcnt(4) lgkmcnt(0)')
    a.e('s_mov_b64 exec, 1')
    a.e(f'buffer_store_dword v{vT+2}, v{vFS}, s[{S_F}:{S_F+3}], 0 offen sc1')
    a.e('s_mov_b64 exec, -1')
    st.at(1) if cfg.stamps else None
    a.e('s_mov_b32 s54, 0')
    a.label('L2_poll')
    a.e(f'buffer_load_dword v{vFLG}, v{vFL}, s[{S_F}:{S_F+3}], 0 offen sc1')
    a.e('s_add_u32 s54, s54, 1')
    a.e('s_waitcnt vmcnt(0)')
    a.e(f'v_readfirstlane_b32 s52, v{vFLG}')
    a.e('s_cmp_gt_u32 s54, 0x40000'); a.e('s_cbranch_scc1 L2_polled')
    a.e('s_cmp_eq_u32 s52, 1'); a.e('s_cbranch_scc0 L2_poll')
    a.label('L2_polled')
    for t in (0, 4, 1, 5, 2, 6, 3, 7):
        a.e(f'buffer_load_dwordx4 v[{FR+4*t}:{FR+4*t+3}], v{vPL}, s[{S_P}:{S_P+3}], {so[t>>2]} offen offset:{(t&3)*1024} sc1')
    st.at(4)
    for m in range(4):
        T = FR + 32 + m*8; x = XR + 4*m
        for r in range(4):
            a.e(f'v_lshlrev_b32 v{T+2*r}, 16, v{x+r}'); a.e(f'v_and_b32 v{T+2*r+1}, s53, v{x+r}')
    for m in range(4):
        x = XR + 4*m; c0 = ACC + 4*m; c1 = ACC + 16 + 4*m; T = FR + 32 + m*8
        a.e(f's_waitcnt vmcnt({6-m})')
        for (c, p) in ((c0, FR + 4*m), (c1, FR + 16 + 4*m)):
            a.e(f'v_pk_add_f32 v[{c}:{c+1}], v[{c}:{c+1}], v[{p}:{p+1}]')
            a.e(f'v_pk_add_f32 v[{c+2}:{c+3}], v[{c+2}:{c+3}], v[{p+2}:{p+3}]')
        for r in range(4): a.e(f'v_permlane16_swap_b32 v{c0+r}, v{c1+r}')
        a.e(f'v_pk_add_f32 v[{c0}:{c0+1}], v[{c0}:{c0+1}], v[{T}:{T+1}]'); a.e(f'v_pk_add_f32 v[{c0+2}:{c0+3}], v[{c0+2}:{c0+3}], v[{T+2}:{T+3}]')
        a.e(f'v_pk_add_f32 v[{c1}:{c1+1}], v[{c1}:{c1+1}], v[{T+4}:{T+5}]'); a.e(f'v_pk_add_f32 v[{c1+2}:{c1+3}], v[{c1+2}:{c1+3}], v[{T+6}:{T+7}]')
        a.e(f'v_cvt_pk_bf16_f32 v{x}, v{c0}, v{c0+1}'); a.e(f'v_cvt_pk_bf16_f32 v{x+1}, v{c0+2}, v{c0+3}')
        a.e(f'v_cvt_pk_bf16_f32 v{x+2}, v{c1}, v{c1+1}'); a.e(f'v_cvt_pk_bf16_f32 v{x+3}, v{c1+2}, v{c1+3}')
        a.e(f'buffer_store_dwordx4 v[{x}:{x+3}], v{vXO}, s[{S_OUT}:{S_OUT+3}], s{60+m} offen')
    if st.on: a.e('s_waitcnt vmcnt(0)')
    st.at(5)
    st.flush(6, 7, sWAVE, vT, vT+1, 92)
    a.label('L2_end')
    a.e('s_endpgm')
    return name, (256, 256, NS*32768), kdesc(name, 256, 256)

def build(cfg):
    a = Asm()
    a.e('.amdgcn_target "amdgcn-amd-amdhsa--gfx950"'); a.e('.text')
    ks = [gen_k0(a, cfg), gen_k1(a, cfg), gen_k2(a, cfg)]
    a.fix()
    head = open('cdna_kernels/' + NAME + '.s.ref').read().split('\n')
    hdr = [l for l in head[:13] if l.startswith(';') and '@launch' not in l and 'Override' not in l and 'grid=ceil' not in l]
    out = '\n'.join(hdr) + '\n'
    for nm, (g, b, lds), _ in ks:
        out += f'; @launch kernel={nm} grid=({g},1,1) block=({b},1,1) lds={lds}\n'
    out += a.text()
    out += '.section .rodata,"a"\n'
    for _, _, kd in ks: out += kd
    return out

if __name__ == '__main__':
    cfg = Cfg()
    outp = sys.argv[1] if len(sys.argv) > 1 else 'cdna_kernels/' + NAME + '.s'
    for kv in sys.argv[2:]:
        k, v = kv.split('='); setattr(cfg, k, int(v))
    open(outp, 'w').write(build(cfg))
    import subprocess
    r = subprocess.run(['clang', '-x', 'assembler', '-target', 'amdgcn-amd-amdhsa', '-mcpu=gfx950', '-c', outp, '-o', 'chk.o'], capture_output=True, text=True)
    if r.returncode: print(r.stderr[:1500]); sys.exit(1)
    print('wrote', outp)
```

```python
import sys
sys.path.insert(0, 'dev')
from asmlib import *

NAME = 'parallel_sum__sliding_local_dilated__glu_gated_bilinear__prompt'
XN_OFF = 0
XN_BYTES = 32*128*1024
ACT2_OFF = 4 << 20
ACT2_BYTES = 144*128*1024
PART_OFF = 24 << 20
PART_BYTES = 128*65536
FLAG_OFF = 32 << 20
FLAG_BYTES = 1024*128
STAMP_OFF = 40 << 20

class Cfg:
    stamps = False
    k2_n0 = 32
    pf = 1
    k2_noadv = 0
    pf3n = 56
    pf3w = 27
    pf3 = 3
    rawx = 0
    pf012 = 1
    k2_fs = 34
    k2_flg = 2
    k2_chk = 3
    ep3 = 1
    k1_stm = 8
    pfa = 0
    k1_v2 = 1
    k2_ra = 0
    k2_rb = 0
    k2_rc = 0
    k2_rm = 31
    k2_ns = 5
    k2_dbg = 0
    k1_wb = 0
    k1_st = 3
    k0_st = 0
    cpf = 1
    pf0 = 6
    k2_nox = 0
    k2_swap = 0
    k2_pf = 0
    k2_pfd = 6
    k2_early = 0
    k2_rd0 = 0
    k2_dstep = 6
    pfd = 8
    def __init__(self, **kw):
        for k, v in kw.items(): setattr(self, k, v)

def srd(a, d, lo, hi, nbytes, off=0):
    if off:
        a.e(f's_add_u32 s{d}, s{lo}, {off}')
        a.e(f's_addc_u32 s{d+1}, s{hi}, 0')
    else:
        a.e(f's_mov_b32 s{d}, s{lo}')
        a.e(f's_mov_b32 s{d+1}, s{hi}')
    a.e(f's_mov_b32 s{d+2}, {nbytes}')
    a.e(f's_mov_b32 s{d+3}, 0x20000')

def kdesc(name, nvgpr, accum, nsgpr=102):
    return f'''.p2align 6
.amdhsa_kernel {name}
  .amdhsa_next_free_vgpr {nvgpr}
  .amdhsa_next_free_sgpr {nsgpr}
  .amdhsa_accum_offset {accum}
  .amdhsa_group_segment_fixed_size 0
  .amdhsa_kernarg_size 80
  .amdhsa_user_sgpr_count 2
  .amdhsa_user_sgpr_kernarg_segment_ptr 1
  .amdhsa_system_sgpr_workgroup_id_x 1
.end_amdhsa_kernel
'''

def code_pf(a, start, end, vlane, vtmp, vdum, spc, nins):
    a.e(f's_getpc_b64 s[{spc}:{spc+1}]')
    lab = f'Lpc_{start}'
    a.label(lab)
    a.e(f's_add_u32 s{spc}, s{spc}, {start}-{lab}')
    a.e(f's_addc_u32 s{spc+1}, s{spc+1}, 0' if False else f's_addc_u32 s{spc+1}, s{spc+1}, ({start}-{lab})>>63')
    for i in range(nins):
        a.e(f'v_lshlrev_b32 v{vtmp}, 7, v{vlane}')
        if i: a.e(f'v_add_u32 v{vtmp}, {i*8192}, v{vtmp}')
        a.e(f'v_min_u32 v{vtmp}, {end}-{start}-4, v{vtmp}')
        a.e(f'global_load_dword v{vdum}, v{vtmp}, s[{spc}:{spc+1}]')

def khead(a, name):
    a.e(f'.globl {name}'); a.e('.p2align 8'); a.e(f'.type {name},@function'); a.label(name)

class Stamper:
    def __init__(self, a, on, base, kid):
        self.a = a; self.on = on; self.base = base; self.n = 0; self.kid = kid; self.cbase = 98 if False else base + 12
    def at(self, i):
        if not self.on: return
        self.a.e(f's_memrealtime s[{self.base+2*i}:{self.base+2*i+1}]')
        if i in (2, 3):
            self.a.e(f's_memtime s[{98+2*(i-2)}:{99+2*(i-2)}]') if False else None
            j = 6 + (i-2)
            self.a.e(f's_memtime s[{self.cbase+2*(i-2)}:{self.cbase+2*(i-2)+1}]')
        self.n = max(self.n, i+1)
    def flush(self, ws_lo, ws_hi, wave_sreg, vt0, vt1, stmp, n=None):
        if not self.on: return
        a = self.a
        n = n or self.n
        a.e('s_waitcnt lgkmcnt(0)')
        srd(a, stmp, ws_lo, ws_hi, 1 << 20, STAMP_OFF + self.kid*(256*4*64))
        a.e(f's_lshl_b32 s{stmp+4}, s2, 8')
        a.e(f's_lshl_b32 s{stmp+5}, s{wave_sreg}, 6')
        a.e(f's_add_u32 s{stmp+4}, s{stmp+4}, s{stmp+5}')
        a.e(f'v_mov_b32 v{vt0}, s{stmp+4}')
        a.e('s_mov_b64 exec, 1')
        for i in range(8):
            a.e(f'v_mov_b32 v{vt1}, s{self.base+2*i}')
            a.e(f'buffer_store_dword v{vt1}, v{vt0}, s[{stmp}:{stmp+3}], 0 offen offset:{4*i}')
        a.e('s_mov_b64 exec, -1')

def gen_k0(a, cfg):
    name = 'ln_kernel'
    khead(a, name)
    st = Stamper(a, cfg.stamps, 70, 0)
    a.e('s_cmp_ge_u32 s2, 256'); a.e('s_cbranch_scc1 L0_end')
    st.at(0)
    a.e('s_load_dwordx2 s[4:5], s[0:1], 0')
    a.e('s_load_dwordx2 s[6:7], s[0:1], 72')
    if cfg.pf:
        a.e('s_load_dwordx2 s[28:29], s[0:1], 8')
        a.e('s_load_dwordx4 s[32:35], s[0:1], 32')
    a.e('v_lshrrev_b32 v2, 6, v0')
    a.e('v_bfe_u32 v3, v0, 3, 3')
    a.e('v_and_b32 v4, 7, v0')
    a.e('v_readfirstlane_b32 s36, v2')
    a.e('s_lshl_b32 s3, s2, 14')
    a.e('v_lshl_add_u32 v5, v3, 11, s3')
    a.e('v_lshl_add_u32 v5, v2, 8, v5')
    a.e('v_lshl_add_u32 v5, v4, 4, v5')
    a.e('s_mov_b32 s10, 0x400000'); a.e('s_mov_b32 s11, 0x20000')
    a.e('s_waitcnt lgkmcnt(0)')
    st.at(1)
    a.e('s_mov_b32 s8, s4'); a.e('s_mov_b32 s9, s5')
    for it in range(2):
        a.e(f'buffer_load_dwordx4 v[{16+4*it}:{19+4*it}], v5, s[8:11], 0 offen offset:{it*128}')
    nafter = 0
    if cfg.pf:
        a.e('s_cmp_gt_u32 s36, 2'); a.e('s_cbranch_scc1 L0_pfd')
        a.e('s_and_b32 s37, s2, 7'); a.e('s_lshr_b32 s38, s2, 3')
        a.e(f'v_min_u32 v12, {cfg.pf0-1}, v3')
        a.e('s_cmp_eq_u32 s36, 0'); a.e('s_cbranch_scc1 L0_pfq')
        a.e('s_cmp_eq_u32 s36, 1')
        a.e('s_cselect_b32 s40, s32, s34'); a.e('s_cselect_b32 s41, s33, s35'); a.e(f's_mov_b32 s42, {1024*3584*2}'); a.e('s_mov_b32 s43, 0x20000')
        a.e(f's_mul_i32 s39, s38, {7168*cfg.pf0}'); a.e('s_mul_i32 s37, s37, 896'); a.e('s_add_u32 s39, s39, s37')
        a.e('v_mul_u32_u24 v10, 7168, v12'); a.e('v_min_u32 v11, 6, v4'); a.e('v_lshl_add_u32 v10, v11, 7, v10')
        a.e('buffer_load_dword v14, v10, s[40:43], s39 offen')
        a.e('s_branch L0_pfd')
        a.label('L0_pfq')
        srd(a, 40, 28, 29, 1024*3072*2)
        a.e(f's_mul_i32 s39, s38, {6144*cfg.pf0}'); a.e('s_lshl_b32 s37, s37, 8'); a.e('s_add_u32 s39, s39, s37')
        a.e('v_mul_u32_u24 v10, 6144, v12'); a.e('v_min_u32 v11, 5, v4')
        a.e('v_lshrrev_b32 v13, 1, v11'); a.e('v_lshl_add_u32 v10, v13, 11, v10')
        a.e('v_and_b32 v13, 1, v11'); a.e('v_lshl_add_u32 v10, v13, 7, v10')
        a.e('buffer_load_dword v14, v10, s[40:43], s39 offen')
        a.label('L0_pfd')
    a.e('s_cmp_gt_u32 s2, 7'); a.e('s_cbranch_scc1 L0_noflag')
    a.e('s_cmp_lt_u32 s36, 6'); a.e('s_cbranch_scc1 L0_noflag')
    srd(a, 20, 6, 7, FLAG_BYTES, FLAG_OFF)
    a.e('s_lshl_b32 s19, s2, 14')
    a.e('v_subrev_u32 v10, 384, v0'); a.e('v_lshlrev_b32 v10, 7, v10'); a.e('v_mov_b32 v11, 0')
    a.e('buffer_store_dword v11, v10, s[20:23], s19 offen')
    a.label('L0_noflag')
    srd(a, 12, 6, 7, XN_BYTES, XN_OFF)
    a.e('v_lshrrev_b32 v6, 2, v4')
    a.e('v_lshl_add_u32 v6, v2, 2, v6')
    a.e('v_lshlrev_b32 v6, 17, v6')
    a.e('v_and_b32 v7, 3, v4')
    a.e('v_lshl_add_u32 v6, v7, 8, v6')
    a.e('v_lshl_add_u32 v6, v3, 4, v6')
    a.e('s_lshr_b32 s16, s2, 1'); a.e('s_lshl_b32 s16, s16, 10')
    a.e('s_and_b32 s17, s2, 1'); a.e('s_lshl_b32 s17, s17, 7'); a.e('s_add_u32 s16, s16, s17')
    a.e('v_add_u32 v6, s16, v6')
    a.e('v_lshlrev_b32 v8, 6, v3')
    a.e('v_lshl_add_u32 v9, v2, 3, v8')
    a.e('s_mov_b32 s24, 0xffff0000'); a.e('s_mov_b32 s25, 262144')
    a.e('v_mov_b32 v60, 0x43000000')
    a.e('v_mov_b32 v61, 0x3727c5ac')
    a.e('v_mov_b32 v62, 0x3a800000')
    a.e('s_cmp_gt_u32 s36, 2'); a.e('s_cbranch_scc1 L0_w0')
    a.e('s_waitcnt vmcnt(1)' if cfg.pf else 's_waitcnt vmcnt(0)'); a.e('s_branch L0_w2')
    a.label('L0_w0')
    a.e('s_waitcnt vmcnt(0)')
    a.label('L0_w2')
    st.at(2)
    X = 24
    for i in range(8):
        a.e(f'v_lshlrev_b32 v{X+2*i}, 16, v{16+i}')
        a.e(f'v_and_b32 v{X+2*i+1}, s24, v{16+i}')
    T = 40
    def P(r): return f'v[{r}:{r+1}]'
    def red8(r):
        a.e(f'v_add_f32_dpp v{r}, v{r}, v{r} quad_perm:[1,0,3,2] row_mask:0xf bank_mask:0xf')
        a.e(f'v_add_f32_dpp v{r}, v{r}, v{r} quad_perm:[2,3,0,1] row_mask:0xf bank_mask:0xf')
        a.e(f'v_add_f32_dpp v{r}, v{r}, v{r} row_half_mirror row_mask:0xf bank_mask:0xf')
    for i in range(4): a.e(f'v_pk_add_f32 {P(T+2*i)}, {P(X+4*i)}, {P(X+4*i+2)}')
    a.e(f'v_pk_add_f32 {P(T)}, {P(T)}, {P(T+2)}'); a.e(f'v_pk_add_f32 {P(T+4)}, {P(T+4)}, {P(T+6)}')
    a.e(f'v_pk_add_f32 {P(T)}, {P(T)}, {P(T+4)}')
    a.e(f'v_add_f32 v{T}, v{T}, v{T+1}')
    red8(T)
    a.e(f'v_mul_f32 v12, 0xbc000000, v{T}')
    a.e('v_mov_b32 v13, v12')
    for i in range(8): a.e(f'v_pk_add_f32 {P(X+2*i)}, {P(X+2*i)}, v[12:13]')
    for i in range(4): a.e(f'v_pk_mul_f32 {P(T+2*i)}, {P(X+4*i)}, {P(X+4*i)}')
    for i in range(4): a.e(f'v_pk_fma_f32 {P(T+2*i)}, {P(X+4*i+2)}, {P(X+4*i+2)}, {P(T+2*i)}')
    a.e(f'v_pk_add_f32 {P(T)}, {P(T)}, {P(T+2)}'); a.e(f'v_pk_add_f32 {P(T+4)}, {P(T+4)}, {P(T+6)}')
    a.e(f'v_pk_add_f32 {P(T)}, {P(T)}, {P(T+4)}')
    a.e(f'v_add_f32 v13, v{T}, v{T+1}')
    red8(13)
    a.e('ds_write_b64 v9, v[12:13]')
    a.e('s_waitcnt lgkmcnt(0)'); a.e('s_barrier')
    for i in range(4): a.e(f'ds_read_b128 v[{44+4*i}:{47+4*i}], v8 offset:{16*i}')
    a.e('s_waitcnt lgkmcnt(0)')
    a.e(f'v_pk_add_f32 {P(T)}, v[44:45], v[46:47]'); a.e(f'v_pk_add_f32 {P(T+2)}, v[48:49], v[50:51]')
    a.e(f'v_pk_add_f32 {P(16)}, v[52:53], v[54:55]'); a.e(f'v_pk_add_f32 {P(18)}, v[56:57], v[58:59]')
    a.e(f'v_pk_add_f32 {P(T)}, {P(T)}, {P(T+2)}'); a.e(f'v_pk_add_f32 {P(16)}, {P(16)}, {P(18)}')
    a.e(f'v_pk_add_f32 {P(T)}, {P(T)}, {P(16)}')
    a.e(f'v_mul_f32 v{T}, 0x3e000000, v{T}')
    for r in range(44, 60, 2): a.e(f'v_sub_f32 v{r}, v{r}, v{T}')
    a.e('v_mul_f32 v16, v44, v44'); a.e('v_mul_f32 v17, v46, v46')
    for r in range(48, 60, 2): a.e(f'v_fmac_f32 v{16 + (r//2) % 2}, v{r}, v{r}')
    a.e('v_add_f32 v16, v16, v17')
    a.e(f'v_fmac_f32 v{T+1}, v16, v60')
    a.e(f'v_fmac_f32 v61, v{T+1}, v62')
    a.e('v_rsq_f32 v60, v61')
    a.e(f'v_sub_f32 v62, v{T}, v12')
    a.e('v_mov_b32 v61, v60')
    a.e('v_mul_f32 v62, v62, v60')
    a.e('v_mov_b32 v63, v62')
    for i in range(8): a.e(f'v_pk_fma_f32 {P(X+2*i)}, {P(X+2*i)}, v[60:61], v[62:63]')
    for i in range(8): a.e(f'v_cvt_pk_bf16_f32 v{16+i}, v{X+2*i}, v{X+2*i+1}')
    st.at(3)
    a.e('buffer_store_dwordx4 v[16:19], v6, s[12:15], 0 offen' + ['', ' sc1', ' nt', ' sc0 sc1', ' sc1 nt'][cfg.k0_st])
    a.e('buffer_store_dwordx4 v[20:23], v6, s[12:15], s25 offen' + ['', ' sc1', ' nt', ' sc0 sc1', ' sc1 nt'][cfg.k0_st])
    st.at(4)
    if st.on:
        a.e('s_waitcnt vmcnt(0)'); a.e('s_and_b32 s36, s36, 3')
    st.at(5)
    st.flush(6, 7, 36, 10, 11, 92)
    a.label('L0_end')
    a.e('s_endpgm')
    return name, (256, 512, 512), kdesc(name, 64, 64, 102 if cfg.stamps else 48)

class LgkmTracker:
    def __init__(self, a):
        self.a = a
        self.q = []
    def read(self, text):
        ins = Ins(text)
        self.a.e(text)
        self.q.append(set(ins.dst))
    def other(self):
        self.q.append(set())
    def need(self, regs):
        regs = set(regs)
        last = -1
        for i, d in enumerate(self.q):
            if d & regs: last = i
        if last < 0: return
        n = len(self.q) - 1 - last
        n = min(n, 15)
        self.a.e(f's_waitcnt lgkmcnt({n})')
        self.q = self.q[len(self.q) - n:] if n else []
    def drain(self):
        self.q = []
    def state(self):
        return [tuple(sorted(x)) for x in self.q]

L1_ACT = 0; L1_W = 65536; L1_HALO = 147456; L1_TOTAL = 151552
def gen_k1(a, cfg):
    name = NAME + '_kernel'
    khead(a, name)
    st = Stamper(a, cfg.stamps, 70, 1)
    S_XN = 8; S_W = 12; S_O = 32
    sACT = 36; sWO = 37; sWS = 42; sM_ACT = 47; sM_W = 48; sM_H = 49; sCNT = 50; sWAVE = 51; sWM = 52; sRB = 54; sJ = 55
    vLANE = 1; vDA = 2; vDH = 3; vDW = 4
    vA = 9; vHA = 10; vGU = 11; vQa = 13; vQb = 15; vHW = 17
    vT = 20
    a.e('s_cmp_ge_u32 s2, 256'); a.e('s_cbranch_scc1 L1_end')
    st.at(0)
    a.e('s_load_dwordx2 s[4:5], s[0:1], 8')
    a.e('s_load_dwordx4 s[56:59], s[0:1], 32')
    a.e('s_load_dwordx2 s[6:7], s[0:1], 72')
    a.e('s_load_dwordx2 s[68:69], s[0:1], 48')
    S_PF = 88; sPFO = 86; sPFS = 87; vPF = 19; vDUM = 31; aBI = 200
    a.e('s_load_dwordx2 s[92:93], s[0:1], 16')
    a.e(f'v_lshrrev_b32 v{vT}, 6, v0')
    a.e(f'v_and_b32 v{vLANE}, 63, v0')
    a.e(f'v_readfirstlane_b32 s{sWAVE}, v{vT}')
    a.e(f's_and_b32 s{sJ}, s2, 7'); a.e(f's_lshl_b32 s{sJ}, s{sJ}, 2')
    a.e('s_lshr_b32 s3, s2, 3')
    a.e(f's_lshr_b32 s{sRB}, s3, 2'); a.e('s_and_b32 s3, s3, 3'); a.e(f's_add_u32 s{sJ}, s{sJ}, s3')
    a.e(f's_lshr_b32 s{sWM}, s{sWAVE}, 1')
    a.e(f's_lshl_b32 s60, s{sRB}, 14'); a.e(f's_lshl_b32 s61, s{sWAVE}, 12'); a.e('s_add_u32 s61, s61, s60')
    a.e(f'v_lshl_add_u32 v{vDA}, v{vLANE}, 4, s61')
    a.e('s_max_u32 s60, s60, 1024'); a.e('s_sub_u32 s60, s60, 1024')
    a.e(f's_lshl_b32 s61, s{sWAVE}, 8'); a.e('s_add_u32 s61, s61, s60')
    a.e(f'v_lshl_add_u32 v{vDH}, v{vLANE}, 2, s61')
    vPFA = 28
    if cfg.pfa:
        a.e(f's_lshl_b32 s60, s{sRB}, 14'); a.e('s_lshl_b32 s61, s3, 12'); a.e('s_add_u32 s60, s60, s61')
        a.e(f's_lshl_b32 s61, s{sWAVE}, 10'); a.e('s_add_u32 s60, s60, s61'); a.e(f's_add_u32 s60, s60, {cfg.pfa*131072}')
        a.e(f'v_min_u32 v{vPFA}, 7, v{vLANE}'); a.e(f'v_lshl_add_u32 v{vPFA}, v{vPFA}, 7, s60')
    a.e(f's_lshl_b32 s{sM_ACT}, s{sWAVE}, 12')
    a.e(f's_mul_i32 s{sM_W}, s{sWAVE}, 5120'); a.e(f's_add_u32 s{sM_W}, s{sM_W}, {L1_W}')
    a.e(f's_lshl_b32 s{sM_H}, s{sWAVE}, 8'); a.e(f's_add_u32 s{sM_H}, s{sM_H}, {L1_HALO}')
    a.e(f's_mov_b32 s{sACT}, 0')
    for d in range(5): a.e(f's_mov_b32 s{sWO+d}, 0')
    a.e(f's_lshl_b32 s62, s{sJ}, 6')
    a.e(f's_mul_i32 s63, s{sJ}, 224')
    a.e(f's_and_b32 s64, s{sJ}, 1'); a.e('s_lshl_b32 s64, s64, 1')
    a.e('s_movk_i32 s65, 6144'); a.e('s_movk_i32 s66, 7168')
    a.e(f's_cmp_eq_u32 s{sWAVE}, 1'); a.e('s_cbranch_scc1 L1_set1')
    a.e(f's_cmp_eq_u32 s{sWAVE}, 2'); a.e('s_cbranch_scc1 L1_set2')
    a.e(f's_cmp_eq_u32 s{sWAVE}, 3'); a.e('s_cbranch_scc1 L1_set3')
    for w in range(4):
        if w: a.label(f'L1_set{w}')
        kinds = []
        if cfg.cpf and w == 3: code_pf(a, 'L1_setdone', 'L1_end', vLANE, vT, vDUM, 94, 3)
        for d in range(5):
            p = 5*w + d
            if p < 6: kind, pl, C, magic = 'q', p, 12, 5462
            elif p < 13: kind, pl, C, magic = 'g', p-6, 14, 4682
            else: kind, pl, C, magic = 'u', p-13, 14, 4682
            kinds.append(kind)
            t0, t1, t2, t3 = vT, vT+1, vT+2, vT+3
            a.e(f'v_add_u32 v{t0}, {64*pl}, v{vLANE}')
            a.e(f'v_mul_u32_u24 v{t1}, {magic}, v{t0}')
            a.e(f'v_lshrrev_b32 v{t1}, 16, v{t1}')
            a.e(f'v_mul_u32_u24 v{t2}, {C}, v{t1}')
            a.e(f'v_sub_u32 v{t0}, v{t0}, v{t2}')
            if kind == 'q':
                a.e(f'v_lshrrev_b32 v{t2}, 1, v{t1}'); a.e(f'v_and_b32 v{t2}, 2, v{t2}')
                a.e(f'v_xor_b32 v{t0}, v{t0}, v{t2}')
                a.e(f'v_lshrrev_b32 v{t2}, 2, v{t0}'); a.e(f'v_lshlrev_b32 v{t2}, 11, v{t2}')
                a.e(f'v_and_b32 v{t0}, 3, v{t0}')
                a.e(f'v_lshl_add_u32 v{t0}, v{t0}, 4, v{t2}')
                a.e(f'v_add_u32 v{t0}, s62, v{t0}')
            else:
                a.e(f'v_add_u32 v{t0}, s64, v{t0}')
                a.e(f'v_subrev_u32 v{t2}, 14, v{t0}')
                a.e(f'v_min_u32 v{t0}, v{t0}, v{t2}')
                a.e(f'v_lshlrev_b32 v{t0}, 4, v{t0}')
                a.e(f'v_add_u32 v{t0}, s63, v{t0}')
            a.e(f'v_and_b32 v{t2}, 3, v{t1}')
            a.e(f'v_bfe_u32 v{t3}, v{t1}, 2, 2')
            a.e(f'v_lshl_add_u32 v{t2}, v{t3}, 3, v{t2}')
            a.e(f'v_lshrrev_b32 v{t3}, 4, v{t1}')
            a.e(f'v_lshl_add_u32 v{t2}, v{t3}, 2, v{t2}')
            a.e(f'v_mad_u32_u24 v{vDW+d}, v{t2}, s{65 if kind == "q" else 66}, v{t0}')
        if cfg.pf:
            t0, t1, t2 = vT, vT+1, vT+2
            if w < 3:
                a.e(f'v_mul_u32_u24 v{t0}, 21846, v{vLANE}'); a.e(f'v_lshrrev_b32 v{t0}, 16, v{t0}')
                a.e(f'v_mul_u32_u24 v{t1}, 3, v{t0}'); a.e(f'v_sub_u32 v{t1}, v{vLANE}, v{t1}')
                a.e(f's_lshl_b32 s60, s{sRB}, 2'); a.e(f'v_add_u32 v{t0}, s60, v{t0}')
                if w == 0:
                    a.e(f'v_lshlrev_b32 v{t1}, 11, v{t1}'); a.e(f'v_add_u32 v{t1}, s62, v{t1}')
                else:
                    a.e(f'v_lshlrev_b32 v{t1}, 7, v{t1}'); a.e(f'v_min_u32 v{t1}, 220, v{t1}'); a.e(f'v_add_u32 v{t1}, s63, v{t1}')
                a.e(f'v_mad_u32_u24 v{vPF}, v{t0}, s{65 if w == 0 else 66}, v{t1}')
                nl = 12
                step = 32*(6144 if w == 0 else 7168)
                a.e(f's_mov_b32 s{sPFS}, {step}'); a.e(f's_mov_b32 s{sPFO}, {step*(cfg.pfd-3)}')
            else:
                a.e(f'v_lshlrev_b32 v{vPF}, 7, v{vLANE}')
                nl = 7 if cfg.pf3 != 3 else cfg.pf3n
                if cfg.pf3 == 3:
                    a.e(f's_mov_b32 s{sPFS}, {nl*128}'); a.e(f's_mov_b32 s{sPFO}, {(-cfg.pf3w*nl*128) & 0xffffffff}')
                    a.e(f's_mul_i32 s60, s2, {224*128}')
                else:
                    a.e(f's_mov_b32 s{sPFS}, 896'); a.e(f's_mul_i32 s{sPFO}, s2, {224*128}')
            a.e(f'v_mov_b32 v{t2}, 0x80000000')
            a.e(f'v_cmp_gt_u32 vcc, {nl}, v{vLANE}')
            a.e(f'v_cndmask_b32 v{vPF}, v{t2}, v{vPF}, vcc')
        if cfg.stamps == 2: st.at(4)
        a.e('s_waitcnt lgkmcnt(0)')
        if cfg.stamps == 2: st.at(5)
        if cfg.pf:
            if w == 0: srd(a, S_PF, 4, 5, 1024*3072*2 if cfg.pf012 else 0)
            elif w == 1: srd(a, S_PF, 56, 57, 1024*3584*2 if cfg.pf012 else 0)
            elif w == 2: srd(a, S_PF, 58, 59, 1024*3584*2 if cfg.pf012 else 0)
            elif cfg.pf3 == 3:
                a.e(f's_add_u32 s{S_PF}, s68, s60'); a.e(f's_addc_u32 s{S_PF+1}, s69, 0')
                a.e(f's_mov_b32 s{S_PF+2}, {224*128}'); a.e(f's_mov_b32 s{S_PF+3}, 0x20000')
            else: srd(a, S_PF, 68, 69, 1024*3584*2 if cfg.pf3 == 1 else 0)
        for d in range(5):
            kind = kinds[d]
            if kind == 'q': srd(a, S_W+4*d, 4, 5, 1024*3072*2); a.e(f's_mov_b32 s{sWS+d}, {32*6144}')
            elif kind == 'g': srd(a, S_W+4*d, 56, 57, 1024*3584*2); a.e(f's_mov_b32 s{sWS+d}, {32*7168}')
            else: srd(a, S_W+4*d, 58, 59, 1024*3584*2); a.e(f's_mov_b32 s{sWS+d}, {32*7168}')
        if w < 3: a.e('s_branch L1_setdone')
    a.label('L1_setdone')
    if cfg.rawx:
        a.e(f'v_and_b32 v25, 15, v{vLANE}'); a.e('v_lshlrev_b32 v25, 11, v25'); a.e(f'v_lshrrev_b32 v26, 4, v{vLANE}'); a.e('v_lshl_add_u32 v25, v26, 4, v25')
        a.e(f's_lshl_b32 s60, s{sRB}, 19'); a.e(f's_lshl_b32 s61, s{sWAVE}, 17'); a.e('s_add_u32 s60, s60, s61'); a.e('v_add_u32 v25, s60, v25')
        for d in range(1, 4): a.e(f'v_add_u32 v{25+d}, {32768*d}, v25')
    srd(a, S_XN, 6, 7, XN_BYTES, XN_OFF)

    def dma_list(slot):
        L = []
        for d in range(5):
            L.append((f's_add_u32 m0, s{sM_W}, {slot*20480 + d*1024}',
                      f'buffer_load_dwordx4 v{vDW+d}, s[{S_W+4*d}:{S_W+4*d+3}], s{sWO+d} offen lds',
                      f's_add_u32 s{sWO+d}, s{sWO+d}, s{sWS+d}'))
        for d in range(4):
            if cfg.rawx:
                L.append((f's_add_u32 m0, s{sM_ACT}, {slot*16384 + d*1024}',
                          f'buffer_load_dwordx4 v{25+d}, s[{S_XN}:{S_XN+3}], s{sACT} offen lds', None))
            else:
                L.append((f's_add_u32 m0, s{sM_ACT}, {slot*16384}' if d == 0 else None,
                          f'buffer_load_dwordx4 v{vDA}, s[{S_XN}:{S_XN+3}], s{sACT} offen offset:{d*1024} lds', None))
        L.append((f's_add_u32 m0, s{sM_H}, {slot*1024}',
                  f'buffer_load_dword v{vDH}, s[{S_XN}:{S_XN+3}], s{sACT} offen lds',
                  f's_add_u32 s{sACT}, s{sACT}, {64 if cfg.rawx else 131072}'))
        if cfg.pf:
            L.append((None, f'buffer_load_dword v{vDUM}, v{vPF}, s[{S_PF}:{S_PF+3}], s{sPFO} offen',
                      f's_add_u32 s{sPFO}, s{sPFO}, s{sPFS}'))
        if cfg.pfa:
            L.append((None, f'buffer_load_dword v{vDUM}, v{vPFA}, s[{S_XN}:{S_XN+3}], s{sACT} offen', None))
        return L
    VMW = 23 if cfg.pf else 20
    if cfg.k1_v2: VMW = 10 + 2*(cfg.pf + (1 if cfg.pfa else 0))
    else: assert not cfg.pfa
    for pre, ins, post in dma_list(0):
        if pre: a.e(pre)
        a.e(ins)
        if post: a.e(post)
    if cfg.stamps == 2: st.at(3)
    b = Asm()
    srd(b, S_O, 6, 7, ACT2_BYTES, ACT2_OFF)
    t0, t1, t2 = vT, vT+1, vT+2
    b.e(f's_lshl_b32 s60, s{sWM}, 13')
    b.e(f'v_lshl_add_u32 v{vA}, v{vLANE}, 4, s60')
    b.e(f'v_lshlrev_b32 v{vHA}, 4, v{vLANE}'); b.e(f'v_add_u32 v{vHA}, {L1_HALO}, v{vHA}')
    b.e(f'v_lshrrev_b32 v{t0}, 2, v{vLANE}')
    b.e(f'v_and_b32 v{t1}, 3, v{vLANE}'); b.e(f'v_lshlrev_b32 v{t1}, 3, v{t1}')
    b.e(f'v_add_u32 v{t1}, {L1_W}, v{t1}')
    b.e(f'v_mul_u32_u24 v{t2}, 224, v{t0}'); b.e(f'v_add_u32 v{vGU}, v{t2}, v{t1}')
    b.e(f'v_add_u32 v{vGU+1}, 40960, v{vGU}')
    b.e(f'v_mul_u32_u24 v{t2}, 192, v{t0}'); b.e(f'v_add_u32 v{t2}, v{t2}, v{t1}')
    b.e(f'v_lshlrev_b32 v{t0}, 1, v{vLANE}'); b.e(f'v_and_b32 v{t0}, 32, v{t0}')
    b.e(f'v_add_u32 v{vQa}, v{t2}, v{t0}'); b.e(f'v_sub_u32 v{vQb}, v{t2}, v{t0}')
    b.e(f'v_add_u32 v{vQa+1}, 40960, v{vQa}'); b.e(f'v_add_u32 v{vQb+1}, 40960, v{vQb}')
    b.e(f's_lshl_b32 s60, s{sWAVE}, 5'); b.e('s_add_u32 s60, s60, 64')
    b.e(f'v_xor_b32 v{t0}, s60, v{t0}')
    b.e(f'v_add_u32 v{vHW}, v{t2}, v{t0}'); b.e(f'v_add_u32 v{vHW+1}, 40960, v{vHW}')
    b.e(f'v_and_b32 v{t0}, 15, v{vLANE}'); b.e(f'v_lshrrev_b32 v{t1}, 4, v{vLANE}'); b.e(f'v_lshlrev_b32 v{t1}, 2, v{t1}')
    b.e(f'v_sub_u32 v{t0}, v{t0}, v{t1}')
    b.e(f'v_mov_b32 v{vT+3}, 0xf149f2ca')
    b.e(f's_or_b32 s60, s{sRB}, s{sWM}'); b.e('s_cmp_eq_u32 s60, 0'); b.e('s_cselect_b64 s[60:61], -1, 0')
    for isprev in range(2):
        for r in range(4):
            b.e(f'v_add_u32 v{t1}, {16*isprev - r}, v{t0}')
            b.e(f'v_and_b32 v{t2}, 0xfffffff1, v{t1}')
            b.e(f'v_cmp_eq_u32 vcc, 0, v{t2}')
            b.e(f'v_cndmask_b32_e64 v{vT+4}, v{vT+3}, 0, vcc')
            b.e(f'v_accvgpr_write_b32 a{aBI+4*isprev+r}, v{vT+4}')
            if isprev:
                b.e(f'v_cndmask_b32_e64 v{vT+4}, v{vT+4}, v{vT+3}, s[60:61]')
                b.e(f'v_accvgpr_write_b32 a{aBI+8+r}, v{vT+4}')
    b.e(f'v_mov_b32 v{vT+4}, 0x3f803f80')
    for r in range(4): b.e(f'v_accvgpr_write_b32 a{aBI+12+r}, v{vT+4}')
    if not cfg.k1_v2:
        for i in range(32, 256): b.e(f'v_mov_b32 v{i}, 0')
        for i in range(96, 196): b.e(f'v_accvgpr_write_b32 a{i}, 0')
    fill = [x.text for x in b.ins]
    dl = dma_list(1) + ([] if cfg.k1_v2 else dma_list(2))
    per = len(fill) // len(dl)
    k = 0
    for n_, (pre, ins, post) in enumerate(dl):
        if pre: a.e(pre)
        stop = (n_+1)*per if n_ < len(dl)-1 else len(fill)
        half = k + (stop - k)//2
        def run(upto):
            nonlocal k
            while k < upto or (k < len(fill) and fill[k].startswith(('s_cselect', 's_addc'))):
                a.e(fill[k]); k += 1
        run(k+1)
        a.e(ins)
        if post: a.e(post)
        run(stop)
    st.at(1)
    a.e(f's_mov_b32 s{sCNT}, 0')
    a.e(f's_and_b32 s60, s{sWAVE}, 1'); a.e('s_cmp_eq_u32 s60, 1'); a.e('s_cbranch_scc1 L1_wn1')

    aACT = 0; aHA = 64; aW = 72; aHW = 88; aACC = 96
    NW = 4; PF = 3
    for wn in range(2):
        if wn == 1: a.label('L1_wn1')
        if wn == 0:
            units = [('q', 0), ('q', 2), ('q', 4), ('q', 6), ('q', 8), ('q', 10), ('g', 0), ('g', 2), ('u', 0), ('u', 2)]
            names = ['q0', 'q1', 'k0', 'k1', 'v0', 'v1', 'g0', 'g1', 'u0', 'u1']
            order_v = ['g0', 'g1', 'u0', 'u1', 'q0', 'q1', 'k0']; order_a = ['k1', 'v0', 'v1']
            if cfg.ep3: order_v = ['g0', 'g1', 'u0', 'q0', 'k0', 'v0', 'v1']; order_a = ['q1', 'k1', 'u1']
        else:
            units = [('g', 4+2*i) for i in range(5)] + [('u', 4+2*i) for i in range(5)]
            names = [f'g{i}' for i in range(2, 7)] + [f'u{i}' for i in range(2, 7)]
            order_v = ['g2', 'g3', 'g4', 'g5', 'g6', 'u2', 'u3']; order_a = ['u4', 'u5', 'u6']
            if cfg.ep3:
                names = ['g2', 'u2', 'g3', 'u3', 'g6', 'g4', 'u4', 'g5', 'u5', 'u6']
                units = [(nm[0], 2*int(nm[1])) for nm in names]
        acc = {}
        for i, nm in enumerate(order_v):
            for m in range(8): acc[(nm, m)] = ('v', 32 + (i*8+m)*4)
        for i, nm in enumerate(order_a):
            for m in range(8): acc[(nm, m)] = ('a', aACC + (i*8+m)*4)
        acc['halo'] = ('a', aACC + 96)
        def R(x): return f'{x[0]}[{x[1]}:{x[1]+3}]'
        def wread(slot, n, buf):
            kind, c0 = units[n]
            half = slot >> 1
            out = []
            for h in range(2):
                if kind == 'q':
                    base = (vQa if c0 % 4 == 0 else vQb) + half
                    off = (slot & 1)*20480 + c0*16 + h*3072
                else:
                    base = vGU + half
                    off = (slot & 1)*20480 + (6144 if kind == 'g' else 13312) + c0*16 + h*3584
                out.append(f'ds_read_b64_tr_b16 a[{aW+4*buf+2*h}:{aW+4*buf+2*h+1}], v{base} offset:{off}')
            return out
        def aread(slot, par, m):
            return f'ds_read_b128 a[{aACT+par*32+4*m}:{aACT+par*32+4*m+3}], v{vA} offset:{slot*16384+m*1024}'
        def hreads(slot):
            half = slot >> 1
            return [f'ds_read_b128 a[{aHA}:{aHA+3}], v{vHA} offset:{slot*1024}'] + \
                   [f'ds_read_b64_tr_b16 a[{aHW+2*h}:{aHW+2*h+1}], v{vHW+half} offset:{(slot&1)*20480+h*3072}' for h in range(2)]
        tr = LgkmTracker(a)
        def tail_reads(nslot, npar, wbase):
            sched = {}
            for k in range(PF):
                r = wread(nslot, k, (wbase + 10 + k) % NW)
                sched.setdefault((7+k)*8 + 0, []).append(r[0]); sched.setdefault((7+k)*8 + 1, []).append(r[1])
            extra = [aread(nslot, npar, m) for m in range(8)] + hreads(nslot)
            pos = [58, 59, 60, 61, 62, 63, 66, 67, 68, 69, 70]
            for p, r in zip(pos, extra): sched.setdefault(p, []).append(r)
            return sched
        if cfg.k1_v2:
            def wfrag(slot, n, reg):
                kind, c0 = units[n]
                half = slot >> 1
                out = []
                for h_ in range(2):
                    if kind == 'q':
                        base = (vQa if c0 % 4 == 0 else vQb) + half
                        off = (slot & 1)*20480 + c0*16 + h_*3072
                    else:
                        base = vGU + half
                        off = (slot & 1)*20480 + (6144 if kind == 'g' else 13312) + c0*16 + h_*3584
                    out.append(f'ds_read_b64_tr_b16 a[{reg+2*h_}:{reg+2*h_+1}], v{base} offset:{off}')
                return out
            aW2 = 216
            def wr(p, n, second): return aW2 + 8*((5*p + n) & 3) + 4*second
            def areg_(stage, m): return aACT + (stage & 1)*32 + 4*m
            def AR(r): return f'a[{r}:{r+3}]'
            carry = []
            def flat(dl):
                out = []
                for pre, ins, post in dl:
                    if pre: out.append(pre)
                    out.append(ins)
                    if post: out.append(post)
                return out
            def period(h, kind, side=None):
                nonlocal carry
                p = h + 1
                first = kind != 'P'; second = kind != 'Q'
                g0 = 0 if h % 2 == 0 else 5
                gn = 5 - g0
                secs = [x for x in (0, 1) if (first if x == 0 else second)]
                mf = [(n, m, sec) for n in range(3) for m in range(8) for sec in secs]
                L = 8*len(secs)
                T0 = len(mf)
                mf += [(n, m, sec) for m in range(8) for n in (3, 4) for sec in secs]
                N = len(mf)
                gaps = [[] for _ in range(N)]
                def place(item, lo, hi, cap=1):
                    for g in range(lo, hi+1):
                        if len(gaps[g]) < cap:
                            gaps[g].append(item); return g
                    return None
                def wf(n):
                    return (wfrag(h % 4, g0+n, wr(p, n, 0)) if first else []) + (wfrag((h+1) % 4, g0+n, wr(p, n, 1)) if second else [])
                for n, lst in ((0, wf(1)), (1, wf(2) ), (2, wf(3) + wf(4))):
                    for k_, r in enumerate(lst): gaps[n*L + k_].append(('r', r))
                if kind != 'Q':
                    cap = 1 if first else 2
                    cur = 1
                    for x in carry:
                        g = place(('x', x), cur, T0-1, cap)
                        assert g is not None
                        cur = g + (1 if (first or x.startswith('s_add_u32 m0')) else 0)
                    per = 2*len(secs)
                    for m in range(8):
                        g = T0 + per*m + (per - 2 if first else 0)
                        gaps[g].append(('r', f'ds_read_b128 {AR(areg_(h+2, m))}, v{vA} offset:{((h+2) % 4)*16384 + m*1024}'))
                    tail = wfrag((h+1) % 4, gn, wr(p+1, 0, 0)) + wfrag((h+2) % 4, gn, wr(p+1, 0, 1)) + hreads((h+2) % 4)
                    for k_, r in enumerate(tail):
                        g = place(('r', r), T0 + (per*k_ if first else 2*k_), N-1, 1); assert g is not None
                    items = flat(dma_list(h % 4))
                    cur = T0
                    hi = N-1 if not (kind == 'H' and h % 4 == 2) else N-4
                    while items:
                        g = place(('x', items[0]), cur, hi, 1)
                        if g is None: break
                        cur = g + 1; items.pop(0)
                    carry = items
                    if kind == 'H' and h % 4 == 2:
                        gaps[N-3].append(('x', f's_add_u32 s{sCNT}, s{sCNT}, 1')); gaps[N-2].append(('x', f's_cmp_eq_u32 s{sCNT}, 8'))
                    if kind == 'H' and h % 4 == 0 and cfg.ep3:
                        gaps[T0-4].append(('x', f's_cmp_eq_u32 s{sCNT}, 7'))
                        for k_, r_ in enumerate((sM_W, sM_ACT, sM_H)): gaps[T0-3+k_].append(('x', f's_cselect_b32 s{r_}, 170000, s{r_}'))
                if side:
                    lead = 3
                    for k_, x in enumerate(side):
                        gaps[min(N-1, lead + (k_*(N-lead))//len(side))].append(('w' if x.startswith('ds_write') else 'x', x))
                if kind == 'Q' and cfg.ep3:
                    mf = [(n, m, 0) for n in range(5) for m in range(8)]
                for i, (n, m, sec) in enumerate(mf):
                    nm = names[g0+n]
                    if kind != 'Q' and i == T0:
                        if cfg.stamps == 3: a.e('s_memtime s[96:97]')
                        a.e(f's_waitcnt vmcnt({VMW}) lgkmcnt(0)'); tr.drain(); a.e('s_barrier')
                        if cfg.stamps == 3:
                            if kind == 'P': a.e('s_mov_b32 s98, 0')
                            a.e('v_mov_b32 v29, s96'); a.e(f'v_cmp_eq_u32 vcc, s98, v{vLANE}'); a.e('v_cndmask_b32 v30, v30, v29, vcc')
                            a.e('s_add_u32 s98, s98, 1')
                    wreg = AR(wr(p, n, sec)); areg = AR(areg_(h+sec, m))
                    tr.need(regs_of(wreg) + regs_of(areg) + (regs_of(AR(wr(p, n, 1))) if (n > 0 and second) else []))
                    d = R(acc[(nm, m)])
                    c = '0' if (kind == 'P' or (kind == 'H0' and sec == 0)) else d
                    if nm[0] == 'v': a.e(f'v_mfma_f32_16x16x32_bf16 {d}, {areg}, {wreg}, {c}')
                    else: a.e(f'v_mfma_f32_16x16x32_bf16 {d}, {wreg}, {areg}, {c}')
                    for k_, x in gaps[i]:
                        if k_ == 'r': tr.read(x)
                        elif k_ == 'w': a.e(x); tr.other()
                        else: a.e(x)
                    if kind != 'Q' and i == L + 5:
                        tr.need(regs_of(AR(aHA)) + regs_of(AR(aHW)))
                        d = R(acc['halo'])
                        a.e(f'v_mfma_f32_16x16x32_bf16 {d}, {AR(aHW)}, {AR(aHA)}, {"0" if kind == "P" else d}')
            carry = flat(dma_list(2))
            a.e(f's_waitcnt vmcnt({VMW})'); a.e('s_barrier')
            st.at(2)
            if st.on: a.e('s_waitcnt lgkmcnt(0)')
            for r in wfrag(0, 5, wr(0, 0, 1)) + [f'ds_read_b128 {AR(areg_(0, m))}, v{vA} offset:{m*1024}' for m in range(8)] + hreads(0): tr.read(r)
            period(-1, 'P')
            period(0, 'H0')
            entry_state = tr.state(); entry_carry = list(carry)
            a.label(f'L1_loop{wn}')
            period(1, 'H'); period(2, 'H')
            exit_q = list(tr.q)
            a.e(f's_cbranch_scc1 L1_tail{wn}')
            period(3, 'H'); period(4, 'H')
            assert tr.state() == entry_state, (tr.state(), entry_state)
            assert carry == entry_carry, (carry, entry_carry)
            a.e(f's_branch L1_loop{wn}')
            a.label(f'L1_tail{wn}')
            tr.q = exit_q
            if not cfg.ep3: period(31, 'Q')
        else:
            a.e(f's_waitcnt vmcnt({VMW})'); a.e('s_barrier')
            st.at(2)
            if st.on: a.e('s_waitcnt lgkmcnt(0)')
            sched = tail_reads(0, 0, -10)
            for p in sorted(sched):
                for r in sched[p]: tr.read(r)
            entry_state = tr.state()
            a.label(f'L1_loop{wn}')
            for u in range(4):
                slot = u; par = u & 1; wbase = (10*u) % NW
                sched = {}
                for n in range(7):
                    r = wread(slot, n+PF, (wbase + n + PF) % NW)
                    sched.setdefault(n*8 + 0, []).append(r[0]); sched.setdefault(n*8 + 1, []).append(r[1])
                for p, l in tail_reads((slot+1) % 4, par ^ 1, wbase).items(): sched.setdefault(p, []).extend(l)
                misc = {}
                dl = dma_list((slot+3) % 4)
                for i, (pre, ins, post) in enumerate(dl):
                    p = 3 + 5*i
                    if pre: misc.setdefault(p-1, []).append(pre)
                    misc.setdefault(p, []).append(ins)
                    if post: misc.setdefault(p, []).append(post)
                for n in range(10):
                    nm = names[n]
                    wreg = f'a[{aW+4*((wbase+n)%NW)}:{aW+4*((wbase+n)%NW)+3}]'
                    for m in range(8):
                        i = n*8 + m
                        if i == 56:
                            if cfg.stamps == 3: a.e('s_memtime s[96:97]')
                            a.e(f's_waitcnt vmcnt({VMW}) lgkmcnt(0)'); tr.drain(); a.e('s_barrier')
                            if cfg.stamps == 3:
                                a.e(f's_lshl_b32 s97, s{sCNT}, 2'); a.e(f's_add_u32 s97, s97, {u}')
                                a.e('v_mov_b32 v29, s96'); a.e(f'v_cmp_eq_u32 vcc, s97, v{vLANE}'); a.e('v_cndmask_b32 v30, v30, v29, vcc')
                        areg = f'a[{aACT+par*32+4*m}:{aACT+par*32+4*m+3}]'
                        tr.need(regs_of(wreg) + regs_of(areg))
                        d = R(acc[(nm, m)])
                        if nm[0] == 'v': a.e(f'v_mfma_f32_16x16x32_bf16 {d}, {areg}, {wreg}, {d}')
                        else: a.e(f'v_mfma_f32_16x16x32_bf16 {d}, {wreg}, {areg}, {d}')
                        for r in sched.get(i, []): tr.read(r)
                        for x in misc.get(i, []): a.e(x)
                        if i == 12:
                            tr.need(regs_of(f'a[{aHA}:{aHA+3}]') + regs_of(f'a[{aHW}:{aHW+3}]'))
                            d = R(acc['halo'])
                            a.e(f'v_mfma_f32_16x16x32_bf16 {d}, a[{aHW}:{aHW+3}], a[{aHA}:{aHA+3}], {d}')
                        if u == 3 and i == 76:
                            a.e(f's_add_u32 s{sCNT}, s{sCNT}, 1'); a.e(f's_cmp_lt_u32 s{sCNT}, 8')
            assert tr.state() == entry_state, (tr.state(), entry_state)
            a.e(f's_cbranch_scc1 L1_loop{wn}')
        if cfg.ep3:
            vO = vDA; vX = vDW
            def P2(r): return f'v[{r}:{r+1}]'
            def fetch(o, x, tmp):
                if x[0] == 'v': return x[1]
                for r in range(4): o.e(f'v_accvgpr_read_b32 v{tmp+r}, a{x[1]+r}')
                return tmp
            def hmul(o, g, u_, m, dst, tmp):
                gb = acc[(g, m)][1]; ub = fetch(o, acc[(u_, m)], tmp)
                o.e(f'v_pk_mul_f32 {P2(gb)}, {P2(gb)}, {P2(ub)}'); o.e(f'v_pk_mul_f32 {P2(gb+2)}, {P2(gb+2)}, {P2(ub+2)}')
                o.e(f'v_cvt_pk_bf16_f32 v{dst}, v{gb}, v{gb+1}'); o.e(f'v_cvt_pk_bf16_f32 v{dst+1}, v{gb+2}, v{gb+3}')
            def ostore(o, src, m, soff, n=4, cls=0):
                op = {4: 'buffer_store_dwordx4', 2: 'buffer_store_dwordx2'}[n]
                o.e(f'{op} v[{src}:{src+n-1}], v{vO + (m >> 2)}, s[{S_O}:{S_O+3}], {soff} offen offset:{(m&3)*1024}' + (' sc1' if (cfg.k1_st >> cls) & 1 else ''))
            def hblock(o, ga, ua, gb_, ub_, m, so, cls, tmp):
                dst = acc[(ga, m)][1]
                hmul(o, ga, ua, m, dst, tmp); hmul(o, gb_, ub_, m, dst+2, tmp+4); ostore(o, dst, m, so, cls=cls)
            def attn1(o, m, q, kp, kc, v0w, v1w, bp, BI, Sx, Ox):
                ONES = f'a[{aBI+12}:{aBI+15}]'
                o.e(f'v_mfma_f32_16x16x32_bf16 v[{Sx}:{Sx+3}], v[{kp}:{kp+3}], v[{q}:{q+3}], 0')
                o.e(f'v_mfma_f32_16x16x32_bf16 v[{Sx+4}:{Sx+7}], v[{kc}:{kc+3}], v[{q}:{q+3}], 0')
                o.e('; gap'); o.e('; gap')
                for r in (0, 2): o.e(f'v_pk_fma_f32 {P2(Sx+r)}, {P2(Sx+r)}, s[68:69], {P2(bp+r)}')
                for r in (0, 2): o.e(f'v_pk_fma_f32 {P2(Sx+4+r)}, {P2(Sx+4+r)}, s[68:69], {P2(BI+r)}')
                M = Sx + 8
                o.e(f'v_max3_f32 v{M}, v{Sx}, v{Sx+1}, v{Sx+2}'); o.e(f'v_max3_f32 v{M+1}, v{Sx+3}, v{Sx+4}, v{Sx+5}')
                o.e(f'v_max3_f32 v{M}, v{M}, v{Sx+6}, v{Sx+7}'); o.e(f'v_max_f32 v{M}, v{M}, v{M+1}')
                o.e(f'v_mov_b32 v{M+1}, v{M}')
                o.e(f'v_permlane32_swap_b32 v{M}, v{M+1}')
                o.e(f'v_max_f32 v{M}, v{M}, v{M+1}'); o.e(f'v_mov_b32 v{M+1}, v{M}')
                o.e(f'v_permlane16_swap_b32 v{M}, v{M+1}')
                o.e(f'v_max_f32 v{M}, v{M}, v{M+1}'); o.e(f'v_mov_b32 v{M+1}, v{M}')
                for r in (0, 2, 4, 6): o.e(f'v_pk_add_f32 {P2(Sx+r)}, {P2(Sx+r)}, {P2(M)} neg_lo:[0,1] neg_hi:[0,1]')
                for r in range(8): o.e(f'v_exp_f32 v{Sx+r}, v{Sx+r}')
                for r in range(4): o.e(f'v_cvt_pk_bf16_f32 v{Sx+12+r}, v{Sx+2*r}, v{Sx+2*r+1}')
                Pp = Sx + 12
                o.e(f'v_mfma_f32_16x16x32_bf16 v[{Ox+8}:{Ox+11}], {ONES}, v[{Pp}:{Pp+3}], 0')
                o.e(f'v_mfma_f32_16x16x32_bf16 v[{Ox}:{Ox+3}], v[{v0w}:{v0w+3}], v[{Pp}:{Pp+3}], 0')
                o.e(f'v_mfma_f32_16x16x32_bf16 v[{Ox+4}:{Ox+7}], v[{v1w}:{v1w+3}], v[{Pp}:{Pp+3}], 0')
                o.e(f'v_rcp_f32 v{Ox+8}, v{Ox+8}')
                o.e(f'v_mov_b32 v{Ox+9}, v{Ox+8}')
                for r in (0, 2, 4, 6): o.e(f'v_pk_mul_f32 {P2(Ox+r)}, {P2(Ox+r)}, {P2(Ox+8)}')
                for r in range(4): o.e(f'v_cvt_pk_bf16_f32 v{q+r}, v{Ox+2*r}, v{Ox+2*r+1}')
                ostore(o, q, m, 's67', cls=3)
            def merge(A, B):
                A = [x.text for x in A.ins]; B = [x.text for x in B.ins]
                want = []
                for i_, x in enumerate(A):
                    nxt = A[i_+1] if i_+1 < len(A) else ''
                    w = 0
                    if x.startswith('v_mfma') and not nxt.startswith('v_mfma'): w = 7
                    elif nxt.startswith('v_permlane'): w = 2
                    elif nxt.startswith('v_mfma') and x.startswith('v_cvt'): w = 2
                    elif x.startswith(('v_rcp',)): w = 1
                    want.append(w)
                tot = sum(want)
                extra = max(0, len(B) - tot)
                k = 0
                for i_, x in enumerate(A):
                    a.e(x)
                    n_ = want[i_] + ((i_+1)*extra)//len(A) - (i_*extra)//len(A)
                    for _ in range(n_):
                        if k < len(B): a.e(B[k]); k += 1
                while k < len(B): a.e(B[k]); k += 1
            o = Asm()
            o.e(f's_lshl_b32 s60, s{sRB}, 14'); o.e(f's_lshl_b32 s61, s{sWM}, 13'); o.e('s_add_u32 s60, s60, s61')
            o.e(f'v_lshl_add_u32 v{vO}, v{vLANE}, 4, s60')
            o.e(f'v_add_u32 v{vO+1}, 4096, v{vO}')
            o.e(f's_mul_i32 s62, s{sJ}, 7'); o.e(f's_and_b32 s63, s{sJ}, 1'); o.e('s_add_u32 s62, s62, s63'); o.e('s_lshr_b32 s62, s62, 1')
            o.e('s_add_u32 s62, s62, 32'); o.e('s_lshl_b32 s62, s62, 17')
            o.e('s_add_u32 s64, s62, 131072'); o.e('s_add_u32 s65, s62, 262144')
            o.e(f's_lshl_b32 s60, s{sWM}, 14'); o.e('s_add_u32 s60, s60, 4096')
            o.e(f'v_lshl_add_u32 v{vX}, v{vLANE}, 4, s60')
            o.e(f'v_and_b32 v{vT}, 15, v{vLANE}'); o.e(f'v_lshrrev_b32 v{vT+1}, 4, v{vLANE}')
            o.e(f'v_lshl_add_u32 v{vX+1}, v{vT}, 5, s60'); o.e(f'v_lshl_add_u32 v{vX+1}, v{vT+1}, 3, v{vX+1}')
            o.e(f's_mul_i32 s60, s{sWM}, 40960'); o.e('s_sub_u32 s61, 40960, s60')
            o.e(f'v_lshl_add_u32 v{vX+2}, v{vLANE}, 4, s60')
            o.e(f'v_lshl_add_u32 v{vX+3}, v{vT+1}, 7, s61'); o.e(f'v_lshl_add_u32 v{vX+3}, v{vT}, 1, v{vX+3}')
            hb = fetch(o, acc['halo'], vT)
            o.e(f'v_cvt_pk_bf16_f32 v{vT+4}, v{hb}, v{hb+1}'); o.e(f'v_cvt_pk_bf16_f32 v{vT+5}, v{hb+2}, v{hb+3}')
            o.e(f'ds_write_b64 v{vX+2}, v[{vT+4}:{vT+5}] offset:{8*wn}')
            of = 1024 + wn*512
            o.e(f'ds_write_b16 v{vX+3}, v{vT+4} offset:{of}'); o.e(f'ds_write_b16_d16_hi v{vX+3}, v{vT+4} offset:{of+32}')
            o.e(f'ds_write_b16 v{vX+3}, v{vT+5} offset:{of+64}'); o.e(f'ds_write_b16_d16_hi v{vX+3}, v{vT+5} offset:{of+96}')
            if cfg.pf and cfg.pf3 == 2:
                srd(o, S_PF, 68, 69, 1024*3584*2)
                o.e(f's_lshl_b32 s60, s2, 2'); o.e(f's_add_u32 s60, s60, s{sWAVE}'); o.e('s_mul_i32 s60, s60, 7168')
                o.e(f'v_min_u32 v{vPF}, 55, v{vLANE}'); o.e(f'v_lshlrev_b32 v{vPF}, 7, v{vPF}')
                o.e(f'buffer_load_dword v{vDUM}, v{vPF}, s[{S_PF}:{S_PF+3}], s60 offen')
            o.e('s_mov_b32 s68, 0x3e8293ee'); o.e('s_mov_b32 s69, 0x3e8293ee')
            o.e(f's_lshl_b32 s67, s{sJ}, 17')
            if wn == 0:
                def packqk(o, n0, n1, m):
                    d = acc[(n0, m)][1]
                    b1 = fetch(o, acc[(n1, m)], vT + 4*(m & 1))
                    o.e(f'v_cvt_pk_bf16_f32 v{d}, v{d}, v{d+1}'); o.e(f'v_cvt_pk_bf16_f32 v{d+1}, v{d+2}, v{d+3}')
                    o.e(f'v_cvt_pk_bf16_f32 v{d+2}, v{b1}, v{b1+1}'); o.e(f'v_cvt_pk_bf16_f32 v{d+3}, v{b1+2}, v{b1+3}')
                    return d
                PV0 = acc[('v0', 0)][1]; PV1 = acc[('v1', 0)][1]
                def packv(o, Pv, m, off):
                    b_ = Pv + 4*m
                    c1 = f'v_cvt_pk_bf16_f32 v{Pv+2+2*m}, v{b_}, v{b_+1}'; c2 = f'v_cvt_pk_bf16_f32 v{Pv+3+2*m}, v{b_+2}, v{b_+3}'
                    for x in ((c2, c1) if m == 0 else (c1, c2)): o.e(x)
                    if m >= 3: o.e(f'ds_write_b64 v{vX+1}, v[{Pv+2+2*m}:{Pv+3+2*m}] offset:{(m-3)*2048+off}')
                for m in range(3, 8):
                    d = packqk(o, 'k0', 'k1', m); o.e(f'ds_write_b128 v{vX}, v[{d}:{d+3}] offset:{(m-3)*2048}')
                for m in range(4, 8):
                    d = packqk(o, 'q0', 'q1', m); o.e(f'ds_write_b128 v{vX}, v[{d}:{d+3}] offset:{10240+(m-4)*1024}')
                for m in range(8): packv(o, PV0, m, 1024)
                for m in range(8): packv(o, PV1, m, 1536)
            else:
                o.e('s_add_u32 s66, s62, 393216'); o.e('s_sub_u32 s61, s62, 131072'); o.e('s_add_u32 s61, s61, 8')
                o.e('s_cmp_eq_u32 s63, 1'); o.e('s_cselect_b32 s66, s61, s66')
                for m in range(8): hblock(o, 'g2', 'u2', 'g3', 'u3', m, 's64', 0, vT)
            period(31, 'Q', side=[x.text for x in o.ins])
            if cfg.stamps != 2: st.at(3)
            a.e('s_waitcnt lgkmcnt(0)'); a.e('s_barrier')
            if cfg.stamps == 4: st.at(0)
            if cfg.pf:
                a.e('s_mov_b32 s94, 0x200000'); a.e('s_mov_b32 s95, 0x20000')
                a.e(f's_lshl_b32 s60, s2, 13'); a.e(f's_lshl_b32 s61, s{sWAVE}, 11'); a.e('s_add_u32 s60, s60, s61')
                a.e(f'v_lshlrev_b32 v{vPF}, 5, v{vLANE}')
                a.e(f'buffer_load_dword v{vDUM}, v{vPF}, s[92:95], s60 offen')
            A = Asm(); B = Asm()
            if wn == 0:
                KP = PV0 + 18; BI = PV1 + 18
                a.e(f's_lshl_b32 s60, s{sWM}, 12'); a.e('s_add_u32 s60, s60, 4096')
                a.e(f'v_subrev_u32 v{vX}, s60, v{vX}'); a.e(f'v_subrev_u32 v{vX+1}, s60, v{vX+1}')
                a.e(f'ds_read_b128 v[{KP}:{KP+3}], v{vX}')
                a.e(f'ds_read_b64 v[{PV0}:{PV0+1}], v{vX+1} offset:1024')
                a.e(f'ds_read_b64 v[{PV1}:{PV1+1}], v{vX+1} offset:1536')
                for m in range(4): hblock(a, 'g0', 'u0', 'g1', 'u1', m, 's62', 1, vT)
                for m in range(3): packqk(a, 'k0', 'k1', m)
                packqk(a, 'q0', 'q1', 0)
                for r in range(12): a.e(f'v_accvgpr_read_b32 v{BI+r}, a{aBI+r}')
                a.e('s_waitcnt lgkmcnt(0)')
                Sx = acc[('g1', 0)][1]; Ox = acc[('u0', 0)][1]
                for m in range(4):
                    attn1(A, m, acc[('q0', m)][1], acc[('k0', m-1)][1] if m else KP, acc[('k0', m)][1], PV0+2*m, PV1+2*m, BI+(8 if m == 0 else 4), BI, Sx, Ox)
                for m in range(1, 4): packqk(B, 'q0', 'q1', m)
                for m in range(4, 8): hblock(B, 'g0', 'u0', 'g1', 'u1', m, 's62', 1, vT)
            else:
                F = acc[('u2', 0)][1]
                KR = F; V0 = F + 20; V1 = F + 30; QR = F + 40; BI = F + 56
                for i_ in range(5):
                    a.e(f'ds_read_b128 v[{KR+4*i_}:{KR+4*i_+3}], v{vX} offset:{i_*2048}')
                    if i_: a.e(f'ds_read_b128 v[{QR+4*(i_-1)}:{QR+4*(i_-1)+3}], v{vX} offset:{10240+(i_-1)*1024}')
                for i_ in range(5):
                    a.e(f'ds_read_b64 v[{V0+2*i_}:{V0+2*i_+1}], v{vX+1} offset:{i_*2048+1024}')
                    a.e(f'ds_read_b64 v[{V1+2*i_}:{V1+2*i_+1}], v{vX+1} offset:{i_*2048+1536}')
                for r in range(8): a.e(f'v_accvgpr_read_b32 v{BI+r}, a{aBI+r}')
                for m in range(2): hblock(a, 'g4', 'u4', 'g5', 'u5', m, 's65', 0, vT)
                a.e('s_waitcnt lgkmcnt(0)')
                Sx = acc[('g3', 0)][1]; Ox = Sx + 16
                for i_ in range(4):
                    attn1(A, 4+i_, QR+4*i_, KR+4*i_, KR+4*i_+4, V0+2*i_, V1+2*i_, BI+4, BI, Sx, Ox)
                for m in range(2, 8): hblock(B, 'g4', 'u4', 'g5', 'u5', m, 's65', 0, vT)
                for m in range(8):
                    dst = acc[('g6', m)][1]
                    hmul(B, 'g6', 'u6', m, dst, vT + 4*(m & 1)); ostore(B, dst, m, 's66', n=2, cls=2)
            merge(A, B)
            if cfg.stamps != 2: st.at(4)
        else:
            if cfg.stamps != 2: st.at(3)
            a.e('s_waitcnt vmcnt(0) lgkmcnt(0)'); a.e('s_barrier')
            if cfg.stamps == 4: st.at(0)
            vO = vDA
            a.e(f's_lshl_b32 s60, s{sRB}, 14'); a.e(f's_lshl_b32 s61, s{sWM}, 13'); a.e('s_add_u32 s60, s60, s61')
            a.e(f'v_lshl_add_u32 v{vO}, v{vLANE}, 4, s60')
            a.e(f'v_add_u32 v{vO+1}, 4096, v{vO}')
            a.e(f's_mul_i32 s62, s{sJ}, 7'); a.e(f's_and_b32 s63, s{sJ}, 1'); a.e('s_add_u32 s62, s62, s63'); a.e('s_lshr_b32 s62, s62, 1')
            a.e('s_add_u32 s62, s62, 32'); a.e('s_lshl_b32 s62, s62, 17')
            def fetch(x, tmp):
                if x[0] == 'v': return x[1]
                for r in range(4): a.e(f'v_accvgpr_read_b32 v{tmp+r}, a{x[1]+r}')
                return tmp
            def hmul(g, u_, m, dst, tmp):
                gb = fetch(acc[(g, m)], tmp); ub = fetch(acc[(u_, m)], tmp+4)
                a.e(f'v_pk_mul_f32 v[{gb}:{gb+1}], v[{gb}:{gb+1}], v[{ub}:{ub+1}]')
                a.e(f'v_pk_mul_f32 v[{gb+2}:{gb+3}], v[{gb+2}:{gb+3}], v[{ub+2}:{ub+3}]')
                a.e(f'v_cvt_pk_bf16_f32 v{dst}, v{gb}, v{gb+1}')
                a.e(f'v_cvt_pk_bf16_f32 v{dst+1}, v{gb+2}, v{gb+3}')
            def ostore(src, m, soff, n=4, vbase=None, cls=0):
                vb = (vbase if vbase is not None else vO) + (m >> 2)
                op = {4: 'buffer_store_dwordx4', 2: 'buffer_store_dwordx2'}[n]
                a.e(f'{op} v[{src}:{src+n-1}], v{vb}, s[{S_O}:{S_O+3}], {soff} offen offset:{(m&3)*1024}' + (' sc1' if (cfg.k1_st >> cls) & 1 and (cls != 0 or m < cfg.k1_stm) else ''))
            if cfg.pf:
                a.e('s_mov_b32 s94, 0x200000'); a.e('s_mov_b32 s95, 0x20000')
                a.e(f's_lshl_b32 s64, s2, 13'); a.e(f's_lshl_b32 s65, s{sWAVE}, 11'); a.e('s_add_u32 s64, s64, s65')
                a.e(f'v_lshlrev_b32 v{vPF}, 5, v{vLANE}')
                a.e(f'buffer_load_dword v{vDUM}, v{vPF}, s[92:95], s64 offen')
            vX = vDW
            a.e(f'v_lshlrev_b32 v{vX}, 4, v{vLANE}')
            a.e(f'v_and_b32 v{vX+1}, 15, v{vLANE}'); a.e(f'v_lshlrev_b32 v{vX+1}, 5, v{vX+1}')
            a.e(f'v_lshrrev_b32 v{vX+2}, 4, v{vLANE}'); a.e(f'v_lshl_add_u32 v{vX+1}, v{vX+2}, 3, v{vX+1}')
            hb = fetch(acc['halo'], vT)
            a.e(f'v_cvt_pk_bf16_f32 v{vT+4}, v{hb}, v{hb+1}'); a.e(f'v_cvt_pk_bf16_f32 v{vT+5}, v{hb+2}, v{hb+3}')
            a.e(f's_cmp_eq_u32 s{sWM}, 1'); a.e(f's_cbranch_scc1 L1_hv{wn}')
            a.e(f'ds_write_b64 v{vX}, v[{vT+4}:{vT+5}] offset:{8*wn}')
            a.e(f's_branch L1_hd{wn}')
            a.label(f'L1_hv{wn}')
            a.e(f'v_lshlrev_b32 v{vX+2}, 7, v{vX+2}')
            a.e(f'v_and_b32 v{vX+3}, 15, v{vLANE}'); a.e(f'v_lshl_add_u32 v{vX+2}, v{vX+3}, 1, v{vX+2}')
            o = 1024 + wn*512
            a.e(f'ds_write_b16 v{vX+2}, v{vT+4} offset:{o}'); a.e(f'ds_write_b16_d16_hi v{vX+2}, v{vT+4} offset:{o+32}')
            a.e(f'ds_write_b16 v{vX+2}, v{vT+5} offset:{o+64}'); a.e(f'ds_write_b16_d16_hi v{vX+2}, v{vT+5} offset:{o+96}')
            a.label(f'L1_hd{wn}')
            a.e(f's_lshl_b32 s64, s{sWM}, 14'); a.e('s_add_u32 s64, s64, 4096')
            a.e(f'v_add_u32 v{vX+2}, s64, v{vX}'); a.e(f'v_add_u32 v{vX+3}, s64, v{vX+1}')
            a.e('s_mov_b32 s68, 0x3e8293ee'); a.e('s_mov_b32 s69, 0x3e8293ee')
            a.e(f's_lshl_b32 s67, s{sJ}, 17')
            def P2(r): return f'v[{r}:{r+1}]'
            def attention(blocks, BI, W1, W2):
                ONES = f'a[{aBI+12}:{aBI+15}]'
                for g0 in range(0, len(blocks), 2):
                    grp = [(blk, W1 + 16*i, W2 + 16*i) for i, blk in enumerate(blocks[g0:g0+2])]
                    for (m, q, kp, kc, v0w, v1w, first), Sx, Ox in grp:
                        a.e(f'v_mfma_f32_16x16x32_bf16 v[{Sx}:{Sx+3}], v[{kp}:{kp+3}], v[{q}:{q+3}], 0')
                        a.e(f'v_mfma_f32_16x16x32_bf16 v[{Sx+4}:{Sx+7}], v[{kc}:{kc+3}], v[{q}:{q+3}], 0')
                    for (m, q, kp, kc, v0w, v1w, first), Sx, Ox in grp:
                        bp = BI + (8 if first else 4)
                        for r in (0, 2): a.e(f'v_pk_fma_f32 {P2(Sx+r)}, {P2(Sx+r)}, s[68:69], {P2(bp+r)}')
                        for r in (0, 2): a.e(f'v_pk_fma_f32 {P2(Sx+4+r)}, {P2(Sx+4+r)}, s[68:69], {P2(BI+r)}')
                        M = Sx + 8
                        a.e(f'v_max3_f32 v{M}, v{Sx}, v{Sx+1}, v{Sx+2}'); a.e(f'v_max3_f32 v{M+1}, v{Sx+3}, v{Sx+4}, v{Sx+5}')
                        a.e(f'v_max3_f32 v{M}, v{M}, v{Sx+6}, v{Sx+7}'); a.e(f'v_max_f32 v{M}, v{M}, v{M+1}')
                        a.e(f'v_mov_b32 v{M+1}, v{M}')
                    for _, Sx, Ox in grp: a.e(f'v_permlane32_swap_b32 v{Sx+8}, v{Sx+9}')
                    for _, Sx, Ox in grp:
                        a.e(f'v_max_f32 v{Sx+8}, v{Sx+8}, v{Sx+9}'); a.e(f'v_mov_b32 v{Sx+9}, v{Sx+8}')
                    for _, Sx, Ox in grp: a.e(f'v_permlane16_swap_b32 v{Sx+8}, v{Sx+9}')
                    for _, Sx, Ox in grp:
                        a.e(f'v_max_f32 v{Sx+8}, v{Sx+8}, v{Sx+9}'); a.e(f'v_mov_b32 v{Sx+9}, v{Sx+8}')
                        for r in (0, 2, 4, 6): a.e(f'v_pk_add_f32 {P2(Sx+r)}, {P2(Sx+r)}, {P2(Sx+8)} neg_lo:[0,1] neg_hi:[0,1]')
                    for _, Sx, Ox in grp:
                        for r in range(8): a.e(f'v_exp_f32 v{Sx+r}, v{Sx+r}')
                    for _, Sx, Ox in grp:
                        for r in range(4): a.e(f'v_cvt_pk_bf16_f32 v{Sx+12+r}, v{Sx+2*r}, v{Sx+2*r+1}')
                    for (m, q, kp, kc, v0w, v1w, first), Sx, Ox in grp:
                        Pp = Sx + 12
                        a.e(f'v_mfma_f32_16x16x32_bf16 v[{Ox+8}:{Ox+11}], {ONES}, v[{Pp}:{Pp+3}], 0')
                        a.e(f'v_mfma_f32_16x16x32_bf16 v[{Ox}:{Ox+3}], v[{v0w}:{v0w+3}], v[{Pp}:{Pp+3}], 0')
                        a.e(f'v_mfma_f32_16x16x32_bf16 v[{Ox+4}:{Ox+7}], v[{v1w}:{v1w+3}], v[{Pp}:{Pp+3}], 0')
                    for _, Sx, Ox in grp:
                        a.e(f'v_rcp_f32 v{Ox+8}, v{Ox+8}')
                    for _, Sx, Ox in grp:
                        a.e(f'v_mov_b32 v{Ox+9}, v{Ox+8}')
                    for (m, q, kp, kc, v0w, v1w, first), Sx, Ox in grp:
                        for r in (0, 2, 4, 6): a.e(f'v_pk_mul_f32 {P2(Ox+r)}, {P2(Ox+r)}, {P2(Ox+8)}')
                        for r in range(4): a.e(f'v_cvt_pk_bf16_f32 v{q+r}, v{Ox+2*r}, v{Ox+2*r+1}')
                        ostore(q, m, 's67', cls=3)
            if wn == 1:
                a.e('s_add_u32 s64, s62, 131072'); a.e('s_add_u32 s65, s62, 262144')
                a.e('s_add_u32 s66, s62, 393216'); a.e('s_sub_u32 s61, s62, 131072'); a.e('s_add_u32 s61, s61, 8')
                a.e('s_cmp_eq_u32 s63, 1'); a.e('s_cselect_b32 s66, s61, s66')
                for m in range(8):
                    for (ga, ua, gb_, ub_, so) in (('g2', 'u2', 'g3', 'u3', 's64'), ('g4', 'u4', 'g5', 'u5', 's65')):
                        dst = acc[(ga, m)][1]
                        hmul(ga, ua, m, dst, vT)
                        hmul(gb_, ub_, m, dst+2, vT)
                        ostore(dst, m, so)
                    dst = acc[('g6', m)][1]
                    hmul('g6', 'u6', m, dst, vT)
                    ostore(dst, m, 's66', n=2, cls=2)
                if cfg.k1_wb == 1: a.e('buffer_wbl2 sc1')
                if cfg.k1_wb == 2:
                    a.e(f's_cmp_lg_u32 s{sWAVE}, 1'); a.e('s_cbranch_scc1 L1_nowb')
                    a.e('s_waitcnt vmcnt(0)'); a.e('buffer_wbl2 sc1')
                    a.label('L1_nowb')
                if cfg.k1_wb == 3:
                    a.e(f's_cmp_lg_u32 s{sWAVE}, 1'); a.e('s_cbranch_scc1 L1_nowb')
                    a.e(f's_cmp_lg_u32 s{sRB}, 0'); a.e('s_cbranch_scc1 L1_nowb')
                    a.e('s_waitcnt vmcnt(0)'); a.e('buffer_wbl2 sc1')
                    a.label('L1_nowb')
                F = acc[('u2', 0)][1]
                KR = F; V0 = F + 20; V1 = F + 30; QR = F + 40; BI = acc[('g3', 0)][1]
                W1 = acc[('g5', 0)][1]; W2 = W1 - 64 + 0
                W2 = BI + 0
                W2 = acc[('g3', 0)][1]; BI = F + 56
                for r in range(8): a.e(f'v_accvgpr_read_b32 v{BI+r}, a{aBI+r}')
                if cfg.stamps == 4: st.at(1)
                a.e('s_waitcnt lgkmcnt(0)'); a.e('s_barrier')
                if cfg.stamps == 4: st.at(2)
                for i in range(5):
                    a.e(f'ds_read_b128 v[{KR+4*i}:{KR+4*i+3}], v{vX+2} offset:{i*2048}')
                    if i: a.e(f'ds_read_b128 v[{QR+4*(i-1)}:{QR+4*(i-1)+3}], v{vX+2} offset:{10240+(i-1)*1024}')
                for i in range(5):
                    a.e(f'ds_read_b64 v[{V0+2*i}:{V0+2*i+1}], v{vX+3} offset:{i*2048+1024}')
                    a.e(f'ds_read_b64 v[{V1+2*i}:{V1+2*i+1}], v{vX+3} offset:{i*2048+1536}')
                a.e('s_waitcnt lgkmcnt(0)')
                attention([(4+i, QR+4*i, KR+4*i, KR+4*i+4, V0+2*i, V1+2*i, False) for i in range(4)], BI, W1, W2)
                if cfg.stamps != 2: st.at(4)
            else:
                def packqk(n0, n1, m):
                    d = acc[(n0, m)][1]
                    b1 = fetch(acc[(n1, m)], vT)
                    a.e(f'v_cvt_pk_bf16_f32 v{d}, v{d}, v{d+1}'); a.e(f'v_cvt_pk_bf16_f32 v{d+1}, v{d+2}, v{d+3}')
                    a.e(f'v_cvt_pk_bf16_f32 v{d+2}, v{b1}, v{b1+1}'); a.e(f'v_cvt_pk_bf16_f32 v{d+3}, v{b1+2}, v{b1+3}')
                    return d
                for m in range(8):
                    dst = acc[('g0', m)][1]
                    hmul('g0', 'u0', m, dst, vT); hmul('g1', 'u1', m, dst+2, vT)
                    ostore(dst, m, 's62', cls=1)
                PV0 = acc[('u0', 0)][1]; PV1 = PV0 + 18
                KP = PV0 + 36; BI = KP + 4
                for m in (3, 4, 5, 6, 7, 0, 1, 2):
                    d = packqk('k0', 'k1', m)
                    if m >= 3: a.e(f'ds_write_b128 v{vX+2}, v[{d}:{d+3}] offset:{(m-3)*2048}')
                    for (nm, Pv, o) in (('v0', PV0, 1024), ('v1', PV1, 1536)):
                        b_ = fetch(acc[(nm, m)], vT+4)
                        a.e(f'v_cvt_pk_bf16_f32 v{Pv+2+2*m}, v{b_}, v{b_+1}'); a.e(f'v_cvt_pk_bf16_f32 v{Pv+3+2*m}, v{b_+2}, v{b_+3}')
                        if m >= 3: a.e(f'ds_write_b64 v{vX+3}, v[{Pv+2+2*m}:{Pv+3+2*m}] offset:{(m-3)*2048+o}')
                    if m >= 4:
                        d = packqk('q0', 'q1', m)
                        a.e(f'ds_write_b128 v{vX+2}, v[{d}:{d+3}] offset:{10240+(m-4)*1024}')
                    if m == 7:
                        if cfg.stamps == 4: st.at(1)
                        a.e('s_waitcnt lgkmcnt(0)'); a.e('s_barrier')
                        if cfg.stamps == 4: st.at(2)
                        a.e(f's_mul_i32 s64, s{sWM}, 12288')
                        a.e(f'v_add_u32 v{vX}, s64, v{vX}'); a.e(f'v_add_u32 v{vX+1}, s64, v{vX+1}')
                        a.e(f'ds_read_b128 v[{KP}:{KP+3}], v{vX}')
                        a.e(f'ds_read_b64 v[{PV0}:{PV0+1}], v{vX+1} offset:1024')
                        a.e(f'ds_read_b64 v[{PV1}:{PV1+1}], v{vX+1} offset:1536')
                for m in range(4): packqk('q0', 'q1', m)
                for r in range(12): a.e(f'v_accvgpr_read_b32 v{BI+r}, a{aBI+r}')
                a.e('s_waitcnt lgkmcnt(0)')
                W1 = acc[('q1', 0)][1]; W2 = acc[('g1', 0)][1]
                attention([(m, acc[('q0', m)][1], acc[('k0', m-1)][1] if m else KP, acc[('k0', m)][1], PV0+2*m, PV1+2*m, m == 0) for m in range(4)], BI, W1, W2)
                if cfg.stamps != 2: st.at(4)
        if st.on: a.e('s_waitcnt vmcnt(0)')
        if cfg.stamps != 2: st.at(5)
        st.flush(6, 7, sWAVE, vT, vT+1, 92)
        if cfg.stamps == 3:
            srd(a, 92, 6, 7, 1 << 20, STAMP_OFF + (1 << 19))
            a.e(f's_lshl_b32 s96, s2, 10'); a.e(f's_lshl_b32 s97, s{sWAVE}, 8'); a.e('s_add_u32 s96, s96, s97')
            a.e(f'v_lshl_add_u32 v{vT}, v{vLANE}, 2, s96')
            a.e(f'buffer_store_dword v30, v{vT}, s[92:95], 0 offen')
        if wn == 0: a.e('s_endpgm')
    a.label('L1_end')
    a.e('s_endpgm')
    return name, (256, 256, L1_TOTAL), kdesc(name, 512, 256)

def gen_k2(a, cfg):
    name = 'gemm2_kernel'
    khead(a, name)
    st = Stamper(a, cfg.stamps, 70, 2)
    NS = cfg.k2_ns
    FS = cfg.k2_fs; HS = 2*(36-FS); TOT = FS + HS
    WB = NS*16384
    S_A = 8; S_W = 12; S_P = 16; S_X = 20; S_OUT = 24; S_F = 28
    sACT = 32; sWO = 33; sM_A = 34; sM_W = 35; sU = 36; sEND = 37; sWAVE = 38; sPART = 39; sRB = 40; sCB = 41; sLOADU = 42; sTILE = 43
    sBEG = 66; sLCNT = 67; sGOT = 68
    vLANE = 1; vDA = 2; vDW = 3; vA = 7; vW = 9; vT = 20; vXO = 17; vDUM = 18; vFLG = 19
    vPS = 28; vPL = 29; vFS = 30; vFL = 31
    XR = 32
    vDH = 48
    vWH = 50
    sM_H = 69
    ACC = 64
    FR = 128
    a.e('s_cmp_ge_u32 s2, 256'); a.e('s_cbranch_scc1 L2_end')
    st.at(0)
    a.e('s_load_dwordx2 s[6:7], s[0:1], 72')
    a.e('s_load_dwordx2 s[44:45], s[0:1], 16')
    a.e('s_load_dwordx4 s[48:51], s[0:1], 48')
    a.e('s_load_dwordx2 s[4:5], s[0:1], 0')
    a.e(f'v_lshrrev_b32 v{vT}, 6, v0')
    a.e(f'v_and_b32 v{vLANE}, 63, v0')
    a.e(f'v_readfirstlane_b32 s{sWAVE}, v{vT}')
    a.e('s_and_b32 s3, s2, 7'); a.e(f's_lshr_b32 s{sPART}, s3, 2'); a.e('s_and_b32 s3, s3, 3'); a.e('s_lshl_b32 s3, s3, 2')
    a.e('s_lshr_b32 s52, s2, 3'); a.e(f's_and_b32 s{sCB}, s52, 7'); a.e('s_lshr_b32 s52, s52, 3'); a.e(f's_add_u32 s{sRB}, s3, s52')
    a.e(f's_cmp_eq_u32 s{sPART}, 0')
    a.e(f's_cselect_b32 s{sBEG}, 0, {FS}'); a.e(f's_cselect_b32 s{sEND}, {TOT}, 72')
    a.e(f's_cselect_b32 s{sLOADU}, 0, {TOT}'); a.e(f's_cselect_b32 s{sWO}, 0, {(TOT-16)*131072}')
    a.e(f's_mov_b32 s{sU}, 0'); a.e(f's_mov_b32 s{sLCNT}, 0')
    a.e(f's_lshr_b32 s57, s{sWAVE}, 1'); a.e(f's_and_b32 s58, s{sWAVE}, 1')
    a.e('s_lshl_b32 s52, s57, 17')
    a.e('s_lshl_b32 s54, s58, 12'); a.e('s_add_u32 s52, s52, s54')
    a.e(f's_lshl_b32 s54, s{sRB}, 13'); a.e('s_add_u32 s52, s52, s54')
    a.e(f'v_lshl_add_u32 v{vDA}, v{vLANE}, 4, s52')
    a.e(f's_lshl_b32 s{sACT}, s{sLOADU}, 18')
    a.e(f's_lshl_b32 s{sM_A}, s{sWAVE}, 12'); a.e(f's_add_u32 s{sM_W}, s{sM_A}, {WB}')
    a.e(f'v_lshrrev_b32 v{vT}, 4, v{vLANE}'); a.e(f'v_and_b32 v{vT+1}, 15, v{vLANE}')
    a.e(f's_lshl_b32 s52, s{sWAVE}, 15'); a.e(f's_lshl_b32 s54, s{sCB}, 8'); a.e('s_add_u32 s52, s52, s54')
    a.e(f'v_lshl_add_u32 v{vT+3}, v{vT}, 11, s52')
    a.e(f'v_lshlrev_b32 v{vT+2}, 1, v{vT}')
    a.e(f'v_xor_b32 v{vT+2}, v{vT+2}, v{vT+1}')
    a.e(f'v_lshl_add_u32 v{vDW}, v{vT+2}, 4, v{vT+3}')
    a.e(f'v_xor_b32 v{vDW+1}, 128, v{vDW}'); a.e(f'v_add_u32 v{vDW+1}, 8192, v{vDW+1}')
    a.e(f'v_add_u32 v{vDW+2}, 16384, v{vDW}'); a.e(f'v_add_u32 v{vDW+3}, 16384, v{vDW+1}')
    a.e(f's_mov_b32 s55, {1024*1024*2}'); a.e(f's_mov_b32 s56, {3584*1024*2}')
    a.e(f's_mov_b32 s{S_W+3}, 0x20000'); a.e(f's_mov_b32 s{S_A+2}, {ACT2_BYTES}'); a.e(f's_mov_b32 s{S_A+3}, 0x20000')
    a.e('s_waitcnt lgkmcnt(0)')
    a.e(f's_add_u32 s{S_A}, s6, {ACT2_OFF}'); a.e(f's_addc_u32 s{S_A+1}, s7, 0')
    a.e(f's_cmp_lt_u32 s{sLOADU}, 16')
    a.e(f's_cselect_b32 s{S_W}, s44, s48'); a.e(f's_cselect_b32 s{S_W+1}, s45, s49')
    a.e(f's_cselect_b32 s{S_W+2}, s55, s56')
    def dma_list(slot, masked=False, sw=False, adv=True):
        L = []
        for d in range(2 if masked else 4):
            L.append(([f's_add_u32 m0, s{sM_H if masked else sM_W}, {slot*16384 + d*1024}'],
                      f'buffer_load_dwordx4 v{(vDH if masked else vDW)+d}, s[{S_W}:{S_W+3}], s{sWO} offen lds', []))
        for d in range(4):
            L.append(([f's_add_u32 m0, s{sM_A}, {slot*16384}'] if d == 0 else [],
                      f'buffer_load_dwordx4 v{vDA}, s[{S_A}:{S_A+3}], s{sACT} offen offset:{d*1024} lds', []))
        post = [f's_add_u32 s{sLOADU}, s{sLOADU}, 1',
                f's_cmp_eq_u32 s{sLOADU}, s{sEND}', f's_cselect_b32 s{sLOADU}, s{sBEG}, s{sLOADU}',
                f's_lshl_b32 s{sACT}, s{sLOADU}, 18',
                f's_sub_u32 s{sWO}, s{sLOADU}, 16',
                f's_cselect_b32 s{sWO}, s{sLOADU}, s{sWO}',
                f's_cselect_b32 s{S_W}, s44, s48', f's_cselect_b32 s{S_W+1}, s45, s49', f's_cselect_b32 s{S_W+2}, s55, s56',
                f's_lshl_b32 s{sWO}, s{sWO}, 17']
        L[-1] = (L[-1][0], L[-1][1], post if adv else [])
        return L
    VMW = 8*(NS-2)
    for pre, ins, post in dma_list(0):
        for x in pre: a.e(x)
        a.e(ins)
        for x in post: a.e(x)
    if cfg.cpf:
        a.e(f's_cmp_lg_u32 s{sWAVE}, 3'); a.e('s_cbranch_scc1 L2_nocpf')
        a.e(f's_cmp_gt_u32 s2, 31'); a.e('s_cbranch_scc1 L2_nocpf')
        code_pf(a, 'L2_nocpf', 'L2_end', vLANE, vT+2, vDUM, 94, 2)
        a.label('L2_nocpf')
    b = Asm()
    b.e(f's_mov_b32 s{sLCNT}, {NS}'); b.e(f's_mov_b32 s{sGOT}, 0')
    b.e(f's_lshl_b32 s{sTILE}, s{sRB}, 3'); b.e(f's_add_u32 s{sTILE}, s{sTILE}, s{sCB}')
    b.e('s_lshl_b32 s52, s57, 12')
    b.e(f'v_lshl_add_u32 v{vA}, v{vLANE}, 4, s52'); b.e(f'v_add_u32 v{vA+1}, 65536, v{vA}')
    b.e(f'v_lshrrev_b32 v{vT}, 2, v{vLANE}')
    b.e(f'v_and_b32 v{vT+1}, 7, v{vT}'); b.e(f'v_lshlrev_b32 v{vT+1}, 5, v{vT+1}')
    b.e(f'v_and_b32 v{vT+2}, 3, v{vLANE}'); b.e(f'v_lshlrev_b32 v{vT+2}, 3, v{vT+2}')
    b.e(f'v_lshl_add_u32 v{vT+2}, v{vT}, 8, v{vT+2}'); b.e(f'v_add_u32 v{vT+2}, {WB}, v{vT+2}')
    b.e('s_lshl_b32 s52, s58, 6'); b.e(f's_lshl_b32 s59, s{sPART}, 7'); b.e('s_add_u32 s59, s59, s52')
    for n in range(4):
        b.e(f's_xor_b32 s53, s59, {32*(n&1) + 128*(n>>1)}')
        b.e(f'v_xor_b32 v{vT+3}, s53, v{vT+1}')
        b.e(f'v_add_u32 v{vW+n}, v{vT+3}, v{vT+2}'); b.e(f'v_add_u32 v{vW+4+n}, 65536, v{vW+n}')
    b.e(f's_lshl_b32 s{sM_H}, s{sWAVE}, 11'); b.e(f's_add_u32 s{sM_H}, s{sM_H}, {WB}')
    b.e(f'v_lshrrev_b32 v{vT}, 3, v{vLANE}'); b.e(f'v_and_b32 v{vT+1}, 6, v{vT}'); b.e(f'v_and_b32 v{vT+2}, 7, v{vLANE}')
    b.e(f'v_xor_b32 v{vT+1}, v{vT+1}, v{vT+2}')
    b.e(f's_lshl_b32 s52, s{sWAVE}, 15'); b.e(f's_lshl_b32 s53, s{sCB}, 8'); b.e('s_add_u32 s52, s52, s53')
    b.e(f's_lshl_b32 s53, s{sPART}, 7'); b.e('s_add_u32 s52, s52, s53')
    b.e(f'v_lshl_add_u32 v{vT}, v{vT}, 11, s52'); b.e(f'v_lshl_add_u32 v{vDH}, v{vT+1}, 4, v{vT}')
    b.e(f'v_add_u32 v{vDH+1}, 16384, v{vDH}')
    b.e(f'v_lshrrev_b32 v{vT}, 2, v{vLANE}'); b.e(f'v_and_b32 v{vT+1}, 6, v{vT}'); b.e(f'v_lshlrev_b32 v{vT+1}, 4, v{vT+1}')
    b.e(f'v_and_b32 v{vT+2}, 3, v{vLANE}'); b.e(f'v_lshlrev_b32 v{vT+2}, 3, v{vT+2}')
    b.e(f'v_lshl_add_u32 v{vT+2}, v{vT}, 7, v{vT+2}'); b.e(f'v_add_u32 v{vT+2}, {WB}, v{vT+2}')
    b.e('s_lshl_b32 s52, s58, 6')
    for n in range(2):
        b.e(f's_add_u32 s53, s52, {32*n}')
        b.e(f'v_xor_b32 v{vT+3}, s53, v{vT+1}')
        b.e(f'v_add_u32 v{vWH+n}, v{vT+3}, v{vT+2}'); b.e(f'v_add_u32 v{vWH+2+n}, 65536, v{vWH+n}')
    srd(b, S_X, 4, 5, 2048*1024*2); srd(b, S_OUT, 50, 51, 2048*1024*2)
    srd(b, S_P, 6, 7, PART_BYTES, PART_OFF); srd(b, S_F, 6, 7, FLAG_BYTES, FLAG_OFF)
    b.e(f's_lshl_b32 s52, s{sRB}, 18'); b.e('s_lshl_b32 s53, s57, 17'); b.e('s_add_u32 s52, s52, s53')
    b.e(f's_lshl_b32 s53, s{sCB}, 8'); b.e('s_add_u32 s52, s52, s53'); b.e('s_add_u32 s52, s52, s59')
    b.e(f'v_and_b32 v{vT+1}, 15, v{vLANE}'); b.e(f'v_lshl_add_u32 v{vT+1}, v{vT+1}, 11, s52')
    b.e(f'v_lshrrev_b32 v{vT}, 4, v{vLANE}')
    b.e(f'v_and_b32 v{vT+2}, 1, v{vT}'); b.e(f'v_lshl_add_u32 v{vT+1}, v{vT+2}, 5, v{vT+1}')
    b.e(f'v_lshrrev_b32 v{vT+2}, 1, v{vT}'); b.e(f'v_lshl_add_u32 v{vXO}, v{vT+2}, 4, v{vT+1}')
    for m in range(4): b.e(f's_mov_b32 s{60+m}, {m*32768}')
    b.e(f's_lshl_b32 s52, s{sTILE}, 1'); b.e(f's_add_u32 s52, s52, s{sPART}'); b.e('s_lshl_b32 s52, s52, 2'); b.e(f's_add_u32 s52, s52, s{sWAVE}')
    b.e('s_xor_b32 s53, s52, 4')
    b.e('s_lshl_b32 s54, s52, 7'); b.e(f'v_mov_b32 v{vFS}, s54')
    b.e('s_lshl_b32 s54, s53, 7'); b.e(f'v_mov_b32 v{vFL}, s54')
    b.e('s_lshl_b32 s52, s52, 13'); b.e('s_lshl_b32 s53, s53, 13')
    b.e(f'v_lshl_add_u32 v{vPS}, v{vLANE}, 4, s52'); b.e(f'v_lshl_add_u32 v{vPL}, v{vLANE}, 4, s53')
    b.e('s_movk_i32 s65, 4096'); b.e('s_mov_b32 s64, 0xffff0000'); b.e(f'v_mov_b32 v{vDUM}, 1') if False else None
    b.e(f'v_mov_b32 v{vT+6}, 1')
    for i in range(32): b.e(f'v_mov_b64 v[{ACC+2*i}:{ACC+2*i+1}], 0')
    fill = [x.text for x in b.ins]
    dl = sum([dma_list(s_) for s_ in range(1, NS)], [])
    per = len(fill) // len(dl) + 1
    k = 0
    def run(upto):
        nonlocal k
        while k < len(fill) and (k < upto or fill[k].startswith(('s_cselect', 's_addc'))):
            a.e(fill[k]); k += 1
    for n_, (pre, ins, post) in enumerate(dl):
        for x in pre: a.e(x)
        run(k+1)
        a.e(ins)
        for x in post: a.e(x)
        run((n_+1)*per)
    run(len(fill))
    so = ['0', 's65']
    def areg(par, ks, m): return FR + par*64 + ks*16 + m*4
    def wreg(par, ks, n): return FR + par*64 + 32 + ks*16 + n*4
    def reads(slot, par, nn=4):
        L = []
        hi = 1 if slot >= 4 else 0
        base = (slot & 3)*16384
        def ar_(ks, m): return [f'ds_read_b128 v[{areg(par,ks,m)}:{areg(par,ks,m)+3}], v{vA+hi} offset:{base + ks*8192 + m*1024}']
        def wr_(ks, n):
            if nn == 2: return [f'ds_read_b64_tr_b16 v[{wreg(par,ks,n)+2*h}:{wreg(par,ks,n)+2*h+1}], v{vWH+2*hi+n} offset:{base + ks*4096 + h*2048}' for h in range(2)]
            return [f'ds_read_b64_tr_b16 v[{wreg(par,ks,n)+2*h}:{wreg(par,ks,n)+2*h+1}], v{vW+4*hi+n} offset:{base + ks*8192 + h*4096}' for h in range(2)]
        L += wr_(0, 0) + ar_(0, 0) + wr_(1, 0) + ar_(1, 0)
        for m in range(1, 4): L += ar_(0, m) + ar_(1, m)
        for n in range(1, nn): L += wr_(0, n) + wr_(1, n)
        return L
    def mfmas(par, order, sched):
        i = 0
        for n in order:
            for m in range(4):
                for ks in range(2):
                    d = ACC + (n*4+m)*4
                    a.e(f'v_mfma_f32_16x16x32_bf16 v[{d}:{d+3}], v[{wreg(par,ks,n)}:{wreg(par,ks,n)+3}], v[{areg(par,ks,m)}:{areg(par,ks,m)+3}], v[{d}:{d+3}]')
                    for x in sched.get(i, []): a.e(x)
                    i += 1
    a.e(f's_waitcnt vmcnt({VMW + 8})'); a.e('s_barrier')
    st.at(2)
    if st.on: a.e('s_waitcnt lgkmcnt(0)')
    for r in reads(0, 0): a.e(r)
    a.label('L2_loop')
    UN = NS if NS % 2 == 0 else 2*NS
    LS = FS - NS
    uexit = (LS - 1) % UN
    for u in range(UN):
        slot = u % NS; par = u & 1
        a.e(f's_waitcnt vmcnt({VMW}) lgkmcnt(0)'); a.e('s_barrier')
        sched = {}
        for i, r in enumerate(reads((slot+1) % NS, par ^ 1)): sched.setdefault(i, []).append(r)
        for i, (pre, ins, post) in enumerate(dma_list(slot)):
            p = 1 + 3*i
            for x in pre: sched.setdefault(p-1, []).append(x)
            sched.setdefault(p, []).append(ins)
            for k_, x in enumerate(post): sched.setdefault(min(30, p + 1 + k_//2), []).append(x)
        if u == uexit:
            sched.setdefault(31, []).append(f's_add_u32 s{sU}, s{sU}, {UN}')
            sched.setdefault(31, []).append(f's_cmp_ge_u32 s{sU}, {LS}')
        mfmas(par, range(4), sched)
        if u == uexit: a.e('s_cbranch_scc1 L2_half')
        if u == UN-1: a.e('s_branch L2_loop')
    a.label('L2_half')
    q = []
    for t in range(LS+1, FS): q += [('d', t)]*8
    def wait_for(pred, extra=''):
        last = max([i for i, x in enumerate(q) if pred(x)], default=-1)
        n = len(q) - 1 - last
        a.e(f's_waitcnt vmcnt({min(n, 63)}){extra}')
        del q[:last+1]
    chk = cfg.k2_chk if cfg.k2_chk else HS-2
    for t in range(LS, TOT):
        hs = t - FS; slot = t % NS; par = t & 1
        nn = 4 if hs < 0 else 2
        if hs == 0: st.at(1)
        if any(x == ('d', t+1) for x in q): wait_for(lambda x: x == ('d', t+1), ' lgkmcnt(0)')
        else: a.e('s_waitcnt lgkmcnt(0)')
        if t+1 < TOT: a.e('s_barrier')
        sched = {}
        def add(i, x, tag=None): sched.setdefault(i, []).append((x, tag))
        if t + 1 < TOT:
            for i, r in enumerate(reads((slot+1) % NS, par ^ 1, 4 if t+1 < FS else 2)): add(i, r)
        extra = []
        if t + NS < TOT:
            for pre, ins, post in dma_list(slot, masked=True):
                extra += [(x, None) for x in pre] + [(ins, ('d', t+NS))] + [(x, None) for x in post]
        if hs == max(HS-NS, 1):
            extra += [(f'buffer_load_dwordx4 v[{XR+4*m}:{XR+4*m+3}], v{vXO}, s[{S_X}:{S_X+3}], s{60+m} offen', ('x', 0)) for m in range(4)]
        if hs == 0:
            extra = [e_ for e_ in extra if not e_[0].startswith(('s_cmp', 's_csel', 's_lshl', 's_sub', f's_add_u32 s{sLOADU}')) or t+NS+1 < TOT] + [(f'buffer_store_dwordx4 v[{ACC+32+4*k_}:{ACC+32+4*k_+3}], v{vPS}, s[{S_P}:{S_P+3}], {so[k_>>2]} offen offset:{(k_&3)*1024} sc1', ('s', 0)) for k_ in range(8)]
        for k_, (x, tag) in enumerate(extra): add((k_*8*nn)//max(len(extra), 1), x, tag)
        i = 0
        for n in range(nn):
            for m in range(4):
                for ks in range(2):
                    d = ACC + (n*4+m)*4
                    a.e(f'v_mfma_f32_16x16x32_bf16 v[{d}:{d+3}], v[{wreg(par,ks,n)}:{wreg(par,ks,n)+3}], v[{areg(par,ks,m)}:{areg(par,ks,m)+3}], v[{d}:{d+3}]')
                    for x, tag in sched.get(i, []):
                        a.e(x)
                        if tag: q.append(tag)
                    i += 1
        if hs == cfg.k2_flg:
            wait_for(lambda x: x[0] == 's')
            a.e('s_mov_b64 exec, 1')
            a.e(f'buffer_store_dword v{vT+6}, v{vFS}, s[{S_F}:{S_F+3}], 0 offen sc1'); q.append(('f', 0))
            a.e('s_mov_b64 exec, -1')
        if hs == chk-1:
            a.e(f'buffer_load_dword v{vFLG}, v{vFL}, s[{S_F}:{S_F+3}], 0 offen sc1'); q.append(('p', 0))
        if hs == chk:
            wait_for(lambda x: x[0] == 'p')
            a.e(f'v_readfirstlane_b32 s52, v{vFLG}')
            a.e('s_cmp_eq_u32 s52, 1'); a.e('s_cbranch_scc0 L2_notyet')
            for k_ in (0, 4, 1, 5, 2, 6, 3, 7):
                a.e(f'buffer_load_dwordx4 v[{ACC+32+4*k_}:{ACC+32+4*k_+3}], v{vPL}, s[{S_P}:{S_P+3}], {so[k_>>2]} offen offset:{(k_&3)*1024} sc1')
            a.e(f's_mov_b32 s{sGOT}, 1')
            a.label('L2_notyet')
    st.at(3)
    for m in range(4):
        T = FR + m*8; x = XR + 4*m
    a.e(f's_cmp_eq_u32 s{sGOT}, 1'); a.e('s_cbranch_scc1 L2_have')
    a.e('s_mov_b32 s54, 0')
    a.label('L2_poll')
    a.e(f'buffer_load_dword v{vFLG}, v{vFL}, s[{S_F}:{S_F+3}], 0 offen sc1')
    a.e('s_add_u32 s54, s54, 1')
    a.e('s_waitcnt vmcnt(0)')
    a.e(f'v_readfirstlane_b32 s52, v{vFLG}')
    a.e('s_cmp_gt_u32 s54, 0x40000'); a.e('s_cbranch_scc1 L2_polled')
    a.e('s_cmp_eq_u32 s52, 1'); a.e('s_cbranch_scc0 L2_poll')
    a.label('L2_polled')
    for k_ in (0, 4, 1, 5, 2, 6, 3, 7):
        a.e(f'buffer_load_dwordx4 v[{ACC+32+4*k_}:{ACC+32+4*k_+3}], v{vPL}, s[{S_P}:{S_P+3}], {so[k_>>2]} offen offset:{(k_&3)*1024} sc1')
    a.label('L2_have')
    st.at(4)
    a.e('s_waitcnt vmcnt(8) lgkmcnt(0)')
    for m in range(4):
        T = FR + m*8; x = XR + 4*m
        for r in range(4):
            a.e(f'v_lshlrev_b32 v{T+2*r}, 16, v{x+r}'); a.e(f'v_and_b32 v{T+2*r+1}, s64, v{x+r}')
    for m in range(4):
        x = XR + 4*m; c0 = ACC + 4*m; c1 = ACC + 16 + 4*m; T = FR + m*8
        a.e(f's_waitcnt vmcnt({6-m})')
        for (c, p) in ((c0, ACC + 32 + 4*m), (c1, ACC + 48 + 4*m)):
            a.e(f'v_pk_add_f32 v[{c}:{c+1}], v[{c}:{c+1}], v[{p}:{p+1}]')
            a.e(f'v_pk_add_f32 v[{c+2}:{c+3}], v[{c+2}:{c+3}], v[{p+2}:{p+3}]')
        for r in range(4): a.e(f'v_permlane16_swap_b32 v{c0+r}, v{c1+r}')
        a.e(f'v_pk_add_f32 v[{c0}:{c0+1}], v[{c0}:{c0+1}], v[{T}:{T+1}]'); a.e(f'v_pk_add_f32 v[{c0+2}:{c0+3}], v[{c0+2}:{c0+3}], v[{T+2}:{T+3}]')
        a.e(f'v_pk_add_f32 v[{c1}:{c1+1}], v[{c1}:{c1+1}], v[{T+4}:{T+5}]'); a.e(f'v_pk_add_f32 v[{c1+2}:{c1+3}], v[{c1+2}:{c1+3}], v[{T+6}:{T+7}]')
        a.e(f'v_cvt_pk_bf16_f32 v{x}, v{c0}, v{c0+1}'); a.e(f'v_cvt_pk_bf16_f32 v{x+1}, v{c0+2}, v{c0+3}')
        a.e(f'v_cvt_pk_bf16_f32 v{x+2}, v{c1}, v{c1+1}'); a.e(f'v_cvt_pk_bf16_f32 v{x+3}, v{c1+2}, v{c1+3}')
        a.e(f'buffer_store_dwordx4 v[{x}:{x+3}], v{vXO}, s[{S_OUT}:{S_OUT+3}], s{60+m} offen')
    if st.on: a.e('s_waitcnt vmcnt(0)')
    st.at(5)
    st.flush(6, 7, sWAVE, vT, vT+1, 92)
    a.label('L2_end')
    a.e('s_endpgm')
    return name, (256, 256, NS*32768), kdesc(name, 256, 256)

def build(cfg):
    a = Asm()
    a.e('.amdgcn_target "amdgcn-amd-amdhsa--gfx950"'); a.e('.text')
    ks = [gen_k0(a, cfg), gen_k1(a, cfg), gen_k2(a, cfg)]
    a.fix()
    head = open('cdna_kernels/' + NAME + '.s.ref').read().split('\n')
    hdr = [l for l in head[:13] if l.startswith(';') and '@launch' not in l and 'Override' not in l and 'grid=ceil' not in l]
    out = '\n'.join(hdr) + '\n'
    for nm, (g, b, lds), _ in ks:
        out += f'; @launch kernel={nm} grid=({g},1,1) block=({b},1,1) lds={lds}\n'
    out += a.text()
    out += '.section .rodata,"a"\n'
    for _, _, kd in ks: out += kd
    return out

if __name__ == '__main__':
    cfg = Cfg()
    outp = sys.argv[1] if len(sys.argv) > 1 else 'cdna_kernels/' + NAME + '.s'
    for kv in sys.argv[2:]:
        k, v = kv.split('='); setattr(cfg, k, int(v))
    open(outp, 'w').write(build(cfg))
    import subprocess
    r = subprocess.run(['clang', '-x', 'assembler', '-target', 'amdgcn-amd-amdhsa', '-mcpu=gfx950', '-c', outp, '-o', 'chk.o'], capture_output=True, text=True)
    if r.returncode: print(r.stderr[:1500]); sys.exit(1)
    print('wrote', outp)
```

```python
import sys
sys.path.insert(0, 'dev')
from asmlib import *

NAME = 'parallel_sum__sliding_local_dilated__glu_gated_bilinear__prompt'
XN_OFF = 0
XN_BYTES = 32*128*1024
ACT2_OFF = 4 << 20
ACT2_BYTES = 144*128*1024
PART_OFF = 24 << 20
PART_BYTES = 128*65536
FLAG_OFF = 32 << 20
FLAG_BYTES = 1024*128
XFLAG_OFF = FLAG_OFF + (256 << 10)
STAMP_OFF = 40 << 20

class Cfg:
    stamps = False
    k2_n0 = 32
    pf = 1
    k2_noadv = 0
    pbf = 0
    pfw = 0
    pfwb = 114688
    pfwo = 4 << 20
    f0ne = 4
    f0fs = 7
    f0sl = 16
    f0sl2 = 0
    fuse0 = 0
    pf3n = 56
    pf3w = 27
    pf3 = 3
    rawx = 0
    pf012 = 1
    k2_fs = 34
    k2_flg = 2
    k2_chk = 3
    ep3 = 1
    k1_stm = 8
    pfa = 0
    k1_v2 = 1
    k2_ra = 0
    k2_rb = 0
    k2_rc = 0
    k2_rm = 31
    k2_ns = 5
    k2_dbg = 0
    k1_wb = 0
    k1_st = 3
    k0_st = 0
    cpf = 1
    pf0 = 6
    k2_nox = 0
    k2_swap = 0
    k2_pf = 0
    k2_pfd = 6
    k2_early = 0
    k2_rd0 = 0
    k2_dstep = 6
    pfd = 8
    def __init__(self, **kw):
        for k, v in kw.items(): setattr(self, k, v)

def srd(a, d, lo, hi, nbytes, off=0):
    if off:
        a.e(f's_add_u32 s{d}, s{lo}, {off}')
        a.e(f's_addc_u32 s{d+1}, s{hi}, 0')
    else:
        a.e(f's_mov_b32 s{d}, s{lo}')
        a.e(f's_mov_b32 s{d+1}, s{hi}')
    a.e(f's_mov_b32 s{d+2}, {nbytes}')
    a.e(f's_mov_b32 s{d+3}, 0x20000')

def kdesc(name, nvgpr, accum, nsgpr=102):
    return f'''.p2align 6
.amdhsa_kernel {name}
  .amdhsa_next_free_vgpr {nvgpr}
  .amdhsa_next_free_sgpr {nsgpr}
  .amdhsa_accum_offset {accum}
  .amdhsa_group_segment_fixed_size 0
  .amdhsa_kernarg_size 80
  .amdhsa_user_sgpr_count 2
  .amdhsa_user_sgpr_kernarg_segment_ptr 1
  .amdhsa_system_sgpr_workgroup_id_x 1
.end_amdhsa_kernel
'''

def code_pf(a, start, end, vlane, vtmp, vdum, spc, nins):
    a.e(f's_getpc_b64 s[{spc}:{spc+1}]')
    lab = f'Lpc_{start}'
    a.label(lab)
    a.e(f's_add_u32 s{spc}, s{spc}, {start}-{lab}')
    a.e(f's_addc_u32 s{spc+1}, s{spc+1}, 0' if False else f's_addc_u32 s{spc+1}, s{spc+1}, ({start}-{lab})>>63')
    for i in range(nins):
        a.e(f'v_lshlrev_b32 v{vtmp}, 7, v{vlane}')
        if i: a.e(f'v_add_u32 v{vtmp}, {i*8192}, v{vtmp}')
        a.e(f'v_min_u32 v{vtmp}, {end}-{start}-4, v{vtmp}')
        a.e(f'global_load_dword v{vdum}, v{vtmp}, s[{spc}:{spc+1}]')

def khead(a, name):
    a.e(f'.globl {name}'); a.e('.p2align 8'); a.e(f'.type {name},@function'); a.label(name)

class Stamper:
    def __init__(self, a, on, base, kid):
        self.a = a; self.on = on; self.base = base; self.n = 0; self.kid = kid; self.cbase = 98 if False else base + 12
    def at(self, i, mode=None):
        if not self.on: return
        if (self.on == 6 and self.kid == 1) != (mode == 6) and i != 0: return
        self.a.e(f's_memrealtime s[{self.base+2*i}:{self.base+2*i+1}]')
        if i in (2, 3):
            self.a.e(f's_memtime s[{98+2*(i-2)}:{99+2*(i-2)}]') if False else None
            j = 6 + (i-2)
            self.a.e(f's_memtime s[{self.cbase+2*(i-2)}:{self.cbase+2*(i-2)+1}]')
        self.n = max(self.n, i+1)
    def flush(self, ws_lo, ws_hi, wave_sreg, vt0, vt1, stmp, n=None):
        if not self.on: return
        a = self.a
        n = n or self.n
        a.e('s_waitcnt lgkmcnt(0)')
        srd(a, stmp, ws_lo, ws_hi, 1 << 20, STAMP_OFF + self.kid*(256*4*64))
        a.e(f's_lshl_b32 s{stmp+4}, s2, 8')
        a.e(f's_lshl_b32 s{stmp+5}, s{wave_sreg}, 6')
        a.e(f's_add_u32 s{stmp+4}, s{stmp+4}, s{stmp+5}')
        a.e(f'v_mov_b32 v{vt0}, s{stmp+4}')
        a.e('s_mov_b64 exec, 1')
        for i in range(8):
            a.e(f'v_mov_b32 v{vt1}, s{self.base+2*i}')
            a.e(f'buffer_store_dword v{vt1}, v{vt0}, s[{stmp}:{stmp+3}], 0 offen offset:{4*i}')
        a.e('s_mov_b64 exec, -1')

def gen_k0(a, cfg):
    name = 'ln_kernel'
    khead(a, name)
    st = Stamper(a, cfg.stamps, 70, 0)
    a.e('s_cmp_ge_u32 s2, 256'); a.e('s_cbranch_scc1 L0_end')
    st.at(0)
    a.e('s_load_dwordx2 s[4:5], s[0:1], 0')
    a.e('s_load_dwordx2 s[6:7], s[0:1], 72')
    if cfg.pf:
        a.e('s_load_dwordx2 s[28:29], s[0:1], 8')
        a.e('s_load_dwordx4 s[32:35], s[0:1], 32')
    a.e('v_lshrrev_b32 v2, 6, v0')
    a.e('v_bfe_u32 v3, v0, 3, 3')
    a.e('v_and_b32 v4, 7, v0')
    a.e('v_readfirstlane_b32 s36, v2')
    a.e('s_lshl_b32 s3, s2, 14')
    a.e('v_lshl_add_u32 v5, v3, 11, s3')
    a.e('v_lshl_add_u32 v5, v2, 8, v5')
    a.e('v_lshl_add_u32 v5, v4, 4, v5')
    a.e('s_mov_b32 s10, 0x400000'); a.e('s_mov_b32 s11, 0x20000')
    a.e('s_waitcnt lgkmcnt(0)')
    st.at(1)
    a.e('s_mov_b32 s8, s4'); a.e('s_mov_b32 s9, s5')
    for it in range(2):
        a.e(f'buffer_load_dwordx4 v[{16+4*it}:{19+4*it}], v5, s[8:11], 0 offen offset:{it*128}')
    nafter = 0
    if cfg.pf:
        a.e('s_cmp_gt_u32 s36, 2'); a.e('s_cbranch_scc1 L0_pfd')
        a.e('s_and_b32 s37, s2, 7'); a.e('s_lshr_b32 s38, s2, 3')
        a.e(f'v_min_u32 v12, {cfg.pf0-1}, v3')
        a.e('s_cmp_eq_u32 s36, 0'); a.e('s_cbranch_scc1 L0_pfq')
        a.e('s_cmp_eq_u32 s36, 1')
        a.e('s_cselect_b32 s40, s32, s34'); a.e('s_cselect_b32 s41, s33, s35'); a.e(f's_mov_b32 s42, {1024*3584*2}'); a.e('s_mov_b32 s43, 0x20000')
        a.e(f's_mul_i32 s39, s38, {7168*cfg.pf0}'); a.e('s_mul_i32 s37, s37, 896'); a.e('s_add_u32 s39, s39, s37')
        a.e('v_mul_u32_u24 v10, 7168, v12'); a.e('v_min_u32 v11, 6, v4'); a.e('v_lshl_add_u32 v10, v11, 7, v10')
        a.e('buffer_load_dword v14, v10, s[40:43], s39 offen')
        a.e('s_branch L0_pfd')
        a.label('L0_pfq')
        srd(a, 40, 28, 29, 1024*3072*2)
        a.e(f's_mul_i32 s39, s38, {6144*cfg.pf0}'); a.e('s_lshl_b32 s37, s37, 8'); a.e('s_add_u32 s39, s39, s37')
        a.e('v_mul_u32_u24 v10, 6144, v12'); a.e('v_min_u32 v11, 5, v4')
        a.e('v_lshrrev_b32 v13, 1, v11'); a.e('v_lshl_add_u32 v10, v13, 11, v10')
        a.e('v_and_b32 v13, 1, v11'); a.e('v_lshl_add_u32 v10, v13, 7, v10')
        a.e('buffer_load_dword v14, v10, s[40:43], s39 offen')
        a.label('L0_pfd')
    a.e('s_cmp_gt_u32 s2, 7'); a.e('s_cbranch_scc1 L0_noflag')
    a.e('s_cmp_lt_u32 s36, 6'); a.e('s_cbranch_scc1 L0_noflag')
    srd(a, 20, 6, 7, FLAG_BYTES, FLAG_OFF)
    a.e('s_lshl_b32 s19, s2, 14')
    a.e('v_subrev_u32 v10, 384, v0'); a.e('v_lshlrev_b32 v10, 7, v10'); a.e('v_mov_b32 v11, 0')
    a.e('buffer_store_dword v11, v10, s[20:23], s19 offen')
    a.label('L0_noflag')
    srd(a, 12, 6, 7, XN_BYTES, XN_OFF)
    a.e('v_lshrrev_b32 v6, 2, v4')
    a.e('v_lshl_add_u32 v6, v2, 2, v6')
    a.e('v_lshlrev_b32 v6, 17, v6')
    a.e('v_and_b32 v7, 3, v4')
    a.e('v_lshl_add_u32 v6, v7, 8, v6')
    a.e('v_lshl_add_u32 v6, v3, 4, v6')
    a.e('s_lshr_b32 s16, s2, 1'); a.e('s_lshl_b32 s16, s16, 10')
    a.e('s_and_b32 s17, s2, 1'); a.e('s_lshl_b32 s17, s17, 7'); a.e('s_add_u32 s16, s16, s17')
    a.e('v_add_u32 v6, s16, v6')
    a.e('v_lshlrev_b32 v8, 6, v3')
    a.e('v_lshl_add_u32 v9, v2, 3, v8')
    a.e('s_mov_b32 s24, 0xffff0000'); a.e('s_mov_b32 s25, 262144')
    a.e('v_mov_b32 v60, 0x43000000')
    a.e('v_mov_b32 v61, 0x3727c5ac')
    a.e('v_mov_b32 v62, 0x3a800000')
    a.e('s_cmp_gt_u32 s36, 2'); a.e('s_cbranch_scc1 L0_w0')
    a.e('s_waitcnt vmcnt(1)' if cfg.pf else 's_waitcnt vmcnt(0)'); a.e('s_branch L0_w2')
    a.label('L0_w0')
    a.e('s_waitcnt vmcnt(0)')
    a.label('L0_w2')
    st.at(2)
    X = 24
    for i in range(8):
        a.e(f'v_lshlrev_b32 v{X+2*i}, 16, v{16+i}')
        a.e(f'v_and_b32 v{X+2*i+1}, s24, v{16+i}')
    T = 40
    def P(r): return f'v[{r}:{r+1}]'
    def red8(r):
        a.e(f'v_add_f32_dpp v{r}, v{r}, v{r} quad_perm:[1,0,3,2] row_mask:0xf bank_mask:0xf')
        a.e(f'v_add_f32_dpp v{r}, v{r}, v{r} quad_perm:[2,3,0,1] row_mask:0xf bank_mask:0xf')
        a.e(f'v_add_f32_dpp v{r}, v{r}, v{r} row_half_mirror row_mask:0xf bank_mask:0xf')
    for i in range(4): a.e(f'v_pk_add_f32 {P(T+2*i)}, {P(X+4*i)}, {P(X+4*i+2)}')
    a.e(f'v_pk_add_f32 {P(T)}, {P(T)}, {P(T+2)}'); a.e(f'v_pk_add_f32 {P(T+4)}, {P(T+4)}, {P(T+6)}')
    a.e(f'v_pk_add_f32 {P(T)}, {P(T)}, {P(T+4)}')
    a.e(f'v_add_f32 v{T}, v{T}, v{T+1}')
    red8(T)
    a.e(f'v_mul_f32 v12, 0xbc000000, v{T}')
    a.e('v_mov_b32 v13, v12')
    for i in range(8): a.e(f'v_pk_add_f32 {P(X+2*i)}, {P(X+2*i)}, v[12:13]')
    for i in range(4): a.e(f'v_pk_mul_f32 {P(T+2*i)}, {P(X+4*i)}, {P(X+4*i)}')
    for i in range(4): a.e(f'v_pk_fma_f32 {P(T+2*i)}, {P(X+4*i+2)}, {P(X+4*i+2)}, {P(T+2*i)}')
    a.e(f'v_pk_add_f32 {P(T)}, {P(T)}, {P(T+2)}'); a.e(f'v_pk_add_f32 {P(T+4)}, {P(T+4)}, {P(T+6)}')
    a.e(f'v_pk_add_f32 {P(T)}, {P(T)}, {P(T+4)}')
    a.e(f'v_add_f32 v13, v{T}, v{T+1}')
    red8(13)
    a.e('ds_write_b64 v9, v[12:13]')
    a.e('s_waitcnt lgkmcnt(0)'); a.e('s_barrier')
    for i in range(4): a.e(f'ds_read_b128 v[{44+4*i}:{47+4*i}], v8 offset:{16*i}')
    a.e('s_waitcnt lgkmcnt(0)')
    a.e(f'v_pk_add_f32 {P(T)}, v[44:45], v[46:47]'); a.e(f'v_pk_add_f32 {P(T+2)}, v[48:49], v[50:51]')
    a.e(f'v_pk_add_f32 {P(16)}, v[52:53], v[54:55]'); a.e(f'v_pk_add_f32 {P(18)}, v[56:57], v[58:59]')
    a.e(f'v_pk_add_f32 {P(T)}, {P(T)}, {P(T+2)}'); a.e(f'v_pk_add_f32 {P(16)}, {P(16)}, {P(18)}')
    a.e(f'v_pk_add_f32 {P(T)}, {P(T)}, {P(16)}')
    a.e(f'v_mul_f32 v{T}, 0x3e000000, v{T}')
    for r in range(44, 60, 2): a.e(f'v_sub_f32 v{r}, v{r}, v{T}')
    a.e('v_mul_f32 v16, v44, v44'); a.e('v_mul_f32 v17, v46, v46')
    for r in range(48, 60, 2): a.e(f'v_fmac_f32 v{16 + (r//2) % 2}, v{r}, v{r}')
    a.e('v_add_f32 v16, v16, v17')
    a.e(f'v_fmac_f32 v{T+1}, v16, v60')
    a.e(f'v_fmac_f32 v61, v{T+1}, v62')
    a.e('v_rsq_f32 v60, v61')
    a.e(f'v_sub_f32 v62, v{T}, v12')
    a.e('v_mov_b32 v61, v60')
    a.e('v_mul_f32 v62, v62, v60')
    a.e('v_mov_b32 v63, v62')
    for i in range(8): a.e(f'v_pk_fma_f32 {P(X+2*i)}, {P(X+2*i)}, v[60:61], v[62:63]')
    for i in range(8): a.e(f'v_cvt_pk_bf16_f32 v{16+i}, v{X+2*i}, v{X+2*i+1}')
    st.at(3)
    a.e('buffer_store_dwordx4 v[16:19], v6, s[12:15], 0 offen' + ['', ' sc1', ' nt', ' sc0 sc1', ' sc1 nt'][cfg.k0_st])
    a.e('buffer_store_dwordx4 v[20:23], v6, s[12:15], s25 offen' + ['', ' sc1', ' nt', ' sc0 sc1', ' sc1 nt'][cfg.k0_st])
    st.at(4)
    if st.on:
        a.e('s_waitcnt vmcnt(0)'); a.e('s_and_b32 s36, s36, 3')
    st.at(5)
    st.flush(6, 7, 36, 10, 11, 92)
    a.label('L0_end')
    a.e('s_endpgm')
    return name, (256, 512, 512), kdesc(name, 64, 64, 102 if cfg.stamps else 48)

class LgkmTracker:
    def __init__(self, a):
        self.a = a
        self.q = []
    def read(self, text):
        ins = Ins(text)
        self.a.e(text)
        self.q.append(set(ins.dst))
    def other(self):
        self.q.append(set())
    def need(self, regs):
        regs = set(regs)
        last = -1
        for i, d in enumerate(self.q):
            if d & regs: last = i
        if last < 0: return
        n = len(self.q) - 1 - last
        n = min(n, 15)
        self.a.e(f's_waitcnt lgkmcnt({n})')
        self.q = self.q[len(self.q) - n:] if n else []
    def drain(self):
        self.q = []
    def state(self):
        return [tuple(sorted(x)) for x in self.q]

L1_ACT = 0; L1_W = 65536; L1_HALO = 147456; L1_TOTAL = 151552
def gen_k1(a, cfg):
    name = NAME + '_kernel'
    khead(a, name)
    st = Stamper(a, cfg.stamps, 70, 1)
    S_XN = 8; S_W = 12; S_O = 32
    sACT = 36; sWO = 37; sWS = 42; sM_ACT = 47; sM_W = 48; sM_H = 49; sCNT = 50; sWAVE = 51; sWM = 52; sRB = 54; sJ = 55
    vLANE = 1; vDA = 2; vDH = 3; vDW = 4
    vA = 9; vHA = 10; vGU = 11; vQa = 13; vQb = 15; vHW = 17
    vT = 20
    a.e('s_cmp_ge_u32 s2, 256'); a.e('s_cbranch_scc1 L1_end')
    st.at(0)
    a.e('s_load_dwordx2 s[4:5], s[0:1], 8')
    a.e('s_load_dwordx4 s[56:59], s[0:1], 32')
    a.e('s_load_dwordx2 s[6:7], s[0:1], 72')
    a.e('s_load_dwordx2 s[68:69], s[0:1], 48')
    S_PF = 88; sPFO = 86; sPFS = 87; vPF = 19; vDUM = 31; aBI = 200
    a.e('s_load_dwordx2 s[92:93], s[0:1], 16')
    a.e(f'v_lshrrev_b32 v{vT}, 6, v0')
    a.e(f'v_and_b32 v{vLANE}, 63, v0')
    a.e(f'v_readfirstlane_b32 s{sWAVE}, v{vT}')
    if cfg.fuse0:
        a.e('s_load_dwordx2 s[96:97], s[0:1], 0')
        if cfg.cpf:
            a.e(f's_cmp_lg_u32 s{sWAVE}, 3'); a.e('s_cbranch_scc1 L1_nocpf0')
            code_pf(a, 'L1_nocpf0', 'L1_wn1', vLANE, 134, 135, 94, 1)
            a.label('L1_nocpf0')
        a.e('s_memrealtime s[60:61]')
        a.e(f'v_lshrrev_b32 v128, 3, v{vLANE}'); a.e(f'v_and_b32 v129, 7, v{vLANE}')
        a.e('s_lshl_b32 s3, s2, 14')
        a.e('v_lshl_add_u32 v130, v128, 11, s3'); a.e(f'v_lshl_add_u32 v130, v{vT}, 9, v130'); a.e('v_lshl_add_u32 v130, v129, 4, v130')
        a.e('s_mov_b32 s98, 0x400000'); a.e('s_mov_b32 s99, 0x20000')
        a.e('s_waitcnt lgkmcnt(0)')
        for it in range(4): a.e(f'buffer_load_dwordx4 v[{32+4*it}:{35+4*it}], v130, s[96:99], 0 offen offset:{it*128}')
        st.at(1, 6)
        a.e('s_sub_u32 s53, s60, 1000')
        a.e(f'v_lshrrev_b32 v131, 2, v129'); a.e(f'v_lshl_add_u32 v131, v{vT}, 3, v131'); a.e('v_lshlrev_b32 v131, 17, v131')
        a.e('v_and_b32 v132, 3, v129'); a.e('v_lshl_add_u32 v131, v132, 8, v131'); a.e('v_lshl_add_u32 v131, v128, 4, v131')
        a.e('s_lshr_b32 s60, s2, 1'); a.e('s_lshl_b32 s60, s60, 10'); a.e('s_and_b32 s61, s2, 1'); a.e('s_lshl_b32 s61, s61, 7'); a.e('s_add_u32 s60, s60, s61')
        a.e('v_add_u32 v131, s60, v131')
        a.e(f'v_lshlrev_b32 v132, 5, v128'); a.e(f'v_add_u32 v132, {L1_TOTAL}, v132'); a.e(f'v_lshl_add_u32 v133, v{vT}, 3, v132')
    a.e(f's_and_b32 s{sJ}, s2, 7'); a.e(f's_lshl_b32 s{sJ}, s{sJ}, 2')
    a.e('s_lshr_b32 s3, s2, 3')
    a.e(f's_lshr_b32 s{sRB}, s3, 2'); a.e('s_and_b32 s3, s3, 3'); a.e(f's_add_u32 s{sJ}, s{sJ}, s3')
    a.e(f's_lshr_b32 s{sWM}, s{sWAVE}, 1')
    a.e(f's_lshl_b32 s60, s{sRB}, 14'); a.e(f's_lshl_b32 s61, s{sWAVE}, 12'); a.e('s_add_u32 s61, s61, s60')
    a.e(f'v_lshl_add_u32 v{vDA}, v{vLANE}, 4, s61')
    a.e('s_max_u32 s60, s60, 1024'); a.e('s_sub_u32 s60, s60, 1024')
    a.e(f's_lshl_b32 s61, s{sWAVE}, 8'); a.e('s_add_u32 s61, s61, s60')
    a.e(f'v_lshl_add_u32 v{vDH}, v{vLANE}, 2, s61')
    vPFA = 28
    if cfg.pfa:
        a.e(f's_lshl_b32 s60, s{sRB}, 14'); a.e('s_lshl_b32 s61, s3, 12'); a.e('s_add_u32 s60, s60, s61')
        a.e(f's_lshl_b32 s61, s{sWAVE}, 10'); a.e('s_add_u32 s60, s60, s61'); a.e(f's_add_u32 s60, s60, {cfg.pfa*131072}')
        a.e(f'v_min_u32 v{vPFA}, 7, v{vLANE}'); a.e(f'v_lshl_add_u32 v{vPFA}, v{vPFA}, 7, s60')
    a.e(f's_lshl_b32 s{sM_ACT}, s{sWAVE}, 12')
    a.e(f's_mul_i32 s{sM_W}, s{sWAVE}, 5120'); a.e(f's_add_u32 s{sM_W}, s{sM_W}, {L1_W}')
    a.e(f's_lshl_b32 s{sM_H}, s{sWAVE}, 8'); a.e(f's_add_u32 s{sM_H}, s{sM_H}, {L1_HALO}')
    a.e(f's_mov_b32 s{sACT}, 0')
    for d in range(5): a.e(f's_mov_b32 s{sWO+d}, 0')
    a.e(f's_lshl_b32 s62, s{sJ}, 6')
    a.e(f's_mul_i32 s63, s{sJ}, 224')
    a.e(f's_and_b32 s64, s{sJ}, 1'); a.e('s_lshl_b32 s64, s64, 1')
    a.e('s_movk_i32 s65, 6144'); a.e('s_movk_i32 s66, 7168')
    a.e(f's_cmp_eq_u32 s{sWAVE}, 1'); a.e('s_cbranch_scc1 L1_set1')
    a.e(f's_cmp_eq_u32 s{sWAVE}, 2'); a.e('s_cbranch_scc1 L1_set2')
    a.e(f's_cmp_eq_u32 s{sWAVE}, 3'); a.e('s_cbranch_scc1 L1_set3')
    for w in range(4):
        if w: a.label(f'L1_set{w}')
        if cfg.pf:
            t0, t1, t2 = vT, vT+1, vT+2
            if w < 3:
                a.e(f'v_mul_u32_u24 v{t0}, 21846, v{vLANE}'); a.e(f'v_lshrrev_b32 v{t0}, 16, v{t0}')
                a.e(f'v_mul_u32_u24 v{t1}, 3, v{t0}'); a.e(f'v_sub_u32 v{t1}, v{vLANE}, v{t1}')
                a.e(f's_lshl_b32 s60, s{sRB}, 2'); a.e(f'v_add_u32 v{t0}, s60, v{t0}')
                if w == 0:
                    a.e(f'v_lshlrev_b32 v{t1}, 11, v{t1}'); a.e(f'v_add_u32 v{t1}, s62, v{t1}')
                else:
                    a.e(f'v_lshlrev_b32 v{t1}, 7, v{t1}'); a.e(f'v_min_u32 v{t1}, 220, v{t1}'); a.e(f'v_add_u32 v{t1}, s63, v{t1}')
                a.e(f'v_mad_u32_u24 v{vPF}, v{t0}, s{65 if w == 0 else 66}, v{t1}')
                nl = 12
                step = 32*(6144 if w == 0 else 7168)
                a.e(f's_mov_b32 s{sPFS}, {step}'); a.e(f's_mov_b32 s{sPFO}, {step*(0 if cfg.fuse0 else cfg.pfd-3)}')
            else:
                a.e(f'v_lshlrev_b32 v{vPF}, 7, v{vLANE}')
                nl = 7 if cfg.pf3 != 3 else cfg.pf3n
                if cfg.pf3 == 3:
                    a.e(f's_mov_b32 s{sPFS}, {nl*128}'); a.e(f's_mov_b32 s{sPFO}, {(-(cfg.pf3w + (cfg.pfd-3 if cfg.fuse0 else 0))*nl*128) & 0xffffffff}')
                    a.e(f's_mul_i32 s60, s2, {224*128}')
                else:
                    a.e(f's_mov_b32 s{sPFS}, 896'); a.e(f's_mul_i32 s{sPFO}, s2, {224*128}')
            a.e(f'v_mov_b32 v{t2}, 0x80000000')
            a.e(f'v_cmp_gt_u32 vcc, {nl}, v{vLANE}')
            a.e(f'v_cndmask_b32 v{vPF}, v{t2}, v{vPF}, vcc')
        if cfg.stamps == 2: st.at(4)
        a.e('s_waitcnt lgkmcnt(0)')
        if cfg.stamps == 2: st.at(5)
        if cfg.pf:
            if w == 0: srd(a, S_PF, 4, 5, 1024*3072*2 if cfg.pf012 else 0)
            elif w == 1: srd(a, S_PF, 56, 57, 1024*3584*2 if cfg.pf012 else 0)
            elif w == 2: srd(a, S_PF, 58, 59, 1024*3584*2 if cfg.pf012 else 0)
            elif cfg.pf3 == 3:
                a.e(f's_add_u32 s{S_PF}, s68, s60'); a.e(f's_addc_u32 s{S_PF+1}, s69, 0')
                a.e(f's_mov_b32 s{S_PF+2}, {224*128}'); a.e(f's_mov_b32 s{S_PF+3}, 0x20000')
            else: srd(a, S_PF, 68, 69, 1024*3584*2 if cfg.pf3 == 1 else 0)
        if cfg.fuse0:
            for _ in range(cfg.f0ne):
                a.e(f'buffer_load_dword v{vDUM}, v{vPF}, s[{S_PF}:{S_PF+3}], s{sPFO} offen'); a.e(f's_add_u32 s{sPFO}, s{sPFO}, s{sPFS}')
        kinds = []
        if cfg.cpf and w == 3 and not cfg.fuse0: code_pf(a, 'L1_setdone', 'L1_end', vLANE, vT, vDUM, 94, 3)
        for d in range(5):
            p = 5*w + d
            if p < 6: kind, pl, C, magic = 'q', p, 12, 5462
            elif p < 13: kind, pl, C, magic = 'g', p-6, 14, 4682
            else: kind, pl, C, magic = 'u', p-13, 14, 4682
            kinds.append(kind)
            t0, t1, t2, t3 = vT, vT+1, vT+2, vT+3
            a.e(f'v_add_u32 v{t0}, {64*pl}, v{vLANE}')
            a.e(f'v_mul_u32_u24 v{t1}, {magic}, v{t0}')
            a.e(f'v_lshrrev_b32 v{t1}, 16, v{t1}')
            a.e(f'v_mul_u32_u24 v{t2}, {C}, v{t1}')
            a.e(f'v_sub_u32 v{t0}, v{t0}, v{t2}')
            if kind == 'q':
                a.e(f'v_lshrrev_b32 v{t2}, 1, v{t1}'); a.e(f'v_and_b32 v{t2}, 2, v{t2}')
                a.e(f'v_xor_b32 v{t0}, v{t0}, v{t2}')
                a.e(f'v_lshrrev_b32 v{t2}, 2, v{t0}'); a.e(f'v_lshlrev_b32 v{t2}, 11, v{t2}')
                a.e(f'v_and_b32 v{t0}, 3, v{t0}')
                a.e(f'v_lshl_add_u32 v{t0}, v{t0}, 4, v{t2}')
                a.e(f'v_add_u32 v{t0}, s62, v{t0}')
            else:
                a.e(f'v_add_u32 v{t0}, s64, v{t0}')
                a.e(f'v_subrev_u32 v{t2}, 14, v{t0}')
                a.e(f'v_min_u32 v{t0}, v{t0}, v{t2}')
                a.e(f'v_lshlrev_b32 v{t0}, 4, v{t0}')
                a.e(f'v_add_u32 v{t0}, s63, v{t0}')
            a.e(f'v_and_b32 v{t2}, 3, v{t1}')
            a.e(f'v_bfe_u32 v{t3}, v{t1}, 2, 2')
            a.e(f'v_lshl_add_u32 v{t2}, v{t3}, 3, v{t2}')
            a.e(f'v_lshrrev_b32 v{t3}, 4, v{t1}')
            a.e(f'v_lshl_add_u32 v{t2}, v{t3}, 2, v{t2}')
            a.e(f'v_mad_u32_u24 v{vDW+d}, v{t2}, s{65 if kind == "q" else 66}, v{t0}')
        a.e('s_waitcnt lgkmcnt(0)')
        for d in range(5):
            kind = kinds[d]
            if kind == 'q': srd(a, S_W+4*d, 4, 5, 1024*3072*2); a.e(f's_mov_b32 s{sWS+d}, {32*6144}')
            elif kind == 'g': srd(a, S_W+4*d, 56, 57, 1024*3584*2); a.e(f's_mov_b32 s{sWS+d}, {32*7168}')
            else: srd(a, S_W+4*d, 58, 59, 1024*3584*2); a.e(f's_mov_b32 s{sWS+d}, {32*7168}')
        if w < 3: a.e('s_branch L1_setdone')
    a.label('L1_setdone')
    st.at(2, 6)
    if cfg.rawx:
        a.e(f'v_and_b32 v25, 15, v{vLANE}'); a.e('v_lshlrev_b32 v25, 11, v25'); a.e(f'v_lshrrev_b32 v26, 4, v{vLANE}'); a.e('v_lshl_add_u32 v25, v26, 4, v25')
        a.e(f's_lshl_b32 s60, s{sRB}, 19'); a.e(f's_lshl_b32 s61, s{sWAVE}, 17'); a.e('s_add_u32 s60, s60, s61'); a.e('v_add_u32 v25, s60, v25')
        for d in range(1, 4): a.e(f'v_add_u32 v{25+d}, {32768*d}, v25')
    srd(a, S_XN, 6, 7, XN_BYTES, XN_OFF)
    S_PW = 80; sPWO = 67
    if cfg.pfw:
        share = cfg.pfwb
        a.e(f's_mul_i32 s60, s2, {share}'); a.e(f's_add_u32 s60, s60, {cfg.pfwo}')
        a.e(f's_add_u32 s{S_PW}, s6, s60'); a.e(f's_addc_u32 s{S_PW+1}, s7, 0'); a.e(f's_mov_b32 s{S_PW+2}, {share}'); a.e(f's_mov_b32 s{S_PW+3}, 0x20000')
        a.e(f's_mov_b32 s{sPWO}, {(-cfg.pfw*32768) & 0xffffffff}')
        a.e(f'v_lshlrev_b32 v{vPFA}, 7, v0')

    def dma_list(slot):
        L = []
        for d in range(5):
            L.append((f's_add_u32 m0, s{sM_W}, {slot*20480 + d*1024}',
                      f'buffer_load_dwordx4 v{vDW+d}, s[{S_W+4*d}:{S_W+4*d+3}], s{sWO+d} offen lds',
                      f's_add_u32 s{sWO+d}, s{sWO+d}, s{sWS+d}'))
        for d in range(4):
            if cfg.rawx:
                L.append((f's_add_u32 m0, s{sM_ACT}, {slot*16384 + d*1024}',
                          f'buffer_load_dwordx4 v{25+d}, s[{S_XN}:{S_XN+3}], s{sACT} offen lds', None))
            else:
                L.append((f's_add_u32 m0, s{sM_ACT}, {slot*16384}' if d == 0 else None,
                          f'buffer_load_dwordx4 v{vDA}, s[{S_XN}:{S_XN+3}], s{sACT} offen offset:{d*1024} lds', None))
        L.append((f's_add_u32 m0, s{sM_H}, {slot*1024}',
                  f'buffer_load_dword v{vDH}, s[{S_XN}:{S_XN+3}], s{sACT} offen lds',
                  f's_add_u32 s{sACT}, s{sACT}, {64 if cfg.rawx else 131072}'))
        if cfg.pf:
            L.append((None, f'buffer_load_dword v{vDUM}, v{vPF}, s[{S_PF}:{S_PF+3}], s{sPFO} offen',
                      f's_add_u32 s{sPFO}, s{sPFO}, s{sPFS}'))
        if cfg.pfa:
            L.append((None, f'buffer_load_dword v{vDUM}, v{vPFA}, s[{S_XN}:{S_XN+3}], s{sACT} offen', None))
        if cfg.pfw:
            L.append((None, f'buffer_load_dword v{vDUM}, v{vPFA}, s[{S_PW}:{S_PW+3}], s{sPWO} offen', f's_add_u32 s{sPWO}, s{sPWO}, 32768'))
        return L
    VMW = 23 if cfg.pf else 20
    if cfg.k1_v2: VMW = 10 + 2*(cfg.pf + (1 if cfg.pfa else 0) + (1 if cfg.pfw else 0))
    else: assert not cfg.pfa
    def emit_dl(dl):
        for pre, ins, post in dl:
            if pre: a.e(pre)
            a.e(ins)
            if post: a.e(post)
    if cfg.fuse0:
        wpro = dma_list(0)[:5] + dma_list(1)[:5]
        latepf = [dma_list(0)[10]]*(cfg.pfd-1-cfg.f0ne)
    else:
        emit_dl(dma_list(0))
    if cfg.stamps == 2: st.at(3)
    b = Asm()
    srd(b, S_O, 6, 7, ACT2_BYTES, ACT2_OFF)
    t0, t1, t2 = vT, vT+1, vT+2
    b.e(f's_lshl_b32 s60, s{sWM}, 13')
    b.e(f'v_lshl_add_u32 v{vA}, v{vLANE}, 4, s60')
    b.e(f'v_lshlrev_b32 v{vHA}, 4, v{vLANE}'); b.e(f'v_add_u32 v{vHA}, {L1_HALO}, v{vHA}')
    b.e(f'v_lshrrev_b32 v{t0}, 2, v{vLANE}')
    b.e(f'v_and_b32 v{t1}, 3, v{vLANE}'); b.e(f'v_lshlrev_b32 v{t1}, 3, v{t1}')
    b.e(f'v_add_u32 v{t1}, {L1_W}, v{t1}')
    b.e(f'v_mul_u32_u24 v{t2}, 224, v{t0}'); b.e(f'v_add_u32 v{vGU}, v{t2}, v{t1}')
    b.e(f'v_add_u32 v{vGU+1}, 40960, v{vGU}')
    b.e(f'v_mul_u32_u24 v{t2}, 192, v{t0}'); b.e(f'v_add_u32 v{t2}, v{t2}, v{t1}')
    b.e(f'v_lshlrev_b32 v{t0}, 1, v{vLANE}'); b.e(f'v_and_b32 v{t0}, 32, v{t0}')
    b.e(f'v_add_u32 v{vQa}, v{t2}, v{t0}'); b.e(f'v_sub_u32 v{vQb}, v{t2}, v{t0}')
    b.e(f'v_add_u32 v{vQa+1}, 40960, v{vQa}'); b.e(f'v_add_u32 v{vQb+1}, 40960, v{vQb}')
    b.e(f's_lshl_b32 s60, s{sWAVE}, 5'); b.e('s_add_u32 s60, s60, 64')
    b.e(f'v_xor_b32 v{t0}, s60, v{t0}')
    b.e(f'v_add_u32 v{vHW}, v{t2}, v{t0}'); b.e(f'v_add_u32 v{vHW+1}, 40960, v{vHW}')
    b.e(f'v_and_b32 v{t0}, 15, v{vLANE}'); b.e(f'v_lshrrev_b32 v{t1}, 4, v{vLANE}'); b.e(f'v_lshlrev_b32 v{t1}, 2, v{t1}')
    b.e(f'v_sub_u32 v{t0}, v{t0}, v{t1}')
    b.e(f'v_mov_b32 v{vT+3}, 0xf149f2ca')
    b.e(f's_or_b32 s60, s{sRB}, s{sWM}'); b.e('s_cmp_eq_u32 s60, 0'); b.e('s_cselect_b64 s[60:61], -1, 0')
    for isprev in range(2):
        for r in range(4):
            b.e(f'v_add_u32 v{t1}, {16*isprev - r}, v{t0}')
            b.e(f'v_and_b32 v{t2}, 0xfffffff1, v{t1}')
            b.e(f'v_cmp_eq_u32 vcc, 0, v{t2}')
            b.e(f'v_cndmask_b32_e64 v{vT+4}, v{vT+3}, 0, vcc')
            b.e(f'v_accvgpr_write_b32 a{aBI+4*isprev+r}, v{vT+4}')
            if isprev:
                b.e(f'v_cndmask_b32_e64 v{vT+4}, v{vT+4}, v{vT+3}, s[60:61]')
                b.e(f'v_accvgpr_write_b32 a{aBI+8+r}, v{vT+4}')
    b.e(f'v_mov_b32 v{vT+4}, 0x3f803f80')
    for r in range(4): b.e(f'v_accvgpr_write_b32 a{aBI+12+r}, v{vT+4}')
    if not cfg.k1_v2:
        for i in range(32, 256): b.e(f'v_mov_b32 v{i}, 0')
        for i in range(96, 196): b.e(f'v_accvgpr_write_b32 a{i}, 0')
    fill = [x.text for x in b.ins]
    if cfg.fuse0:
        srd(a, 96, 6, 7, 256*128, XFLAG_OFF)
        a.e(f's_lshl_b32 s60, s{sRB}, 5'); a.e('s_sub_u32 s60, s60, 2')
        a.e(f'v_min_u32 v134, 33, v{vLANE}'); a.e('v_add_u32 v134, s60, v134'); a.e('v_max_i32 v134, 0, v134'); a.e(f'v_lshlrev_b32 v134, {cfg.f0fs}, v134')
        a.e(f's_lshl_b32 s60, s2, {cfg.f0fs}'); a.e('v_mov_b32 v135, s60')
        a.e('s_add_u32 s60, s53, 1000'); a.e('v_mov_b32 v136, s60'); a.e('v_not_b32 v137, v136')
        a.e('s_mov_b32 s60, 0xffff0000'); a.e('s_mov_b32 s61, 262144'); a.e('s_mov_b32 s62, 524288'); a.e('s_mov_b32 s63, 786432')
        a.e('v_mov_b32 v120, 0x43800000'); a.e('v_mov_b32 v121, 0x3727c5ac'); a.e('v_mov_b32 v122, 0x3a800000')
        st.at(3, 6)
        a.e(f's_waitcnt vmcnt({cfg.f0ne})')
        st.at(4, 6)
        if cfg.stamps: st.at(4) if cfg.stamps == 5 else None
        X = 48; T = 80
        def P(r): return f'v[{r}:{r+1}]'
        def red8(r):
            a.e(f'v_add_f32_dpp v{r}, v{r}, v{r} quad_perm:[1,0,3,2] row_mask:0xf bank_mask:0xf')
            a.e(f'v_add_f32_dpp v{r}, v{r}, v{r} quad_perm:[2,3,0,1] row_mask:0xf bank_mask:0xf')
            a.e(f'v_add_f32_dpp v{r}, v{r}, v{r} row_half_mirror row_mask:0xf bank_mask:0xf')
        def tree():
            for sp in (4, 2, 1):
                for i_ in range(sp): a.e(f'v_pk_add_f32 {P(T+2*i_)}, {P(T+2*i_)}, {P(T+2*i_+2*sp)}')
        for i_ in range(16):
            a.e(f'v_lshlrev_b32 v{X+2*i_}, 16, v{32+i_}'); a.e(f'v_and_b32 v{X+2*i_+1}, s60, v{32+i_}')
        for i_ in range(8): a.e(f'v_pk_add_f32 {P(T+2*i_)}, {P(X+4*i_)}, {P(X+4*i_+2)}')
        tree()
        a.e(f'v_add_f32 v{T}, v{T}, v{T+1}'); red8(T)
        a.e(f'v_mul_f32 v96, 0xbb800000, v{T}'); a.e('v_mov_b32 v97, v96')
        for i_ in range(16): a.e(f'v_pk_add_f32 {P(X+2*i_)}, {P(X+2*i_)}, v[96:97]')
        for i_ in range(8): a.e(f'v_pk_mul_f32 {P(T+2*i_)}, {P(X+4*i_)}, {P(X+4*i_)}')
        for i_ in range(8): a.e(f'v_pk_fma_f32 {P(T+2*i_)}, {P(X+4*i_+2)}, {P(X+4*i_+2)}, {P(T+2*i_)}')
        tree()
        a.e(f'v_add_f32 v97, v{T}, v{T+1}'); red8(97)
        a.e('ds_write_b64 v133, v[96:97]')
        a.e('s_waitcnt lgkmcnt(0)'); a.e('s_barrier')
        a.e('ds_read_b128 v[100:103], v132'); a.e('ds_read_b128 v[104:107], v132 offset:16')
        a.e('s_waitcnt lgkmcnt(0)')
        a.e('v_pk_add_f32 v[108:109], v[100:101], v[102:103]'); a.e('v_pk_add_f32 v[110:111], v[104:105], v[106:107]')
        a.e('v_pk_add_f32 v[108:109], v[108:109], v[110:111]')
        a.e('v_mul_f32 v108, 0x3e800000, v108')
        for r in (100, 102, 104, 106): a.e(f'v_sub_f32 v{r}, v{r}, v108')
        a.e('v_mul_f32 v110, v100, v100'); a.e('v_mul_f32 v111, v102, v102'); a.e('v_fmac_f32 v110, v104, v104'); a.e('v_fmac_f32 v111, v106, v106')
        a.e('v_add_f32 v110, v110, v111')
        a.e('v_fmac_f32 v109, v110, v120'); a.e('v_fmac_f32 v121, v109, v122')
        a.e('v_rsq_f32 v120, v121')
        a.e('v_sub_f32 v122, v108, v96'); a.e('v_mov_b32 v121, v120'); a.e('v_mul_f32 v122, v122, v120'); a.e('v_mov_b32 v123, v122')
        so_ = ['0', 's61', 's62', 's63']
        for it in range(4):
            for i_ in range(4*it, 4*it+4): a.e(f'v_pk_fma_f32 {P(X+2*i_)}, {P(X+2*i_)}, v[120:121], v[122:123]')
            for i_ in range(4*it, 4*it+4): a.e(f'v_cvt_pk_bf16_f32 v{32+i_}, v{X+2*i_}, v{X+2*i_+1}')
            a.e(f'buffer_store_dwordx4 v[{32+4*it}:{35+4*it}], v131, s[{S_XN}:{S_XN+3}], {so_[it]} offen sc1')
        st.at(5, 6)
        emit_dl(wpro)
        for x in fill: a.e(x)
        a.e(f's_waitcnt vmcnt({len(wpro)})'); a.e('s_barrier')
        if cfg.stamps == 5: st.at(5)
        a.e(f's_cmp_eq_u32 s{sWAVE}, 0'); a.e('s_cbranch_scc1 L1_pub')
        a.e(f's_cmp_eq_u32 s{sWAVE}, 3'); a.e('s_cbranch_scc1 L1_cpf')
        a.e('s_cmp_gt_u32 s2, 7'); a.e('s_cbranch_scc1 L1_polled')
        srd(a, 96, 6, 7, FLAG_BYTES, FLAG_OFF)
        a.e('s_lshl_b32 s60, s2, 14'); a.e('v_subrev_u32 v134, 64, v0'); a.e('v_lshlrev_b32 v134, 7, v134'); a.e('v_mov_b32 v135, 0')
        a.e('buffer_store_dword v135, v134, s[96:99], s60 offen')
        a.e('s_branch L1_polled')
        a.label('L1_cpf')
        if cfg.cpf: code_pf(a, 'L1_polled', 'L1_end', vLANE, 134, 135, 94, 4)
        a.e('s_branch L1_polled')
        a.label('L1_pub')
        a.e('s_mov_b64 exec, 1')
        a.e('buffer_store_dwordx2 v[136:137], v135, s[96:99], 0 offen sc1')
        a.e('s_mov_b64 exec, -1')
        a.e('s_mov_b32 s62, 0'); a.e('s_mov_b32 s63, 0x1000000')
        if cfg.f0sl: a.e(f's_sleep {cfg.f0sl}')
        a.label('L1_poll')
        a.e('buffer_load_dwordx2 v[138:139], v134, s[96:99], 0 offen sc1')
        a.e('s_add_u32 s62, s62, 1')
        a.e('s_waitcnt vmcnt(0)')
        a.e('v_xor_b32 v139, v138, v139'); a.e('v_subrev_u32 v138, s53, v138')
        a.e('v_cmp_eq_u32 vcc, -1, v139'); a.e('v_cmp_gt_u32 s[60:61], s63, v138')
        a.e('s_and_b64 vcc, vcc, s[60:61]')
        a.e('s_cmp_eq_u64 vcc, exec'); a.e('s_cbranch_scc1 L1_polled0')
        if cfg.f0sl2: a.e(f's_sleep {cfg.f0sl2}')
        a.e('s_cmp_lt_u32 s62, 0x8000'); a.e('s_cbranch_scc1 L1_poll')
        a.label('L1_polled0')
        a.label('L1_polled')
        a.e('s_barrier')
        emit_dl(dma_list(0)[5:10] + dma_list(1)[5:10] + latepf)
    else:
        dl = dma_list(1) + ([] if cfg.k1_v2 else dma_list(2))
        per = len(fill) // len(dl)
        k = 0
        for n_, (pre, ins, post) in enumerate(dl):
            if pre: a.e(pre)
            stop = (n_+1)*per if n_ < len(dl)-1 else len(fill)
            half = k + (stop - k)//2
            def run(upto):
                nonlocal k
                while k < upto or (k < len(fill) and fill[k].startswith(('s_cselect', 's_addc'))):
                    a.e(fill[k]); k += 1
            run(k+1)
            a.e(ins)
            if post: a.e(post)
            run(stop)
    st.at(1)
    a.e(f's_mov_b32 s{sCNT}, 0')
    a.e(f's_and_b32 s60, s{sWAVE}, 1'); a.e('s_cmp_eq_u32 s60, 1'); a.e('s_cbranch_scc1 L1_wn1')

    aACT = 0; aHA = 64; aW = 72; aHW = 88; aACC = 96
    NW = 4; PF = 3
    for wn in range(2):
        if wn == 1: a.label('L1_wn1')
        if wn == 0:
            units = [('q', 0), ('q', 2), ('q', 4), ('q', 6), ('q', 8), ('q', 10), ('g', 0), ('g', 2), ('u', 0), ('u', 2)]
            names = ['q0', 'q1', 'k0', 'k1', 'v0', 'v1', 'g0', 'g1', 'u0', 'u1']
            order_v = ['g0', 'g1', 'u0', 'u1', 'q0', 'q1', 'k0']; order_a = ['k1', 'v0', 'v1']
            if cfg.ep3: order_v = ['g0', 'g1', 'u0', 'q0', 'k0', 'v0', 'v1']; order_a = ['q1', 'k1', 'u1']
        else:
            units = [('g', 4+2*i) for i in range(5)] + [('u', 4+2*i) for i in range(5)]
            names = [f'g{i}' for i in range(2, 7)] + [f'u{i}' for i in range(2, 7)]
            order_v = ['g2', 'g3', 'g4', 'g5', 'g6', 'u2', 'u3']; order_a = ['u4', 'u5', 'u6']
            if cfg.ep3:
                names = ['g2', 'u2', 'g3', 'u3', 'g6', 'g4', 'u4', 'g5', 'u5', 'u6']
                units = [(nm[0], 2*int(nm[1])) for nm in names]
        acc = {}
        for i, nm in enumerate(order_v):
            for m in range(8): acc[(nm, m)] = ('v', 32 + (i*8+m)*4)
        for i, nm in enumerate(order_a):
            for m in range(8): acc[(nm, m)] = ('a', aACC + (i*8+m)*4)
        acc['halo'] = ('a', aACC + 96)
        def R(x): return f'{x[0]}[{x[1]}:{x[1]+3}]'
        def wread(slot, n, buf):
            kind, c0 = units[n]
            half = slot >> 1
            out = []
            for h in range(2):
                if kind == 'q':
                    base = (vQa if c0 % 4 == 0 else vQb) + half
                    off = (slot & 1)*20480 + c0*16 + h*3072
                else:
                    base = vGU + half
                    off = (slot & 1)*20480 + (6144 if kind == 'g' else 13312) + c0*16 + h*3584
                out.append(f'ds_read_b64_tr_b16 a[{aW+4*buf+2*h}:{aW+4*buf+2*h+1}], v{base} offset:{off}')
            return out
        def aread(slot, par, m):
            return f'ds_read_b128 a[{aACT+par*32+4*m}:{aACT+par*32+4*m+3}], v{vA} offset:{slot*16384+m*1024}'
        def hreads(slot):
            half = slot >> 1
            return [f'ds_read_b128 a[{aHA}:{aHA+3}], v{vHA} offset:{slot*1024}'] + \
                   [f'ds_read_b64_tr_b16 a[{aHW+2*h}:{aHW+2*h+1}], v{vHW+half} offset:{(slot&1)*20480+h*3072}' for h in range(2)]
        tr = LgkmTracker(a)
        def tail_reads(nslot, npar, wbase):
            sched = {}
            for k in range(PF):
                r = wread(nslot, k, (wbase + 10 + k) % NW)
                sched.setdefault((7+k)*8 + 0, []).append(r[0]); sched.setdefault((7+k)*8 + 1, []).append(r[1])
            extra = [aread(nslot, npar, m) for m in range(8)] + hreads(nslot)
            pos = [58, 59, 60, 61, 62, 63, 66, 67, 68, 69, 70]
            for p, r in zip(pos, extra): sched.setdefault(p, []).append(r)
            return sched
        if cfg.k1_v2:
            def wfrag(slot, n, reg):
                kind, c0 = units[n]
                half = slot >> 1
                out = []
                for h_ in range(2):
                    if kind == 'q':
                        base = (vQa if c0 % 4 == 0 else vQb) + half
                        off = (slot & 1)*20480 + c0*16 + h_*3072
                    else:
                        base = vGU + half
                        off = (slot & 1)*20480 + (6144 if kind == 'g' else 13312) + c0*16 + h_*3584
                    out.append(f'ds_read_b64_tr_b16 a[{reg+2*h_}:{reg+2*h_+1}], v{base} offset:{off}')
                return out
            aW2 = 216
            def wr(p, n, second): return aW2 + 8*((5*p + n) & 3) + 4*second
            def areg_(stage, m): return aACT + (stage & 1)*32 + 4*m
            def AR(r): return f'a[{r}:{r+3}]'
            carry = []
            def flat(dl):
                out = []
                for pre, ins, post in dl:
                    if pre: out.append(pre)
                    out.append(ins)
                    if post: out.append(post)
                return out
            def period(h, kind, side=None):
                nonlocal carry
                p = h + 1
                first = kind != 'P'; second = kind != 'Q'
                g0 = 0 if h % 2 == 0 else 5
                gn = 5 - g0
                secs = [x for x in (0, 1) if (first if x == 0 else second)]
                mf = [(n, m, sec) for n in range(3) for m in range(8) for sec in secs]
                L = 8*len(secs)
                T0 = len(mf)
                mf += [(n, m, sec) for m in range(8) for n in (3, 4) for sec in secs]
                N = len(mf)
                gaps = [[] for _ in range(N)]
                def place(item, lo, hi, cap=1):
                    for g in range(lo, hi+1):
                        if len(gaps[g]) < cap:
                            gaps[g].append(item); return g
                    return None
                def wf(n):
                    return (wfrag(h % 4, g0+n, wr(p, n, 0)) if first else []) + (wfrag((h+1) % 4, g0+n, wr(p, n, 1)) if second else [])
                for n, lst in ((0, wf(1)), (1, wf(2) ), (2, wf(3) + wf(4))):
                    for k_, r in enumerate(lst): gaps[n*L + k_].append(('r', r))
                if kind != 'Q':
                    cap = 1 if first else 2
                    cur = 1
                    for x in carry:
                        g = place(('x', x), cur, T0-1, cap)
                        assert g is not None
                        cur = g + (1 if (first or x.startswith('s_add_u32 m0')) else 0)
                    per = 2*len(secs)
                    for m in range(8):
                        g = T0 + per*m + (per - 2 if first else 0)
                        gaps[g].append(('r', f'ds_read_b128 {AR(areg_(h+2, m))}, v{vA} offset:{((h+2) % 4)*16384 + m*1024}'))
                    tail = wfrag((h+1) % 4, gn, wr(p+1, 0, 0)) + wfrag((h+2) % 4, gn, wr(p+1, 0, 1)) + hreads((h+2) % 4)
                    for k_, r in enumerate(tail):
                        g = place(('r', r), T0 + (per*k_ if first else 2*k_), N-1, 1); assert g is not None
                    items = flat(dma_list(h % 4))
                    cur = T0
                    hi = N-1 if not (kind == 'H' and h % 4 == 2) else N-4
                    while items:
                        g = place(('x', items[0]), cur, hi, 1)
                        if g is None: break
                        cur = g + 1; items.pop(0)
                    carry = items
                    if kind == 'H' and h % 4 == 2:
                        gaps[N-3].append(('x', f's_add_u32 s{sCNT}, s{sCNT}, 1')); gaps[N-2].append(('x', f's_cmp_eq_u32 s{sCNT}, 8'))
                    if kind == 'H' and h % 4 == 0 and cfg.ep3:
                        gaps[T0-4].append(('x', f's_cmp_eq_u32 s{sCNT}, 7'))
                        for k_, r_ in enumerate((sM_W, sM_ACT, sM_H)): gaps[T0-3+k_].append(('x', f's_cselect_b32 s{r_}, 170000, s{r_}'))
                if side:
                    lead = 3
                    for k_, x in enumerate(side):
                        gaps[min(N-1, lead + (k_*(N-lead))//len(side))].append(('w' if x.startswith('ds_write') else 'x', x))
                if kind == 'Q' and cfg.ep3:
                    mf = [(n, m, 0) for n in range(5) for m in range(8)]
                for i, (n, m, sec) in enumerate(mf):
                    nm = names[g0+n]
                    if kind != 'Q' and i == T0:
                        if cfg.stamps == 3: a.e('s_memtime s[96:97]')
                        a.e(f's_waitcnt vmcnt({VMW-1+len(latepf) if (cfg.fuse0 and kind == "P") else VMW}) lgkmcnt(0)'); tr.drain(); a.e('s_barrier')
                        if cfg.stamps == 3:
                            if kind == 'P': a.e('s_mov_b32 s98, 0')
                            a.e('v_mov_b32 v29, s96'); a.e(f'v_cmp_eq_u32 vcc, s98, v{vLANE}'); a.e('v_cndmask_b32 v30, v30, v29, vcc')
                            a.e('s_add_u32 s98, s98, 1')
                    wreg = AR(wr(p, n, sec)); areg = AR(areg_(h+sec, m))
                    tr.need(regs_of(wreg) + regs_of(areg) + (regs_of(AR(wr(p, n, 1))) if (n > 0 and second) else []))
                    d = R(acc[(nm, m)])
                    c = '0' if (kind == 'P' or (kind == 'H0' and sec == 0)) else d
                    if nm[0] == 'v': a.e(f'v_mfma_f32_16x16x32_bf16 {d}, {areg}, {wreg}, {c}')
                    else: a.e(f'v_mfma_f32_16x16x32_bf16 {d}, {wreg}, {areg}, {c}')
                    for k_, x in gaps[i]:
                        if k_ == 'r': tr.read(x)
                        elif k_ == 'w': a.e(x); tr.other()
                        else: a.e(x)
                    if kind != 'Q' and i == L + 5:
                        tr.need(regs_of(AR(aHA)) + regs_of(AR(aHW)))
                        d = R(acc['halo'])
                        a.e(f'v_mfma_f32_16x16x32_bf16 {d}, {AR(aHW)}, {AR(aHA)}, {"0" if kind == "P" else d}')
            carry = flat(dma_list(2))
            a.e(f's_waitcnt vmcnt({5 + len(latepf) if cfg.fuse0 else VMW})'); a.e('s_barrier')
            st.at(2)
            if st.on: a.e('s_waitcnt lgkmcnt(0)')
            for r in wfrag(0, 5, wr(0, 0, 1)) + [f'ds_read_b128 {AR(areg_(0, m))}, v{vA} offset:{m*1024}' for m in range(8)] + hreads(0): tr.read(r)
            period(-1, 'P')
            period(0, 'H0')
            entry_state = tr.state(); entry_carry = list(carry)
            a.label(f'L1_loop{wn}')
            period(1, 'H'); period(2, 'H')
            exit_q = list(tr.q)
            a.e(f's_cbranch_scc1 L1_tail{wn}')
            period(3, 'H'); period(4, 'H')
            assert tr.state() == entry_state, (tr.state(), entry_state)
            assert carry == entry_carry, (carry, entry_carry)
            a.e(f's_branch L1_loop{wn}')
            a.label(f'L1_tail{wn}')
            tr.q = exit_q
            if not cfg.ep3: period(31, 'Q')
        else:
            a.e(f's_waitcnt vmcnt({VMW})'); a.e('s_barrier')
            st.at(2)
            if st.on: a.e('s_waitcnt lgkmcnt(0)')
            sched = tail_reads(0, 0, -10)
            for p in sorted(sched):
                for r in sched[p]: tr.read(r)
            entry_state = tr.state()
            a.label(f'L1_loop{wn}')
            for u in range(4):
                slot = u; par = u & 1; wbase = (10*u) % NW
                sched = {}
                for n in range(7):
                    r = wread(slot, n+PF, (wbase + n + PF) % NW)
                    sched.setdefault(n*8 + 0, []).append(r[0]); sched.setdefault(n*8 + 1, []).append(r[1])
                for p, l in tail_reads((slot+1) % 4, par ^ 1, wbase).items(): sched.setdefault(p, []).extend(l)
                misc = {}
                dl = dma_list((slot+3) % 4)
                for i, (pre, ins, post) in enumerate(dl):
                    p = 3 + 5*i
                    if pre: misc.setdefault(p-1, []).append(pre)
                    misc.setdefault(p, []).append(ins)
                    if post: misc.setdefault(p, []).append(post)
                for n in range(10):
                    nm = names[n]
                    wreg = f'a[{aW+4*((wbase+n)%NW)}:{aW+4*((wbase+n)%NW)+3}]'
                    for m in range(8):
                        i = n*8 + m
                        if i == 56:
                            if cfg.stamps == 3: a.e('s_memtime s[96:97]')
                            a.e(f's_waitcnt vmcnt({VMW}) lgkmcnt(0)'); tr.drain(); a.e('s_barrier')
                            if cfg.stamps == 3:
                                a.e(f's_lshl_b32 s97, s{sCNT}, 2'); a.e(f's_add_u32 s97, s97, {u}')
                                a.e('v_mov_b32 v29, s96'); a.e(f'v_cmp_eq_u32 vcc, s97, v{vLANE}'); a.e('v_cndmask_b32 v30, v30, v29, vcc')
                        areg = f'a[{aACT+par*32+4*m}:{aACT+par*32+4*m+3}]'
                        tr.need(regs_of(wreg) + regs_of(areg))
                        d = R(acc[(nm, m)])
                        if nm[0] == 'v': a.e(f'v_mfma_f32_16x16x32_bf16 {d}, {areg}, {wreg}, {d}')
                        else: a.e(f'v_mfma_f32_16x16x32_bf16 {d}, {wreg}, {areg}, {d}')
                        for r in sched.get(i, []): tr.read(r)
                        for x in misc.get(i, []): a.e(x)
                        if i == 12:
                            tr.need(regs_of(f'a[{aHA}:{aHA+3}]') + regs_of(f'a[{aHW}:{aHW+3}]'))
                            d = R(acc['halo'])
                            a.e(f'v_mfma_f32_16x16x32_bf16 {d}, a[{aHW}:{aHW+3}], a[{aHA}:{aHA+3}], {d}')
                        if u == 3 and i == 76:
                            a.e(f's_add_u32 s{sCNT}, s{sCNT}, 1'); a.e(f's_cmp_lt_u32 s{sCNT}, 8')
            assert tr.state() == entry_state, (tr.state(), entry_state)
            a.e(f's_cbranch_scc1 L1_loop{wn}')
        if cfg.ep3:
            vO = vDA; vX = vDW
            def P2(r): return f'v[{r}:{r+1}]'
            def fetch(o, x, tmp):
                if x[0] == 'v': return x[1]
                for r in range(4): o.e(f'v_accvgpr_read_b32 v{tmp+r}, a{x[1]+r}')
                return tmp
            def hmul(o, g, u_, m, dst, tmp):
                gb = acc[(g, m)][1]; ub = fetch(o, acc[(u_, m)], tmp)
                o.e(f'v_pk_mul_f32 {P2(gb)}, {P2(gb)}, {P2(ub)}'); o.e(f'v_pk_mul_f32 {P2(gb+2)}, {P2(gb+2)}, {P2(ub+2)}')
                o.e(f'v_cvt_pk_bf16_f32 v{dst}, v{gb}, v{gb+1}'); o.e(f'v_cvt_pk_bf16_f32 v{dst+1}, v{gb+2}, v{gb+3}')
            def ostore(o, src, m, soff, n=4, cls=0):
                op = {4: 'buffer_store_dwordx4', 2: 'buffer_store_dwordx2'}[n]
                o.e(f'{op} v[{src}:{src+n-1}], v{vO + (m >> 2)}, s[{S_O}:{S_O+3}], {soff} offen offset:{(m&3)*1024}' + (' sc1' if (cfg.k1_st >> cls) & 1 else ''))
            def hblock(o, ga, ua, gb_, ub_, m, so, cls, tmp):
                dst = acc[(ga, m)][1]
                hmul(o, ga, ua, m, dst, tmp); hmul(o, gb_, ub_, m, dst+2, tmp+4); ostore(o, dst, m, so, cls=cls)
            def attn1(o, m, q, kp, kc, v0w, v1w, bp, BI, Sx, Ox):
                ONES = f'a[{aBI+12}:{aBI+15}]'
                o.e(f'v_mfma_f32_16x16x32_bf16 v[{Sx}:{Sx+3}], v[{kp}:{kp+3}], v[{q}:{q+3}], 0')
                o.e(f'v_mfma_f32_16x16x32_bf16 v[{Sx+4}:{Sx+7}], v[{kc}:{kc+3}], v[{q}:{q+3}], 0')
                o.e('; gap'); o.e('; gap')
                for r in (0, 2): o.e(f'v_pk_fma_f32 {P2(Sx+r)}, {P2(Sx+r)}, s[68:69], {P2(bp+r)}')
                for r in (0, 2): o.e(f'v_pk_fma_f32 {P2(Sx+4+r)}, {P2(Sx+4+r)}, s[68:69], {P2(BI+r)}')
                M = Sx + 8
                o.e(f'v_max3_f32 v{M}, v{Sx}, v{Sx+1}, v{Sx+2}'); o.e(f'v_max3_f32 v{M+1}, v{Sx+3}, v{Sx+4}, v{Sx+5}')
                o.e(f'v_max3_f32 v{M}, v{M}, v{Sx+6}, v{Sx+7}'); o.e(f'v_max_f32 v{M}, v{M}, v{M+1}')
                o.e(f'v_mov_b32 v{M+1}, v{M}')
                o.e(f'v_permlane32_swap_b32 v{M}, v{M+1}')
                o.e(f'v_max_f32 v{M}, v{M}, v{M+1}'); o.e(f'v_mov_b32 v{M+1}, v{M}')
                o.e(f'v_permlane16_swap_b32 v{M}, v{M+1}')
                o.e(f'v_max_f32 v{M}, v{M}, v{M+1}'); o.e(f'v_mov_b32 v{M+1}, v{M}')
                for r in (0, 2, 4, 6): o.e(f'v_pk_add_f32 {P2(Sx+r)}, {P2(Sx+r)}, {P2(M)} neg_lo:[0,1] neg_hi:[0,1]')
                for r in range(8): o.e(f'v_exp_f32 v{Sx+r}, v{Sx+r}')
                for r in range(4): o.e(f'v_cvt_pk_bf16_f32 v{Sx+12+r}, v{Sx+2*r}, v{Sx+2*r+1}')
                Pp = Sx + 12
                o.e(f'v_mfma_f32_16x16x32_bf16 v[{Ox+8}:{Ox+11}], {ONES}, v[{Pp}:{Pp+3}], 0')
                o.e(f'v_mfma_f32_16x16x32_bf16 v[{Ox}:{Ox+3}], v[{v0w}:{v0w+3}], v[{Pp}:{Pp+3}], 0')
                o.e(f'v_mfma_f32_16x16x32_bf16 v[{Ox+4}:{Ox+7}], v[{v1w}:{v1w+3}], v[{Pp}:{Pp+3}], 0')
                o.e(f'v_rcp_f32 v{Ox+8}, v{Ox+8}')
                o.e(f'v_mov_b32 v{Ox+9}, v{Ox+8}')
                for r in (0, 2, 4, 6): o.e(f'v_pk_mul_f32 {P2(Ox+r)}, {P2(Ox+r)}, {P2(Ox+8)}')
                for r in range(4): o.e(f'v_cvt_pk_bf16_f32 v{q+r}, v{Ox+2*r}, v{Ox+2*r+1}')
                ostore(o, q, m, 's67', cls=3)
            def merge(A, B):
                A = [x.text for x in A.ins]; B = [x.text for x in B.ins]
                want = []
                for i_, x in enumerate(A):
                    nxt = A[i_+1] if i_+1 < len(A) else ''
                    w = 0
                    if x.startswith('v_mfma') and not nxt.startswith('v_mfma'): w = 7
                    elif nxt.startswith('v_permlane'): w = 2
                    elif nxt.startswith('v_mfma') and x.startswith('v_cvt'): w = 2
                    elif x.startswith(('v_rcp',)): w = 1
                    want.append(w)
                tot = sum(want)
                extra = max(0, len(B) - tot)
                k = 0
                for i_, x in enumerate(A):
                    a.e(x)
                    n_ = want[i_] + ((i_+1)*extra)//len(A) - (i_*extra)//len(A)
                    for _ in range(n_):
                        if k < len(B): a.e(B[k]); k += 1
                while k < len(B): a.e(B[k]); k += 1
            o = Asm()
            o.e(f's_lshl_b32 s60, s{sRB}, 14'); o.e(f's_lshl_b32 s61, s{sWM}, 13'); o.e('s_add_u32 s60, s60, s61')
            o.e(f'v_lshl_add_u32 v{vO}, v{vLANE}, 4, s60')
            o.e(f'v_add_u32 v{vO+1}, 4096, v{vO}')
            o.e(f's_mul_i32 s62, s{sJ}, 7'); o.e(f's_and_b32 s63, s{sJ}, 1'); o.e('s_add_u32 s62, s62, s63'); o.e('s_lshr_b32 s62, s62, 1')
            o.e('s_add_u32 s62, s62, 32'); o.e('s_lshl_b32 s62, s62, 17')
            o.e('s_add_u32 s64, s62, 131072'); o.e('s_add_u32 s65, s62, 262144')
            o.e(f's_lshl_b32 s60, s{sWM}, 14'); o.e('s_add_u32 s60, s60, 4096')
            o.e(f'v_lshl_add_u32 v{vX}, v{vLANE}, 4, s60')
            o.e(f'v_and_b32 v{vT}, 15, v{vLANE}'); o.e(f'v_lshrrev_b32 v{vT+1}, 4, v{vLANE}')
            o.e(f'v_lshl_add_u32 v{vX+1}, v{vT}, 5, s60'); o.e(f'v_lshl_add_u32 v{vX+1}, v{vT+1}, 3, v{vX+1}')
            o.e(f's_mul_i32 s60, s{sWM}, 40960'); o.e('s_sub_u32 s61, 40960, s60')
            o.e(f'v_lshl_add_u32 v{vX+2}, v{vLANE}, 4, s60')
            o.e(f'v_lshl_add_u32 v{vX+3}, v{vT+1}, 7, s61'); o.e(f'v_lshl_add_u32 v{vX+3}, v{vT}, 1, v{vX+3}')
            hb = fetch(o, acc['halo'], vT)
            o.e(f'v_cvt_pk_bf16_f32 v{vT+4}, v{hb}, v{hb+1}'); o.e(f'v_cvt_pk_bf16_f32 v{vT+5}, v{hb+2}, v{hb+3}')
            o.e(f'ds_write_b64 v{vX+2}, v[{vT+4}:{vT+5}] offset:{8*wn}')
            of = 1024 + wn*512
            o.e(f'ds_write_b16 v{vX+3}, v{vT+4} offset:{of}'); o.e(f'ds_write_b16_d16_hi v{vX+3}, v{vT+4} offset:{of+32}')
            o.e(f'ds_write_b16 v{vX+3}, v{vT+5} offset:{of+64}'); o.e(f'ds_write_b16_d16_hi v{vX+3}, v{vT+5} offset:{of+96}')
            if cfg.pf and cfg.pf3 == 2:
                srd(o, S_PF, 68, 69, 1024*3584*2)
                o.e(f's_lshl_b32 s60, s2, 2'); o.e(f's_add_u32 s60, s60, s{sWAVE}'); o.e('s_mul_i32 s60, s60, 7168')
                o.e(f'v_min_u32 v{vPF}, 55, v{vLANE}'); o.e(f'v_lshlrev_b32 v{vPF}, 7, v{vPF}')
                o.e(f'buffer_load_dword v{vDUM}, v{vPF}, s[{S_PF}:{S_PF+3}], s60 offen')
            o.e('s_mov_b32 s68, 0x3e8293ee'); o.e('s_mov_b32 s69, 0x3e8293ee')
            o.e(f's_lshl_b32 s67, s{sJ}, 17')
            if wn == 0:
                def packqk(o, n0, n1, m):
                    d = acc[(n0, m)][1]
                    b1 = fetch(o, acc[(n1, m)], vT + 4*(m & 1))
                    o.e(f'v_cvt_pk_bf16_f32 v{d}, v{d}, v{d+1}'); o.e(f'v_cvt_pk_bf16_f32 v{d+1}, v{d+2}, v{d+3}')
                    o.e(f'v_cvt_pk_bf16_f32 v{d+2}, v{b1}, v{b1+1}'); o.e(f'v_cvt_pk_bf16_f32 v{d+3}, v{b1+2}, v{b1+3}')
                    return d
                PV0 = acc[('v0', 0)][1]; PV1 = acc[('v1', 0)][1]
                def packv(o, Pv, m, off):
                    b_ = Pv + 4*m
                    c1 = f'v_cvt_pk_bf16_f32 v{Pv+2+2*m}, v{b_}, v{b_+1}'; c2 = f'v_cvt_pk_bf16_f32 v{Pv+3+2*m}, v{b_+2}, v{b_+3}'
                    for x in ((c2, c1) if m == 0 else (c1, c2)): o.e(x)
                    if m >= 3: o.e(f'ds_write_b64 v{vX+1}, v[{Pv+2+2*m}:{Pv+3+2*m}] offset:{(m-3)*2048+off}')
                for m in range(3, 8):
                    d = packqk(o, 'k0', 'k1', m); o.e(f'ds_write_b128 v{vX}, v[{d}:{d+3}] offset:{(m-3)*2048}')
                for m in range(4, 8):
                    d = packqk(o, 'q0', 'q1', m); o.e(f'ds_write_b128 v{vX}, v[{d}:{d+3}] offset:{10240+(m-4)*1024}')
                for m in range(8): packv(o, PV0, m, 1024)
                for m in range(8): packv(o, PV1, m, 1536)
            else:
                o.e('s_add_u32 s66, s62, 393216'); o.e('s_sub_u32 s61, s62, 131072'); o.e('s_add_u32 s61, s61, 8')
                o.e('s_cmp_eq_u32 s63, 1'); o.e('s_cselect_b32 s66, s61, s66')
                for m in range(8): hblock(o, 'g2', 'u2', 'g3', 'u3', m, 's64', 0, vT)
            period(31, 'Q', side=[x.text for x in o.ins])
            if cfg.stamps != 2: st.at(3)
            a.e('s_waitcnt lgkmcnt(0)'); a.e('s_barrier')
            if cfg.stamps == 4: st.at(0)
            if cfg.pf:
                a.e('s_mov_b32 s94, 0x200000'); a.e('s_mov_b32 s95, 0x20000')
                a.e(f's_lshl_b32 s60, s2, 13'); a.e(f's_lshl_b32 s61, s{sWAVE}, 11'); a.e('s_add_u32 s60, s60, s61')
                a.e(f'v_lshlrev_b32 v{vPF}, 5, v{vLANE}')
                a.e(f'buffer_load_dword v{vDUM}, v{vPF}, s[92:95], s60 offen')
            A = Asm(); B = Asm()
            if wn == 0:
                KP = PV0 + 18; BI = PV1 + 18
                a.e(f's_lshl_b32 s60, s{sWM}, 12'); a.e('s_add_u32 s60, s60, 4096')
                a.e(f'v_subrev_u32 v{vX}, s60, v{vX}'); a.e(f'v_subrev_u32 v{vX+1}, s60, v{vX+1}')
                a.e(f'ds_read_b128 v[{KP}:{KP+3}], v{vX}')
                a.e(f'ds_read_b64 v[{PV0}:{PV0+1}], v{vX+1} offset:1024')
                a.e(f'ds_read_b64 v[{PV1}:{PV1+1}], v{vX+1} offset:1536')
                for m in range(4): hblock(a, 'g0', 'u0', 'g1', 'u1', m, 's62', 1, vT)
                for m in range(3): packqk(a, 'k0', 'k1', m)
                packqk(a, 'q0', 'q1', 0)
                for r in range(12): a.e(f'v_accvgpr_read_b32 v{BI+r}, a{aBI+r}')
                a.e('s_waitcnt lgkmcnt(0)')
                Sx = acc[('g1', 0)][1]; Ox = acc[('u0', 0)][1]
                for m in range(4):
                    attn1(A, m, acc[('q0', m)][1], acc[('k0', m-1)][1] if m else KP, acc[('k0', m)][1], PV0+2*m, PV1+2*m, BI+(8 if m == 0 else 4), BI, Sx, Ox)
                for m in range(1, 4): packqk(B, 'q0', 'q1', m)
                for m in range(4, 8): hblock(B, 'g0', 'u0', 'g1', 'u1', m, 's62', 1, vT)
            else:
                F = acc[('u2', 0)][1]
                KR = F; V0 = F + 20; V1 = F + 30; QR = F + 40; BI = F + 56
                for i_ in range(5):
                    a.e(f'ds_read_b128 v[{KR+4*i_}:{KR+4*i_+3}], v{vX} offset:{i_*2048}')
                    if i_: a.e(f'ds_read_b128 v[{QR+4*(i_-1)}:{QR+4*(i_-1)+3}], v{vX} offset:{10240+(i_-1)*1024}')
                for i_ in range(5):
                    a.e(f'ds_read_b64 v[{V0+2*i_}:{V0+2*i_+1}], v{vX+1} offset:{i_*2048+1024}')
                    a.e(f'ds_read_b64 v[{V1+2*i_}:{V1+2*i_+1}], v{vX+1} offset:{i_*2048+1536}')
                for r in range(8): a.e(f'v_accvgpr_read_b32 v{BI+r}, a{aBI+r}')
                for m in range(2): hblock(a, 'g4', 'u4', 'g5', 'u5', m, 's65', 0, vT)
                a.e('s_waitcnt lgkmcnt(0)')
                Sx = acc[('g3', 0)][1]; Ox = Sx + 16
                for i_ in range(4):
                    attn1(A, 4+i_, QR+4*i_, KR+4*i_, KR+4*i_+4, V0+2*i_, V1+2*i_, BI+4, BI, Sx, Ox)
                for m in range(2, 8): hblock(B, 'g4', 'u4', 'g5', 'u5', m, 's65', 0, vT)
                for m in range(8):
                    dst = acc[('g6', m)][1]
                    hmul(B, 'g6', 'u6', m, dst, vT + 4*(m & 1)); ostore(B, dst, m, 's66', n=2, cls=2)
            merge(A, B)
            if cfg.stamps not in (2, 5): st.at(4)
        else:
            if cfg.stamps != 2: st.at(3)
            a.e('s_waitcnt vmcnt(0) lgkmcnt(0)'); a.e('s_barrier')
            if cfg.stamps == 4: st.at(0)
            vO = vDA
            a.e(f's_lshl_b32 s60, s{sRB}, 14'); a.e(f's_lshl_b32 s61, s{sWM}, 13'); a.e('s_add_u32 s60, s60, s61')
            a.e(f'v_lshl_add_u32 v{vO}, v{vLANE}, 4, s60')
            a.e(f'v_add_u32 v{vO+1}, 4096, v{vO}')
            a.e(f's_mul_i32 s62, s{sJ}, 7'); a.e(f's_and_b32 s63, s{sJ}, 1'); a.e('s_add_u32 s62, s62, s63'); a.e('s_lshr_b32 s62, s62, 1')
            a.e('s_add_u32 s62, s62, 32'); a.e('s_lshl_b32 s62, s62, 17')
            def fetch(x, tmp):
                if x[0] == 'v': return x[1]
                for r in range(4): a.e(f'v_accvgpr_read_b32 v{tmp+r}, a{x[1]+r}')
                return tmp
            def hmul(g, u_, m, dst, tmp):
                gb = fetch(acc[(g, m)], tmp); ub = fetch(acc[(u_, m)], tmp+4)
                a.e(f'v_pk_mul_f32 v[{gb}:{gb+1}], v[{gb}:{gb+1}], v[{ub}:{ub+1}]')
                a.e(f'v_pk_mul_f32 v[{gb+2}:{gb+3}], v[{gb+2}:{gb+3}], v[{ub+2}:{ub+3}]')
                a.e(f'v_cvt_pk_bf16_f32 v{dst}, v{gb}, v{gb+1}')
                a.e(f'v_cvt_pk_bf16_f32 v{dst+1}, v{gb+2}, v{gb+3}')
            def ostore(src, m, soff, n=4, vbase=None, cls=0):
                vb = (vbase if vbase is not None else vO) + (m >> 2)
                op = {4: 'buffer_store_dwordx4', 2: 'buffer_store_dwordx2'}[n]
                a.e(f'{op} v[{src}:{src+n-1}], v{vb}, s[{S_O}:{S_O+3}], {soff} offen offset:{(m&3)*1024}' + (' sc1' if (cfg.k1_st >> cls) & 1 and (cls != 0 or m < cfg.k1_stm) else ''))
            if cfg.pf:
                a.e('s_mov_b32 s94, 0x200000'); a.e('s_mov_b32 s95, 0x20000')
                a.e(f's_lshl_b32 s64, s2, 13'); a.e(f's_lshl_b32 s65, s{sWAVE}, 11'); a.e('s_add_u32 s64, s64, s65')
                a.e(f'v_lshlrev_b32 v{vPF}, 5, v{vLANE}')
                a.e(f'buffer_load_dword v{vDUM}, v{vPF}, s[92:95], s64 offen')
            vX = vDW
            a.e(f'v_lshlrev_b32 v{vX}, 4, v{vLANE}')
            a.e(f'v_and_b32 v{vX+1}, 15, v{vLANE}'); a.e(f'v_lshlrev_b32 v{vX+1}, 5, v{vX+1}')
            a.e(f'v_lshrrev_b32 v{vX+2}, 4, v{vLANE}'); a.e(f'v_lshl_add_u32 v{vX+1}, v{vX+2}, 3, v{vX+1}')
            hb = fetch(acc['halo'], vT)
            a.e(f'v_cvt_pk_bf16_f32 v{vT+4}, v{hb}, v{hb+1}'); a.e(f'v_cvt_pk_bf16_f32 v{vT+5}, v{hb+2}, v{hb+3}')
            a.e(f's_cmp_eq_u32 s{sWM}, 1'); a.e(f's_cbranch_scc1 L1_hv{wn}')
            a.e(f'ds_write_b64 v{vX}, v[{vT+4}:{vT+5}] offset:{8*wn}')
            a.e(f's_branch L1_hd{wn}')
            a.label(f'L1_hv{wn}')
            a.e(f'v_lshlrev_b32 v{vX+2}, 7, v{vX+2}')
            a.e(f'v_and_b32 v{vX+3}, 15, v{vLANE}'); a.e(f'v_lshl_add_u32 v{vX+2}, v{vX+3}, 1, v{vX+2}')
            o = 1024 + wn*512
            a.e(f'ds_write_b16 v{vX+2}, v{vT+4} offset:{o}'); a.e(f'ds_write_b16_d16_hi v{vX+2}, v{vT+4} offset:{o+32}')
            a.e(f'ds_write_b16 v{vX+2}, v{vT+5} offset:{o+64}'); a.e(f'ds_write_b16_d16_hi v{vX+2}, v{vT+5} offset:{o+96}')
            a.label(f'L1_hd{wn}')
            a.e(f's_lshl_b32 s64, s{sWM}, 14'); a.e('s_add_u32 s64, s64, 4096')
            a.e(f'v_add_u32 v{vX+2}, s64, v{vX}'); a.e(f'v_add_u32 v{vX+3}, s64, v{vX+1}')
            a.e('s_mov_b32 s68, 0x3e8293ee'); a.e('s_mov_b32 s69, 0x3e8293ee')
            a.e(f's_lshl_b32 s67, s{sJ}, 17')
            def P2(r): return f'v[{r}:{r+1}]'
            def attention(blocks, BI, W1, W2):
                ONES = f'a[{aBI+12}:{aBI+15}]'
                for g0 in range(0, len(blocks), 2):
                    grp = [(blk, W1 + 16*i, W2 + 16*i) for i, blk in enumerate(blocks[g0:g0+2])]
                    for (m, q, kp, kc, v0w, v1w, first), Sx, Ox in grp:
                        a.e(f'v_mfma_f32_16x16x32_bf16 v[{Sx}:{Sx+3}], v[{kp}:{kp+3}], v[{q}:{q+3}], 0')
                        a.e(f'v_mfma_f32_16x16x32_bf16 v[{Sx+4}:{Sx+7}], v[{kc}:{kc+3}], v[{q}:{q+3}], 0')
                    for (m, q, kp, kc, v0w, v1w, first), Sx, Ox in grp:
                        bp = BI + (8 if first else 4)
                        for r in (0, 2): a.e(f'v_pk_fma_f32 {P2(Sx+r)}, {P2(Sx+r)}, s[68:69], {P2(bp+r)}')
                        for r in (0, 2): a.e(f'v_pk_fma_f32 {P2(Sx+4+r)}, {P2(Sx+4+r)}, s[68:69], {P2(BI+r)}')
                        M = Sx + 8
                        a.e(f'v_max3_f32 v{M}, v{Sx}, v{Sx+1}, v{Sx+2}'); a.e(f'v_max3_f32 v{M+1}, v{Sx+3}, v{Sx+4}, v{Sx+5}')
                        a.e(f'v_max3_f32 v{M}, v{M}, v{Sx+6}, v{Sx+7}'); a.e(f'v_max_f32 v{M}, v{M}, v{M+1}')
                        a.e(f'v_mov_b32 v{M+1}, v{M}')
                    for _, Sx, Ox in grp: a.e(f'v_permlane32_swap_b32 v{Sx+8}, v{Sx+9}')
                    for _, Sx, Ox in grp:
                        a.e(f'v_max_f32 v{Sx+8}, v{Sx+8}, v{Sx+9}'); a.e(f'v_mov_b32 v{Sx+9}, v{Sx+8}')
                    for _, Sx, Ox in grp: a.e(f'v_permlane16_swap_b32 v{Sx+8}, v{Sx+9}')
                    for _, Sx, Ox in grp:
                        a.e(f'v_max_f32 v{Sx+8}, v{Sx+8}, v{Sx+9}'); a.e(f'v_mov_b32 v{Sx+9}, v{Sx+8}')
                        for r in (0, 2, 4, 6): a.e(f'v_pk_add_f32 {P2(Sx+r)}, {P2(Sx+r)}, {P2(Sx+8)} neg_lo:[0,1] neg_hi:[0,1]')
                    for _, Sx, Ox in grp:
                        for r in range(8): a.e(f'v_exp_f32 v{Sx+r}, v{Sx+r}')
                    for _, Sx, Ox in grp:
                        for r in range(4): a.e(f'v_cvt_pk_bf16_f32 v{Sx+12+r}, v{Sx+2*r}, v{Sx+2*r+1}')
                    for (m, q, kp, kc, v0w, v1w, first), Sx, Ox in grp:
                        Pp = Sx + 12
                        a.e(f'v_mfma_f32_16x16x32_bf16 v[{Ox+8}:{Ox+11}], {ONES}, v[{Pp}:{Pp+3}], 0')
                        a.e(f'v_mfma_f32_16x16x32_bf16 v[{Ox}:{Ox+3}], v[{v0w}:{v0w+3}], v[{Pp}:{Pp+3}], 0')
                        a.e(f'v_mfma_f32_16x16x32_bf16 v[{Ox+4}:{Ox+7}], v[{v1w}:{v1w+3}], v[{Pp}:{Pp+3}], 0')
                    for _, Sx, Ox in grp:
                        a.e(f'v_rcp_f32 v{Ox+8}, v{Ox+8}')
                    for _, Sx, Ox in grp:
                        a.e(f'v_mov_b32 v{Ox+9}, v{Ox+8}')
                    for (m, q, kp, kc, v0w, v1w, first), Sx, Ox in grp:
                        for r in (0, 2, 4, 6): a.e(f'v_pk_mul_f32 {P2(Ox+r)}, {P2(Ox+r)}, {P2(Ox+8)}')
                        for r in range(4): a.e(f'v_cvt_pk_bf16_f32 v{q+r}, v{Ox+2*r}, v{Ox+2*r+1}')
                        ostore(q, m, 's67', cls=3)
            if wn == 1:
                a.e('s_add_u32 s64, s62, 131072'); a.e('s_add_u32 s65, s62, 262144')
                a.e('s_add_u32 s66, s62, 393216'); a.e('s_sub_u32 s61, s62, 131072'); a.e('s_add_u32 s61, s61, 8')
                a.e('s_cmp_eq_u32 s63, 1'); a.e('s_cselect_b32 s66, s61, s66')
                for m in range(8):
                    for (ga, ua, gb_, ub_, so) in (('g2', 'u2', 'g3', 'u3', 's64'), ('g4', 'u4', 'g5', 'u5', 's65')):
                        dst = acc[(ga, m)][1]
                        hmul(ga, ua, m, dst, vT)
                        hmul(gb_, ub_, m, dst+2, vT)
                        ostore(dst, m, so)
                    dst = acc[('g6', m)][1]
                    hmul('g6', 'u6', m, dst, vT)
                    ostore(dst, m, 's66', n=2, cls=2)
                if cfg.k1_wb == 1: a.e('buffer_wbl2 sc1')
                if cfg.k1_wb == 2:
                    a.e(f's_cmp_lg_u32 s{sWAVE}, 1'); a.e('s_cbranch_scc1 L1_nowb')
                    a.e('s_waitcnt vmcnt(0)'); a.e('buffer_wbl2 sc1')
                    a.label('L1_nowb')
                if cfg.k1_wb == 3:
                    a.e(f's_cmp_lg_u32 s{sWAVE}, 1'); a.e('s_cbranch_scc1 L1_nowb')
                    a.e(f's_cmp_lg_u32 s{sRB}, 0'); a.e('s_cbranch_scc1 L1_nowb')
                    a.e('s_waitcnt vmcnt(0)'); a.e('buffer_wbl2 sc1')
                    a.label('L1_nowb')
                F = acc[('u2', 0)][1]
                KR = F; V0 = F + 20; V1 = F + 30; QR = F + 40; BI = acc[('g3', 0)][1]
                W1 = acc[('g5', 0)][1]; W2 = W1 - 64 + 0
                W2 = BI + 0
                W2 = acc[('g3', 0)][1]; BI = F + 56
                for r in range(8): a.e(f'v_accvgpr_read_b32 v{BI+r}, a{aBI+r}')
                if cfg.stamps == 4: st.at(1)
                a.e('s_waitcnt lgkmcnt(0)'); a.e('s_barrier')
                if cfg.stamps == 4: st.at(2)
                for i in range(5):
                    a.e(f'ds_read_b128 v[{KR+4*i}:{KR+4*i+3}], v{vX+2} offset:{i*2048}')
                    if i: a.e(f'ds_read_b128 v[{QR+4*(i-1)}:{QR+4*(i-1)+3}], v{vX+2} offset:{10240+(i-1)*1024}')
                for i in range(5):
                    a.e(f'ds_read_b64 v[{V0+2*i}:{V0+2*i+1}], v{vX+3} offset:{i*2048+1024}')
                    a.e(f'ds_read_b64 v[{V1+2*i}:{V1+2*i+1}], v{vX+3} offset:{i*2048+1536}')
                a.e('s_waitcnt lgkmcnt(0)')
                attention([(4+i, QR+4*i, KR+4*i, KR+4*i+4, V0+2*i, V1+2*i, False) for i in range(4)], BI, W1, W2)
                if cfg.stamps != 2: st.at(4)
            else:
                def packqk(n0, n1, m):
                    d = acc[(n0, m)][1]
                    b1 = fetch(acc[(n1, m)], vT)
                    a.e(f'v_cvt_pk_bf16_f32 v{d}, v{d}, v{d+1}'); a.e(f'v_cvt_pk_bf16_f32 v{d+1}, v{d+2}, v{d+3}')
                    a.e(f'v_cvt_pk_bf16_f32 v{d+2}, v{b1}, v{b1+1}'); a.e(f'v_cvt_pk_bf16_f32 v{d+3}, v{b1+2}, v{b1+3}')
                    return d
                for m in range(8):
                    dst = acc[('g0', m)][1]
                    hmul('g0', 'u0', m, dst, vT); hmul('g1', 'u1', m, dst+2, vT)
                    ostore(dst, m, 's62', cls=1)
                PV0 = acc[('u0', 0)][1]; PV1 = PV0 + 18
                KP = PV0 + 36; BI = KP + 4
                for m in (3, 4, 5, 6, 7, 0, 1, 2):
                    d = packqk('k0', 'k1', m)
                    if m >= 3: a.e(f'ds_write_b128 v{vX+2}, v[{d}:{d+3}] offset:{(m-3)*2048}')
                    for (nm, Pv, o) in (('v0', PV0, 1024), ('v1', PV1, 1536)):
                        b_ = fetch(acc[(nm, m)], vT+4)
                        a.e(f'v_cvt_pk_bf16_f32 v{Pv+2+2*m}, v{b_}, v{b_+1}'); a.e(f'v_cvt_pk_bf16_f32 v{Pv+3+2*m}, v{b_+2}, v{b_+3}')
                        if m >= 3: a.e(f'ds_write_b64 v{vX+3}, v[{Pv+2+2*m}:{Pv+3+2*m}] offset:{(m-3)*2048+o}')
                    if m >= 4:
                        d = packqk('q0', 'q1', m)
                        a.e(f'ds_write_b128 v{vX+2}, v[{d}:{d+3}] offset:{10240+(m-4)*1024}')
                    if m == 7:
                        if cfg.stamps == 4: st.at(1)
                        a.e('s_waitcnt lgkmcnt(0)'); a.e('s_barrier')
                        if cfg.stamps == 4: st.at(2)
                        a.e(f's_mul_i32 s64, s{sWM}, 12288')
                        a.e(f'v_add_u32 v{vX}, s64, v{vX}'); a.e(f'v_add_u32 v{vX+1}, s64, v{vX+1}')
                        a.e(f'ds_read_b128 v[{KP}:{KP+3}], v{vX}')
                        a.e(f'ds_read_b64 v[{PV0}:{PV0+1}], v{vX+1} offset:1024')
                        a.e(f'ds_read_b64 v[{PV1}:{PV1+1}], v{vX+1} offset:1536')
                for m in range(4): packqk('q0', 'q1', m)
                for r in range(12): a.e(f'v_accvgpr_read_b32 v{BI+r}, a{aBI+r}')
                a.e('s_waitcnt lgkmcnt(0)')
                W1 = acc[('q1', 0)][1]; W2 = acc[('g1', 0)][1]
                attention([(m, acc[('q0', m)][1], acc[('k0', m-1)][1] if m else KP, acc[('k0', m)][1], PV0+2*m, PV1+2*m, m == 0) for m in range(4)], BI, W1, W2)
                if cfg.stamps != 2: st.at(4)
        if st.on: a.e('s_waitcnt vmcnt(0)')
        if cfg.stamps not in (2, 5): st.at(5)
        st.flush(6, 7, sWAVE, vT, vT+1, 92)
        if cfg.stamps == 3:
            srd(a, 92, 6, 7, 1 << 20, STAMP_OFF + (1 << 19))
            a.e(f's_lshl_b32 s96, s2, 10'); a.e(f's_lshl_b32 s97, s{sWAVE}, 8'); a.e('s_add_u32 s96, s96, s97')
            a.e(f'v_lshl_add_u32 v{vT}, v{vLANE}, 2, s96')
            a.e(f'buffer_store_dword v30, v{vT}, s[92:95], 0 offen')
        if wn == 0: a.e('s_endpgm')
    a.label('L1_end')
    a.e('s_endpgm')
    return name, (256, 256, L1_TOTAL + 512), kdesc(name, 512, 256)

def gen_k2(a, cfg):
    name = 'gemm2_kernel'
    khead(a, name)
    st = Stamper(a, cfg.stamps, 70, 2)
    NS = cfg.k2_ns
    FS = cfg.k2_fs; HS = 2*(36-FS); TOT = FS + HS
    WB = NS*16384
    S_A = 8; S_W = 12; S_P = 16; S_X = 20; S_OUT = 24; S_F = 28
    sACT = 32; sWO = 33; sM_A = 34; sM_W = 35; sU = 36; sEND = 37; sWAVE = 38; sPART = 39; sRB = 40; sCB = 41; sLOADU = 42; sTILE = 43
    sBEG = 66; sLCNT = 67; sGOT = 68
    vLANE = 1; vDA = 2; vDW = 3; vA = 7; vW = 9; vT = 20; vXO = 17; vDUM = 18; vFLG = 19
    vPS = 28; vPL = 29; vFS = 30; vFL = 31
    XR = 32
    vDH = 48
    vWH = 50
    sM_H = 69
    ACC = 64
    FR = 128
    a.e('s_cmp_ge_u32 s2, 256'); a.e('s_cbranch_scc1 L2_end')
    st.at(0)
    a.e('s_load_dwordx2 s[6:7], s[0:1], 72')
    a.e('s_load_dwordx2 s[44:45], s[0:1], 16')
    a.e('s_load_dwordx4 s[48:51], s[0:1], 48')
    a.e('s_load_dwordx2 s[4:5], s[0:1], 0')
    a.e(f'v_lshrrev_b32 v{vT}, 6, v0')
    a.e(f'v_and_b32 v{vLANE}, 63, v0')
    a.e(f'v_readfirstlane_b32 s{sWAVE}, v{vT}')
    a.e('s_and_b32 s3, s2, 7'); a.e(f's_lshr_b32 s{sPART}, s3, 2'); a.e('s_and_b32 s3, s3, 3'); a.e('s_lshl_b32 s3, s3, 2')
    a.e('s_lshr_b32 s52, s2, 3'); a.e(f's_and_b32 s{sCB}, s52, 7'); a.e('s_lshr_b32 s52, s52, 3'); a.e(f's_add_u32 s{sRB}, s3, s52')
    a.e(f's_cmp_eq_u32 s{sPART}, 0')
    a.e(f's_cselect_b32 s{sBEG}, 0, {FS}'); a.e(f's_cselect_b32 s{sEND}, {TOT}, 72')
    a.e(f's_cselect_b32 s{sLOADU}, 0, {TOT}'); a.e(f's_cselect_b32 s{sWO}, 0, {(TOT-16)*131072}')
    a.e(f's_mov_b32 s{sU}, 0'); a.e(f's_mov_b32 s{sLCNT}, 0')
    a.e(f's_lshr_b32 s57, s{sWAVE}, 1'); a.e(f's_and_b32 s58, s{sWAVE}, 1')
    a.e('s_lshl_b32 s52, s57, 17')
    a.e('s_lshl_b32 s54, s58, 12'); a.e('s_add_u32 s52, s52, s54')
    a.e(f's_lshl_b32 s54, s{sRB}, 13'); a.e('s_add_u32 s52, s52, s54')
    a.e(f'v_lshl_add_u32 v{vDA}, v{vLANE}, 4, s52')
    a.e(f's_lshl_b32 s{sACT}, s{sLOADU}, 18')
    a.e(f's_lshl_b32 s{sM_A}, s{sWAVE}, 12'); a.e(f's_add_u32 s{sM_W}, s{sM_A}, {WB}')
    a.e(f'v_lshrrev_b32 v{vT}, 4, v{vLANE}'); a.e(f'v_and_b32 v{vT+1}, 15, v{vLANE}')
    a.e(f's_lshl_b32 s52, s{sWAVE}, 15'); a.e(f's_lshl_b32 s54, s{sCB}, 8'); a.e('s_add_u32 s52, s52, s54')
    a.e(f'v_lshl_add_u32 v{vT+3}, v{vT}, 11, s52')
    a.e(f'v_lshlrev_b32 v{vT+2}, 1, v{vT}')
    a.e(f'v_xor_b32 v{vT+2}, v{vT+2}, v{vT+1}')
    a.e(f'v_lshl_add_u32 v{vDW}, v{vT+2}, 4, v{vT+3}')
    a.e(f'v_xor_b32 v{vDW+1}, 128, v{vDW}'); a.e(f'v_add_u32 v{vDW+1}, 8192, v{vDW+1}')
    a.e(f'v_add_u32 v{vDW+2}, 16384, v{vDW}'); a.e(f'v_add_u32 v{vDW+3}, 16384, v{vDW+1}')
    a.e(f's_mov_b32 s55, {1024*1024*2}'); a.e(f's_mov_b32 s56, {3584*1024*2}')
    a.e(f's_mov_b32 s{S_W+3}, 0x20000'); a.e(f's_mov_b32 s{S_A+2}, {ACT2_BYTES}'); a.e(f's_mov_b32 s{S_A+3}, 0x20000')
    a.e('s_waitcnt lgkmcnt(0)')
    a.e(f's_add_u32 s{S_A}, s6, {ACT2_OFF}'); a.e(f's_addc_u32 s{S_A+1}, s7, 0')
    a.e(f's_cmp_lt_u32 s{sLOADU}, 16')
    a.e(f's_cselect_b32 s{S_W}, s44, s48'); a.e(f's_cselect_b32 s{S_W+1}, s45, s49')
    a.e(f's_cselect_b32 s{S_W+2}, s55, s56')
    def dma_list(slot, masked=False, sw=False, adv=True):
        L = []
        for d in range(2 if masked else 4):
            L.append(([f's_add_u32 m0, s{sM_H if masked else sM_W}, {slot*16384 + d*1024}'],
                      f'buffer_load_dwordx4 v{(vDH if masked else vDW)+d}, s[{S_W}:{S_W+3}], s{sWO} offen lds', []))
        for d in range(4):
            L.append(([f's_add_u32 m0, s{sM_A}, {slot*16384}'] if d == 0 else [],
                      f'buffer_load_dwordx4 v{vDA}, s[{S_A}:{S_A+3}], s{sACT} offen offset:{d*1024} lds', []))
        post = [f's_add_u32 s{sLOADU}, s{sLOADU}, 1',
                f's_cmp_eq_u32 s{sLOADU}, s{sEND}', f's_cselect_b32 s{sLOADU}, s{sBEG}, s{sLOADU}',
                f's_lshl_b32 s{sACT}, s{sLOADU}, 18',
                f's_sub_u32 s{sWO}, s{sLOADU}, 16',
                f's_cselect_b32 s{sWO}, s{sLOADU}, s{sWO}',
                f's_cselect_b32 s{S_W}, s44, s48', f's_cselect_b32 s{S_W+1}, s45, s49', f's_cselect_b32 s{S_W+2}, s55, s56',
                f's_lshl_b32 s{sWO}, s{sWO}, 17']
        L[-1] = (L[-1][0], L[-1][1], post if adv else [])
        return L
    VMW = 8*(NS-2)
    for pre, ins, post in dma_list(0):
        for x in pre: a.e(x)
        a.e(ins)
        for x in post: a.e(x)
    if cfg.cpf:
        a.e(f's_cmp_lg_u32 s{sWAVE}, 3'); a.e('s_cbranch_scc1 L2_nocpf')
        a.e(f's_cmp_gt_u32 s2, 31'); a.e('s_cbranch_scc1 L2_nocpf')
        code_pf(a, 'L2_nocpf', 'L2_end', vLANE, vT+2, vDUM, 94, 2)
        a.label('L2_nocpf')
    b = Asm()
    b.e(f's_mov_b32 s{sLCNT}, {NS}'); b.e(f's_mov_b32 s{sGOT}, 0')
    b.e(f's_lshl_b32 s{sTILE}, s{sRB}, 3'); b.e(f's_add_u32 s{sTILE}, s{sTILE}, s{sCB}')
    b.e('s_lshl_b32 s52, s57, 12')
    b.e(f'v_lshl_add_u32 v{vA}, v{vLANE}, 4, s52'); b.e(f'v_add_u32 v{vA+1}, 65536, v{vA}')
    b.e(f'v_lshrrev_b32 v{vT}, 2, v{vLANE}')
    b.e(f'v_and_b32 v{vT+1}, 7, v{vT}'); b.e(f'v_lshlrev_b32 v{vT+1}, 5, v{vT+1}')
    b.e(f'v_and_b32 v{vT+2}, 3, v{vLANE}'); b.e(f'v_lshlrev_b32 v{vT+2}, 3, v{vT+2}')
    b.e(f'v_lshl_add_u32 v{vT+2}, v{vT}, 8, v{vT+2}'); b.e(f'v_add_u32 v{vT+2}, {WB}, v{vT+2}')
    b.e('s_lshl_b32 s52, s58, 6'); b.e(f's_lshl_b32 s59, s{sPART}, 7'); b.e('s_add_u32 s59, s59, s52')
    for n in range(4):
        b.e(f's_xor_b32 s53, s59, {32*(n&1) + 128*(n>>1)}')
        b.e(f'v_xor_b32 v{vT+3}, s53, v{vT+1}')
        b.e(f'v_add_u32 v{vW+n}, v{vT+3}, v{vT+2}'); b.e(f'v_add_u32 v{vW+4+n}, 65536, v{vW+n}')
    b.e(f's_lshl_b32 s{sM_H}, s{sWAVE}, 11'); b.e(f's_add_u32 s{sM_H}, s{sM_H}, {WB}')
    b.e(f'v_lshrrev_b32 v{vT}, 3, v{vLANE}'); b.e(f'v_and_b32 v{vT+1}, 6, v{vT}'); b.e(f'v_and_b32 v{vT+2}, 7, v{vLANE}')
    b.e(f'v_xor_b32 v{vT+1}, v{vT+1}, v{vT+2}')
    b.e(f's_lshl_b32 s52, s{sWAVE}, 15'); b.e(f's_lshl_b32 s53, s{sCB}, 8'); b.e('s_add_u32 s52, s52, s53')
    b.e(f's_lshl_b32 s53, s{sPART}, 7'); b.e('s_add_u32 s52, s52, s53')
    b.e(f'v_lshl_add_u32 v{vT}, v{vT}, 11, s52'); b.e(f'v_lshl_add_u32 v{vDH}, v{vT+1}, 4, v{vT}')
    b.e(f'v_add_u32 v{vDH+1}, 16384, v{vDH}')
    b.e(f'v_lshrrev_b32 v{vT}, 2, v{vLANE}'); b.e(f'v_and_b32 v{vT+1}, 6, v{vT}'); b.e(f'v_lshlrev_b32 v{vT+1}, 4, v{vT+1}')
    b.e(f'v_and_b32 v{vT+2}, 3, v{vLANE}'); b.e(f'v_lshlrev_b32 v{vT+2}, 3, v{vT+2}')
    b.e(f'v_lshl_add_u32 v{vT+2}, v{vT}, 7, v{vT+2}'); b.e(f'v_add_u32 v{vT+2}, {WB}, v{vT+2}')
    b.e('s_lshl_b32 s52, s58, 6')
    for n in range(2):
        b.e(f's_add_u32 s53, s52, {32*n}')
        b.e(f'v_xor_b32 v{vT+3}, s53, v{vT+1}')
        b.e(f'v_add_u32 v{vWH+n}, v{vT+3}, v{vT+2}'); b.e(f'v_add_u32 v{vWH+2+n}, 65536, v{vWH+n}')
    srd(b, S_X, 4, 5, 2048*1024*2); srd(b, S_OUT, 50, 51, 2048*1024*2)
    srd(b, S_P, 6, 7, PART_BYTES if not cfg.pbf else XN_BYTES, PART_OFF if cfg.pbf != 2 else XN_OFF); srd(b, S_F, 6, 7, FLAG_BYTES, FLAG_OFF)
    b.e(f's_lshl_b32 s52, s{sRB}, 18'); b.e('s_lshl_b32 s53, s57, 17'); b.e('s_add_u32 s52, s52, s53')
    b.e(f's_lshl_b32 s53, s{sCB}, 8'); b.e('s_add_u32 s52, s52, s53'); b.e('s_add_u32 s52, s52, s59')
    b.e(f'v_and_b32 v{vT+1}, 15, v{vLANE}'); b.e(f'v_lshl_add_u32 v{vT+1}, v{vT+1}, 11, s52')
    b.e(f'v_lshrrev_b32 v{vT}, 4, v{vLANE}')
    b.e(f'v_and_b32 v{vT+2}, 1, v{vT}'); b.e(f'v_lshl_add_u32 v{vT+1}, v{vT+2}, 5, v{vT+1}')
    b.e(f'v_lshrrev_b32 v{vT+2}, 1, v{vT}'); b.e(f'v_lshl_add_u32 v{vXO}, v{vT+2}, 4, v{vT+1}')
    for m in range(4): b.e(f's_mov_b32 s{60+m}, {m*32768}')
    b.e(f's_lshl_b32 s52, s{sTILE}, 1'); b.e(f's_add_u32 s52, s52, s{sPART}'); b.e('s_lshl_b32 s52, s52, 2'); b.e(f's_add_u32 s52, s52, s{sWAVE}')
    b.e('s_xor_b32 s53, s52, 4')
    b.e('s_lshl_b32 s54, s52, 7'); b.e(f'v_mov_b32 v{vFS}, s54')
    b.e('s_lshl_b32 s54, s53, 7'); b.e(f'v_mov_b32 v{vFL}, s54')
    b.e(f's_lshl_b32 s52, s52, {12 if cfg.pbf else 13}'); b.e(f's_lshl_b32 s53, s53, {12 if cfg.pbf else 13}')
    b.e(f'v_lshl_add_u32 v{vPS}, v{vLANE}, 4, s52'); b.e(f'v_lshl_add_u32 v{vPL}, v{vLANE}, 4, s53')
    b.e('s_movk_i32 s65, 4096'); b.e('s_mov_b32 s64, 0xffff0000'); b.e(f'v_mov_b32 v{vDUM}, 1') if False else None
    b.e(f'v_mov_b32 v{vT+6}, 1')
    for i in range(32): b.e(f'v_mov_b64 v[{ACC+2*i}:{ACC+2*i+1}], 0')
    fill = [x.text for x in b.ins]
    dl = sum([dma_list(s_) for s_ in range(1, NS)], [])
    per = len(fill) // len(dl) + 1
    k = 0
    def run(upto):
        nonlocal k
        while k < len(fill) and (k < upto or fill[k].startswith(('s_cselect', 's_addc'))):
            a.e(fill[k]); k += 1
    for n_, (pre, ins, post) in enumerate(dl):
        for x in pre: a.e(x)
        run(k+1)
        a.e(ins)
        for x in post: a.e(x)
        run((n_+1)*per)
    run(len(fill))
    so = ['0', 's65']
    def areg(par, ks, m): return FR + par*64 + ks*16 + m*4
    def wreg(par, ks, n): return FR + par*64 + 32 + ks*16 + n*4
    def reads(slot, par, nn=4):
        L = []
        hi = 1 if slot >= 4 else 0
        base = (slot & 3)*16384
        def ar_(ks, m): return [f'ds_read_b128 v[{areg(par,ks,m)}:{areg(par,ks,m)+3}], v{vA+hi} offset:{base + ks*8192 + m*1024}']
        def wr_(ks, n):
            if nn == 2: return [f'ds_read_b64_tr_b16 v[{wreg(par,ks,n)+2*h}:{wreg(par,ks,n)+2*h+1}], v{vWH+2*hi+n} offset:{base + ks*4096 + h*2048}' for h in range(2)]
            return [f'ds_read_b64_tr_b16 v[{wreg(par,ks,n)+2*h}:{wreg(par,ks,n)+2*h+1}], v{vW+4*hi+n} offset:{base + ks*8192 + h*4096}' for h in range(2)]
        L += wr_(0, 0) + ar_(0, 0) + wr_(1, 0) + ar_(1, 0)
        for m in range(1, 4): L += ar_(0, m) + ar_(1, m)
        for n in range(1, nn): L += wr_(0, n) + wr_(1, n)
        return L
    def rec():
        if cfg.stamps != 7: return
        a.e('s_memrealtime s[86:87]'); a.e('s_waitcnt lgkmcnt(0)')
        a.e('v_mov_b32 v62, s86'); a.e(f'v_cmp_eq_u32 vcc, s88, v{vLANE}'); a.e('v_cndmask_b32 v63, v63, v62, vcc'); a.e('s_add_u32 s88, s88, 1')
    def mfmas(par, order, sched):
        i = 0
        for n in order:
            for m in range(4):
                for ks in range(2):
                    d = ACC + (n*4+m)*4
                    a.e(f'v_mfma_f32_16x16x32_bf16 v[{d}:{d+3}], v[{wreg(par,ks,n)}:{wreg(par,ks,n)+3}], v[{areg(par,ks,m)}:{areg(par,ks,m)+3}], v[{d}:{d+3}]')
                    for x in sched.get(i, []): a.e(x)
                    i += 1
    a.e(f's_waitcnt vmcnt({VMW + 8})'); a.e('s_barrier')
    st.at(2)
    if st.on: a.e('s_waitcnt lgkmcnt(0)')
    for r in reads(0, 0): a.e(r)
    if cfg.stamps == 7: a.e('s_mov_b32 s88, 0')
    a.label('L2_loop')
    UN = NS if NS % 2 == 0 else 2*NS
    LS = FS - NS
    uexit = (LS - 1) % UN
    for u in range(UN):
        slot = u % NS; par = u & 1
        a.e(f's_waitcnt vmcnt({VMW}) lgkmcnt(0)'); a.e('s_barrier'); rec()
        sched = {}
        for i, r in enumerate(reads((slot+1) % NS, par ^ 1)): sched.setdefault(i, []).append(r)
        for i, (pre, ins, post) in enumerate(dma_list(slot)):
            p = 1 + 3*i
            for x in pre: sched.setdefault(p-1, []).append(x)
            sched.setdefault(p, []).append(ins)
            for k_, x in enumerate(post): sched.setdefault(min(30, p + 1 + k_//2), []).append(x)
        if u == uexit:
            sched.setdefault(31, []).append(f's_add_u32 s{sU}, s{sU}, {UN}')
            sched.setdefault(31, []).append(f's_cmp_ge_u32 s{sU}, {LS}')
        mfmas(par, range(4), sched)
        if u == uexit: a.e('s_cbranch_scc1 L2_half')
        if u == UN-1: a.e('s_branch L2_loop')
    a.label('L2_half')
    q = []
    for t in range(LS+1, FS): q += [('d', t)]*8
    def wait_for(pred, extra=''):
        last = max([i for i, x in enumerate(q) if pred(x)], default=-1)
        n = len(q) - 1 - last
        a.e(f's_waitcnt vmcnt({min(n, 63)}){extra}')
        del q[:last+1]
    chk = cfg.k2_chk if cfg.k2_chk else HS-2
    def pl():
        if cfg.pbf:
            for k_ in range(4): a.e(f'buffer_load_dwordx4 v[{ACC+32+4*k_}:{ACC+32+4*k_+3}], v{vPL}, s[{S_P}:{S_P+3}], 0 offen offset:{k_*1024} sc1')
        else:
            for k_ in (0, 4, 1, 5, 2, 6, 3, 7):
                a.e(f'buffer_load_dwordx4 v[{ACC+32+4*k_}:{ACC+32+4*k_+3}], v{vPL}, s[{S_P}:{S_P+3}], {so[k_>>2]} offen offset:{(k_&3)*1024} sc1')
    for t in range(LS, TOT):
        hs = t - FS; slot = t % NS; par = t & 1
        nn = 4 if hs < 0 else 2
        if hs == 0: st.at(1)
        if any(x == ('d', t+1) for x in q): wait_for(lambda x: x == ('d', t+1), ' lgkmcnt(0)')
        else: a.e('s_waitcnt lgkmcnt(0)')
        if t+1 < TOT: a.e('s_barrier')
        rec()
        sched = {}
        def add(i, x, tag=None): sched.setdefault(i, []).append((x, tag))
        if t + 1 < TOT:
            for i, r in enumerate(reads((slot+1) % NS, par ^ 1, 4 if t+1 < FS else 2)): add(i, r)
        extra = []
        if t + NS < TOT:
            for pre, ins, post in dma_list(slot, masked=True):
                extra += [(x, None) for x in pre] + [(ins, ('d', t+NS))] + [(x, None) for x in post]
        if hs == max(HS-NS, 1):
            extra += [(f'buffer_load_dwordx4 v[{XR+4*m}:{XR+4*m+3}], v{vXO}, s[{S_X}:{S_X+3}], s{60+m} offen', ('x', 0)) for m in range(4)]
        if hs == 0:
            extra = [e_ for e_ in extra if not e_[0].startswith(('s_cmp', 's_csel', 's_lshl', 's_sub', f's_add_u32 s{sLOADU}')) or t+NS+1 < TOT]
            if cfg.pbf:
                for k_ in range(4):
                    c0 = ACC+32+4*k_; c1 = ACC+48+4*k_
                    extra += [(f'v_cvt_pk_bf16_f32 v{c0}, v{c0}, v{c0+1}', None), (f'v_cvt_pk_bf16_f32 v{c0+1}, v{c0+2}, v{c0+3}', None),
                              (f'v_cvt_pk_bf16_f32 v{c0+2}, v{c1}, v{c1+1}', None), (f'v_cvt_pk_bf16_f32 v{c0+3}, v{c1+2}, v{c1+3}', None),
                              (f'buffer_store_dwordx4 v[{c0}:{c0+3}], v{vPS}, s[{S_P}:{S_P+3}], 0 offen offset:{k_*1024} sc1', ('s', 0))]
            else:
                extra += [(f'buffer_store_dwordx4 v[{ACC+32+4*k_}:{ACC+32+4*k_+3}], v{vPS}, s[{S_P}:{S_P+3}], {so[k_>>2]} offen offset:{(k_&3)*1024} sc1', ('s', 0)) for k_ in range(8)]
        for k_, (x, tag) in enumerate(extra): add((k_*8*nn)//max(len(extra), 1), x, tag)
        i = 0
        for n in range(nn):
            for m in range(4):
                for ks in range(2):
                    d = ACC + (n*4+m)*4
                    a.e(f'v_mfma_f32_16x16x32_bf16 v[{d}:{d+3}], v[{wreg(par,ks,n)}:{wreg(par,ks,n)+3}], v[{areg(par,ks,m)}:{areg(par,ks,m)+3}], v[{d}:{d+3}]')
                    for x, tag in sched.get(i, []):
                        a.e(x)
                        if tag: q.append(tag)
                    i += 1
        if hs == cfg.k2_flg:
            wait_for(lambda x: x[0] == 's')
            a.e('s_mov_b64 exec, 1')
            a.e(f'buffer_store_dword v{vT+6}, v{vFS}, s[{S_F}:{S_F+3}], 0 offen sc1'); q.append(('f', 0))
            a.e('s_mov_b64 exec, -1')
        if hs == chk-1:
            a.e(f'buffer_load_dword v{vFLG}, v{vFL}, s[{S_F}:{S_F+3}], 0 offen sc1'); q.append(('p', 0))
        if hs == chk:
            wait_for(lambda x: x[0] == 'p')
            a.e(f'v_readfirstlane_b32 s52, v{vFLG}')
            a.e('s_cmp_eq_u32 s52, 1'); a.e('s_cbranch_scc0 L2_notyet')
            pl()
            a.e(f's_mov_b32 s{sGOT}, 1')
            a.label('L2_notyet')
    st.at(3)
    for m in range(4):
        T = FR + m*8; x = XR + 4*m
    a.e(f's_cmp_eq_u32 s{sGOT}, 1'); a.e('s_cbranch_scc1 L2_have')
    a.e('s_mov_b32 s54, 0')
    a.label('L2_poll')
    a.e(f'buffer_load_dword v{vFLG}, v{vFL}, s[{S_F}:{S_F+3}], 0 offen sc1')
    a.e('s_add_u32 s54, s54, 1')
    a.e('s_waitcnt vmcnt(0)')
    a.e(f'v_readfirstlane_b32 s52, v{vFLG}')
    a.e('s_cmp_gt_u32 s54, 0x40000'); a.e('s_cbranch_scc1 L2_polled')
    a.e('s_cmp_eq_u32 s52, 1'); a.e('s_cbranch_scc0 L2_poll')
    a.label('L2_polled')
    pl()
    a.label('L2_have')
    st.at(4)
    a.e(f's_waitcnt vmcnt({4 if cfg.pbf else 8}) lgkmcnt(0)')
    for m in range(4):
        T = FR + m*8; x = XR + 4*m
        for r in range(4):
            a.e(f'v_lshlrev_b32 v{T+2*r}, 16, v{x+r}'); a.e(f'v_and_b32 v{T+2*r+1}, s64, v{x+r}')
    for m in range(4):
        x = XR + 4*m; c0 = ACC + 4*m; c1 = ACC + 16 + 4*m; T = FR + m*8
        a.e(f's_waitcnt vmcnt({3 if cfg.pbf else 6-m})')
        if cfg.pbf:
            pk = ACC + 32 + 4*m; U = FR + 32 + m*8
            for r in range(4):
                a.e(f'v_lshlrev_b32 v{U+2*r}, 16, v{pk+r}'); a.e(f'v_and_b32 v{U+2*r+1}, s64, v{pk+r}')
        for (c, p) in (((c0, U), (c1, U+4)) if cfg.pbf else ((c0, ACC + 32 + 4*m), (c1, ACC + 48 + 4*m))):
            a.e(f'v_pk_add_f32 v[{c}:{c+1}], v[{c}:{c+1}], v[{p}:{p+1}]')
            a.e(f'v_pk_add_f32 v[{c+2}:{c+3}], v[{c+2}:{c+3}], v[{p+2}:{p+3}]')
        for r in range(4): a.e(f'v_permlane16_swap_b32 v{c0+r}, v{c1+r}')
        a.e(f'v_pk_add_f32 v[{c0}:{c0+1}], v[{c0}:{c0+1}], v[{T}:{T+1}]'); a.e(f'v_pk_add_f32 v[{c0+2}:{c0+3}], v[{c0+2}:{c0+3}], v[{T+2}:{T+3}]')
        a.e(f'v_pk_add_f32 v[{c1}:{c1+1}], v[{c1}:{c1+1}], v[{T+4}:{T+5}]'); a.e(f'v_pk_add_f32 v[{c1+2}:{c1+3}], v[{c1+2}:{c1+3}], v[{T+6}:{T+7}]')
        a.e(f'v_cvt_pk_bf16_f32 v{x}, v{c0}, v{c0+1}'); a.e(f'v_cvt_pk_bf16_f32 v{x+1}, v{c0+2}, v{c0+3}')
        a.e(f'v_cvt_pk_bf16_f32 v{x+2}, v{c1}, v{c1+1}'); a.e(f'v_cvt_pk_bf16_f32 v{x+3}, v{c1+2}, v{c1+3}')
        a.e(f'buffer_store_dwordx4 v[{x}:{x+3}], v{vXO}, s[{S_OUT}:{S_OUT+3}], s{60+m} offen')
    if st.on: a.e('s_waitcnt vmcnt(0)')
    st.at(5)
    st.flush(6, 7, sWAVE, vT, vT+1, 92)
    if cfg.stamps == 7:
        srd(a, 92, 6, 7, 1 << 20, STAMP_OFF + (1 << 19))
        a.e(f's_lshl_b32 s96, s2, 10'); a.e(f's_lshl_b32 s97, s{sWAVE}, 8'); a.e('s_add_u32 s96, s96, s97')
        a.e(f'v_lshl_add_u32 v{vT}, v{vLANE}, 2, s96')
        a.e(f'buffer_store_dword v63, v{vT}, s[92:95], 0 offen')
    a.label('L2_end')
    a.e('s_endpgm')
    return name, (256, 256, NS*32768), kdesc(name, 256, 256)

def build(cfg):
    a = Asm()
    a.e('.amdgcn_target "amdgcn-amd-amdhsa--gfx950"'); a.e('.text')
    ks = ([] if cfg.fuse0 else [gen_k0(a, cfg)]) + [gen_k1(a, cfg), gen_k2(a, cfg)]
    a.fix()
    head = open('cdna_kernels/' + NAME + '.s.ref').read().split('\n')
    hdr = [l for l in head[:13] if l.startswith(';') and '@launch' not in l and 'Override' not in l and 'grid=ceil' not in l]
    out = '\n'.join(hdr) + '\n'
    for nm, (g, b, lds), _ in ks:
        out += f'; @launch kernel={nm} grid=({g},1,1) block=({b},1,1) lds={lds}\n'
    out += a.text()
    out += '.section .rodata,"a"\n'
    for _, _, kd in ks: out += kd
    return out

if __name__ == '__main__':
    cfg = Cfg()
    outp = sys.argv[1] if len(sys.argv) > 1 else 'cdna_kernels/' + NAME + '.s'
    for kv in sys.argv[2:]:
        k, v = kv.split('='); setattr(cfg, k, int(v))
    open(outp, 'w').write(build(cfg))
    import subprocess
    r = subprocess.run(['clang', '-x', 'assembler', '-target', 'amdgcn-amd-amdhsa', '-mcpu=gfx950', '-c', outp, '-o', 'chk.o'], capture_output=True, text=True)
    if r.returncode: print(r.stderr[:1500]); sys.exit(1)
    print('wrote', outp)
```

```python
import sys
sys.path.insert(0, 'dev')
from asmlib import *

NAME = 'parallel_sum__sliding_local_dilated__glu_gated_bilinear__prompt'
XN_OFF = 0
XN_BYTES = 32*128*1024
ACT2_OFF = 4 << 20
ACT2_BYTES = 144*128*1024
PART_OFF = 24 << 20
PART_BYTES = 128*65536
FLAG_OFF = 32 << 20
FLAG_BYTES = 1024*128
XFLAG_OFF = FLAG_OFF + (256 << 10)
G1FLAG_REL = 512 << 10
STAMP_OFF = 40 << 20

class Cfg:
    stamps = False
    k2_n0 = 32
    pf = 1
    k2_noadv = 0
    fuse2 = 0
    g1sl = 8
    pbf = 0
    pfw = 0
    pfwb = 114688
    pfwo = 4 << 20
    f0ne = 4
    f0fs = 7
    f0sl = 16
    f0sl2 = 0
    fuse0 = 0
    pf3n = 56
    pf3w = 27
    pf3 = 3
    rawx = 0
    pf012 = 1
    k2_fs = 34
    k2_flg = 2
    k2_chk = 3
    ep3 = 1
    k1_stm = 8
    pfa = 0
    k1_v2 = 1
    k2_ra = 0
    k2_rb = 0
    k2_rc = 0
    k2_rm = 31
    k2_ns = 5
    k2_dbg = 0
    k1_wb = 0
    k1_st = 3
    k0_st = 0
    cpf = 1
    pf0 = 6
    k2_nox = 0
    k2_swap = 0
    k2_pf = 0
    k2_pfd = 6
    k2_early = 0
    k2_rd0 = 0
    k2_dstep = 6
    pfd = 8
    def __init__(self, **kw):
        for k, v in kw.items(): setattr(self, k, v)

def srd(a, d, lo, hi, nbytes, off=0):
    if off:
        a.e(f's_add_u32 s{d}, s{lo}, {off}')
        a.e(f's_addc_u32 s{d+1}, s{hi}, 0')
    else:
        a.e(f's_mov_b32 s{d}, s{lo}')
        a.e(f's_mov_b32 s{d+1}, s{hi}')
    a.e(f's_mov_b32 s{d+2}, {nbytes}')
    a.e(f's_mov_b32 s{d+3}, 0x20000')

def kdesc(name, nvgpr, accum, nsgpr=102):
    return f'''.p2align 6
.amdhsa_kernel {name}
  .amdhsa_next_free_vgpr {nvgpr}
  .amdhsa_next_free_sgpr {nsgpr}
  .amdhsa_accum_offset {accum}
  .amdhsa_group_segment_fixed_size 0
  .amdhsa_kernarg_size 80
  .amdhsa_user_sgpr_count 2
  .amdhsa_user_sgpr_kernarg_segment_ptr 1
  .amdhsa_system_sgpr_workgroup_id_x 1
.end_amdhsa_kernel
'''

def code_pf(a, start, end, vlane, vtmp, vdum, spc, nins):
    a.e(f's_getpc_b64 s[{spc}:{spc+1}]')
    lab = f'Lpc_{start}'
    a.label(lab)
    a.e(f's_add_u32 s{spc}, s{spc}, {start}-{lab}')
    a.e(f's_addc_u32 s{spc+1}, s{spc+1}, 0' if False else f's_addc_u32 s{spc+1}, s{spc+1}, ({start}-{lab})>>63')
    for i in range(nins):
        a.e(f'v_lshlrev_b32 v{vtmp}, 7, v{vlane}')
        if i: a.e(f'v_add_u32 v{vtmp}, {i*8192}, v{vtmp}')
        a.e(f'v_min_u32 v{vtmp}, {end}-{start}-4, v{vtmp}')
        a.e(f'global_load_dword v{vdum}, v{vtmp}, s[{spc}:{spc+1}]')

def khead(a, name):
    a.e(f'.globl {name}'); a.e('.p2align 8'); a.e(f'.type {name},@function'); a.label(name)

class Stamper:
    def __init__(self, a, on, base, kid):
        self.a = a; self.on = on; self.base = base; self.n = 0; self.kid = kid; self.cbase = 98 if False else base + 12
    def at(self, i, mode=None):
        if not self.on: return
        if (self.on == 6 and self.kid == 1) != (mode == 6) and i != 0: return
        self.a.e(f's_memrealtime s[{self.base+2*i}:{self.base+2*i+1}]')
        if i in (2, 3):
            self.a.e(f's_memtime s[{98+2*(i-2)}:{99+2*(i-2)}]') if False else None
            j = 6 + (i-2)
            self.a.e(f's_memtime s[{self.cbase+2*(i-2)}:{self.cbase+2*(i-2)+1}]')
        self.n = max(self.n, i+1)
    def flush(self, ws_lo, ws_hi, wave_sreg, vt0, vt1, stmp, n=None):
        if not self.on: return
        a = self.a
        n = n or self.n
        a.e('s_waitcnt lgkmcnt(0)')
        srd(a, stmp, ws_lo, ws_hi, 1 << 20, STAMP_OFF + self.kid*(256*4*64))
        a.e(f's_lshl_b32 s{stmp+4}, s2, 8')
        a.e(f's_lshl_b32 s{stmp+5}, s{wave_sreg}, 6')
        a.e(f's_add_u32 s{stmp+4}, s{stmp+4}, s{stmp+5}')
        a.e(f'v_mov_b32 v{vt0}, s{stmp+4}')
        a.e('s_mov_b64 exec, 1')
        for i in range(8):
            a.e(f'v_mov_b32 v{vt1}, s{self.base+2*i}')
            a.e(f'buffer_store_dword v{vt1}, v{vt0}, s[{stmp}:{stmp+3}], 0 offen offset:{4*i}')
        a.e('s_mov_b64 exec, -1')

def gen_k0(a, cfg):
    name = 'ln_kernel'
    khead(a, name)
    st = Stamper(a, cfg.stamps, 70, 0)
    a.e('s_cmp_ge_u32 s2, 256'); a.e('s_cbranch_scc1 L0_end')
    st.at(0)
    a.e('s_load_dwordx2 s[4:5], s[0:1], 0')
    a.e('s_load_dwordx2 s[6:7], s[0:1], 72')
    if cfg.pf:
        a.e('s_load_dwordx2 s[28:29], s[0:1], 8')
        a.e('s_load_dwordx4 s[32:35], s[0:1], 32')
    a.e('v_lshrrev_b32 v2, 6, v0')
    a.e('v_bfe_u32 v3, v0, 3, 3')
    a.e('v_and_b32 v4, 7, v0')
    a.e('v_readfirstlane_b32 s36, v2')
    a.e('s_lshl_b32 s3, s2, 14')
    a.e('v_lshl_add_u32 v5, v3, 11, s3')
    a.e('v_lshl_add_u32 v5, v2, 8, v5')
    a.e('v_lshl_add_u32 v5, v4, 4, v5')
    a.e('s_mov_b32 s10, 0x400000'); a.e('s_mov_b32 s11, 0x20000')
    a.e('s_waitcnt lgkmcnt(0)')
    st.at(1)
    a.e('s_mov_b32 s8, s4'); a.e('s_mov_b32 s9, s5')
    for it in range(2):
        a.e(f'buffer_load_dwordx4 v[{16+4*it}:{19+4*it}], v5, s[8:11], 0 offen offset:{it*128}')
    nafter = 0
    if cfg.pf:
        a.e('s_cmp_gt_u32 s36, 2'); a.e('s_cbranch_scc1 L0_pfd')
        a.e('s_and_b32 s37, s2, 7'); a.e('s_lshr_b32 s38, s2, 3')
        a.e(f'v_min_u32 v12, {cfg.pf0-1}, v3')
        a.e('s_cmp_eq_u32 s36, 0'); a.e('s_cbranch_scc1 L0_pfq')
        a.e('s_cmp_eq_u32 s36, 1')
        a.e('s_cselect_b32 s40, s32, s34'); a.e('s_cselect_b32 s41, s33, s35'); a.e(f's_mov_b32 s42, {1024*3584*2}'); a.e('s_mov_b32 s43, 0x20000')
        a.e(f's_mul_i32 s39, s38, {7168*cfg.pf0}'); a.e('s_mul_i32 s37, s37, 896'); a.e('s_add_u32 s39, s39, s37')
        a.e('v_mul_u32_u24 v10, 7168, v12'); a.e('v_min_u32 v11, 6, v4'); a.e('v_lshl_add_u32 v10, v11, 7, v10')
        a.e('buffer_load_dword v14, v10, s[40:43], s39 offen')
        a.e('s_branch L0_pfd')
        a.label('L0_pfq')
        srd(a, 40, 28, 29, 1024*3072*2)
        a.e(f's_mul_i32 s39, s38, {6144*cfg.pf0}'); a.e('s_lshl_b32 s37, s37, 8'); a.e('s_add_u32 s39, s39, s37')
        a.e('v_mul_u32_u24 v10, 6144, v12'); a.e('v_min_u32 v11, 5, v4')
        a.e('v_lshrrev_b32 v13, 1, v11'); a.e('v_lshl_add_u32 v10, v13, 11, v10')
        a.e('v_and_b32 v13, 1, v11'); a.e('v_lshl_add_u32 v10, v13, 7, v10')
        a.e('buffer_load_dword v14, v10, s[40:43], s39 offen')
        a.label('L0_pfd')
    a.e('s_cmp_gt_u32 s2, 7'); a.e('s_cbranch_scc1 L0_noflag')
    a.e('s_cmp_lt_u32 s36, 6'); a.e('s_cbranch_scc1 L0_noflag')
    srd(a, 20, 6, 7, FLAG_BYTES, FLAG_OFF)
    a.e('s_lshl_b32 s19, s2, 14')
    a.e('v_subrev_u32 v10, 384, v0'); a.e('v_lshlrev_b32 v10, 7, v10'); a.e('v_mov_b32 v11, 0')
    a.e('buffer_store_dword v11, v10, s[20:23], s19 offen')
    a.label('L0_noflag')
    srd(a, 12, 6, 7, XN_BYTES, XN_OFF)
    a.e('v_lshrrev_b32 v6, 2, v4')
    a.e('v_lshl_add_u32 v6, v2, 2, v6')
    a.e('v_lshlrev_b32 v6, 17, v6')
    a.e('v_and_b32 v7, 3, v4')
    a.e('v_lshl_add_u32 v6, v7, 8, v6')
    a.e('v_lshl_add_u32 v6, v3, 4, v6')
    a.e('s_lshr_b32 s16, s2, 1'); a.e('s_lshl_b32 s16, s16, 10')
    a.e('s_and_b32 s17, s2, 1'); a.e('s_lshl_b32 s17, s17, 7'); a.e('s_add_u32 s16, s16, s17')
    a.e('v_add_u32 v6, s16, v6')
    a.e('v_lshlrev_b32 v8, 6, v3')
    a.e('v_lshl_add_u32 v9, v2, 3, v8')
    a.e('s_mov_b32 s24, 0xffff0000'); a.e('s_mov_b32 s25, 262144')
    a.e('v_mov_b32 v60, 0x43000000')
    a.e('v_mov_b32 v61, 0x3727c5ac')
    a.e('v_mov_b32 v62, 0x3a800000')
    a.e('s_cmp_gt_u32 s36, 2'); a.e('s_cbranch_scc1 L0_w0')
    a.e('s_waitcnt vmcnt(1)' if cfg.pf else 's_waitcnt vmcnt(0)'); a.e('s_branch L0_w2')
    a.label('L0_w0')
    a.e('s_waitcnt vmcnt(0)')
    a.label('L0_w2')
    st.at(2)
    X = 24
    for i in range(8):
        a.e(f'v_lshlrev_b32 v{X+2*i}, 16, v{16+i}')
        a.e(f'v_and_b32 v{X+2*i+1}, s24, v{16+i}')
    T = 40
    def P(r): return f'v[{r}:{r+1}]'
    def red8(r):
        a.e(f'v_add_f32_dpp v{r}, v{r}, v{r} quad_perm:[1,0,3,2] row_mask:0xf bank_mask:0xf')
        a.e(f'v_add_f32_dpp v{r}, v{r}, v{r} quad_perm:[2,3,0,1] row_mask:0xf bank_mask:0xf')
        a.e(f'v_add_f32_dpp v{r}, v{r}, v{r} row_half_mirror row_mask:0xf bank_mask:0xf')
    for i in range(4): a.e(f'v_pk_add_f32 {P(T+2*i)}, {P(X+4*i)}, {P(X+4*i+2)}')
    a.e(f'v_pk_add_f32 {P(T)}, {P(T)}, {P(T+2)}'); a.e(f'v_pk_add_f32 {P(T+4)}, {P(T+4)}, {P(T+6)}')
    a.e(f'v_pk_add_f32 {P(T)}, {P(T)}, {P(T+4)}')
    a.e(f'v_add_f32 v{T}, v{T}, v{T+1}')
    red8(T)
    a.e(f'v_mul_f32 v12, 0xbc000000, v{T}')
    a.e('v_mov_b32 v13, v12')
    for i in range(8): a.e(f'v_pk_add_f32 {P(X+2*i)}, {P(X+2*i)}, v[12:13]')
    for i in range(4): a.e(f'v_pk_mul_f32 {P(T+2*i)}, {P(X+4*i)}, {P(X+4*i)}')
    for i in range(4): a.e(f'v_pk_fma_f32 {P(T+2*i)}, {P(X+4*i+2)}, {P(X+4*i+2)}, {P(T+2*i)}')
    a.e(f'v_pk_add_f32 {P(T)}, {P(T)}, {P(T+2)}'); a.e(f'v_pk_add_f32 {P(T+4)}, {P(T+4)}, {P(T+6)}')
    a.e(f'v_pk_add_f32 {P(T)}, {P(T)}, {P(T+4)}')
    a.e(f'v_add_f32 v13, v{T}, v{T+1}')
    red8(13)
    a.e('ds_write_b64 v9, v[12:13]')
    a.e('s_waitcnt lgkmcnt(0)'); a.e('s_barrier')
    for i in range(4): a.e(f'ds_read_b128 v[{44+4*i}:{47+4*i}], v8 offset:{16*i}')
    a.e('s_waitcnt lgkmcnt(0)')
    a.e(f'v_pk_add_f32 {P(T)}, v[44:45], v[46:47]'); a.e(f'v_pk_add_f32 {P(T+2)}, v[48:49], v[50:51]')
    a.e(f'v_pk_add_f32 {P(16)}, v[52:53], v[54:55]'); a.e(f'v_pk_add_f32 {P(18)}, v[56:57], v[58:59]')
    a.e(f'v_pk_add_f32 {P(T)}, {P(T)}, {P(T+2)}'); a.e(f'v_pk_add_f32 {P(16)}, {P(16)}, {P(18)}')
    a.e(f'v_pk_add_f32 {P(T)}, {P(T)}, {P(16)}')
    a.e(f'v_mul_f32 v{T}, 0x3e000000, v{T}')
    for r in range(44, 60, 2): a.e(f'v_sub_f32 v{r}, v{r}, v{T}')
    a.e('v_mul_f32 v16, v44, v44'); a.e('v_mul_f32 v17, v46, v46')
    for r in range(48, 60, 2): a.e(f'v_fmac_f32 v{16 + (r//2) % 2}, v{r}, v{r}')
    a.e('v_add_f32 v16, v16, v17')
    a.e(f'v_fmac_f32 v{T+1}, v16, v60')
    a.e(f'v_fmac_f32 v61, v{T+1}, v62')
    a.e('v_rsq_f32 v60, v61')
    a.e(f'v_sub_f32 v62, v{T}, v12')
    a.e('v_mov_b32 v61, v60')
    a.e('v_mul_f32 v62, v62, v60')
    a.e('v_mov_b32 v63, v62')
    for i in range(8): a.e(f'v_pk_fma_f32 {P(X+2*i)}, {P(X+2*i)}, v[60:61], v[62:63]')
    for i in range(8): a.e(f'v_cvt_pk_bf16_f32 v{16+i}, v{X+2*i}, v{X+2*i+1}')
    st.at(3)
    a.e('buffer_store_dwordx4 v[16:19], v6, s[12:15], 0 offen' + ['', ' sc1', ' nt', ' sc0 sc1', ' sc1 nt'][cfg.k0_st])
    a.e('buffer_store_dwordx4 v[20:23], v6, s[12:15], s25 offen' + ['', ' sc1', ' nt', ' sc0 sc1', ' sc1 nt'][cfg.k0_st])
    st.at(4)
    if st.on:
        a.e('s_waitcnt vmcnt(0)'); a.e('s_and_b32 s36, s36, 3')
    st.at(5)
    st.flush(6, 7, 36, 10, 11, 92)
    a.label('L0_end')
    a.e('s_endpgm')
    return name, (256, 512, 512), kdesc(name, 64, 64, 102 if cfg.stamps else 48)

class LgkmTracker:
    def __init__(self, a):
        self.a = a
        self.q = []
    def read(self, text):
        ins = Ins(text)
        self.a.e(text)
        self.q.append(set(ins.dst))
    def other(self):
        self.q.append(set())
    def need(self, regs):
        regs = set(regs)
        last = -1
        for i, d in enumerate(self.q):
            if d & regs: last = i
        if last < 0: return
        n = len(self.q) - 1 - last
        n = min(n, 15)
        self.a.e(f's_waitcnt lgkmcnt({n})')
        self.q = self.q[len(self.q) - n:] if n else []
    def drain(self):
        self.q = []
    def state(self):
        return [tuple(sorted(x)) for x in self.q]

L1_ACT = 0; L1_W = 65536; L1_HALO = 147456; L1_TOTAL = 151552
def gen_k1(a, cfg):
    name = NAME + '_kernel'
    khead(a, name)
    st = Stamper(a, cfg.stamps, 70, 1)
    S_XN = 8; S_W = 12; S_O = 32
    sACT = 36; sWO = 37; sWS = 42; sM_ACT = 47; sM_W = 48; sM_H = 49; sCNT = 50; sWAVE = 51; sWM = 52; sRB = 54; sJ = 55
    vLANE = 1; vDA = 2; vDH = 3; vDW = 4
    vA = 9; vHA = 10; vGU = 11; vQa = 13; vQb = 15; vHW = 17
    vT = 20
    a.e('s_cmp_ge_u32 s2, 256'); a.e('s_cbranch_scc1 L1_end')
    st.at(0)
    a.e('s_load_dwordx2 s[4:5], s[0:1], 8')
    a.e('s_load_dwordx4 s[56:59], s[0:1], 32')
    a.e('s_load_dwordx2 s[6:7], s[0:1], 72')
    a.e('s_load_dwordx2 s[68:69], s[0:1], 48')
    S_PF = 88; sPFO = 86; sPFS = 87; vPF = 19; vDUM = 31; aBI = 200
    a.e('s_load_dwordx2 s[92:93], s[0:1], 16')
    a.e(f'v_lshrrev_b32 v{vT}, 6, v0')
    a.e(f'v_and_b32 v{vLANE}, 63, v0')
    a.e(f'v_readfirstlane_b32 s{sWAVE}, v{vT}')
    if cfg.fuse0:
        a.e('s_load_dwordx2 s[96:97], s[0:1], 0')
        if cfg.cpf:
            a.e(f's_cmp_lg_u32 s{sWAVE}, 3'); a.e('s_cbranch_scc1 L1_nocpf0')
            code_pf(a, 'L1_nocpf0', 'L1_wn1', vLANE, 134, 135, 94, 1)
            a.label('L1_nocpf0')
        a.e('s_memrealtime s[60:61]')
        a.e(f'v_lshrrev_b32 v128, 3, v{vLANE}'); a.e(f'v_and_b32 v129, 7, v{vLANE}')
        a.e('s_lshl_b32 s3, s2, 14')
        a.e('v_lshl_add_u32 v130, v128, 11, s3'); a.e(f'v_lshl_add_u32 v130, v{vT}, 9, v130'); a.e('v_lshl_add_u32 v130, v129, 4, v130')
        a.e('s_mov_b32 s98, 0x400000'); a.e('s_mov_b32 s99, 0x20000')
        a.e('s_waitcnt lgkmcnt(0)')
        for it in range(4): a.e(f'buffer_load_dwordx4 v[{32+4*it}:{35+4*it}], v130, s[96:99], 0 offen offset:{it*128}')
        st.at(1, 6)
        a.e('s_sub_u32 s100, s60, 1000')
        a.e(f'v_lshrrev_b32 v131, 2, v129'); a.e(f'v_lshl_add_u32 v131, v{vT}, 3, v131'); a.e('v_lshlrev_b32 v131, 17, v131')
        a.e('v_and_b32 v132, 3, v129'); a.e('v_lshl_add_u32 v131, v132, 8, v131'); a.e('v_lshl_add_u32 v131, v128, 4, v131')
        a.e('s_lshr_b32 s60, s2, 1'); a.e('s_lshl_b32 s60, s60, 10'); a.e('s_and_b32 s61, s2, 1'); a.e('s_lshl_b32 s61, s61, 7'); a.e('s_add_u32 s60, s60, s61')
        a.e('v_add_u32 v131, s60, v131')
        a.e(f'v_lshlrev_b32 v132, 5, v128'); a.e(f'v_add_u32 v132, {L1_TOTAL}, v132'); a.e(f'v_lshl_add_u32 v133, v{vT}, 3, v132')
    a.e(f's_and_b32 s{sJ}, s2, 7'); a.e(f's_lshl_b32 s{sJ}, s{sJ}, 2')
    a.e('s_lshr_b32 s3, s2, 3')
    a.e(f's_lshr_b32 s{sRB}, s3, 2'); a.e('s_and_b32 s3, s3, 3'); a.e(f's_add_u32 s{sJ}, s{sJ}, s3')
    a.e(f's_lshr_b32 s{sWM}, s{sWAVE}, 1')
    a.e(f's_lshl_b32 s60, s{sRB}, 14'); a.e(f's_lshl_b32 s61, s{sWAVE}, 12'); a.e('s_add_u32 s61, s61, s60')
    a.e(f'v_lshl_add_u32 v{vDA}, v{vLANE}, 4, s61')
    a.e('s_max_u32 s60, s60, 1024'); a.e('s_sub_u32 s60, s60, 1024')
    a.e(f's_lshl_b32 s61, s{sWAVE}, 8'); a.e('s_add_u32 s61, s61, s60')
    a.e(f'v_lshl_add_u32 v{vDH}, v{vLANE}, 2, s61')
    vPFA = 28
    if cfg.pfa:
        a.e(f's_lshl_b32 s60, s{sRB}, 14'); a.e('s_lshl_b32 s61, s3, 12'); a.e('s_add_u32 s60, s60, s61')
        a.e(f's_lshl_b32 s61, s{sWAVE}, 10'); a.e('s_add_u32 s60, s60, s61'); a.e(f's_add_u32 s60, s60, {cfg.pfa*131072}')
        a.e(f'v_min_u32 v{vPFA}, 7, v{vLANE}'); a.e(f'v_lshl_add_u32 v{vPFA}, v{vPFA}, 7, s60')
    a.e(f's_lshl_b32 s{sM_ACT}, s{sWAVE}, 12')
    a.e(f's_mul_i32 s{sM_W}, s{sWAVE}, 5120'); a.e(f's_add_u32 s{sM_W}, s{sM_W}, {L1_W}')
    a.e(f's_lshl_b32 s{sM_H}, s{sWAVE}, 8'); a.e(f's_add_u32 s{sM_H}, s{sM_H}, {L1_HALO}')
    a.e(f's_mov_b32 s{sACT}, 0')
    for d in range(5): a.e(f's_mov_b32 s{sWO+d}, 0')
    a.e(f's_lshl_b32 s62, s{sJ}, 6')
    a.e(f's_mul_i32 s63, s{sJ}, 224')
    a.e(f's_and_b32 s64, s{sJ}, 1'); a.e('s_lshl_b32 s64, s64, 1')
    a.e('s_movk_i32 s65, 6144'); a.e('s_movk_i32 s66, 7168')
    a.e(f's_cmp_eq_u32 s{sWAVE}, 1'); a.e('s_cbranch_scc1 L1_set1')
    a.e(f's_cmp_eq_u32 s{sWAVE}, 2'); a.e('s_cbranch_scc1 L1_set2')
    a.e(f's_cmp_eq_u32 s{sWAVE}, 3'); a.e('s_cbranch_scc1 L1_set3')
    for w in range(4):
        if w: a.label(f'L1_set{w}')
        if cfg.pf:
            t0, t1, t2 = vT, vT+1, vT+2
            if w < 3:
                a.e(f'v_mul_u32_u24 v{t0}, 21846, v{vLANE}'); a.e(f'v_lshrrev_b32 v{t0}, 16, v{t0}')
                a.e(f'v_mul_u32_u24 v{t1}, 3, v{t0}'); a.e(f'v_sub_u32 v{t1}, v{vLANE}, v{t1}')
                a.e(f's_lshl_b32 s60, s{sRB}, 2'); a.e(f'v_add_u32 v{t0}, s60, v{t0}')
                if w == 0:
                    a.e(f'v_lshlrev_b32 v{t1}, 11, v{t1}'); a.e(f'v_add_u32 v{t1}, s62, v{t1}')
                else:
                    a.e(f'v_lshlrev_b32 v{t1}, 7, v{t1}'); a.e(f'v_min_u32 v{t1}, 220, v{t1}'); a.e(f'v_add_u32 v{t1}, s63, v{t1}')
                a.e(f'v_mad_u32_u24 v{vPF}, v{t0}, s{65 if w == 0 else 66}, v{t1}')
                nl = 12
                step = 32*(6144 if w == 0 else 7168)
                a.e(f's_mov_b32 s{sPFS}, {step}'); a.e(f's_mov_b32 s{sPFO}, {step*(0 if cfg.fuse0 else cfg.pfd-3)}')
            else:
                a.e(f'v_lshlrev_b32 v{vPF}, 7, v{vLANE}')
                nl = 7 if cfg.pf3 != 3 else cfg.pf3n
                if cfg.pf3 == 3:
                    a.e(f's_mov_b32 s{sPFS}, {nl*128}'); a.e(f's_mov_b32 s{sPFO}, {(-(cfg.pf3w + (cfg.pfd-3 if cfg.fuse0 else 0))*nl*128) & 0xffffffff}')
                    a.e(f's_mul_i32 s60, s2, {224*128}')
                else:
                    a.e(f's_mov_b32 s{sPFS}, 896'); a.e(f's_mul_i32 s{sPFO}, s2, {224*128}')
            a.e(f'v_mov_b32 v{t2}, 0x80000000')
            a.e(f'v_cmp_gt_u32 vcc, {nl}, v{vLANE}')
            a.e(f'v_cndmask_b32 v{vPF}, v{t2}, v{vPF}, vcc')
        if cfg.stamps == 2: st.at(4)
        a.e('s_waitcnt lgkmcnt(0)')
        if cfg.stamps == 2: st.at(5)
        if cfg.pf:
            if w == 0: srd(a, S_PF, 4, 5, 1024*3072*2 if cfg.pf012 else 0)
            elif w == 1: srd(a, S_PF, 56, 57, 1024*3584*2 if cfg.pf012 else 0)
            elif w == 2: srd(a, S_PF, 58, 59, 1024*3584*2 if cfg.pf012 else 0)
            elif cfg.pf3 == 3:
                a.e(f's_add_u32 s{S_PF}, s68, s60'); a.e(f's_addc_u32 s{S_PF+1}, s69, 0')
                a.e(f's_mov_b32 s{S_PF+2}, {224*128}'); a.e(f's_mov_b32 s{S_PF+3}, 0x20000')
            else: srd(a, S_PF, 68, 69, 1024*3584*2 if cfg.pf3 == 1 else 0)
        if cfg.fuse0:
            for _ in range(cfg.f0ne):
                a.e(f'buffer_load_dword v{vDUM}, v{vPF}, s[{S_PF}:{S_PF+3}], s{sPFO} offen'); a.e(f's_add_u32 s{sPFO}, s{sPFO}, s{sPFS}')
        kinds = []
        if cfg.cpf and w == 3 and not cfg.fuse0: code_pf(a, 'L1_setdone', 'L1_end', vLANE, vT, vDUM, 94, 3)
        for d in range(5):
            p = 5*w + d
            if p < 6: kind, pl, C, magic = 'q', p, 12, 5462
            elif p < 13: kind, pl, C, magic = 'g', p-6, 14, 4682
            else: kind, pl, C, magic = 'u', p-13, 14, 4682
            kinds.append(kind)
            t0, t1, t2, t3 = vT, vT+1, vT+2, vT+3
            a.e(f'v_add_u32 v{t0}, {64*pl}, v{vLANE}')
            a.e(f'v_mul_u32_u24 v{t1}, {magic}, v{t0}')
            a.e(f'v_lshrrev_b32 v{t1}, 16, v{t1}')
            a.e(f'v_mul_u32_u24 v{t2}, {C}, v{t1}')
            a.e(f'v_sub_u32 v{t0}, v{t0}, v{t2}')
            if kind == 'q':
                a.e(f'v_lshrrev_b32 v{t2}, 1, v{t1}'); a.e(f'v_and_b32 v{t2}, 2, v{t2}')
                a.e(f'v_xor_b32 v{t0}, v{t0}, v{t2}')
                a.e(f'v_lshrrev_b32 v{t2}, 2, v{t0}'); a.e(f'v_lshlrev_b32 v{t2}, 11, v{t2}')
                a.e(f'v_and_b32 v{t0}, 3, v{t0}')
                a.e(f'v_lshl_add_u32 v{t0}, v{t0}, 4, v{t2}')
                a.e(f'v_add_u32 v{t0}, s62, v{t0}')
            else:
                a.e(f'v_add_u32 v{t0}, s64, v{t0}')
                a.e(f'v_subrev_u32 v{t2}, 14, v{t0}')
                a.e(f'v_min_u32 v{t0}, v{t0}, v{t2}')
                a.e(f'v_lshlrev_b32 v{t0}, 4, v{t0}')
                a.e(f'v_add_u32 v{t0}, s63, v{t0}')
            a.e(f'v_and_b32 v{t2}, 3, v{t1}')
            a.e(f'v_bfe_u32 v{t3}, v{t1}, 2, 2')
            a.e(f'v_lshl_add_u32 v{t2}, v{t3}, 3, v{t2}')
            a.e(f'v_lshrrev_b32 v{t3}, 4, v{t1}')
            a.e(f'v_lshl_add_u32 v{t2}, v{t3}, 2, v{t2}')
            a.e(f'v_mad_u32_u24 v{vDW+d}, v{t2}, s{65 if kind == "q" else 66}, v{t0}')
        a.e('s_waitcnt lgkmcnt(0)')
        for d in range(5):
            kind = kinds[d]
            if kind == 'q': srd(a, S_W+4*d, 4, 5, 1024*3072*2); a.e(f's_mov_b32 s{sWS+d}, {32*6144}')
            elif kind == 'g': srd(a, S_W+4*d, 56, 57, 1024*3584*2); a.e(f's_mov_b32 s{sWS+d}, {32*7168}')
            else: srd(a, S_W+4*d, 58, 59, 1024*3584*2); a.e(f's_mov_b32 s{sWS+d}, {32*7168}')
        if w < 3: a.e('s_branch L1_setdone')
    a.label('L1_setdone')
    st.at(2, 6)
    if cfg.rawx:
        a.e(f'v_and_b32 v25, 15, v{vLANE}'); a.e('v_lshlrev_b32 v25, 11, v25'); a.e(f'v_lshrrev_b32 v26, 4, v{vLANE}'); a.e('v_lshl_add_u32 v25, v26, 4, v25')
        a.e(f's_lshl_b32 s60, s{sRB}, 19'); a.e(f's_lshl_b32 s61, s{sWAVE}, 17'); a.e('s_add_u32 s60, s60, s61'); a.e('v_add_u32 v25, s60, v25')
        for d in range(1, 4): a.e(f'v_add_u32 v{25+d}, {32768*d}, v25')
    srd(a, S_XN, 6, 7, XN_BYTES, XN_OFF)
    S_PW = 80; sPWO = 67
    if cfg.pfw:
        share = cfg.pfwb
        a.e(f's_mul_i32 s60, s2, {share}'); a.e(f's_add_u32 s60, s60, {cfg.pfwo}')
        a.e(f's_add_u32 s{S_PW}, s6, s60'); a.e(f's_addc_u32 s{S_PW+1}, s7, 0'); a.e(f's_mov_b32 s{S_PW+2}, {share}'); a.e(f's_mov_b32 s{S_PW+3}, 0x20000')
        a.e(f's_mov_b32 s{sPWO}, {(-cfg.pfw*32768) & 0xffffffff}')
        a.e(f'v_lshlrev_b32 v{vPFA}, 7, v0')

    def dma_list(slot):
        L = []
        for d in range(5):
            L.append((f's_add_u32 m0, s{sM_W}, {slot*20480 + d*1024}',
                      f'buffer_load_dwordx4 v{vDW+d}, s[{S_W+4*d}:{S_W+4*d+3}], s{sWO+d} offen lds',
                      f's_add_u32 s{sWO+d}, s{sWO+d}, s{sWS+d}'))
        for d in range(4):
            if cfg.rawx:
                L.append((f's_add_u32 m0, s{sM_ACT}, {slot*16384 + d*1024}',
                          f'buffer_load_dwordx4 v{25+d}, s[{S_XN}:{S_XN+3}], s{sACT} offen lds', None))
            else:
                L.append((f's_add_u32 m0, s{sM_ACT}, {slot*16384}' if d == 0 else None,
                          f'buffer_load_dwordx4 v{vDA}, s[{S_XN}:{S_XN+3}], s{sACT} offen offset:{d*1024} lds', None))
        L.append((f's_add_u32 m0, s{sM_H}, {slot*1024}',
                  f'buffer_load_dword v{vDH}, s[{S_XN}:{S_XN+3}], s{sACT} offen lds',
                  f's_add_u32 s{sACT}, s{sACT}, {64 if cfg.rawx else 131072}'))
        if cfg.pf:
            L.append((None, f'buffer_load_dword v{vDUM}, v{vPF}, s[{S_PF}:{S_PF+3}], s{sPFO} offen',
                      f's_add_u32 s{sPFO}, s{sPFO}, s{sPFS}'))
        if cfg.pfa:
            L.append((None, f'buffer_load_dword v{vDUM}, v{vPFA}, s[{S_XN}:{S_XN+3}], s{sACT} offen', None))
        if cfg.pfw:
            L.append((None, f'buffer_load_dword v{vDUM}, v{vPFA}, s[{S_PW}:{S_PW+3}], s{sPWO} offen', f's_add_u32 s{sPWO}, s{sPWO}, 32768'))
        return L
    VMW = 23 if cfg.pf else 20
    if cfg.k1_v2: VMW = 10 + 2*(cfg.pf + (1 if cfg.pfa else 0) + (1 if cfg.pfw else 0))
    else: assert not cfg.pfa
    def emit_dl(dl):
        for pre, ins, post in dl:
            if pre: a.e(pre)
            a.e(ins)
            if post: a.e(post)
    if cfg.fuse0:
        wpro = dma_list(0)[:5] + dma_list(1)[:5]
        latepf = [dma_list(0)[10]]*(cfg.pfd-1-cfg.f0ne)
    else:
        emit_dl(dma_list(0))
    if cfg.stamps == 2: st.at(3)
    b = Asm()
    srd(b, S_O, 6, 7, ACT2_BYTES, ACT2_OFF)
    t0, t1, t2 = vT, vT+1, vT+2
    b.e(f's_lshl_b32 s60, s{sWM}, 13')
    b.e(f'v_lshl_add_u32 v{vA}, v{vLANE}, 4, s60')
    b.e(f'v_lshlrev_b32 v{vHA}, 4, v{vLANE}'); b.e(f'v_add_u32 v{vHA}, {L1_HALO}, v{vHA}')
    b.e(f'v_lshrrev_b32 v{t0}, 2, v{vLANE}')
    b.e(f'v_and_b32 v{t1}, 3, v{vLANE}'); b.e(f'v_lshlrev_b32 v{t1}, 3, v{t1}')
    b.e(f'v_add_u32 v{t1}, {L1_W}, v{t1}')
    b.e(f'v_mul_u32_u24 v{t2}, 224, v{t0}'); b.e(f'v_add_u32 v{vGU}, v{t2}, v{t1}')
    b.e(f'v_add_u32 v{vGU+1}, 40960, v{vGU}')
    b.e(f'v_mul_u32_u24 v{t2}, 192, v{t0}'); b.e(f'v_add_u32 v{t2}, v{t2}, v{t1}')
    b.e(f'v_lshlrev_b32 v{t0}, 1, v{vLANE}'); b.e(f'v_and_b32 v{t0}, 32, v{t0}')
    b.e(f'v_add_u32 v{vQa}, v{t2}, v{t0}'); b.e(f'v_sub_u32 v{vQb}, v{t2}, v{t0}')
    b.e(f'v_add_u32 v{vQa+1}, 40960, v{vQa}'); b.e(f'v_add_u32 v{vQb+1}, 40960, v{vQb}')
    b.e(f's_lshl_b32 s60, s{sWAVE}, 5'); b.e('s_add_u32 s60, s60, 64')
    b.e(f'v_xor_b32 v{t0}, s60, v{t0}')
    b.e(f'v_add_u32 v{vHW}, v{t2}, v{t0}'); b.e(f'v_add_u32 v{vHW+1}, 40960, v{vHW}')
    b.e(f'v_and_b32 v{t0}, 15, v{vLANE}'); b.e(f'v_lshrrev_b32 v{t1}, 4, v{vLANE}'); b.e(f'v_lshlrev_b32 v{t1}, 2, v{t1}')
    b.e(f'v_sub_u32 v{t0}, v{t0}, v{t1}')
    b.e(f'v_mov_b32 v{vT+3}, 0xf149f2ca')
    b.e(f's_or_b32 s60, s{sRB}, s{sWM}'); b.e('s_cmp_eq_u32 s60, 0'); b.e('s_cselect_b64 s[60:61], -1, 0')
    for isprev in range(2):
        for r in range(4):
            b.e(f'v_add_u32 v{t1}, {16*isprev - r}, v{t0}')
            b.e(f'v_and_b32 v{t2}, 0xfffffff1, v{t1}')
            b.e(f'v_cmp_eq_u32 vcc, 0, v{t2}')
            b.e(f'v_cndmask_b32_e64 v{vT+4}, v{vT+3}, 0, vcc')
            b.e(f'v_accvgpr_write_b32 a{aBI+4*isprev+r}, v{vT+4}')
            if isprev:
                b.e(f'v_cndmask_b32_e64 v{vT+4}, v{vT+4}, v{vT+3}, s[60:61]')
                b.e(f'v_accvgpr_write_b32 a{aBI+8+r}, v{vT+4}')
    b.e(f'v_mov_b32 v{vT+4}, 0x3f803f80')
    for r in range(4): b.e(f'v_accvgpr_write_b32 a{aBI+12+r}, v{vT+4}')
    if not cfg.k1_v2:
        for i in range(32, 256): b.e(f'v_mov_b32 v{i}, 0')
        for i in range(96, 196): b.e(f'v_accvgpr_write_b32 a{i}, 0')
    fill = [x.text for x in b.ins]
    if cfg.fuse0:
        srd(a, 96, 6, 7, 256*128, XFLAG_OFF)
        a.e(f's_lshl_b32 s60, s{sRB}, 5'); a.e('s_sub_u32 s60, s60, 2')
        a.e(f'v_min_u32 v134, 33, v{vLANE}'); a.e('v_add_u32 v134, s60, v134'); a.e('v_max_i32 v134, 0, v134'); a.e(f'v_lshlrev_b32 v134, {cfg.f0fs}, v134')
        a.e(f's_lshl_b32 s60, s2, {cfg.f0fs}'); a.e('v_mov_b32 v135, s60')
        a.e('s_add_u32 s60, s100, 1000'); a.e('v_mov_b32 v136, s60'); a.e('v_not_b32 v137, v136')
        a.e('s_mov_b32 s60, 0xffff0000'); a.e('s_mov_b32 s61, 262144'); a.e('s_mov_b32 s62, 524288'); a.e('s_mov_b32 s63, 786432')
        a.e('v_mov_b32 v120, 0x43800000'); a.e('v_mov_b32 v121, 0x3727c5ac'); a.e('v_mov_b32 v122, 0x3a800000')
        st.at(3, 6)
        a.e(f's_waitcnt vmcnt({cfg.f0ne})')
        st.at(4, 6)
        if cfg.stamps: st.at(4) if cfg.stamps == 5 else None
        X = 48; T = 80
        def P(r): return f'v[{r}:{r+1}]'
        def red8(r):
            a.e(f'v_add_f32_dpp v{r}, v{r}, v{r} quad_perm:[1,0,3,2] row_mask:0xf bank_mask:0xf')
            a.e(f'v_add_f32_dpp v{r}, v{r}, v{r} quad_perm:[2,3,0,1] row_mask:0xf bank_mask:0xf')
            a.e(f'v_add_f32_dpp v{r}, v{r}, v{r} row_half_mirror row_mask:0xf bank_mask:0xf')
        def tree():
            for sp in (4, 2, 1):
                for i_ in range(sp): a.e(f'v_pk_add_f32 {P(T+2*i_)}, {P(T+2*i_)}, {P(T+2*i_+2*sp)}')
        for i_ in range(16):
            a.e(f'v_lshlrev_b32 v{X+2*i_}, 16, v{32+i_}'); a.e(f'v_and_b32 v{X+2*i_+1}, s60, v{32+i_}')
        for i_ in range(8): a.e(f'v_pk_add_f32 {P(T+2*i_)}, {P(X+4*i_)}, {P(X+4*i_+2)}')
        tree()
        a.e(f'v_add_f32 v{T}, v{T}, v{T+1}'); red8(T)
        a.e(f'v_mul_f32 v96, 0xbb800000, v{T}'); a.e('v_mov_b32 v97, v96')
        for i_ in range(16): a.e(f'v_pk_add_f32 {P(X+2*i_)}, {P(X+2*i_)}, v[96:97]')
        for i_ in range(8): a.e(f'v_pk_mul_f32 {P(T+2*i_)}, {P(X+4*i_)}, {P(X+4*i_)}')
        for i_ in range(8): a.e(f'v_pk_fma_f32 {P(T+2*i_)}, {P(X+4*i_+2)}, {P(X+4*i_+2)}, {P(T+2*i_)}')
        tree()
        a.e(f'v_add_f32 v97, v{T}, v{T+1}'); red8(97)
        a.e('ds_write_b64 v133, v[96:97]')
        a.e('s_waitcnt lgkmcnt(0)'); a.e('s_barrier')
        a.e('ds_read_b128 v[100:103], v132'); a.e('ds_read_b128 v[104:107], v132 offset:16')
        a.e('s_waitcnt lgkmcnt(0)')
        a.e('v_pk_add_f32 v[108:109], v[100:101], v[102:103]'); a.e('v_pk_add_f32 v[110:111], v[104:105], v[106:107]')
        a.e('v_pk_add_f32 v[108:109], v[108:109], v[110:111]')
        a.e('v_mul_f32 v108, 0x3e800000, v108')
        for r in (100, 102, 104, 106): a.e(f'v_sub_f32 v{r}, v{r}, v108')
        a.e('v_mul_f32 v110, v100, v100'); a.e('v_mul_f32 v111, v102, v102'); a.e('v_fmac_f32 v110, v104, v104'); a.e('v_fmac_f32 v111, v106, v106')
        a.e('v_add_f32 v110, v110, v111')
        a.e('v_fmac_f32 v109, v110, v120'); a.e('v_fmac_f32 v121, v109, v122')
        a.e('v_rsq_f32 v120, v121')
        a.e('v_sub_f32 v122, v108, v96'); a.e('v_mov_b32 v121, v120'); a.e('v_mul_f32 v122, v122, v120'); a.e('v_mov_b32 v123, v122')
        so_ = ['0', 's61', 's62', 's63']
        for it in range(4):
            for i_ in range(4*it, 4*it+4): a.e(f'v_pk_fma_f32 {P(X+2*i_)}, {P(X+2*i_)}, v[120:121], v[122:123]')
            for i_ in range(4*it, 4*it+4): a.e(f'v_cvt_pk_bf16_f32 v{32+i_}, v{X+2*i_}, v{X+2*i_+1}')
            a.e(f'buffer_store_dwordx4 v[{32+4*it}:{35+4*it}], v131, s[{S_XN}:{S_XN+3}], {so_[it]} offen sc1')
        st.at(5, 6)
        emit_dl(wpro)
        for x in fill: a.e(x)
        a.e(f's_waitcnt vmcnt({len(wpro)})'); a.e('s_barrier')
        if cfg.stamps == 5: st.at(5)
        a.e(f's_cmp_eq_u32 s{sWAVE}, 0'); a.e('s_cbranch_scc1 L1_pub')
        a.e(f's_cmp_eq_u32 s{sWAVE}, 3'); a.e('s_cbranch_scc1 L1_cpf')
        if cfg.fuse2: a.e('s_branch L1_polled')
        a.e('s_cmp_gt_u32 s2, 7'); a.e('s_cbranch_scc1 L1_polled')
        srd(a, 96, 6, 7, FLAG_BYTES, FLAG_OFF)
        a.e('s_lshl_b32 s60, s2, 14'); a.e('v_subrev_u32 v134, 64, v0'); a.e('v_lshlrev_b32 v134, 7, v134'); a.e('v_mov_b32 v135, 0')
        a.e('buffer_store_dword v135, v134, s[96:99], s60 offen')
        a.e('s_branch L1_polled')
        a.label('L1_cpf')
        if cfg.cpf: code_pf(a, 'L1_polled', 'L2_end' if cfg.fuse2 else 'L1_end', vLANE, 134, 135, 94, 5 if cfg.fuse2 else 4)
        a.e('s_branch L1_polled')
        a.label('L1_pub')
        a.e('s_mov_b64 exec, 1')
        a.e('buffer_store_dwordx2 v[136:137], v135, s[96:99], 0 offen sc1')
        a.e('s_mov_b64 exec, -1')
        a.e('s_mov_b32 s62, 0'); a.e('s_mov_b32 s63, 0x1000000')
        if cfg.f0sl: a.e(f's_sleep {cfg.f0sl}')
        a.label('L1_poll')
        a.e('buffer_load_dwordx2 v[138:139], v134, s[96:99], 0 offen sc1')
        a.e('s_add_u32 s62, s62, 1')
        a.e('s_waitcnt vmcnt(0)')
        a.e('v_xor_b32 v139, v138, v139'); a.e('v_subrev_u32 v138, s100, v138')
        a.e('v_cmp_eq_u32 vcc, -1, v139'); a.e('v_cmp_gt_u32 s[60:61], s63, v138')
        a.e('s_and_b64 vcc, vcc, s[60:61]')
        a.e('s_cmp_eq_u64 vcc, exec'); a.e('s_cbranch_scc1 L1_polled0')
        if cfg.f0sl2: a.e(f's_sleep {cfg.f0sl2}')
        a.e('s_cmp_lt_u32 s62, 0x8000'); a.e('s_cbranch_scc1 L1_poll')
        a.label('L1_polled0')
        a.label('L1_polled')
        a.e('s_barrier')
        emit_dl(dma_list(0)[5:10] + dma_list(1)[5:10] + latepf)
    else:
        dl = dma_list(1) + ([] if cfg.k1_v2 else dma_list(2))
        per = len(fill) // len(dl)
        k = 0
        for n_, (pre, ins, post) in enumerate(dl):
            if pre: a.e(pre)
            stop = (n_+1)*per if n_ < len(dl)-1 else len(fill)
            half = k + (stop - k)//2
            def run(upto):
                nonlocal k
                while k < upto or (k < len(fill) and fill[k].startswith(('s_cselect', 's_addc'))):
                    a.e(fill[k]); k += 1
            run(k+1)
            a.e(ins)
            if post: a.e(post)
            run(stop)
    st.at(1)
    a.e(f's_mov_b32 s{sCNT}, 0')
    a.e(f's_and_b32 s60, s{sWAVE}, 1'); a.e('s_cmp_eq_u32 s60, 1'); a.e('s_cbranch_scc1 L1_wn1')

    aACT = 0; aHA = 64; aW = 72; aHW = 88; aACC = 96
    NW = 4; PF = 3
    for wn in range(2):
        if wn == 1: a.label('L1_wn1')
        if wn == 0:
            units = [('q', 0), ('q', 2), ('q', 4), ('q', 6), ('q', 8), ('q', 10), ('g', 0), ('g', 2), ('u', 0), ('u', 2)]
            names = ['q0', 'q1', 'k0', 'k1', 'v0', 'v1', 'g0', 'g1', 'u0', 'u1']
            order_v = ['g0', 'g1', 'u0', 'u1', 'q0', 'q1', 'k0']; order_a = ['k1', 'v0', 'v1']
            if cfg.ep3: order_v = ['g0', 'g1', 'u0', 'q0', 'k0', 'v0', 'v1']; order_a = ['q1', 'k1', 'u1']
        else:
            units = [('g', 4+2*i) for i in range(5)] + [('u', 4+2*i) for i in range(5)]
            names = [f'g{i}' for i in range(2, 7)] + [f'u{i}' for i in range(2, 7)]
            order_v = ['g2', 'g3', 'g4', 'g5', 'g6', 'u2', 'u3']; order_a = ['u4', 'u5', 'u6']
            if cfg.ep3:
                names = ['g2', 'u2', 'g3', 'u3', 'g6', 'g4', 'u4', 'g5', 'u5', 'u6']
                units = [(nm[0], 2*int(nm[1])) for nm in names]
        acc = {}
        for i, nm in enumerate(order_v):
            for m in range(8): acc[(nm, m)] = ('v', 32 + (i*8+m)*4)
        for i, nm in enumerate(order_a):
            for m in range(8): acc[(nm, m)] = ('a', aACC + (i*8+m)*4)
        acc['halo'] = ('a', aACC + 96)
        def R(x): return f'{x[0]}[{x[1]}:{x[1]+3}]'
        def wread(slot, n, buf):
            kind, c0 = units[n]
            half = slot >> 1
            out = []
            for h in range(2):
                if kind == 'q':
                    base = (vQa if c0 % 4 == 0 else vQb) + half
                    off = (slot & 1)*20480 + c0*16 + h*3072
                else:
                    base = vGU + half
                    off = (slot & 1)*20480 + (6144 if kind == 'g' else 13312) + c0*16 + h*3584
                out.append(f'ds_read_b64_tr_b16 a[{aW+4*buf+2*h}:{aW+4*buf+2*h+1}], v{base} offset:{off}')
            return out
        def aread(slot, par, m):
            return f'ds_read_b128 a[{aACT+par*32+4*m}:{aACT+par*32+4*m+3}], v{vA} offset:{slot*16384+m*1024}'
        def hreads(slot):
            half = slot >> 1
            return [f'ds_read_b128 a[{aHA}:{aHA+3}], v{vHA} offset:{slot*1024}'] + \
                   [f'ds_read_b64_tr_b16 a[{aHW+2*h}:{aHW+2*h+1}], v{vHW+half} offset:{(slot&1)*20480+h*3072}' for h in range(2)]
        tr = LgkmTracker(a)
        def tail_reads(nslot, npar, wbase):
            sched = {}
            for k in range(PF):
                r = wread(nslot, k, (wbase + 10 + k) % NW)
                sched.setdefault((7+k)*8 + 0, []).append(r[0]); sched.setdefault((7+k)*8 + 1, []).append(r[1])
            extra = [aread(nslot, npar, m) for m in range(8)] + hreads(nslot)
            pos = [58, 59, 60, 61, 62, 63, 66, 67, 68, 69, 70]
            for p, r in zip(pos, extra): sched.setdefault(p, []).append(r)
            return sched
        if cfg.k1_v2:
            def wfrag(slot, n, reg):
                kind, c0 = units[n]
                half = slot >> 1
                out = []
                for h_ in range(2):
                    if kind == 'q':
                        base = (vQa if c0 % 4 == 0 else vQb) + half
                        off = (slot & 1)*20480 + c0*16 + h_*3072
                    else:
                        base = vGU + half
                        off = (slot & 1)*20480 + (6144 if kind == 'g' else 13312) + c0*16 + h_*3584
                    out.append(f'ds_read_b64_tr_b16 a[{reg+2*h_}:{reg+2*h_+1}], v{base} offset:{off}')
                return out
            aW2 = 216
            def wr(p, n, second): return aW2 + 8*((5*p + n) & 3) + 4*second
            def areg_(stage, m): return aACT + (stage & 1)*32 + 4*m
            def AR(r): return f'a[{r}:{r+3}]'
            carry = []
            def flat(dl):
                out = []
                for pre, ins, post in dl:
                    if pre: out.append(pre)
                    out.append(ins)
                    if post: out.append(post)
                return out
            def period(h, kind, side=None):
                nonlocal carry
                p = h + 1
                first = kind != 'P'; second = kind != 'Q'
                g0 = 0 if h % 2 == 0 else 5
                gn = 5 - g0
                secs = [x for x in (0, 1) if (first if x == 0 else second)]
                mf = [(n, m, sec) for n in range(3) for m in range(8) for sec in secs]
                L = 8*len(secs)
                T0 = len(mf)
                mf += [(n, m, sec) for m in range(8) for n in (3, 4) for sec in secs]
                N = len(mf)
                gaps = [[] for _ in range(N)]
                def place(item, lo, hi, cap=1):
                    for g in range(lo, hi+1):
                        if len(gaps[g]) < cap:
                            gaps[g].append(item); return g
                    return None
                def wf(n):
                    return (wfrag(h % 4, g0+n, wr(p, n, 0)) if first else []) + (wfrag((h+1) % 4, g0+n, wr(p, n, 1)) if second else [])
                for n, lst in ((0, wf(1)), (1, wf(2) ), (2, wf(3) + wf(4))):
                    for k_, r in enumerate(lst): gaps[n*L + k_].append(('r', r))
                if kind != 'Q':
                    cap = 1 if first else 2
                    cur = 1
                    for x in carry:
                        g = place(('x', x), cur, T0-1, cap)
                        assert g is not None
                        cur = g + (1 if (first or x.startswith('s_add_u32 m0')) else 0)
                    per = 2*len(secs)
                    for m in range(8):
                        g = T0 + per*m + (per - 2 if first else 0)
                        gaps[g].append(('r', f'ds_read_b128 {AR(areg_(h+2, m))}, v{vA} offset:{((h+2) % 4)*16384 + m*1024}'))
                    tail = wfrag((h+1) % 4, gn, wr(p+1, 0, 0)) + wfrag((h+2) % 4, gn, wr(p+1, 0, 1)) + hreads((h+2) % 4)
                    for k_, r in enumerate(tail):
                        g = place(('r', r), T0 + (per*k_ if first else 2*k_), N-1, 1); assert g is not None
                    items = flat(dma_list(h % 4))
                    cur = T0
                    hi = N-1 if not (kind == 'H' and h % 4 == 2) else N-4
                    while items:
                        g = place(('x', items[0]), cur, hi, 1)
                        if g is None: break
                        cur = g + 1; items.pop(0)
                    carry = items
                    if kind == 'H' and h % 4 == 2:
                        gaps[N-3].append(('x', f's_add_u32 s{sCNT}, s{sCNT}, 1')); gaps[N-2].append(('x', f's_cmp_eq_u32 s{sCNT}, 8'))
                    if kind == 'H' and h % 4 == 0 and cfg.ep3:
                        gaps[T0-4].append(('x', f's_cmp_eq_u32 s{sCNT}, 7'))
                        for k_, r_ in enumerate((sM_W, sM_ACT, sM_H)): gaps[T0-3+k_].append(('x', f's_cselect_b32 s{r_}, 170000, s{r_}'))
                if side:
                    lead = 3
                    for k_, x in enumerate(side):
                        gaps[min(N-1, lead + (k_*(N-lead))//len(side))].append(('w' if x.startswith('ds_write') else 'x', x))
                if kind == 'Q' and cfg.ep3:
                    mf = [(n, m, 0) for n in range(5) for m in range(8)]
                for i, (n, m, sec) in enumerate(mf):
                    nm = names[g0+n]
                    if kind != 'Q' and i == T0:
                        if cfg.stamps == 3: a.e('s_memtime s[96:97]')
                        a.e(f's_waitcnt vmcnt({VMW-1+len(latepf) if (cfg.fuse0 and kind == "P") else VMW}) lgkmcnt(0)'); tr.drain(); a.e('s_barrier')
                        if cfg.stamps == 3:
                            if kind == 'P': a.e('s_mov_b32 s98, 0')
                            a.e('v_mov_b32 v29, s96'); a.e(f'v_cmp_eq_u32 vcc, s98, v{vLANE}'); a.e('v_cndmask_b32 v30, v30, v29, vcc')
                            a.e('s_add_u32 s98, s98, 1')
                    wreg = AR(wr(p, n, sec)); areg = AR(areg_(h+sec, m))
                    tr.need(regs_of(wreg) + regs_of(areg) + (regs_of(AR(wr(p, n, 1))) if (n > 0 and second) else []))
                    d = R(acc[(nm, m)])
                    c = '0' if (kind == 'P' or (kind == 'H0' and sec == 0)) else d
                    if nm[0] == 'v': a.e(f'v_mfma_f32_16x16x32_bf16 {d}, {areg}, {wreg}, {c}')
                    else: a.e(f'v_mfma_f32_16x16x32_bf16 {d}, {wreg}, {areg}, {c}')
                    for k_, x in gaps[i]:
                        if k_ == 'r': tr.read(x)
                        elif k_ == 'w': a.e(x); tr.other()
                        else: a.e(x)
                    if kind != 'Q' and i == L + 5:
                        tr.need(regs_of(AR(aHA)) + regs_of(AR(aHW)))
                        d = R(acc['halo'])
                        a.e(f'v_mfma_f32_16x16x32_bf16 {d}, {AR(aHW)}, {AR(aHA)}, {"0" if kind == "P" else d}')
            carry = flat(dma_list(2))
            a.e(f's_waitcnt vmcnt({5 + len(latepf) if cfg.fuse0 else VMW})'); a.e('s_barrier')
            st.at(2)
            if st.on: a.e('s_waitcnt lgkmcnt(0)')
            for r in wfrag(0, 5, wr(0, 0, 1)) + [f'ds_read_b128 {AR(areg_(0, m))}, v{vA} offset:{m*1024}' for m in range(8)] + hreads(0): tr.read(r)
            period(-1, 'P')
            period(0, 'H0')
            entry_state = tr.state(); entry_carry = list(carry)
            a.label(f'L1_loop{wn}')
            period(1, 'H'); period(2, 'H')
            exit_q = list(tr.q)
            a.e(f's_cbranch_scc1 L1_tail{wn}')
            period(3, 'H'); period(4, 'H')
            assert tr.state() == entry_state, (tr.state(), entry_state)
            assert carry == entry_carry, (carry, entry_carry)
            a.e(f's_branch L1_loop{wn}')
            a.label(f'L1_tail{wn}')
            tr.q = exit_q
            if not cfg.ep3: period(31, 'Q')
        else:
            a.e(f's_waitcnt vmcnt({VMW})'); a.e('s_barrier')
            st.at(2)
            if st.on: a.e('s_waitcnt lgkmcnt(0)')
            sched = tail_reads(0, 0, -10)
            for p in sorted(sched):
                for r in sched[p]: tr.read(r)
            entry_state = tr.state()
            a.label(f'L1_loop{wn}')
            for u in range(4):
                slot = u; par = u & 1; wbase = (10*u) % NW
                sched = {}
                for n in range(7):
                    r = wread(slot, n+PF, (wbase + n + PF) % NW)
                    sched.setdefault(n*8 + 0, []).append(r[0]); sched.setdefault(n*8 + 1, []).append(r[1])
                for p, l in tail_reads((slot+1) % 4, par ^ 1, wbase).items(): sched.setdefault(p, []).extend(l)
                misc = {}
                dl = dma_list((slot+3) % 4)
                for i, (pre, ins, post) in enumerate(dl):
                    p = 3 + 5*i
                    if pre: misc.setdefault(p-1, []).append(pre)
                    misc.setdefault(p, []).append(ins)
                    if post: misc.setdefault(p, []).append(post)
                for n in range(10):
                    nm = names[n]
                    wreg = f'a[{aW+4*((wbase+n)%NW)}:{aW+4*((wbase+n)%NW)+3}]'
                    for m in range(8):
                        i = n*8 + m
                        if i == 56:
                            if cfg.stamps == 3: a.e('s_memtime s[96:97]')
                            a.e(f's_waitcnt vmcnt({VMW}) lgkmcnt(0)'); tr.drain(); a.e('s_barrier')
                            if cfg.stamps == 3:
                                a.e(f's_lshl_b32 s97, s{sCNT}, 2'); a.e(f's_add_u32 s97, s97, {u}')
                                a.e('v_mov_b32 v29, s96'); a.e(f'v_cmp_eq_u32 vcc, s97, v{vLANE}'); a.e('v_cndmask_b32 v30, v30, v29, vcc')
                        areg = f'a[{aACT+par*32+4*m}:{aACT+par*32+4*m+3}]'
                        tr.need(regs_of(wreg) + regs_of(areg))
                        d = R(acc[(nm, m)])
                        if nm[0] == 'v': a.e(f'v_mfma_f32_16x16x32_bf16 {d}, {areg}, {wreg}, {d}')
                        else: a.e(f'v_mfma_f32_16x16x32_bf16 {d}, {wreg}, {areg}, {d}')
                        for r in sched.get(i, []): tr.read(r)
                        for x in misc.get(i, []): a.e(x)
                        if i == 12:
                            tr.need(regs_of(f'a[{aHA}:{aHA+3}]') + regs_of(f'a[{aHW}:{aHW+3}]'))
                            d = R(acc['halo'])
                            a.e(f'v_mfma_f32_16x16x32_bf16 {d}, a[{aHW}:{aHW+3}], a[{aHA}:{aHA+3}], {d}')
                        if u == 3 and i == 76:
                            a.e(f's_add_u32 s{sCNT}, s{sCNT}, 1'); a.e(f's_cmp_lt_u32 s{sCNT}, 8')
            assert tr.state() == entry_state, (tr.state(), entry_state)
            a.e(f's_cbranch_scc1 L1_loop{wn}')
        if cfg.ep3:
            vO = vDA; vX = vDW
            def P2(r): return f'v[{r}:{r+1}]'
            def fetch(o, x, tmp):
                if x[0] == 'v': return x[1]
                for r in range(4): o.e(f'v_accvgpr_read_b32 v{tmp+r}, a{x[1]+r}')
                return tmp
            def hmul(o, g, u_, m, dst, tmp):
                gb = acc[(g, m)][1]; ub = fetch(o, acc[(u_, m)], tmp)
                o.e(f'v_pk_mul_f32 {P2(gb)}, {P2(gb)}, {P2(ub)}'); o.e(f'v_pk_mul_f32 {P2(gb+2)}, {P2(gb+2)}, {P2(ub+2)}')
                o.e(f'v_cvt_pk_bf16_f32 v{dst}, v{gb}, v{gb+1}'); o.e(f'v_cvt_pk_bf16_f32 v{dst+1}, v{gb+2}, v{gb+3}')
            def ostore(o, src, m, soff, n=4, cls=0):
                op = {4: 'buffer_store_dwordx4', 2: 'buffer_store_dwordx2'}[n]
                o.e(f'{op} v[{src}:{src+n-1}], v{vO + (m >> 2)}, s[{S_O}:{S_O+3}], {soff} offen offset:{(m&3)*1024}' + (' sc1' if (cfg.k1_st >> cls) & 1 else ''))
            def hblock(o, ga, ua, gb_, ub_, m, so, cls, tmp):
                dst = acc[(ga, m)][1]
                hmul(o, ga, ua, m, dst, tmp); hmul(o, gb_, ub_, m, dst+2, tmp+4); ostore(o, dst, m, so, cls=cls)
            def attn1(o, m, q, kp, kc, v0w, v1w, bp, BI, Sx, Ox):
                ONES = f'a[{aBI+12}:{aBI+15}]'
                o.e(f'v_mfma_f32_16x16x32_bf16 v[{Sx}:{Sx+3}], v[{kp}:{kp+3}], v[{q}:{q+3}], 0')
                o.e(f'v_mfma_f32_16x16x32_bf16 v[{Sx+4}:{Sx+7}], v[{kc}:{kc+3}], v[{q}:{q+3}], 0')
                o.e('; gap'); o.e('; gap')
                for r in (0, 2): o.e(f'v_pk_fma_f32 {P2(Sx+r)}, {P2(Sx+r)}, s[68:69], {P2(bp+r)}')
                for r in (0, 2): o.e(f'v_pk_fma_f32 {P2(Sx+4+r)}, {P2(Sx+4+r)}, s[68:69], {P2(BI+r)}')
                M = Sx + 8
                o.e(f'v_max3_f32 v{M}, v{Sx}, v{Sx+1}, v{Sx+2}'); o.e(f'v_max3_f32 v{M+1}, v{Sx+3}, v{Sx+4}, v{Sx+5}')
                o.e(f'v_max3_f32 v{M}, v{M}, v{Sx+6}, v{Sx+7}'); o.e(f'v_max_f32 v{M}, v{M}, v{M+1}')
                o.e(f'v_mov_b32 v{M+1}, v{M}')
                o.e(f'v_permlane32_swap_b32 v{M}, v{M+1}')
                o.e(f'v_max_f32 v{M}, v{M}, v{M+1}'); o.e(f'v_mov_b32 v{M+1}, v{M}')
                o.e(f'v_permlane16_swap_b32 v{M}, v{M+1}')
                o.e(f'v_max_f32 v{M}, v{M}, v{M+1}'); o.e(f'v_mov_b32 v{M+1}, v{M}')
                for r in (0, 2, 4, 6): o.e(f'v_pk_add_f32 {P2(Sx+r)}, {P2(Sx+r)}, {P2(M)} neg_lo:[0,1] neg_hi:[0,1]')
                for r in range(8): o.e(f'v_exp_f32 v{Sx+r}, v{Sx+r}')
                for r in range(4): o.e(f'v_cvt_pk_bf16_f32 v{Sx+12+r}, v{Sx+2*r}, v{Sx+2*r+1}')
                Pp = Sx + 12
                o.e(f'v_mfma_f32_16x16x32_bf16 v[{Ox+8}:{Ox+11}], {ONES}, v[{Pp}:{Pp+3}], 0')
                o.e(f'v_mfma_f32_16x16x32_bf16 v[{Ox}:{Ox+3}], v[{v0w}:{v0w+3}], v[{Pp}:{Pp+3}], 0')
                o.e(f'v_mfma_f32_16x16x32_bf16 v[{Ox+4}:{Ox+7}], v[{v1w}:{v1w+3}], v[{Pp}:{Pp+3}], 0')
                o.e(f'v_rcp_f32 v{Ox+8}, v{Ox+8}')
                o.e(f'v_mov_b32 v{Ox+9}, v{Ox+8}')
                for r in (0, 2, 4, 6): o.e(f'v_pk_mul_f32 {P2(Ox+r)}, {P2(Ox+r)}, {P2(Ox+8)}')
                for r in range(4): o.e(f'v_cvt_pk_bf16_f32 v{q+r}, v{Ox+2*r}, v{Ox+2*r+1}')
                ostore(o, q, m, 's67', cls=3)
            def merge(A, B):
                A = [x.text for x in A.ins]; B = [x.text for x in B.ins]
                want = []
                for i_, x in enumerate(A):
                    nxt = A[i_+1] if i_+1 < len(A) else ''
                    w = 0
                    if x.startswith('v_mfma') and not nxt.startswith('v_mfma'): w = 7
                    elif nxt.startswith('v_permlane'): w = 2
                    elif nxt.startswith('v_mfma') and x.startswith('v_cvt'): w = 2
                    elif x.startswith(('v_rcp',)): w = 1
                    want.append(w)
                tot = sum(want)
                extra = max(0, len(B) - tot)
                k = 0
                for i_, x in enumerate(A):
                    a.e(x)
                    n_ = want[i_] + ((i_+1)*extra)//len(A) - (i_*extra)//len(A)
                    for _ in range(n_):
                        if k < len(B): a.e(B[k]); k += 1
                while k < len(B): a.e(B[k]); k += 1
            o = Asm()
            o.e(f's_lshl_b32 s60, s{sRB}, 14'); o.e(f's_lshl_b32 s61, s{sWM}, 13'); o.e('s_add_u32 s60, s60, s61')
            o.e(f'v_lshl_add_u32 v{vO}, v{vLANE}, 4, s60')
            o.e(f'v_add_u32 v{vO+1}, 4096, v{vO}')
            o.e(f's_mul_i32 s62, s{sJ}, 7'); o.e(f's_and_b32 s63, s{sJ}, 1'); o.e('s_add_u32 s62, s62, s63'); o.e('s_lshr_b32 s62, s62, 1')
            o.e('s_add_u32 s62, s62, 32'); o.e('s_lshl_b32 s62, s62, 17')
            o.e('s_add_u32 s64, s62, 131072'); o.e('s_add_u32 s65, s62, 262144')
            o.e(f's_lshl_b32 s60, s{sWM}, 14'); o.e('s_add_u32 s60, s60, 4096')
            o.e(f'v_lshl_add_u32 v{vX}, v{vLANE}, 4, s60')
            o.e(f'v_and_b32 v{vT}, 15, v{vLANE}'); o.e(f'v_lshrrev_b32 v{vT+1}, 4, v{vLANE}')
            o.e(f'v_lshl_add_u32 v{vX+1}, v{vT}, 5, s60'); o.e(f'v_lshl_add_u32 v{vX+1}, v{vT+1}, 3, v{vX+1}')
            o.e(f's_mul_i32 s60, s{sWM}, 40960'); o.e('s_sub_u32 s61, 40960, s60')
            o.e(f'v_lshl_add_u32 v{vX+2}, v{vLANE}, 4, s60')
            o.e(f'v_lshl_add_u32 v{vX+3}, v{vT+1}, 7, s61'); o.e(f'v_lshl_add_u32 v{vX+3}, v{vT}, 1, v{vX+3}')
            hb = fetch(o, acc['halo'], vT)
            o.e(f'v_cvt_pk_bf16_f32 v{vT+4}, v{hb}, v{hb+1}'); o.e(f'v_cvt_pk_bf16_f32 v{vT+5}, v{hb+2}, v{hb+3}')
            o.e(f'ds_write_b64 v{vX+2}, v[{vT+4}:{vT+5}] offset:{8*wn}')
            of = 1024 + wn*512
            o.e(f'ds_write_b16 v{vX+3}, v{vT+4} offset:{of}'); o.e(f'ds_write_b16_d16_hi v{vX+3}, v{vT+4} offset:{of+32}')
            o.e(f'ds_write_b16 v{vX+3}, v{vT+5} offset:{of+64}'); o.e(f'ds_write_b16_d16_hi v{vX+3}, v{vT+5} offset:{of+96}')
            if cfg.pf and cfg.pf3 == 2:
                srd(o, S_PF, 68, 69, 1024*3584*2)
                o.e(f's_lshl_b32 s60, s2, 2'); o.e(f's_add_u32 s60, s60, s{sWAVE}'); o.e('s_mul_i32 s60, s60, 7168')
                o.e(f'v_min_u32 v{vPF}, 55, v{vLANE}'); o.e(f'v_lshlrev_b32 v{vPF}, 7, v{vPF}')
                o.e(f'buffer_load_dword v{vDUM}, v{vPF}, s[{S_PF}:{S_PF+3}], s60 offen')
            o.e('s_mov_b32 s68, 0x3e8293ee'); o.e('s_mov_b32 s69, 0x3e8293ee')
            o.e(f's_lshl_b32 s67, s{sJ}, 17')
            if wn == 0:
                def packqk(o, n0, n1, m):
                    d = acc[(n0, m)][1]
                    b1 = fetch(o, acc[(n1, m)], vT + 4*(m & 1))
                    o.e(f'v_cvt_pk_bf16_f32 v{d}, v{d}, v{d+1}'); o.e(f'v_cvt_pk_bf16_f32 v{d+1}, v{d+2}, v{d+3}')
                    o.e(f'v_cvt_pk_bf16_f32 v{d+2}, v{b1}, v{b1+1}'); o.e(f'v_cvt_pk_bf16_f32 v{d+3}, v{b1+2}, v{b1+3}')
                    return d
                PV0 = acc[('v0', 0)][1]; PV1 = acc[('v1', 0)][1]
                def packv(o, Pv, m, off):
                    b_ = Pv + 4*m
                    c1 = f'v_cvt_pk_bf16_f32 v{Pv+2+2*m}, v{b_}, v{b_+1}'; c2 = f'v_cvt_pk_bf16_f32 v{Pv+3+2*m}, v{b_+2}, v{b_+3}'
                    for x in ((c2, c1) if m == 0 else (c1, c2)): o.e(x)
                    if m >= 3: o.e(f'ds_write_b64 v{vX+1}, v[{Pv+2+2*m}:{Pv+3+2*m}] offset:{(m-3)*2048+off}')
                for m in range(3, 8):
                    d = packqk(o, 'k0', 'k1', m); o.e(f'ds_write_b128 v{vX}, v[{d}:{d+3}] offset:{(m-3)*2048}')
                for m in range(4, 8):
                    d = packqk(o, 'q0', 'q1', m); o.e(f'ds_write_b128 v{vX}, v[{d}:{d+3}] offset:{10240+(m-4)*1024}')
                for m in range(8): packv(o, PV0, m, 1024)
                for m in range(8): packv(o, PV1, m, 1536)
            else:
                o.e('s_add_u32 s66, s62, 393216'); o.e('s_sub_u32 s61, s62, 131072'); o.e('s_add_u32 s61, s61, 8')
                o.e('s_cmp_eq_u32 s63, 1'); o.e('s_cselect_b32 s66, s61, s66')
                for m in range(8): hblock(o, 'g2', 'u2', 'g3', 'u3', m, 's64', 0, vT)
            period(31, 'Q', side=[x.text for x in o.ins])
            if cfg.stamps != 2: st.at(3)
            a.e('s_waitcnt lgkmcnt(0)'); a.e('s_barrier')
            if cfg.stamps == 4: st.at(0)
            if cfg.pf:
                a.e('s_mov_b32 s94, 0x200000'); a.e('s_mov_b32 s95, 0x20000')
                a.e(f's_lshl_b32 s60, s2, 13'); a.e(f's_lshl_b32 s61, s{sWAVE}, 11'); a.e('s_add_u32 s60, s60, s61')
                a.e(f'v_lshlrev_b32 v{vPF}, 5, v{vLANE}')
                a.e(f'buffer_load_dword v{vDUM}, v{vPF}, s[92:95], s60 offen')
            A = Asm(); B = Asm()
            if wn == 0:
                KP = PV0 + 18; BI = PV1 + 18
                a.e(f's_lshl_b32 s60, s{sWM}, 12'); a.e('s_add_u32 s60, s60, 4096')
                a.e(f'v_subrev_u32 v{vX}, s60, v{vX}'); a.e(f'v_subrev_u32 v{vX+1}, s60, v{vX+1}')
                a.e(f'ds_read_b128 v[{KP}:{KP+3}], v{vX}')
                a.e(f'ds_read_b64 v[{PV0}:{PV0+1}], v{vX+1} offset:1024')
                a.e(f'ds_read_b64 v[{PV1}:{PV1+1}], v{vX+1} offset:1536')
                for m in range(4): hblock(a, 'g0', 'u0', 'g1', 'u1', m, 's62', 1, vT)
                for m in range(3): packqk(a, 'k0', 'k1', m)
                packqk(a, 'q0', 'q1', 0)
                for r in range(12): a.e(f'v_accvgpr_read_b32 v{BI+r}, a{aBI+r}')
                a.e('s_waitcnt lgkmcnt(0)')
                Sx = acc[('g1', 0)][1]; Ox = acc[('u0', 0)][1]
                for m in range(4):
                    attn1(A, m, acc[('q0', m)][1], acc[('k0', m-1)][1] if m else KP, acc[('k0', m)][1], PV0+2*m, PV1+2*m, BI+(8 if m == 0 else 4), BI, Sx, Ox)
                for m in range(1, 4): packqk(B, 'q0', 'q1', m)
                for m in range(4, 8): hblock(B, 'g0', 'u0', 'g1', 'u1', m, 's62', 1, vT)
            else:
                F = acc[('u2', 0)][1]
                KR = F; V0 = F + 20; V1 = F + 30; QR = F + 40; BI = F + 56
                for i_ in range(5):
                    a.e(f'ds_read_b128 v[{KR+4*i_}:{KR+4*i_+3}], v{vX} offset:{i_*2048}')
                    if i_: a.e(f'ds_read_b128 v[{QR+4*(i_-1)}:{QR+4*(i_-1)+3}], v{vX} offset:{10240+(i_-1)*1024}')
                for i_ in range(5):
                    a.e(f'ds_read_b64 v[{V0+2*i_}:{V0+2*i_+1}], v{vX+1} offset:{i_*2048+1024}')
                    a.e(f'ds_read_b64 v[{V1+2*i_}:{V1+2*i_+1}], v{vX+1} offset:{i_*2048+1536}')
                for r in range(8): a.e(f'v_accvgpr_read_b32 v{BI+r}, a{aBI+r}')
                for m in range(2): hblock(a, 'g4', 'u4', 'g5', 'u5', m, 's65', 0, vT)
                a.e('s_waitcnt lgkmcnt(0)')
                Sx = acc[('g3', 0)][1]; Ox = Sx + 16
                for i_ in range(4):
                    attn1(A, 4+i_, QR+4*i_, KR+4*i_, KR+4*i_+4, V0+2*i_, V1+2*i_, BI+4, BI, Sx, Ox)
                for m in range(2, 8): hblock(B, 'g4', 'u4', 'g5', 'u5', m, 's65', 0, vT)
                for m in range(8):
                    dst = acc[('g6', m)][1]
                    hmul(B, 'g6', 'u6', m, dst, vT + 4*(m & 1)); ostore(B, dst, m, 's66', n=2, cls=2)
            merge(A, B)
            if cfg.stamps not in (2, 5): st.at(4)
        else:
            if cfg.stamps != 2: st.at(3)
            a.e('s_waitcnt vmcnt(0) lgkmcnt(0)'); a.e('s_barrier')
            if cfg.stamps == 4: st.at(0)
            vO = vDA
            a.e(f's_lshl_b32 s60, s{sRB}, 14'); a.e(f's_lshl_b32 s61, s{sWM}, 13'); a.e('s_add_u32 s60, s60, s61')
            a.e(f'v_lshl_add_u32 v{vO}, v{vLANE}, 4, s60')
            a.e(f'v_add_u32 v{vO+1}, 4096, v{vO}')
            a.e(f's_mul_i32 s62, s{sJ}, 7'); a.e(f's_and_b32 s63, s{sJ}, 1'); a.e('s_add_u32 s62, s62, s63'); a.e('s_lshr_b32 s62, s62, 1')
            a.e('s_add_u32 s62, s62, 32'); a.e('s_lshl_b32 s62, s62, 17')
            def fetch(x, tmp):
                if x[0] == 'v': return x[1]
                for r in range(4): a.e(f'v_accvgpr_read_b32 v{tmp+r}, a{x[1]+r}')
                return tmp
            def hmul(g, u_, m, dst, tmp):
                gb = fetch(acc[(g, m)], tmp); ub = fetch(acc[(u_, m)], tmp+4)
                a.e(f'v_pk_mul_f32 v[{gb}:{gb+1}], v[{gb}:{gb+1}], v[{ub}:{ub+1}]')
                a.e(f'v_pk_mul_f32 v[{gb+2}:{gb+3}], v[{gb+2}:{gb+3}], v[{ub+2}:{ub+3}]')
                a.e(f'v_cvt_pk_bf16_f32 v{dst}, v{gb}, v{gb+1}')
                a.e(f'v_cvt_pk_bf16_f32 v{dst+1}, v{gb+2}, v{gb+3}')
            def ostore(src, m, soff, n=4, vbase=None, cls=0):
                vb = (vbase if vbase is not None else vO) + (m >> 2)
                op = {4: 'buffer_store_dwordx4', 2: 'buffer_store_dwordx2'}[n]
                a.e(f'{op} v[{src}:{src+n-1}], v{vb}, s[{S_O}:{S_O+3}], {soff} offen offset:{(m&3)*1024}' + (' sc1' if (cfg.k1_st >> cls) & 1 and (cls != 0 or m < cfg.k1_stm) else ''))
            if cfg.pf:
                a.e('s_mov_b32 s94, 0x200000'); a.e('s_mov_b32 s95, 0x20000')
                a.e(f's_lshl_b32 s64, s2, 13'); a.e(f's_lshl_b32 s65, s{sWAVE}, 11'); a.e('s_add_u32 s64, s64, s65')
                a.e(f'v_lshlrev_b32 v{vPF}, 5, v{vLANE}')
                a.e(f'buffer_load_dword v{vDUM}, v{vPF}, s[92:95], s64 offen')
            vX = vDW
            a.e(f'v_lshlrev_b32 v{vX}, 4, v{vLANE}')
            a.e(f'v_and_b32 v{vX+1}, 15, v{vLANE}'); a.e(f'v_lshlrev_b32 v{vX+1}, 5, v{vX+1}')
            a.e(f'v_lshrrev_b32 v{vX+2}, 4, v{vLANE}'); a.e(f'v_lshl_add_u32 v{vX+1}, v{vX+2}, 3, v{vX+1}')
            hb = fetch(acc['halo'], vT)
            a.e(f'v_cvt_pk_bf16_f32 v{vT+4}, v{hb}, v{hb+1}'); a.e(f'v_cvt_pk_bf16_f32 v{vT+5}, v{hb+2}, v{hb+3}')
            a.e(f's_cmp_eq_u32 s{sWM}, 1'); a.e(f's_cbranch_scc1 L1_hv{wn}')
            a.e(f'ds_write_b64 v{vX}, v[{vT+4}:{vT+5}] offset:{8*wn}')
            a.e(f's_branch L1_hd{wn}')
            a.label(f'L1_hv{wn}')
            a.e(f'v_lshlrev_b32 v{vX+2}, 7, v{vX+2}')
            a.e(f'v_and_b32 v{vX+3}, 15, v{vLANE}'); a.e(f'v_lshl_add_u32 v{vX+2}, v{vX+3}, 1, v{vX+2}')
            o = 1024 + wn*512
            a.e(f'ds_write_b16 v{vX+2}, v{vT+4} offset:{o}'); a.e(f'ds_write_b16_d16_hi v{vX+2}, v{vT+4} offset:{o+32}')
            a.e(f'ds_write_b16 v{vX+2}, v{vT+5} offset:{o+64}'); a.e(f'ds_write_b16_d16_hi v{vX+2}, v{vT+5} offset:{o+96}')
            a.label(f'L1_hd{wn}')
            a.e(f's_lshl_b32 s64, s{sWM}, 14'); a.e('s_add_u32 s64, s64, 4096')
            a.e(f'v_add_u32 v{vX+2}, s64, v{vX}'); a.e(f'v_add_u32 v{vX+3}, s64, v{vX+1}')
            a.e('s_mov_b32 s68, 0x3e8293ee'); a.e('s_mov_b32 s69, 0x3e8293ee')
            a.e(f's_lshl_b32 s67, s{sJ}, 17')
            def P2(r): return f'v[{r}:{r+1}]'
            def attention(blocks, BI, W1, W2):
                ONES = f'a[{aBI+12}:{aBI+15}]'
                for g0 in range(0, len(blocks), 2):
                    grp = [(blk, W1 + 16*i, W2 + 16*i) for i, blk in enumerate(blocks[g0:g0+2])]
                    for (m, q, kp, kc, v0w, v1w, first), Sx, Ox in grp:
                        a.e(f'v_mfma_f32_16x16x32_bf16 v[{Sx}:{Sx+3}], v[{kp}:{kp+3}], v[{q}:{q+3}], 0')
                        a.e(f'v_mfma_f32_16x16x32_bf16 v[{Sx+4}:{Sx+7}], v[{kc}:{kc+3}], v[{q}:{q+3}], 0')
                    for (m, q, kp, kc, v0w, v1w, first), Sx, Ox in grp:
                        bp = BI + (8 if first else 4)
                        for r in (0, 2): a.e(f'v_pk_fma_f32 {P2(Sx+r)}, {P2(Sx+r)}, s[68:69], {P2(bp+r)}')
                        for r in (0, 2): a.e(f'v_pk_fma_f32 {P2(Sx+4+r)}, {P2(Sx+4+r)}, s[68:69], {P2(BI+r)}')
                        M = Sx + 8
                        a.e(f'v_max3_f32 v{M}, v{Sx}, v{Sx+1}, v{Sx+2}'); a.e(f'v_max3_f32 v{M+1}, v{Sx+3}, v{Sx+4}, v{Sx+5}')
                        a.e(f'v_max3_f32 v{M}, v{M}, v{Sx+6}, v{Sx+7}'); a.e(f'v_max_f32 v{M}, v{M}, v{M+1}')
                        a.e(f'v_mov_b32 v{M+1}, v{M}')
                    for _, Sx, Ox in grp: a.e(f'v_permlane32_swap_b32 v{Sx+8}, v{Sx+9}')
                    for _, Sx, Ox in grp:
                        a.e(f'v_max_f32 v{Sx+8}, v{Sx+8}, v{Sx+9}'); a.e(f'v_mov_b32 v{Sx+9}, v{Sx+8}')
                    for _, Sx, Ox in grp: a.e(f'v_permlane16_swap_b32 v{Sx+8}, v{Sx+9}')
                    for _, Sx, Ox in grp:
                        a.e(f'v_max_f32 v{Sx+8}, v{Sx+8}, v{Sx+9}'); a.e(f'v_mov_b32 v{Sx+9}, v{Sx+8}')
                        for r in (0, 2, 4, 6): a.e(f'v_pk_add_f32 {P2(Sx+r)}, {P2(Sx+r)}, {P2(Sx+8)} neg_lo:[0,1] neg_hi:[0,1]')
                    for _, Sx, Ox in grp:
                        for r in range(8): a.e(f'v_exp_f32 v{Sx+r}, v{Sx+r}')
                    for _, Sx, Ox in grp:
                        for r in range(4): a.e(f'v_cvt_pk_bf16_f32 v{Sx+12+r}, v{Sx+2*r}, v{Sx+2*r+1}')
                    for (m, q, kp, kc, v0w, v1w, first), Sx, Ox in grp:
                        Pp = Sx + 12
                        a.e(f'v_mfma_f32_16x16x32_bf16 v[{Ox+8}:{Ox+11}], {ONES}, v[{Pp}:{Pp+3}], 0')
                        a.e(f'v_mfma_f32_16x16x32_bf16 v[{Ox}:{Ox+3}], v[{v0w}:{v0w+3}], v[{Pp}:{Pp+3}], 0')
                        a.e(f'v_mfma_f32_16x16x32_bf16 v[{Ox+4}:{Ox+7}], v[{v1w}:{v1w+3}], v[{Pp}:{Pp+3}], 0')
                    for _, Sx, Ox in grp:
                        a.e(f'v_rcp_f32 v{Ox+8}, v{Ox+8}')
                    for _, Sx, Ox in grp:
                        a.e(f'v_mov_b32 v{Ox+9}, v{Ox+8}')
                    for (m, q, kp, kc, v0w, v1w, first), Sx, Ox in grp:
                        for r in (0, 2, 4, 6): a.e(f'v_pk_mul_f32 {P2(Ox+r)}, {P2(Ox+r)}, {P2(Ox+8)}')
                        for r in range(4): a.e(f'v_cvt_pk_bf16_f32 v{q+r}, v{Ox+2*r}, v{Ox+2*r+1}')
                        ostore(q, m, 's67', cls=3)
            if wn == 1:
                a.e('s_add_u32 s64, s62, 131072'); a.e('s_add_u32 s65, s62, 262144')
                a.e('s_add_u32 s66, s62, 393216'); a.e('s_sub_u32 s61, s62, 131072'); a.e('s_add_u32 s61, s61, 8')
                a.e('s_cmp_eq_u32 s63, 1'); a.e('s_cselect_b32 s66, s61, s66')
                for m in range(8):
                    for (ga, ua, gb_, ub_, so) in (('g2', 'u2', 'g3', 'u3', 's64'), ('g4', 'u4', 'g5', 'u5', 's65')):
                        dst = acc[(ga, m)][1]
                        hmul(ga, ua, m, dst, vT)
                        hmul(gb_, ub_, m, dst+2, vT)
                        ostore(dst, m, so)
                    dst = acc[('g6', m)][1]
                    hmul('g6', 'u6', m, dst, vT)
                    ostore(dst, m, 's66', n=2, cls=2)
                if cfg.k1_wb == 1: a.e('buffer_wbl2 sc1')
                if cfg.k1_wb == 2:
                    a.e(f's_cmp_lg_u32 s{sWAVE}, 1'); a.e('s_cbranch_scc1 L1_nowb')
                    a.e('s_waitcnt vmcnt(0)'); a.e('buffer_wbl2 sc1')
                    a.label('L1_nowb')
                if cfg.k1_wb == 3:
                    a.e(f's_cmp_lg_u32 s{sWAVE}, 1'); a.e('s_cbranch_scc1 L1_nowb')
                    a.e(f's_cmp_lg_u32 s{sRB}, 0'); a.e('s_cbranch_scc1 L1_nowb')
                    a.e('s_waitcnt vmcnt(0)'); a.e('buffer_wbl2 sc1')
                    a.label('L1_nowb')
                F = acc[('u2', 0)][1]
                KR = F; V0 = F + 20; V1 = F + 30; QR = F + 40; BI = acc[('g3', 0)][1]
                W1 = acc[('g5', 0)][1]; W2 = W1 - 64 + 0
                W2 = BI + 0
                W2 = acc[('g3', 0)][1]; BI = F + 56
                for r in range(8): a.e(f'v_accvgpr_read_b32 v{BI+r}, a{aBI+r}')
                if cfg.stamps == 4: st.at(1)
                a.e('s_waitcnt lgkmcnt(0)'); a.e('s_barrier')
                if cfg.stamps == 4: st.at(2)
                for i in range(5):
                    a.e(f'ds_read_b128 v[{KR+4*i}:{KR+4*i+3}], v{vX+2} offset:{i*2048}')
                    if i: a.e(f'ds_read_b128 v[{QR+4*(i-1)}:{QR+4*(i-1)+3}], v{vX+2} offset:{10240+(i-1)*1024}')
                for i in range(5):
                    a.e(f'ds_read_b64 v[{V0+2*i}:{V0+2*i+1}], v{vX+3} offset:{i*2048+1024}')
                    a.e(f'ds_read_b64 v[{V1+2*i}:{V1+2*i+1}], v{vX+3} offset:{i*2048+1536}')
                a.e('s_waitcnt lgkmcnt(0)')
                attention([(4+i, QR+4*i, KR+4*i, KR+4*i+4, V0+2*i, V1+2*i, False) for i in range(4)], BI, W1, W2)
                if cfg.stamps != 2: st.at(4)
            else:
                def packqk(n0, n1, m):
                    d = acc[(n0, m)][1]
                    b1 = fetch(acc[(n1, m)], vT)
                    a.e(f'v_cvt_pk_bf16_f32 v{d}, v{d}, v{d+1}'); a.e(f'v_cvt_pk_bf16_f32 v{d+1}, v{d+2}, v{d+3}')
                    a.e(f'v_cvt_pk_bf16_f32 v{d+2}, v{b1}, v{b1+1}'); a.e(f'v_cvt_pk_bf16_f32 v{d+3}, v{b1+2}, v{b1+3}')
                    return d
                for m in range(8):
                    dst = acc[('g0', m)][1]
                    hmul('g0', 'u0', m, dst, vT); hmul('g1', 'u1', m, dst+2, vT)
                    ostore(dst, m, 's62', cls=1)
                PV0 = acc[('u0', 0)][1]; PV1 = PV0 + 18
                KP = PV0 + 36; BI = KP + 4
                for m in (3, 4, 5, 6, 7, 0, 1, 2):
                    d = packqk('k0', 'k1', m)
                    if m >= 3: a.e(f'ds_write_b128 v{vX+2}, v[{d}:{d+3}] offset:{(m-3)*2048}')
                    for (nm, Pv, o) in (('v0', PV0, 1024), ('v1', PV1, 1536)):
                        b_ = fetch(acc[(nm, m)], vT+4)
                        a.e(f'v_cvt_pk_bf16_f32 v{Pv+2+2*m}, v{b_}, v{b_+1}'); a.e(f'v_cvt_pk_bf16_f32 v{Pv+3+2*m}, v{b_+2}, v{b_+3}')
                        if m >= 3: a.e(f'ds_write_b64 v{vX+3}, v[{Pv+2+2*m}:{Pv+3+2*m}] offset:{(m-3)*2048+o}')
                    if m >= 4:
                        d = packqk('q0', 'q1', m)
                        a.e(f'ds_write_b128 v{vX+2}, v[{d}:{d+3}] offset:{10240+(m-4)*1024}')
                    if m == 7:
                        if cfg.stamps == 4: st.at(1)
                        a.e('s_waitcnt lgkmcnt(0)'); a.e('s_barrier')
                        if cfg.stamps == 4: st.at(2)
                        a.e(f's_mul_i32 s64, s{sWM}, 12288')
                        a.e(f'v_add_u32 v{vX}, s64, v{vX}'); a.e(f'v_add_u32 v{vX+1}, s64, v{vX+1}')
                        a.e(f'ds_read_b128 v[{KP}:{KP+3}], v{vX}')
                        a.e(f'ds_read_b64 v[{PV0}:{PV0+1}], v{vX+1} offset:1024')
                        a.e(f'ds_read_b64 v[{PV1}:{PV1+1}], v{vX+1} offset:1536')
                for m in range(4): packqk('q0', 'q1', m)
                for r in range(12): a.e(f'v_accvgpr_read_b32 v{BI+r}, a{aBI+r}')
                a.e('s_waitcnt lgkmcnt(0)')
                W1 = acc[('q1', 0)][1]; W2 = acc[('g1', 0)][1]
                attention([(m, acc[('q0', m)][1], acc[('k0', m-1)][1] if m else KP, acc[('k0', m)][1], PV0+2*m, PV1+2*m, m == 0) for m in range(4)], BI, W1, W2)
                if cfg.stamps != 2: st.at(4)
        if st.on and not cfg.fuse2: a.e('s_waitcnt vmcnt(0)')
        if cfg.stamps not in (2, 5): st.at(5)
        st.flush(6, 7, sWAVE, vT, vT+1, 92)
        if cfg.stamps == 3:
            srd(a, 92, 6, 7, 1 << 20, STAMP_OFF + (1 << 19))
            a.e(f's_lshl_b32 s96, s2, 10'); a.e(f's_lshl_b32 s97, s{sWAVE}, 8'); a.e('s_add_u32 s96, s96, s97')
            a.e(f'v_lshl_add_u32 v{vT}, v{vLANE}, 2, s96')
            a.e(f'buffer_store_dword v30, v{vT}, s[92:95], 0 offen')
        if cfg.fuse2: a.e('s_branch L2_entry')
        elif wn == 0: a.e('s_endpgm')
    a.label('L1_end')
    a.e('s_endpgm')
    if cfg.fuse2: gen_k2(a, cfg)
    return name, (256, 256, 163840 if cfg.fuse2 else L1_TOTAL + 512), kdesc(name, 512, 256)

def gen_k2(a, cfg):
    name = 'gemm2_kernel'
    F2 = cfg.fuse2
    if F2: a.label('L2_entry')
    else: khead(a, name)
    st = Stamper(a, cfg.stamps, 70, 2)
    NS = cfg.k2_ns
    FS = cfg.k2_fs; HS = 2*(36-FS); TOT = FS + HS
    WB = NS*16384
    S_A = 8; S_W = 12; S_P = 16; S_X = 20; S_OUT = 24; S_F = 28
    sACT = 32; sWO = 33; sM_A = 34; sM_W = 35; sU = 36; sEND = 37; sWAVE = 38; sPART = 39; sRB = 40; sCB = 41; sLOADU = 42; sTILE = 43
    sBEG = 66; sLCNT = 67; sGOT = 68
    vLANE = 1; vDA = 2; vDW = 3; vA = 7; vW = 9; vT = 20; vXO = 17; vDUM = 18; vFLG = 19
    vPS = 28; vPL = 29; vFS = 30; vFL = 31
    XR = 32
    vDH = 48
    vWH = 50
    sM_H = 69
    ACC = 64
    FR = 128
    if not F2: a.e('s_cmp_ge_u32 s2, 256'); a.e('s_cbranch_scc1 L2_end')
    st.at(0)
    a.e('s_load_dwordx2 s[6:7], s[0:1], 72')
    a.e('s_load_dwordx2 s[44:45], s[0:1], 16')
    a.e('s_load_dwordx4 s[48:51], s[0:1], 48')
    a.e('s_load_dwordx2 s[4:5], s[0:1], 0')
    a.e(f'v_lshrrev_b32 v{vT}, 6, v0')
    a.e(f'v_and_b32 v{vLANE}, 63, v0')
    a.e(f'v_readfirstlane_b32 s{sWAVE}, v{vT}')
    a.e('s_and_b32 s3, s2, 7'); a.e(f's_lshr_b32 s{sPART}, s3, 2'); a.e('s_and_b32 s3, s3, 3'); a.e('s_lshl_b32 s3, s3, 2')
    a.e('s_lshr_b32 s52, s2, 3'); a.e(f's_and_b32 s{sCB}, s52, 7'); a.e('s_lshr_b32 s52, s52, 3'); a.e(f's_add_u32 s{sRB}, s3, s52')
    a.e(f's_cmp_eq_u32 s{sPART}, 0')
    a.e(f's_cselect_b32 s{sBEG}, 0, {FS}'); a.e(f's_cselect_b32 s{sEND}, {TOT}, 72')
    a.e(f's_cselect_b32 s{sLOADU}, 0, {TOT}'); a.e(f's_cselect_b32 s{sWO}, 0, {(TOT-16)*131072}')
    a.e(f's_mov_b32 s{sU}, 0'); a.e(f's_mov_b32 s{sLCNT}, 0')
    a.e(f's_lshr_b32 s57, s{sWAVE}, 1'); a.e(f's_and_b32 s58, s{sWAVE}, 1')
    a.e('s_lshl_b32 s52, s57, 17')
    a.e('s_lshl_b32 s54, s58, 12'); a.e('s_add_u32 s52, s52, s54')
    a.e(f's_lshl_b32 s54, s{sRB}, 13'); a.e('s_add_u32 s52, s52, s54')
    a.e(f'v_lshl_add_u32 v{vDA}, v{vLANE}, 4, s52')
    a.e(f's_lshl_b32 s{sACT}, s{sLOADU}, 18')
    a.e(f's_lshl_b32 s{sM_A}, s{sWAVE}, 12'); a.e(f's_add_u32 s{sM_W}, s{sM_A}, {WB}')
    a.e(f'v_lshrrev_b32 v{vT}, 4, v{vLANE}'); a.e(f'v_and_b32 v{vT+1}, 15, v{vLANE}')
    a.e(f's_lshl_b32 s52, s{sWAVE}, 15'); a.e(f's_lshl_b32 s54, s{sCB}, 8'); a.e('s_add_u32 s52, s52, s54')
    a.e(f'v_lshl_add_u32 v{vT+3}, v{vT}, 11, s52')
    a.e(f'v_lshlrev_b32 v{vT+2}, 1, v{vT}')
    a.e(f'v_xor_b32 v{vT+2}, v{vT+2}, v{vT+1}')
    a.e(f'v_lshl_add_u32 v{vDW}, v{vT+2}, 4, v{vT+3}')
    a.e(f'v_xor_b32 v{vDW+1}, 128, v{vDW}'); a.e(f'v_add_u32 v{vDW+1}, 8192, v{vDW+1}')
    a.e(f'v_add_u32 v{vDW+2}, 16384, v{vDW}'); a.e(f'v_add_u32 v{vDW+3}, 16384, v{vDW+1}')
    a.e(f's_mov_b32 s55, {1024*1024*2}'); a.e(f's_mov_b32 s56, {3584*1024*2}')
    a.e(f's_mov_b32 s{S_W+3}, 0x20000'); a.e(f's_mov_b32 s{S_A+2}, {ACT2_BYTES}'); a.e(f's_mov_b32 s{S_A+3}, 0x20000')
    a.e('s_waitcnt lgkmcnt(0)')
    a.e(f's_add_u32 s{S_A}, s6, {ACT2_OFF}'); a.e(f's_addc_u32 s{S_A+1}, s7, 0')
    a.e(f's_cmp_lt_u32 s{sLOADU}, 16')
    a.e(f's_cselect_b32 s{S_W}, s44, s48'); a.e(f's_cselect_b32 s{S_W+1}, s45, s49')
    a.e(f's_cselect_b32 s{S_W+2}, s55, s56')
    def dma_list(slot, masked=False, sw=False, adv=True):
        L = []
        for d in range(2 if masked else 4):
            L.append(([f's_add_u32 m0, s{sM_H if masked else sM_W}, {slot*16384 + d*1024}'],
                      f'buffer_load_dwordx4 v{(vDH if masked else vDW)+d}, s[{S_W}:{S_W+3}], s{sWO} offen lds', []))
        for d in range(4):
            L.append(([f's_add_u32 m0, s{sM_A}, {slot*16384}'] if d == 0 else [],
                      f'buffer_load_dwordx4 v{vDA}, s[{S_A}:{S_A+3}], s{sACT} offen offset:{d*1024} lds', []))
        post = [f's_add_u32 s{sLOADU}, s{sLOADU}, 1',
                f's_cmp_eq_u32 s{sLOADU}, s{sEND}', f's_cselect_b32 s{sLOADU}, s{sBEG}, s{sLOADU}',
                f's_lshl_b32 s{sACT}, s{sLOADU}, 18',
                f's_sub_u32 s{sWO}, s{sLOADU}, 16',
                f's_cselect_b32 s{sWO}, s{sLOADU}, s{sWO}',
                f's_cselect_b32 s{S_W}, s44, s48', f's_cselect_b32 s{S_W+1}, s45, s49', f's_cselect_b32 s{S_W+2}, s55, s56',
                f's_lshl_b32 s{sWO}, s{sWO}, 17']
        L[-1] = (L[-1][0], L[-1][1], post if adv else [])
        return L
    VMW = 8*(NS-2)
    def wonly(slot):
        d_ = dma_list(slot)
        return d_[:3] + [(d_[3][0], d_[3][1], d_[7][2])]
    sA0 = 89; vTS = 54
    if F2: a.e(f's_mov_b32 s{sA0}, s{sACT}')
    for pre, ins, post in (wonly(0) if F2 else dma_list(0)):
        for x in pre: a.e(x)
        a.e(ins)
        for x in post: a.e(x)
    if cfg.cpf and not F2:
        a.e(f's_cmp_lg_u32 s{sWAVE}, 3'); a.e('s_cbranch_scc1 L2_nocpf')
        a.e(f's_cmp_gt_u32 s2, 31'); a.e('s_cbranch_scc1 L2_nocpf')
        code_pf(a, 'L2_nocpf', 'L2_end', vLANE, vT+2, vDUM, 94, 2)
        a.label('L2_nocpf')
    b = Asm()
    b.e(f's_mov_b32 s{sLCNT}, {NS}'); b.e(f's_mov_b32 s{sGOT}, 0')
    b.e(f's_lshl_b32 s{sTILE}, s{sRB}, 3'); b.e(f's_add_u32 s{sTILE}, s{sTILE}, s{sCB}')
    b.e('s_lshl_b32 s52, s57, 12')
    b.e(f'v_lshl_add_u32 v{vA}, v{vLANE}, 4, s52'); b.e(f'v_add_u32 v{vA+1}, 65536, v{vA}')
    b.e(f'v_lshrrev_b32 v{vT}, 2, v{vLANE}')
    b.e(f'v_and_b32 v{vT+1}, 7, v{vT}'); b.e(f'v_lshlrev_b32 v{vT+1}, 5, v{vT+1}')
    b.e(f'v_and_b32 v{vT+2}, 3, v{vLANE}'); b.e(f'v_lshlrev_b32 v{vT+2}, 3, v{vT+2}')
    b.e(f'v_lshl_add_u32 v{vT+2}, v{vT}, 8, v{vT+2}'); b.e(f'v_add_u32 v{vT+2}, {WB}, v{vT+2}')
    b.e('s_lshl_b32 s52, s58, 6'); b.e(f's_lshl_b32 s59, s{sPART}, 7'); b.e('s_add_u32 s59, s59, s52')
    for n in range(4):
        b.e(f's_xor_b32 s53, s59, {32*(n&1) + 128*(n>>1)}')
        b.e(f'v_xor_b32 v{vT+3}, s53, v{vT+1}')
        b.e(f'v_add_u32 v{vW+n}, v{vT+3}, v{vT+2}'); b.e(f'v_add_u32 v{vW+4+n}, 65536, v{vW+n}')
    b.e(f's_lshl_b32 s{sM_H}, s{sWAVE}, 11'); b.e(f's_add_u32 s{sM_H}, s{sM_H}, {WB}')
    b.e(f'v_lshrrev_b32 v{vT}, 3, v{vLANE}'); b.e(f'v_and_b32 v{vT+1}, 6, v{vT}'); b.e(f'v_and_b32 v{vT+2}, 7, v{vLANE}')
    b.e(f'v_xor_b32 v{vT+1}, v{vT+1}, v{vT+2}')
    b.e(f's_lshl_b32 s52, s{sWAVE}, 15'); b.e(f's_lshl_b32 s53, s{sCB}, 8'); b.e('s_add_u32 s52, s52, s53')
    b.e(f's_lshl_b32 s53, s{sPART}, 7'); b.e('s_add_u32 s52, s52, s53')
    b.e(f'v_lshl_add_u32 v{vT}, v{vT}, 11, s52'); b.e(f'v_lshl_add_u32 v{vDH}, v{vT+1}, 4, v{vT}')
    b.e(f'v_add_u32 v{vDH+1}, 16384, v{vDH}')
    b.e(f'v_lshrrev_b32 v{vT}, 2, v{vLANE}'); b.e(f'v_and_b32 v{vT+1}, 6, v{vT}'); b.e(f'v_lshlrev_b32 v{vT+1}, 4, v{vT+1}')
    b.e(f'v_and_b32 v{vT+2}, 3, v{vLANE}'); b.e(f'v_lshlrev_b32 v{vT+2}, 3, v{vT+2}')
    b.e(f'v_lshl_add_u32 v{vT+2}, v{vT}, 7, v{vT+2}'); b.e(f'v_add_u32 v{vT+2}, {WB}, v{vT+2}')
    b.e('s_lshl_b32 s52, s58, 6')
    for n in range(2):
        b.e(f's_add_u32 s53, s52, {32*n}')
        b.e(f'v_xor_b32 v{vT+3}, s53, v{vT+1}')
        b.e(f'v_add_u32 v{vWH+n}, v{vT+3}, v{vT+2}'); b.e(f'v_add_u32 v{vWH+2+n}, 65536, v{vWH+n}')
    srd(b, S_X, 4, 5, 2048*1024*2); srd(b, S_OUT, 50, 51, 2048*1024*2)
    srd(b, S_P, 6, 7, PART_BYTES if not cfg.pbf else XN_BYTES, PART_OFF if cfg.pbf != 2 else XN_OFF); srd(b, S_F, 6, 7, (1 << 20) if F2 else FLAG_BYTES, FLAG_OFF)
    b.e(f's_lshl_b32 s52, s{sRB}, 18'); b.e('s_lshl_b32 s53, s57, 17'); b.e('s_add_u32 s52, s52, s53')
    b.e(f's_lshl_b32 s53, s{sCB}, 8'); b.e('s_add_u32 s52, s52, s53'); b.e('s_add_u32 s52, s52, s59')
    b.e(f'v_and_b32 v{vT+1}, 15, v{vLANE}'); b.e(f'v_lshl_add_u32 v{vT+1}, v{vT+1}, 11, s52')
    b.e(f'v_lshrrev_b32 v{vT}, 4, v{vLANE}')
    b.e(f'v_and_b32 v{vT+2}, 1, v{vT}'); b.e(f'v_lshl_add_u32 v{vT+1}, v{vT+2}, 5, v{vT+1}')
    b.e(f'v_lshrrev_b32 v{vT+2}, 1, v{vT}'); b.e(f'v_lshl_add_u32 v{vXO}, v{vT+2}, 4, v{vT+1}')
    for m in range(4): b.e(f's_mov_b32 s{60+m}, {m*32768}')
    b.e(f's_lshl_b32 s52, s{sTILE}, 1'); b.e(f's_add_u32 s52, s52, s{sPART}'); b.e('s_lshl_b32 s52, s52, 2'); b.e(f's_add_u32 s52, s52, s{sWAVE}')
    b.e('s_xor_b32 s53, s52, 4')
    b.e('s_lshl_b32 s54, s52, 7'); b.e(f'v_mov_b32 v{vFS}, s54')
    b.e('s_lshl_b32 s54, s53, 7'); b.e(f'v_mov_b32 v{vFL}, s54')
    b.e(f's_lshl_b32 s52, s52, {12 if cfg.pbf else 13}'); b.e(f's_lshl_b32 s53, s53, {12 if cfg.pbf else 13}')
    b.e(f'v_lshl_add_u32 v{vPS}, v{vLANE}, 4, s52'); b.e(f'v_lshl_add_u32 v{vPL}, v{vLANE}, 4, s53')
    b.e('s_movk_i32 s65, 4096'); b.e('s_mov_b32 s64, 0xffff0000'); b.e(f'v_mov_b32 v{vDUM}, 1') if False else None
    b.e(f'v_mov_b32 v{vT+6}, 1')
    if F2:
        b.e('s_add_u32 s52, s100, 1000'); b.e(f'v_mov_b32 v{vTS}, s52'); b.e(f'v_not_b32 v{vTS+1}, v{vTS}')
        b.e('s_mov_b32 s101, 0x1000000')
        b.e('s_lshl_b32 s52, s2, 2'); b.e(f's_add_u32 s52, s52, s{sWAVE}'); b.e('s_lshl_b32 s52, s52, 7'); b.e(f's_add_u32 s52, s52, {G1FLAG_REL}')
        b.e(f'v_mov_b32 v{vTS+2}, s52')
        b.e(f's_lshr_b32 s52, s{sRB}, 1'); b.e('s_lshl_b32 s52, s52, 14'); b.e(f's_and_b32 s53, s{sRB}, 1'); b.e('s_lshl_b32 s53, s53, 8')
        b.e('s_add_u32 s52, s52, s53'); b.e(f's_add_u32 s52, s52, {G1FLAG_REL}')
        b.e(f'v_lshrrev_b32 v{vT}, 1, v{vLANE}'); b.e(f'v_lshl_add_u32 v{vTS+3}, v{vT}, 9, s52')
        b.e(f'v_and_b32 v{vT}, 1, v{vLANE}'); b.e(f'v_lshl_add_u32 v{vTS+3}, v{vT}, 7, v{vTS+3}')
    for i in range(32): b.e(f'v_mov_b64 v[{ACC+2*i}:{ACC+2*i+1}], 0')
    fill = [x.text for x in b.ins]
    dl = sum([(wonly(s_) if F2 else dma_list(s_)) for s_ in range(1, NS)], [])
    per = len(fill) // len(dl) + 1
    k = 0
    def run(upto):
        nonlocal k
        while k < len(fill) and (k < upto or fill[k].startswith(('s_cselect', 's_addc'))):
            a.e(fill[k]); k += 1
    for n_, (pre, ins, post) in enumerate(dl):
        for x in pre: a.e(x)
        run(k+1)
        a.e(ins)
        for x in post: a.e(x)
        run((n_+1)*per)
    run(len(fill))
    so = ['0', 's65']
    def areg(par, ks, m): return FR + par*64 + ks*16 + m*4
    def wreg(par, ks, n): return FR + par*64 + 32 + ks*16 + n*4
    def reads(slot, par, nn=4):
        L = []
        hi = 1 if slot >= 4 else 0
        base = (slot & 3)*16384
        def ar_(ks, m): return [f'ds_read_b128 v[{areg(par,ks,m)}:{areg(par,ks,m)+3}], v{vA+hi} offset:{base + ks*8192 + m*1024}']
        def wr_(ks, n):
            if nn == 2: return [f'ds_read_b64_tr_b16 v[{wreg(par,ks,n)+2*h}:{wreg(par,ks,n)+2*h+1}], v{vWH+2*hi+n} offset:{base + ks*4096 + h*2048}' for h in range(2)]
            return [f'ds_read_b64_tr_b16 v[{wreg(par,ks,n)+2*h}:{wreg(par,ks,n)+2*h+1}], v{vW+4*hi+n} offset:{base + ks*8192 + h*4096}' for h in range(2)]
        L += wr_(0, 0) + ar_(0, 0) + wr_(1, 0) + ar_(1, 0)
        for m in range(1, 4): L += ar_(0, m) + ar_(1, m)
        for n in range(1, nn): L += wr_(0, n) + wr_(1, n)
        return L
    def rec():
        if cfg.stamps != 7: return
        a.e('s_memrealtime s[86:87]'); a.e('s_waitcnt lgkmcnt(0)')
        a.e('v_mov_b32 v62, s86'); a.e(f'v_cmp_eq_u32 vcc, s88, v{vLANE}'); a.e('v_cndmask_b32 v63, v63, v62, vcc'); a.e('s_add_u32 s88, s88, 1')
    def mfmas(par, order, sched):
        i = 0
        for n in order:
            for m in range(4):
                for ks in range(2):
                    d = ACC + (n*4+m)*4
                    a.e(f'v_mfma_f32_16x16x32_bf16 v[{d}:{d+3}], v[{wreg(par,ks,n)}:{wreg(par,ks,n)+3}], v[{areg(par,ks,m)}:{areg(par,ks,m)+3}], v[{d}:{d+3}]')
                    for x in sched.get(i, []): a.e(x)
                    i += 1
    if F2:
        a.e(f's_waitcnt vmcnt({4*NS})')
        a.e('s_mov_b64 exec, 1')
        a.e(f'buffer_store_dwordx2 v[{vTS}:{vTS+1}], v{vTS+2}, s[{S_F}:{S_F+3}], 0 offen sc1')
        a.e('s_mov_b64 exec, -1')
        st.at(5, 8)
        a.e(f's_cmp_lg_u32 s{sWAVE}, 0'); a.e('s_cbranch_scc1 L2_g1ok')
        a.e('s_mov_b32 s54, 0')
        if cfg.g1sl: a.e(f's_sleep {cfg.g1sl}')
        a.label('L2_g1poll')
        a.e(f'buffer_load_dwordx2 v[{vT}:{vT+1}], v{vTS+3}, s[{S_F}:{S_F+3}], 0 offen sc1')
        a.e('s_add_u32 s54, s54, 1')
        a.e('s_waitcnt vmcnt(0)')
        a.e(f'v_xor_b32 v{vT+1}, v{vT}, v{vT+1}'); a.e(f'v_subrev_u32 v{vT}, s100, v{vT}')
        a.e(f'v_cmp_eq_u32 vcc, -1, v{vT+1}'); a.e(f'v_cmp_gt_u32 s[52:53], s101, v{vT}')
        a.e('s_and_b64 vcc, vcc, s[52:53]')
        a.e('s_cmp_eq_u64 vcc, exec'); a.e('s_cbranch_scc1 L2_g1ok')
        a.e('s_sleep 4')
        a.e('s_cmp_lt_u32 s54, 0x8000'); a.e('s_cbranch_scc1 L2_g1poll')
        a.label('L2_g1ok')
        a.e('s_barrier')
        for s_ in range(NS):
            a.e(f's_add_u32 m0, s{sM_A}, {s_*16384}')
            for d in range(4): a.e(f'buffer_load_dwordx4 v{vDA}, s[{S_A}:{S_A+3}], s{sA0} offen offset:{d*1024} lds')
            a.e(f's_add_u32 s{sA0}, s{sA0}, 262144')
        a.e(f's_waitcnt vmcnt({4*(NS-1)})'); a.e('s_barrier')
    else:
        a.e(f's_waitcnt vmcnt({VMW + 8})'); a.e('s_barrier')
    st.at(2)
    if st.on: a.e('s_waitcnt lgkmcnt(0)')
    for r in reads(0, 0): a.e(r)
    if cfg.stamps == 7: a.e('s_mov_b32 s88, 0')
    UN = NS if NS % 2 == 0 else 2*NS
    LS = FS - NS
    uexit = (LS - 1) % UN
    def full_step(u, wait, inloop):
        slot = u % NS; par = u & 1
        a.e(f's_waitcnt vmcnt({wait}) lgkmcnt(0)'); a.e('s_barrier'); rec()
        sched = {}
        for i, r in enumerate(reads((slot+1) % NS, par ^ 1)): sched.setdefault(i, []).append(r)
        for i, (pre, ins, post) in enumerate(dma_list(slot)):
            p = 1 + 3*i
            for x in pre: sched.setdefault(p-1, []).append(x)
            sched.setdefault(p, []).append(ins)
            for k_, x in enumerate(post): sched.setdefault(min(30, p + 1 + k_//2), []).append(x)
        if inloop and u == uexit:
            sched.setdefault(31, []).append(f's_add_u32 s{sU}, s{sU}, {UN}')
            sched.setdefault(31, []).append(f's_cmp_ge_u32 s{sU}, {LS}')
        mfmas(par, range(4), sched)
    if F2:
        assert uexit >= NS-2
        for u in range(NS-2): full_step(u, 4*(NS-2-u) + 8*u, False)
        a.e('s_branch L2_uin')
    a.label('L2_loop')
    for u in range(UN):
        if F2 and u == NS-2: a.label('L2_uin')
        full_step(u, VMW, True)
        if u == uexit: a.e('s_cbranch_scc1 L2_half')
        if u == UN-1: a.e('s_branch L2_loop')
    a.label('L2_half')
    q = []
    for t in range(LS+1, FS): q += [('d', t)]*8
    def wait_for(pred, extra=''):
        last = max([i for i, x in enumerate(q) if pred(x)], default=-1)
        n = len(q) - 1 - last
        a.e(f's_waitcnt vmcnt({min(n, 63)}){extra}')
        del q[:last+1]
    chk = cfg.k2_chk if cfg.k2_chk else HS-2
    def fload():
        a.e(f'buffer_load_dwordx2 v[{vT+2}:{vT+3}], v{vFL}, s[{S_F}:{S_F+3}], 0 offen sc1' if F2 else f'buffer_load_dword v{vFLG}, v{vFL}, s[{S_F}:{S_F+3}], 0 offen sc1')
    def ftest():
        if F2:
            a.e(f'v_readfirstlane_b32 s52, v{vT+2}'); a.e(f'v_readfirstlane_b32 s53, v{vT+3}')
            a.e('s_xor_b32 s53, s53, s52'); a.e('s_sub_u32 s52, s52, s100')
            a.e('s_cmp_eq_u32 s53, -1'); a.e('s_cselect_b32 s52, s52, -1'); a.e('s_cmp_lt_u32 s52, s101')
        else:
            a.e(f'v_readfirstlane_b32 s52, v{vFLG}'); a.e('s_cmp_eq_u32 s52, 1')
    def pl():
        if cfg.pbf:
            for k_ in range(4): a.e(f'buffer_load_dwordx4 v[{ACC+32+4*k_}:{ACC+32+4*k_+3}], v{vPL}, s[{S_P}:{S_P+3}], 0 offen offset:{k_*1024} sc1')
        else:
            for k_ in (0, 4, 1, 5, 2, 6, 3, 7):
                a.e(f'buffer_load_dwordx4 v[{ACC+32+4*k_}:{ACC+32+4*k_+3}], v{vPL}, s[{S_P}:{S_P+3}], {so[k_>>2]} offen offset:{(k_&3)*1024} sc1')
    for t in range(LS, TOT):
        hs = t - FS; slot = t % NS; par = t & 1
        nn = 4 if hs < 0 else 2
        if hs == 0: st.at(1)
        if any(x == ('d', t+1) for x in q): wait_for(lambda x: x == ('d', t+1), ' lgkmcnt(0)')
        else: a.e('s_waitcnt lgkmcnt(0)')
        if t+1 < TOT: a.e('s_barrier')
        rec()
        sched = {}
        def add(i, x, tag=None): sched.setdefault(i, []).append((x, tag))
        if t + 1 < TOT:
            for i, r in enumerate(reads((slot+1) % NS, par ^ 1, 4 if t+1 < FS else 2)): add(i, r)
        extra = []
        if t + NS < TOT:
            for pre, ins, post in dma_list(slot, masked=True):
                extra += [(x, None) for x in pre] + [(ins, ('d', t+NS))] + [(x, None) for x in post]
        if hs == max(HS-NS, 1):
            extra += [(f'buffer_load_dwordx4 v[{XR+4*m}:{XR+4*m+3}], v{vXO}, s[{S_X}:{S_X+3}], s{60+m} offen', ('x', 0)) for m in range(4)]
        if hs == 0:
            extra = [e_ for e_ in extra if not e_[0].startswith(('s_cmp', 's_csel', 's_lshl', 's_sub', f's_add_u32 s{sLOADU}')) or t+NS+1 < TOT]
            if cfg.pbf:
                for k_ in range(4):
                    c0 = ACC+32+4*k_; c1 = ACC+48+4*k_
                    extra += [(f'v_cvt_pk_bf16_f32 v{c0}, v{c0}, v{c0+1}', None), (f'v_cvt_pk_bf16_f32 v{c0+1}, v{c0+2}, v{c0+3}', None),
                              (f'v_cvt_pk_bf16_f32 v{c0+2}, v{c1}, v{c1+1}', None), (f'v_cvt_pk_bf16_f32 v{c0+3}, v{c1+2}, v{c1+3}', None),
                              (f'buffer_store_dwordx4 v[{c0}:{c0+3}], v{vPS}, s[{S_P}:{S_P+3}], 0 offen offset:{k_*1024} sc1', ('s', 0))]
            else:
                extra += [(f'buffer_store_dwordx4 v[{ACC+32+4*k_}:{ACC+32+4*k_+3}], v{vPS}, s[{S_P}:{S_P+3}], {so[k_>>2]} offen offset:{(k_&3)*1024} sc1', ('s', 0)) for k_ in range(8)]
        for k_, (x, tag) in enumerate(extra): add((k_*8*nn)//max(len(extra), 1), x, tag)
        i = 0
        for n in range(nn):
            for m in range(4):
                for ks in range(2):
                    d = ACC + (n*4+m)*4
                    a.e(f'v_mfma_f32_16x16x32_bf16 v[{d}:{d+3}], v[{wreg(par,ks,n)}:{wreg(par,ks,n)+3}], v[{areg(par,ks,m)}:{areg(par,ks,m)+3}], v[{d}:{d+3}]')
                    for x, tag in sched.get(i, []):
                        a.e(x)
                        if tag: q.append(tag)
                    i += 1
        if hs == cfg.k2_flg:
            wait_for(lambda x: x[0] == 's')
            a.e('s_mov_b64 exec, 1')
            a.e(f'buffer_store_dwordx2 v[{vTS}:{vTS+1}], v{vFS}, s[{S_F}:{S_F+3}], 0 offen sc1' if F2 else f'buffer_store_dword v{vT+6}, v{vFS}, s[{S_F}:{S_F+3}], 0 offen sc1'); q.append(('f', 0))
            a.e('s_mov_b64 exec, -1')
        if hs == chk-1:
            fload(); q.append(('p', 0))
        if hs == chk:
            wait_for(lambda x: x[0] == 'p')
            ftest(); a.e('s_cbranch_scc0 L2_notyet')
            pl()
            a.e(f's_mov_b32 s{sGOT}, 1')
            a.label('L2_notyet')
    st.at(3)
    for m in range(4):
        T = FR + m*8; x = XR + 4*m
    a.e(f's_cmp_eq_u32 s{sGOT}, 1'); a.e('s_cbranch_scc1 L2_have')
    a.e('s_mov_b32 s54, 0')
    a.label('L2_poll')
    fload()
    a.e('s_add_u32 s54, s54, 1')
    a.e('s_waitcnt vmcnt(0)')
    a.e('s_cmp_gt_u32 s54, 0x40000'); a.e('s_cbranch_scc1 L2_polled')
    ftest(); a.e('s_cbranch_scc0 L2_poll')
    a.label('L2_polled')
    pl()
    a.label('L2_have')
    st.at(4)
    a.e(f's_waitcnt vmcnt({4 if cfg.pbf else 8}) lgkmcnt(0)')
    for m in range(4):
        T = FR + m*8; x = XR + 4*m
        for r in range(4):
            a.e(f'v_lshlrev_b32 v{T+2*r}, 16, v{x+r}'); a.e(f'v_and_b32 v{T+2*r+1}, s64, v{x+r}')
    for m in range(4):
        x = XR + 4*m; c0 = ACC + 4*m; c1 = ACC + 16 + 4*m; T = FR + m*8
        a.e(f's_waitcnt vmcnt({3 if cfg.pbf else 6-m})')
        if cfg.pbf:
            pk = ACC + 32 + 4*m; U = FR + 32 + m*8
            for r in range(4):
                a.e(f'v_lshlrev_b32 v{U+2*r}, 16, v{pk+r}'); a.e(f'v_and_b32 v{U+2*r+1}, s64, v{pk+r}')
        for (c, p) in (((c0, U), (c1, U+4)) if cfg.pbf else ((c0, ACC + 32 + 4*m), (c1, ACC + 48 + 4*m))):
            a.e(f'v_pk_add_f32 v[{c}:{c+1}], v[{c}:{c+1}], v[{p}:{p+1}]')
            a.e(f'v_pk_add_f32 v[{c+2}:{c+3}], v[{c+2}:{c+3}], v[{p+2}:{p+3}]')
        for r in range(4): a.e(f'v_permlane16_swap_b32 v{c0+r}, v{c1+r}')
        a.e(f'v_pk_add_f32 v[{c0}:{c0+1}], v[{c0}:{c0+1}], v[{T}:{T+1}]'); a.e(f'v_pk_add_f32 v[{c0+2}:{c0+3}], v[{c0+2}:{c0+3}], v[{T+2}:{T+3}]')
        a.e(f'v_pk_add_f32 v[{c1}:{c1+1}], v[{c1}:{c1+1}], v[{T+4}:{T+5}]'); a.e(f'v_pk_add_f32 v[{c1+2}:{c1+3}], v[{c1+2}:{c1+3}], v[{T+6}:{T+7}]')
        a.e(f'v_cvt_pk_bf16_f32 v{x}, v{c0}, v{c0+1}'); a.e(f'v_cvt_pk_bf16_f32 v{x+1}, v{c0+2}, v{c0+3}')
        a.e(f'v_cvt_pk_bf16_f32 v{x+2}, v{c1}, v{c1+1}'); a.e(f'v_cvt_pk_bf16_f32 v{x+3}, v{c1+2}, v{c1+3}')
        a.e(f'buffer_store_dwordx4 v[{x}:{x+3}], v{vXO}, s[{S_OUT}:{S_OUT+3}], s{60+m} offen')
    if st.on: a.e('s_waitcnt vmcnt(0)')
    st.at(5)
    st.flush(6, 7, sWAVE, vT, vT+1, 92)
    if cfg.stamps == 7:
        srd(a, 92, 6, 7, 1 << 20, STAMP_OFF + (1 << 19))
        a.e(f's_lshl_b32 s96, s2, 10'); a.e(f's_lshl_b32 s97, s{sWAVE}, 8'); a.e('s_add_u32 s96, s96, s97')
        a.e(f'v_lshl_add_u32 v{vT}, v{vLANE}, 2, s96')
        a.e(f'buffer_store_dword v63, v{vT}, s[92:95], 0 offen')
    a.label('L2_end')
    a.e('s_endpgm')
    return name, (256, 256, NS*32768), kdesc(name, 256, 256)

def build(cfg):
    a = Asm()
    a.e('.amdgcn_target "amdgcn-amd-amdhsa--gfx950"'); a.e('.text')
    ks = ([] if cfg.fuse0 else [gen_k0(a, cfg)]) + [gen_k1(a, cfg)] + ([] if cfg.fuse2 else [gen_k2(a, cfg)])
    a.fix()
    head = open('cdna_kernels/' + NAME + '.s.ref').read().split('\n')
    hdr = [l for l in head[:13] if l.startswith(';') and '@launch' not in l and 'Override' not in l and 'grid=ceil' not in l]
    out = '\n'.join(hdr) + '\n'
    for nm, (g, b, lds), _ in ks:
        out += (f'; @launch kernel={nm} ' if len(ks) > 1 else '; @launch ') + f'grid=({g},1,1) block=({b},1,1) lds={lds}\n'
    out += a.text()
    out += '.section .rodata,"a"\n'
    for _, _, kd in ks: out += kd
    return out

if __name__ == '__main__':
    cfg = Cfg()
    outp = sys.argv[1] if len(sys.argv) > 1 else 'cdna_kernels/' + NAME + '.s'
    for kv in sys.argv[2:]:
        k, v = kv.split('='); setattr(cfg, k, int(v))
    open(outp, 'w').write(build(cfg))
    import subprocess
    r = subprocess.run(['clang', '-x', 'assembler', '-target', 'amdgcn-amd-amdhsa', '-mcpu=gfx950', '-c', outp, '-o', 'chk.o'], capture_output=True, text=True)
    if r.returncode: print(r.stderr[:1500]); sys.exit(1)
    print('wrote', outp)
```

```python
import sys
sys.path.insert(0, 'dev')
from asmlib import *

NAME = 'parallel_sum__sliding_local_dilated__glu_gated_bilinear__prompt'
XN_OFF = 0;            XN_BYTES = 32*128*1024
ACT2_OFF = 4 << 20;    ACT2_BYTES = 144*128*1024
PART_OFF = 24 << 20;   PART_BYTES = 1024*4096
FLAG_OFF = 32 << 20
PFLAG_REL = 0; XFLAG_REL = 256 << 10; AFLAG_REL = 512 << 10; BFLAG_REL = 640 << 10
STAMP_OFF = 40 << 20

class Cfg:
    stamps = 0
    pfd = 8; pf3n = 56; pf3w = 27; f0ne = 4; f0sl = 16
    k2_fs = 34; k2_flg = 2; k2_chk = 3
    g1sl = 0
    ncpf = 6
    bper = 3
    npeel = 7
    fa_at = 2
    def __init__(self, **kw):
        for k, v in kw.items(): setattr(self, k, v)

def srd(a, d, lo, hi, nbytes, off=0):
    if off:
        a.e(f's_add_u32 s{d}, s{lo}, {off}'); a.e(f's_addc_u32 s{d+1}, s{hi}, 0')
    else:
        a.e(f's_mov_b32 s{d}, s{lo}'); a.e(f's_mov_b32 s{d+1}, s{hi}')
    a.e(f's_mov_b32 s{d+2}, {nbytes}'); a.e(f's_mov_b32 s{d+3}, 0x20000')

def code_pf(a, start, end, vlane, vtmp, vdum, spc, nins):
    a.e(f's_getpc_b64 s[{spc}:{spc+1}]')
    lab = f'Lpc_{start}'
    a.label(lab)
    a.e(f's_add_u32 s{spc}, s{spc}, {start}-{lab}')
    a.e(f's_addc_u32 s{spc+1}, s{spc+1}, 0')
    for i in range(nins):
        a.e(f'v_lshlrev_b32 v{vtmp}, 7, v{vlane}')
        if i: a.e(f'v_add_u32 v{vtmp}, {i*8192}, v{vtmp}')
        a.e(f'v_min_u32 v{vtmp}, {end}-{start}-4, v{vtmp}')
        a.e(f'global_load_dword v{vdum}, v{vtmp}, s[{spc}:{spc+1}]')

class Stamper:
    def __init__(self, a, on): self.a = a; self.on = on
    def at(self, i, mode=1):
        if self.on == mode or (self.on and i == 0): self.a.e(f's_memrealtime s[{70+2*i}:{71+2*i}]')
    def flush(self, wave, vt0, vt1):
        if not self.on: return
        a = self.a
        a.e('s_waitcnt lgkmcnt(0)')
        srd(a, 92, 6, 7, 1 << 20, STAMP_OFF)
        a.e('s_lshl_b32 s96, s2, 8'); a.e(f's_lshl_b32 s97, s{wave}, 6'); a.e('s_add_u32 s96, s96, s97')
        a.e(f'v_mov_b32 v{vt0}, s96')
        a.e('s_mov_b64 exec, 1')
        for i in range(8):
            a.e(f'v_mov_b32 v{vt1}, s{70+2*i}')
            a.e(f'buffer_store_dword v{vt1}, v{vt0}, s[92:95], 0 offen offset:{4*i}')
        a.e('s_mov_b64 exec, -1')

class LgkmTracker:
    def __init__(self, a): self.a = a; self.q = []
    def read(self, text):
        self.a.e(text); self.q.append(set(Ins(text).dst))
    def other(self): self.q.append(set())
    def need(self, regs):
        regs = set(regs); last = -1
        for i, d in enumerate(self.q):
            if d & regs: last = i
        if last < 0: return
        n = min(len(self.q) - 1 - last, 15)
        self.a.e(f's_waitcnt lgkmcnt({n})')
        self.q = self.q[len(self.q) - n:] if n else []
    def drain(self): self.q = []
    def state(self): return [tuple(sorted(x)) for x in self.q]

def P2(r): return f'v[{r}:{r+1}]'
def AR(r): return f'a[{r}:{r+3}]'
MF = 'v_mfma_f32_16x16x32_bf16'

L1_W = 65536; L1_HALO = 147456; L1_STAT = 151552
sT0 = 100; sWIN = 101; sWAVE = 51

def stamp_ok(a, v, stmp):
    a.e(f'v_xor_b32 v{v+1}, v{v}, v{v+1}'); a.e(f'v_subrev_u32 v{v}, s{sT0}, v{v}')
    a.e(f'v_cmp_eq_u32 vcc, -1, v{v+1}'); a.e(f'v_cmp_gt_u32 s[{stmp}:{stmp+1}], s{sWIN}, v{v}')
    a.e(f's_and_b64 vcc, vcc, s[{stmp}:{stmp+1}]')
    a.e('s_cmp_eq_u64 vcc, exec')

def gen(a, cfg):
    name = NAME + '_kernel'
    a.e(f'.globl {name}'); a.e('.p2align 8'); a.e(f'.type {name},@function'); a.label(name)
    st = Stamper(a, cfg.stamps)
    S_XN = 8; S_W = 12; S_O = 32
    sACT = 36; sWO = 37; sWS = 42; sM_ACT = 47; sM_W = 48; sM_H = 49; sCNT = 50; sWM = 52; sRB = 54; sJ = 55
    S_PF = 88; sPFO = 86; sPFS = 87
    vLANE = 1; vDA = 2; vDH = 3; vDW = 4
    vA = 9; vHA = 10; vGU = 11; vQa = 13; vQb = 15; vHW = 17; vPF = 19; vT = 20; vDUM = 31
    aBI = 200
    a.e('s_cmp_ge_u32 s2, 256'); a.e('s_cbranch_scc1 L_end')
    st.at(0)
    a.e('s_load_dwordx2 s[96:97], s[0:1], 0')
    a.e('s_load_dwordx2 s[4:5], s[0:1], 8')
    a.e('s_load_dwordx4 s[56:59], s[0:1], 32')
    a.e('s_load_dwordx2 s[6:7], s[0:1], 72')
    a.e('s_load_dwordx2 s[68:69], s[0:1], 48')
    a.e('s_load_dwordx2 s[92:93], s[0:1], 16')
    a.e('s_memrealtime s[60:61]')
    a.e(f'v_lshrrev_b32 v{vT}, 6, v0')
    a.e(f'v_and_b32 v{vLANE}, 63, v0')
    a.e(f'v_readfirstlane_b32 s{sWAVE}, v{vT}')
    a.e(f's_cmp_lg_u32 s{sWAVE}, 3'); a.e('s_cbranch_scc1 L1_nocpf0')
    code_pf(a, 'L1_nocpf0', 'L1_wn1', vLANE, 134, 135, 94, 1)
    a.label('L1_nocpf0')
    a.e(f'v_lshrrev_b32 v128, 3, v{vLANE}'); a.e(f'v_and_b32 v129, 7, v{vLANE}')
    a.e('s_lshl_b32 s3, s2, 14')
    a.e('v_lshl_add_u32 v130, v128, 11, s3'); a.e(f'v_lshl_add_u32 v130, v{vT}, 9, v130'); a.e('v_lshl_add_u32 v130, v129, 4, v130')
    a.e('s_mov_b32 s98, 0x400000'); a.e('s_mov_b32 s99, 0x20000')
    a.e('s_waitcnt lgkmcnt(0)')
    for it in range(4): a.e(f'buffer_load_dwordx4 v[{32+4*it}:{35+4*it}], v130, s[96:99], 0 offen offset:{it*128}')
    a.e(f's_sub_u32 s{sT0}, s60, 1000')
    a.e(f's_mov_b32 s{sWIN}, 0x1000000')
    a.e(f's_and_b32 s{sJ}, s2, 7'); a.e(f's_lshl_b32 s{sJ}, s{sJ}, 2')
    a.e('s_lshr_b32 s3, s2, 3')
    a.e(f's_lshr_b32 s{sRB}, s3, 2'); a.e('s_and_b32 s3, s3, 3'); a.e(f's_add_u32 s{sJ}, s{sJ}, s3')
    a.e(f's_lshr_b32 s{sWM}, s{sWAVE}, 1')
    a.e(f's_lshl_b32 s62, s{sJ}, 6'); a.e(f's_mul_i32 s63, s{sJ}, 224')
    a.e(f's_and_b32 s64, s{sJ}, 1'); a.e('s_lshl_b32 s64, s64, 1')
    a.e('s_movk_i32 s65, 6144'); a.e('s_movk_i32 s66, 7168')
    for w in (1, 2, 3):
        a.e(f's_cmp_eq_u32 s{sWAVE}, {w}'); a.e(f's_cbranch_scc1 L1_set{w}')
    for w in range(4):
        if w: a.label(f'L1_set{w}')
        t0, t1, t2, t3 = vT+1, vT+2, vT+3, vT+4
        if w < 3:
            a.e(f'v_mul_u32_u24 v{t0}, 21846, v{vLANE}'); a.e(f'v_lshrrev_b32 v{t0}, 16, v{t0}')
            a.e(f'v_mul_u32_u24 v{t1}, 3, v{t0}'); a.e(f'v_sub_u32 v{t1}, v{vLANE}, v{t1}')
            a.e(f's_lshl_b32 s60, s{sRB}, 2'); a.e(f'v_add_u32 v{t0}, s60, v{t0}')
            if w == 0:
                a.e(f'v_lshlrev_b32 v{t1}, 11, v{t1}'); a.e(f'v_add_u32 v{t1}, s62, v{t1}')
            else:
                a.e(f'v_lshlrev_b32 v{t1}, 7, v{t1}'); a.e(f'v_min_u32 v{t1}, 220, v{t1}'); a.e(f'v_add_u32 v{t1}, s63, v{t1}')
            a.e(f'v_mad_u32_u24 v{vPF}, v{t0}, s{65 if w == 0 else 66}, v{t1}')
            nl = 12
            a.e(f's_mov_b32 s{sPFS}, {32*(6144 if w == 0 else 7168)}'); a.e(f's_mov_b32 s{sPFO}, 0')
            srd(a, S_PF, *((4, 5, 1024*3072*2), (56, 57, 1024*3584*2), (58, 59, 1024*3584*2))[w])
        else:
            a.e(f'v_lshlrev_b32 v{vPF}, 7, v{vLANE}')
            nl = cfg.pf3n
            a.e(f's_mov_b32 s{sPFS}, {nl*128}'); a.e(f's_mov_b32 s{sPFO}, {(-(cfg.pf3w + cfg.pfd-3)*nl*128) & 0xffffffff}')
            a.e(f's_mul_i32 s60, s2, {224*128}')
            a.e(f's_add_u32 s{S_PF}, s68, s60'); a.e(f's_addc_u32 s{S_PF+1}, s69, 0')
            a.e(f's_mov_b32 s{S_PF+2}, {224*128}'); a.e(f's_mov_b32 s{S_PF+3}, 0x20000')
        a.e(f'v_mov_b32 v{t2}, 0x80000000')
        a.e(f'v_cmp_gt_u32 vcc, {nl}, v{vLANE}')
        a.e(f'v_cndmask_b32 v{vPF}, v{t2}, v{vPF}, vcc')
        for _ in range(cfg.f0ne):
            a.e(f'buffer_load_dword v{vDUM}, v{vPF}, s[{S_PF}:{S_PF+3}], s{sPFO} offen'); a.e(f's_add_u32 s{sPFO}, s{sPFO}, s{sPFS}')
        for d in range(5):
            p = 5*w + d
            if p < 6: kind, pl, C, magic = 'q', p, 12, 5462
            elif p < 13: kind, pl, C, magic = 'g', p-6, 14, 4682
            else: kind, pl, C, magic = 'u', p-13, 14, 4682
            a.e(f'v_add_u32 v{t0}, {64*pl}, v{vLANE}')
            a.e(f'v_mul_u32_u24 v{t1}, {magic}, v{t0}')
            a.e(f'v_lshrrev_b32 v{t1}, 16, v{t1}')
            a.e(f'v_mul_u32_u24 v{t2}, {C}, v{t1}')
            a.e(f'v_sub_u32 v{t0}, v{t0}, v{t2}')
            if kind == 'q':
                a.e(f'v_lshrrev_b32 v{t2}, 1, v{t1}'); a.e(f'v_and_b32 v{t2}, 2, v{t2}')
                a.e(f'v_xor_b32 v{t0}, v{t0}, v{t2}')
                a.e(f'v_lshrrev_b32 v{t2}, 2, v{t0}'); a.e(f'v_lshlrev_b32 v{t2}, 11, v{t2}')
                a.e(f'v_and_b32 v{t0}, 3, v{t0}')
                a.e(f'v_lshl_add_u32 v{t0}, v{t0}, 4, v{t2}')
                a.e(f'v_add_u32 v{t0}, s62, v{t0}')
            else:
                a.e(f'v_add_u32 v{t0}, s64, v{t0}')
                a.e(f'v_subrev_u32 v{t2}, 14, v{t0}')
                a.e(f'v_min_u32 v{t0}, v{t0}, v{t2}')
                a.e(f'v_lshl_add_u32 v{t0}, v{t0}, 4, s63')
            a.e(f'v_and_b32 v{t2}, 3, v{t1}')
            a.e(f'v_bfe_u32 v{t3}, v{t1}, 2, 2')
            a.e(f'v_lshl_add_u32 v{t2}, v{t3}, 3, v{t2}')
            a.e(f'v_lshrrev_b32 v{t3}, 4, v{t1}')
            a.e(f'v_lshl_add_u32 v{t2}, v{t3}, 2, v{t2}')
            a.e(f'v_mad_u32_u24 v{vDW+d}, v{t2}, s{65 if kind == "q" else 66}, v{t0}')
            srd(a, S_W+4*d, *{'q': (4, 5, 1024*3072*2), 'g': (56, 57, 1024*3584*2), 'u': (58, 59, 1024*3584*2)}[kind])
            a.e(f's_mov_b32 s{sWS+d}, {32*(6144 if kind == "q" else 7168)}')
        if w < 3: a.e('s_branch L1_setdone')
    a.label('L1_setdone')
    srd(a, S_XN, 6, 7, XN_BYTES)
    srd(a, 96, 6, 7, 1 << 20, FLAG_OFF)
    a.e('v_lshrrev_b32 v131, 2, v129'); a.e(f'v_lshl_add_u32 v131, v{vT}, 3, v131'); a.e('v_lshlrev_b32 v131, 17, v131')
    a.e('v_and_b32 v132, 3, v129'); a.e('v_lshl_add_u32 v131, v132, 8, v131'); a.e('v_lshl_add_u32 v131, v128, 4, v131')
    a.e('s_lshr_b32 s60, s2, 1'); a.e('s_lshl_b32 s60, s60, 10'); a.e('s_and_b32 s61, s2, 1'); a.e('s_lshl_b32 s61, s61, 7'); a.e('s_add_u32 s60, s60, s61')
    a.e('v_add_u32 v131, s60, v131')
    a.e('v_lshlrev_b32 v132, 5, v128'); a.e(f'v_add_u32 v132, {L1_STAT}, v132'); a.e(f'v_lshl_add_u32 v133, v{vT}, 3, v132')
    a.e('s_mov_b32 s60, 0xffff0000'); a.e('s_mov_b32 s61, 262144'); a.e('s_mov_b32 s62, 524288'); a.e('s_mov_b32 s63, 786432')
    a.e('v_mov_b32 v120, 0x43800000'); a.e('v_mov_b32 v121, 0x3727c5ac'); a.e('v_mov_b32 v122, 0x3a800000')
    a.e(f's_waitcnt vmcnt({cfg.f0ne})')
    X = 48; T = 80
    def red8(r):
        a.e(f'v_add_f32_dpp v{r}, v{r}, v{r} quad_perm:[1,0,3,2] row_mask:0xf bank_mask:0xf')
        a.e(f'v_add_f32_dpp v{r}, v{r}, v{r} quad_perm:[2,3,0,1] row_mask:0xf bank_mask:0xf')
        a.e(f'v_add_f32_dpp v{r}, v{r}, v{r} row_half_mirror row_mask:0xf bank_mask:0xf')
    def tree():
        for sp in (4, 2, 1):
            for i_ in range(sp): a.e(f'v_pk_add_f32 {P2(T+2*i_)}, {P2(T+2*i_)}, {P2(T+2*i_+2*sp)}')
    for i_ in range(16):
        a.e(f'v_lshlrev_b32 v{X+2*i_}, 16, v{32+i_}'); a.e(f'v_and_b32 v{X+2*i_+1}, s60, v{32+i_}')
    for i_ in range(8): a.e(f'v_pk_add_f32 {P2(T+2*i_)}, {P2(X+4*i_)}, {P2(X+4*i_+2)}')
    tree()
    a.e(f'v_add_f32 v{T}, v{T}, v{T+1}'); red8(T)
    a.e(f'v_mul_f32 v96, 0xbb800000, v{T}'); a.e('v_mov_b32 v97, v96')
    for i_ in range(16): a.e(f'v_pk_add_f32 {P2(X+2*i_)}, {P2(X+2*i_)}, v[96:97]')
    for i_ in range(8): a.e(f'v_pk_mul_f32 {P2(T+2*i_)}, {P2(X+4*i_)}, {P2(X+4*i_)}')
    for i_ in range(8): a.e(f'v_pk_fma_f32 {P2(T+2*i_)}, {P2(X+4*i_+2)}, {P2(X+4*i_+2)}, {P2(T+2*i_)}')
    tree()
    a.e(f'v_add_f32 v97, v{T}, v{T+1}'); red8(97)
    a.e('ds_write_b64 v133, v[96:97]')
    a.e('s_waitcnt lgkmcnt(0)'); a.e('s_barrier')
    a.e('ds_read_b128 v[100:103], v132'); a.e('ds_read_b128 v[104:107], v132 offset:16')
    a.e('s_waitcnt lgkmcnt(0)')
    a.e('v_pk_add_f32 v[108:109], v[100:101], v[102:103]'); a.e('v_pk_add_f32 v[110:111], v[104:105], v[106:107]')
    a.e('v_pk_add_f32 v[108:109], v[108:109], v[110:111]')
    a.e('v_mul_f32 v108, 0x3e800000, v108')
    for r in (100, 102, 104, 106): a.e(f'v_sub_f32 v{r}, v{r}, v108')
    a.e('v_mul_f32 v110, v100, v100'); a.e('v_mul_f32 v111, v102, v102'); a.e('v_fmac_f32 v110, v104, v104'); a.e('v_fmac_f32 v111, v106, v106')
    a.e('v_add_f32 v110, v110, v111')
    a.e('v_fmac_f32 v109, v110, v120'); a.e('v_fmac_f32 v121, v109, v122')
    a.e('v_rsq_f32 v120, v121')
    a.e('v_sub_f32 v122, v108, v96'); a.e('v_mov_b32 v121, v120'); a.e('v_mul_f32 v122, v122, v120'); a.e('v_mov_b32 v123, v122')
    so_ = ['0', 's61', 's62', 's63']
    for it in range(4):
        for i_ in range(4*it, 4*it+4): a.e(f'v_pk_fma_f32 {P2(X+2*i_)}, {P2(X+2*i_)}, v[120:121], v[122:123]')
        for i_ in range(4*it, 4*it+4): a.e(f'v_cvt_pk_bf16_f32 v{32+i_}, v{X+2*i_}, v{X+2*i_+1}')
        a.e(f'buffer_store_dwordx4 v[{32+4*it}:{35+4*it}], v131, s[{S_XN}:{S_XN+3}], {so_[it]} offen sc1')
    a.e(f's_lshl_b32 s{sM_ACT}, s{sWAVE}, 12')
    a.e(f's_mul_i32 s{sM_W}, s{sWAVE}, 5120'); a.e(f's_add_u32 s{sM_W}, s{sM_W}, {L1_W}')
    a.e(f's_lshl_b32 s{sM_H}, s{sWAVE}, 8'); a.e(f's_add_u32 s{sM_H}, s{sM_H}, {L1_HALO}')
    a.e(f's_mov_b32 s{sACT}, 0')
    for d in range(5): a.e(f's_mov_b32 s{sWO+d}, 0')
    def dma_list(slot):
        L = []
        for d in range(5):
            L.append((f's_add_u32 m0, s{sM_W}, {slot*20480 + d*1024}',
                      f'buffer_load_dwordx4 v{vDW+d}, s[{S_W+4*d}:{S_W+4*d+3}], s{sWO+d} offen lds',
                      f's_add_u32 s{sWO+d}, s{sWO+d}, s{sWS+d}'))
        for d in range(4):
            L.append((f's_add_u32 m0, s{sM_ACT}, {slot*16384}' if d == 0 else None,
                      f'buffer_load_dwordx4 v{vDA}, s[{S_XN}:{S_XN+3}], s{sACT} offen offset:{d*1024} lds', None))
        L.append((f's_add_u32 m0, s{sM_H}, {slot*1024}',
                  f'buffer_load_dword v{vDH}, s[{S_XN}:{S_XN+3}], s{sACT} offen lds', f's_add_u32 s{sACT}, s{sACT}, 131072'))
        L.append((None, f'buffer_load_dword v{vDUM}, v{vPF}, s[{S_PF}:{S_PF+3}], s{sPFO} offen', f's_add_u32 s{sPFO}, s{sPFO}, s{sPFS}'))
        return L
    def flat(dl): return [x for t_ in dl for x in t_ if x]
    VMW = 12
    for x in flat(dma_list(0)[:5] + dma_list(1)[:5]): a.e(x)
    latepf = [dma_list(0)[10]]*(cfg.pfd-1-cfg.f0ne)
    srd(a, S_O, 6, 7, ACT2_BYTES, ACT2_OFF)
    a.e(f's_lshl_b32 s60, s{sRB}, 14'); a.e(f's_lshl_b32 s61, s{sWAVE}, 12'); a.e('s_add_u32 s61, s61, s60')
    a.e(f'v_lshl_add_u32 v{vDA}, v{vLANE}, 4, s61')
    a.e('s_max_u32 s60, s60, 1024'); a.e('s_sub_u32 s60, s60, 1024')
    a.e(f's_lshl_b32 s61, s{sWAVE}, 8'); a.e('s_add_u32 s61, s61, s60')
    a.e(f'v_lshl_add_u32 v{vDH}, v{vLANE}, 2, s61')
    a.e(f's_lshl_b32 s60, s{sRB}, 5'); a.e('s_sub_u32 s60, s60, 2')
    a.e(f'v_min_u32 v134, 33, v{vLANE}'); a.e('v_add_u32 v134, s60, v134'); a.e('v_max_i32 v134, 0, v134'); a.e('v_lshlrev_b32 v134, 7, v134')
    a.e(f'v_add_u32 v134, {XFLAG_REL}, v134')
    a.e('s_lshl_b32 s60, s2, 7'); a.e(f's_add_u32 s60, s60, {XFLAG_REL}'); a.e('v_mov_b32 v135, s60')
    a.e(f's_add_u32 s60, s{sT0}, 1000'); a.e('v_mov_b32 v136, s60'); a.e('v_not_b32 v137, v136')
    t0, t1, t2 = vT, vT+1, vT+2
    a.e(f's_lshl_b32 s60, s{sWM}, 13')
    a.e(f'v_lshl_add_u32 v{vA}, v{vLANE}, 4, s60')
    a.e(f'v_lshlrev_b32 v{vHA}, 4, v{vLANE}'); a.e(f'v_add_u32 v{vHA}, {L1_HALO}, v{vHA}')
    a.e(f'v_lshrrev_b32 v{t0}, 2, v{vLANE}')
    a.e(f'v_and_b32 v{t1}, 3, v{vLANE}'); a.e(f'v_lshlrev_b32 v{t1}, 3, v{t1}'); a.e(f'v_add_u32 v{t1}, {L1_W}, v{t1}')
    a.e(f'v_mul_u32_u24 v{t2}, 224, v{t0}'); a.e(f'v_add_u32 v{vGU}, v{t2}, v{t1}'); a.e(f'v_add_u32 v{vGU+1}, 40960, v{vGU}')
    a.e(f'v_mul_u32_u24 v{t2}, 192, v{t0}'); a.e(f'v_add_u32 v{t2}, v{t2}, v{t1}')
    a.e(f'v_lshlrev_b32 v{t0}, 1, v{vLANE}'); a.e(f'v_and_b32 v{t0}, 32, v{t0}')
    a.e(f'v_add_u32 v{vQa}, v{t2}, v{t0}'); a.e(f'v_sub_u32 v{vQb}, v{t2}, v{t0}')
    a.e(f'v_add_u32 v{vQa+1}, 40960, v{vQa}'); a.e(f'v_add_u32 v{vQb+1}, 40960, v{vQb}')
    a.e(f's_lshl_b32 s60, s{sWAVE}, 5'); a.e('s_add_u32 s60, s60, 64')
    a.e(f'v_xor_b32 v{t0}, s60, v{t0}')
    a.e(f'v_add_u32 v{vHW}, v{t2}, v{t0}'); a.e(f'v_add_u32 v{vHW+1}, 40960, v{vHW}')
    a.e(f's_mov_b32 s{sCNT}, 0')
    a.e('s_waitcnt vmcnt(10)'); a.e('s_barrier')
    st.at(1, 2)
    a.e(f's_cmp_eq_u32 s{sWAVE}, 0'); a.e('s_cbranch_scc1 L1_pub')
    a.e(f's_cmp_eq_u32 s{sWAVE}, 2'); a.e('s_cbranch_scc1 L1_consts')
    a.e(f's_cmp_eq_u32 s{sWAVE}, 1'); a.e('s_cbranch_scc1 L1_wopf')
    code_pf(a, 'L1_polled', 'L_end', vLANE, 134, 135, 94, cfg.ncpf)
    a.e('s_branch L1_consts')
    a.label('L1_wopf')
    a.e('s_mov_b32 s94, 0x200000'); a.e('s_mov_b32 s95, 0x20000')
    a.e('s_lshl_b32 s60, s2, 13'); a.e(f'v_lshlrev_b32 v134, 7, v{vLANE}')
    a.e('buffer_load_dword v135, v134, s[92:95], s60 offen')
    a.e('s_branch L1_consts')
    a.label('L1_pub')
    a.e('s_mov_b64 exec, 1')
    a.e('buffer_store_dwordx2 v[136:137], v135, s[96:99], 0 offen sc1')
    a.e('s_mov_b64 exec, -1')
    a.label('L1_consts')
    a.e(f'v_and_b32 v{t0}, 15, v{vLANE}'); a.e(f'v_lshrrev_b32 v{t1}, 4, v{vLANE}'); a.e(f'v_lshlrev_b32 v{t1}, 2, v{t1}')
    a.e(f'v_sub_u32 v{t0}, v{t0}, v{t1}')
    a.e(f'v_mov_b32 v{vT+3}, 0xf149f2ca')
    a.e(f's_or_b32 s60, s{sRB}, s{sWM}'); a.e('s_cmp_eq_u32 s60, 0'); a.e('s_cselect_b64 s[60:61], -1, 0')
    for isprev in range(2):
        for r in range(4):
            a.e(f'v_add_u32 v{t1}, {16*isprev - r}, v{t0}')
            a.e(f'v_and_b32 v{t2}, 0xfffffff1, v{t1}')
            a.e(f'v_cmp_eq_u32 vcc, 0, v{t2}')
            a.e(f'v_cndmask_b32_e64 v{vT+4}, v{vT+3}, 0, vcc')
            a.e(f'v_accvgpr_write_b32 a{aBI+4*isprev+r}, v{vT+4}')
            if isprev:
                a.e(f'v_cndmask_b32_e64 v{vT+4}, v{vT+4}, v{vT+3}, s[60:61]')
                a.e(f'v_accvgpr_write_b32 a{aBI+8+r}, v{vT+4}')
    a.e(f'v_mov_b32 v{vT+4}, 0x3f803f80')
    for r in range(4): a.e(f'v_accvgpr_write_b32 a{aBI+12+r}, v{vT+4}')
    a.e(f's_cmp_lg_u32 s{sWAVE}, 0'); a.e('s_cbranch_scc1 L1_polled')
    a.e('s_mov_b32 s62, 0')
    if cfg.f0sl: a.e(f's_sleep {cfg.f0sl}')
    a.label('L1_poll')
    a.e('buffer_load_dwordx2 v[138:139], v134, s[96:99], 0 offen sc1')
    a.e('s_add_u32 s62, s62, 1')
    a.e('s_waitcnt vmcnt(0)')
    stamp_ok(a, 138, 60); a.e('s_cbranch_scc1 L1_polled')
    a.e('s_cmp_lt_u32 s62, 0x8000'); a.e('s_cbranch_scc1 L1_poll')
    a.label('L1_polled')
    a.e('s_barrier')
    for x in flat(dma_list(0)[5:10] + dma_list(1)[5:10] + latepf): a.e(x)
    a.e(f's_and_b32 s60, s{sWAVE}, 1'); a.e('s_cmp_eq_u32 s60, 1'); a.e('s_cbranch_scc1 L1_wn1')

    NS = 5; FS = cfg.k2_fs; HS = 2*(36-FS); TOT = FS + HS; WB = NS*16384
    G_A = 8; G_W = 12; G_P = 16; G_X = 20; G_OUT = 24
    gACT = 36; gWO = 37; gM_A = 38; gM_W = 39; gU = 40; gPART = 41; gRB = 42; gCB = 43; gIDX = 53; gSZ0 = 54; gSZ1 = 55
    gM_H = 44; gKC = 45; gT1 = 46; gT2 = 47; G_F = 96
    hDA = 32; hDW = 33; hTS = 38; hSEQ = 42; hT = 44
    hA = 2; hW = 4; hXO = 12; hPS = 14; hPL = 15; hFS = 16; hFL = 17; hDH = 18; hWH = 20; hT2 = 24; hBF = 30; hO = 45
    XR = 48; ACC = 64; FR = 128
    NA = (FS*2 + HS == 72) and 22
    def g2_next():
        return [f's_add_u32 s{gIDX}, s{gIDX}, 1',
                f'v_readlane_b32 s{gWO}, v{hSEQ}, s{gIDX}',
                f's_lshl_b32 s{gACT}, s{gWO}, 17',
                f's_cmp_lt_u32 s{gWO}, 32',
                f's_cselect_b32 s{G_W}, s92, s68', f's_cselect_b32 s{G_W+1}, s93, s69', f's_cselect_b32 s{G_W+2}, s{gSZ0}, s{gSZ1}',
                f's_cselect_b32 s60, 0, 32',
                f's_sub_u32 s{gWO}, s{gWO}, s60',
                f's_lshl_b32 s{gWO}, s{gWO}, 16']
    def g2_dma(slot, compact=False):
        L = []
        for d in range(2 if compact else 4):
            L.append(([f's_add_u32 m0, s{gM_H if compact else gM_W}, {slot*16384 + d*1024}'],
                      f'buffer_load_dwordx4 v{(hDH if compact else hDW)+d}, s[{G_W}:{G_W+3}], s{gWO} offen lds', []))
        for d in range(4):
            L.append(([f's_add_u32 m0, s{gM_A}, {slot*16384}'] if d == 0 else [],
                      f'buffer_load_dwordx4 v{hDA}, s[{G_A}:{G_A+3}], s{gACT} offen offset:{d*1024} lds', []))
        L[-1] = (L[-1][0], L[-1][1], g2_next())
        return L
    def g2_early(o):
        o.e('s_and_b32 s3, s2, 7'); o.e(f's_lshr_b32 s{gPART}, s3, 2'); o.e('s_and_b32 s3, s3, 3'); o.e('s_lshl_b32 s3, s3, 2')
        o.e('s_lshr_b32 s60, s2, 3'); o.e(f's_and_b32 s{gCB}, s60, 7'); o.e('s_lshr_b32 s60, s60, 3'); o.e(f's_add_u32 s{gRB}, s3, s60')
        o.e(f's_and_b32 s3, s{sWAVE}, 1')
        o.e(f's_mul_i32 s60, s{gPART}, 22')
        o.e(f'v_add_u32 v{hT}, s60, v{vLANE}'); o.e(f'v_add_u32 v{hT+1}, {44-FS}, v{vLANE}')
        o.e(f'v_cmp_gt_u32 vcc, 22, v{vLANE}'); o.e(f'v_cndmask_b32 v{hT}, v{hT+1}, v{hT}, vcc')
        o.e(f'v_mul_u32_u24 v{hT+1}, 21846, v{hT}'); o.e(f'v_lshrrev_b32 v{hT+1}, 16, v{hT+1}')
        o.e(f'v_lshl_add_u32 v{hT}, v{hT+1}, 2, v{hT}')
        o.e(f's_lshl_b32 s60, s{sWM}, 2'); o.e('s_add_u32 s60, s60, 32'); o.e(f'v_add_u32 v{hT}, s60, v{hT}')
        o.e(f's_mul_i32 s60, s{gPART}, 24'); o.e(f's_add_u32 s60, s60, s{sWM}'); o.e('s_sub_u32 s60, s60, 44')
        o.e(f'v_lshl_add_u32 v{hT+1}, v{vLANE}, 1, s60')
        o.e(f's_mul_i32 s60, s{sWM}, 7'); o.e(f's_sub_u32 s60, s60, {14*26-35}')
        o.e(f'v_mul_u32_u24 v{hT+2}, 14, v{vLANE}'); o.e(f'v_add_u32 v{hT+2}, s60, v{hT+2}')
        o.e(f's_cmp_eq_u32 s{gPART}, 0'); o.e('s_cselect_b32 s60, 63, 26')
        o.e(f'v_cmp_gt_u32 vcc, s60, v{vLANE}'); o.e(f'v_cndmask_b32 v{hT+1}, v{hT+2}, v{hT+1}, vcc')
        o.e(f'v_subrev_u32 v{hT+2}, 22, v{vLANE}'); o.e(f'v_cmp_gt_u32 vcc, {FS-22}, v{hT+2}')
        o.e(f'v_cndmask_b32 v{hSEQ}, v{hT}, v{hT+1}, vcc')
        o.e('s_lshl_b32 s60, s3, 12'); o.e(f's_lshl_b32 s61, s{gRB}, 13'); o.e('s_add_u32 s60, s60, s61')
        o.e(f'v_lshl_add_u32 v{hDA}, v{vLANE}, 4, s60')
        o.e(f's_lshl_b32 s{gM_A}, s{sWAVE}, 12'); o.e(f's_add_u32 s{gM_W}, s{gM_A}, {WB}')
        o.e(f'v_lshrrev_b32 v{hT}, 4, v{vLANE}'); o.e(f'v_and_b32 v{hT+1}, 15, v{vLANE}')
        o.e('s_lshl_b32 s60, s3, 15'); o.e(f's_lshl_b32 s61, s{gCB}, 8'); o.e('s_add_u32 s60, s60, s61')
        o.e(f'v_lshl_add_u32 v{hT+3}, v{hT}, 11, s60')
        o.e(f'v_lshlrev_b32 v{hT+2}, 1, v{hT}'); o.e(f'v_xor_b32 v{hT+2}, v{hT+2}, v{hT+1}')
        o.e(f'v_lshl_add_u32 v{hDW}, v{hT+2}, 4, v{hT+3}')
        o.e(f'v_xor_b32 v{hDW+1}, 128, v{hDW}'); o.e(f'v_add_u32 v{hDW+1}, 8192, v{hDW+1}')
        o.e(f'v_add_u32 v{hDW+2}, 16384, v{hDW}'); o.e(f'v_add_u32 v{hDW+3}, 16384, v{hDW+1}')
        o.e(f's_mov_b32 s{gSZ0}, {1024*1024*2}'); o.e(f's_mov_b32 s{gSZ1}, {3584*1024*2}'); o.e(f's_mov_b32 s{G_W+3}, 0x20000')
        srd(o, G_A, 6, 7, ACT2_BYTES, ACT2_OFF)
        o.e(f's_lshr_b32 s60, s{gRB}, 1'); o.e('s_lshl_b32 s60, s60, 14'); o.e(f's_and_b32 s61, s{gRB}, 1'); o.e('s_lshl_b32 s61, s61, 8')
        o.e('s_add_u32 s60, s60, s61'); o.e(f's_add_u32 s60, s60, {AFLAG_REL}')
        o.e(f'v_lshrrev_b32 v{hT}, 1, v{vLANE}'); o.e(f'v_lshl_add_u32 v{hTS+3}, v{hT}, 9, s60')
        o.e(f'v_and_b32 v{hT}, 1, v{vLANE}'); o.e(f'v_lshl_add_u32 v{hTS+3}, v{hT}, 7, v{hTS+3}')
        o.e(f's_mov_b32 s{gIDX}, -1')
        for x in g2_next(): o.e(x)
        for s_ in range(NS):
            d_ = g2_dma(s_)
            for pre, ins, post in d_[:4]:
                for x in pre: o.e(x)
                o.e(ins)
            for x in d_[7][2]: o.e(x)
    def g2_flagA(o, younger):
        o.e(f's_add_u32 s60, s{sT0}, 1000'); o.e(f'v_mov_b32 v{hTS}, s60'); o.e(f'v_not_b32 v{hTS+1}, v{hTS}')
        o.e('s_lshl_b32 s60, s2, 2'); o.e(f's_add_u32 s60, s60, s{sWAVE}'); o.e('s_lshl_b32 s60, s60, 7'); o.e(f's_add_u32 s60, s60, {AFLAG_REL}')
        o.e(f'v_mov_b32 v{hTS+2}, s60')
        o.e(f's_waitcnt vmcnt({younger})')
        o.e('s_mov_b64 exec, 1')
        o.e(f'buffer_store_dwordx2 v[{hTS}:{hTS+1}], v{hTS+2}, s[{G_F}:{G_F+3}], 0 offen sc1')
        o.e('s_mov_b64 exec, -1')
        st.at(4, 3)
    def g2_poll_act(wn):
        st.at(4, 1); st.at(5, 3)
        if wn == 0:
            a.e(f's_cmp_lg_u32 s{sWAVE}, 0'); a.e(f's_cbranch_scc1 L2_aok')
            a.e('s_mov_b32 s3, 0')
            if cfg.g1sl: a.e(f's_sleep {cfg.g1sl}')
            a.label('L2_apoll')
            a.e(f'buffer_load_dwordx2 v[{hT2}:{hT2+1}], v{hTS+3}, s[{G_F}:{G_F+3}], 0 offen sc1')
            a.e('s_add_u32 s3, s3, 1')
            a.e('s_waitcnt vmcnt(0)')
            stamp_ok(a, hT2, 60); a.e('s_cbranch_scc1 L2_aok')
            a.e('s_sleep 4')
            a.e('s_cmp_lt_u32 s3, 0x8000'); a.e('s_cbranch_scc1 L2_apoll')
            a.label('L2_aok')
        a.e('s_barrier')
        st.at(5, 1); st.at(6, 3)
        for s_ in range(NS):
            a.e(f'v_readlane_b32 s60, v{hSEQ}, {s_}'); a.e('s_lshl_b32 s60, s60, 17')
            a.e(f's_add_u32 m0, s{gM_A}, {s_*16384}')
            for d in range(4): a.e(f'buffer_load_dwordx4 v{hDA}, s[{G_A}:{G_A+3}], s60 offen offset:{d*1024} lds')

    aACT = 0; aHA = 64; aHW = 88; aACC = 96; aW2 = 216
    for wn in range(2):
        if wn == 1: a.label('L1_wn1')
        if wn == 0:
            names = ['q0', 'q1', 'k0', 'k1', 'v0', 'v1', 'g0', 'g1', 'u0', 'u1']
            units = [('q', 0), ('q', 2), ('q', 4), ('q', 6), ('q', 8), ('q', 10), ('g', 0), ('g', 2), ('u', 0), ('u', 2)]
            order_v = ['g0', 'g1', 'u0', 'q0', 'k0', 'v0', 'v1']; order_a = ['q1', 'k1', 'u1']
        else:
            names = ['g2', 'u2', 'g3', 'u3', 'g6', 'g4', 'u4', 'g5', 'u5', 'u6']
            units = [(nm[0], 2*int(nm[1])) for nm in names]
            order_v = ['g2', 'g3', 'g4', 'g5', 'g6', 'u2', 'u3']; order_a = ['u4', 'u5', 'u6']
        acc = {}
        for i, nm in enumerate(order_v):
            for m in range(8): acc[(nm, m)] = ('v', 32 + (i*8+m)*4)
        for i, nm in enumerate(order_a):
            for m in range(8): acc[(nm, m)] = ('a', aACC + (i*8+m)*4)
        acc['halo'] = ('a', aACC + 96)
        def R(x): return f'{x[0]}[{x[1]}:{x[1]+3}]'
        def hreads(slot):
            return [f'ds_read_b128 {AR(aHA)}, v{vHA} offset:{slot*1024}'] + \
                   [f'ds_read_b64_tr_b16 a[{aHW+2*h}:{aHW+2*h+1}], v{vHW+(slot>>1)} offset:{(slot&1)*20480+h*3072}' for h in range(2)]
        def wfrag(slot, n, reg):
            kind, c0 = units[n]; out = []
            for h_ in range(2):
                if kind == 'q':
                    base = (vQa if c0 % 4 == 0 else vQb) + (slot >> 1); off = (slot & 1)*20480 + c0*16 + h_*3072
                else:
                    base = vGU + (slot >> 1); off = (slot & 1)*20480 + (6144 if kind == 'g' else 13312) + c0*16 + h_*3584
                out.append(f'ds_read_b64_tr_b16 a[{reg+2*h_}:{reg+2*h_+1}], v{base} offset:{off}')
            return out
        def wr(p, n, second): return aW2 + 8*((5*p + n) & 3) + 4*second
        def areg_(stage, m): return aACT + (stage & 1)*32 + 4*m
        tr = LgkmTracker(a)
        carry = flat(dma_list(2))
        def period(h, kind, side=None):
            nonlocal carry
            p = h + 1
            first = kind != 'P'; second = kind != 'Q'
            g0 = 0 if h % 2 == 0 else 5
            gn = 5 - g0
            secs = [x for x in (0, 1) if (first if x == 0 else second)]
            mf = [(n, m, sec) for n in range(3) for m in range(8) for sec in secs]
            L = 8*len(secs); T0 = len(mf)
            mf += [(n, m, sec) for m in range(8) for n in (3, 4) for sec in secs]
            N = len(mf)
            gaps = [[] for _ in range(N)]
            def place(item, lo, hi, cap=1):
                for g in range(lo, hi+1):
                    if len(gaps[g]) < cap:
                        gaps[g].append(item); return g
                return None
            def wf(n):
                return (wfrag(h % 4, g0+n, wr(p, n, 0)) if first else []) + (wfrag((h+1) % 4, g0+n, wr(p, n, 1)) if second else [])
            for n, lst in ((0, wf(1)), (1, wf(2)), (2, wf(3) + wf(4))):
                for k_, r in enumerate(lst): gaps[n*L + k_].append(('r', r))
            if kind != 'Q':
                cur = 1
                for x in carry:
                    g = place(('x', x), cur, T0-5, 1 if first else 2); assert g is not None
                    cur = g + (1 if (first or x.startswith('s_add_u32 m0')) else 0)
                per = 2*len(secs)
                for m in range(8):
                    gaps[T0 + per*m + (per - 2 if first else 0)].append(('r', f'ds_read_b128 {AR(areg_(h+2, m))}, v{vA} offset:{((h+2) % 4)*16384 + m*1024}'))
                tail = wfrag((h+1) % 4, gn, wr(p+1, 0, 0)) + wfrag((h+2) % 4, gn, wr(p+1, 0, 1)) + hreads((h+2) % 4)
                for k_, r in enumerate(tail):
                    g = place(('r', r), T0 + (per*k_ if first else 2*k_), N-1, 1); assert g is not None
                items = flat(dma_list(h % 4))
                cur = T0
                hi = N-1 if not (kind == 'H' and h % 4 == 2) else N-4
                while items:
                    g = place(('x', items[0]), cur, hi, 1)
                    if g is None: break
                    cur = g + 1; items.pop(0)
                carry = items
                if kind == 'H' and h % 4 == 2:
                    gaps[N-3].append(('x', f's_add_u32 s{sCNT}, s{sCNT}, 1')); gaps[N-2].append(('x', f's_cmp_eq_u32 s{sCNT}, 8'))
                if kind == 'H' and h % 4 == 0:
                    gaps[T0-4].append(('x', f's_cmp_eq_u32 s{sCNT}, 7'))
                    for k_, r_ in enumerate((sM_W, sM_ACT, sM_H)): gaps[T0-3+k_].append(('x', f's_cselect_b32 s{r_}, 170000, s{r_}'))
            if side:
                for k_, x in enumerate(side):
                    gaps[min(N-1, 3 + (k_*(N-3))//len(side))].append(('w' if x.startswith('ds_write') else 'x', x))
            if kind == 'Q': mf = [(n, m, 0) for n in range(5) for m in range(8)]
            for i, (n, m, sec) in enumerate(mf):
                nm = names[g0+n]
                if kind != 'Q' and i == T0:
                    a.e(f's_waitcnt vmcnt({VMW-1+len(latepf) if kind == "P" else VMW}) lgkmcnt(0)'); tr.drain(); a.e('s_barrier')
                wreg = AR(wr(p, n, sec)); areg = AR(areg_(h+sec, m))
                tr.need(regs_of(wreg) + regs_of(areg) + (regs_of(AR(wr(p, n, 1))) if (n > 0 and second) else []))
                d = R(acc[(nm, m)])
                c = '0' if (kind == 'P' or (kind == 'H0' and sec == 0)) else d
                a.e(f'{MF} {d}, {areg}, {wreg}, {c}' if nm[0] == 'v' else f'{MF} {d}, {wreg}, {areg}, {c}')
                for k_, x in gaps[i]:
                    if k_ == 'r': tr.read(x)
                    elif k_ == 'w': a.e(x); tr.other()
                    else: a.e(x)
                if kind != 'Q' and i == L + 5:
                    tr.need(regs_of(AR(aHA)) + regs_of(AR(aHW)))
                    d = R(acc['halo'])
                    a.e(f'{MF} {d}, {AR(aHW)}, {AR(aHA)}, {"0" if kind == "P" else d}')
        a.e(f's_waitcnt vmcnt({5 + len(latepf)})'); a.e('s_barrier')
        st.at(1, 1); st.at(2, 2)
        if st.on: a.e('s_waitcnt lgkmcnt(0)')
        for r in wfrag(0, 5, wr(0, 0, 1)) + [f'ds_read_b128 {AR(areg_(0, m))}, v{vA} offset:{m*1024}' for m in range(8)] + hreads(0): tr.read(r)
        period(-1, 'P'); period(0, 'H0')
        entry_state = tr.state(); entry_carry = list(carry)
        a.label(f'L1_loop{wn}')
        period(1, 'H'); period(2, 'H')
        exit_q = list(tr.q)
        a.e(f's_cbranch_scc1 L1_tail{wn}')
        period(3, 'H'); period(4, 'H')
        assert tr.state() == entry_state and carry == entry_carry
        a.e(f's_branch L1_loop{wn}')
        a.label(f'L1_tail{wn}')
        tr.q = exit_q
        vO = vDA; vX = vDW
        def fetch(o, x, tmp):
            if x[0] == 'v': return x[1]
            for r in range(4): o.e(f'v_accvgpr_read_b32 v{tmp+r}, a{x[1]+r}')
            return tmp
        def hmul(o, g, u_, m, dst, tmp):
            gb = acc[(g, m)][1]; ub = fetch(o, acc[(u_, m)], tmp)
            o.e(f'v_pk_mul_f32 {P2(gb)}, {P2(gb)}, {P2(ub)}'); o.e(f'v_pk_mul_f32 {P2(gb+2)}, {P2(gb+2)}, {P2(ub+2)}')
            o.e(f'v_cvt_pk_bf16_f32 v{dst}, v{gb}, v{gb+1}'); o.e(f'v_cvt_pk_bf16_f32 v{dst+1}, v{gb+2}, v{gb+3}')
        def ostore(o, src, m, soff, n=4):
            op = {4: 'buffer_store_dwordx4', 2: 'buffer_store_dwordx2'}[n]
            o.e(f'{op} v[{src}:{src+n-1}], v{vO + (m >> 2)}, s[{S_O}:{S_O+3}], {soff} offen offset:{(m&3)*1024} sc1')
        def hblock(o, ga, ua, gb_, ub_, m, so, tmp):
            dst = acc[(ga, m)][1]
            hmul(o, ga, ua, m, dst, tmp); hmul(o, gb_, ub_, m, dst+2, tmp+4); ostore(o, dst, m, so)
        def attn1(o, q, kp, kc, v0w, v1w, bp, BI, Sx, Ox, dst):
            o.e(f'{MF} v[{Sx}:{Sx+3}], v[{kp}:{kp+3}], v[{q}:{q+3}], 0')
            o.e(f'{MF} v[{Sx+4}:{Sx+7}], v[{kc}:{kc+3}], v[{q}:{q+3}], 0')
            for r in (0, 2): o.e(f'v_pk_fma_f32 {P2(Sx+r)}, {P2(Sx+r)}, s[94:95], {P2(bp+r)}')
            for r in (0, 2): o.e(f'v_pk_fma_f32 {P2(Sx+4+r)}, {P2(Sx+4+r)}, s[94:95], {P2(BI+r)}')
            M = Sx + 8
            o.e(f'v_max3_f32 v{M}, v{Sx}, v{Sx+1}, v{Sx+2}'); o.e(f'v_max3_f32 v{M+1}, v{Sx+3}, v{Sx+4}, v{Sx+5}')
            o.e(f'v_max3_f32 v{M}, v{M}, v{Sx+6}, v{Sx+7}'); o.e(f'v_max_f32 v{M}, v{M}, v{M+1}')
            o.e(f'v_mov_b32 v{M+1}, v{M}')
            o.e(f'v_permlane32_swap_b32 v{M}, v{M+1}')
            o.e(f'v_max_f32 v{M}, v{M}, v{M+1}'); o.e(f'v_mov_b32 v{M+1}, v{M}')
            o.e(f'v_permlane16_swap_b32 v{M}, v{M+1}')
            o.e(f'v_max_f32 v{M}, v{M}, v{M+1}'); o.e(f'v_mov_b32 v{M+1}, v{M}')
            for r in (0, 2, 4, 6): o.e(f'v_pk_add_f32 {P2(Sx+r)}, {P2(Sx+r)}, {P2(M)} neg_lo:[0,1] neg_hi:[0,1]')
            for r in range(8): o.e(f'v_exp_f32 v{Sx+r}, v{Sx+r}')
            for r in range(4): o.e(f'v_cvt_pk_bf16_f32 v{Sx+12+r}, v{Sx+2*r}, v{Sx+2*r+1}')
            Pp = Sx + 12
            o.e(f'{MF} v[{Ox+8}:{Ox+11}], a[{aBI+12}:{aBI+15}], v[{Pp}:{Pp+3}], 0')
            o.e(f'{MF} v[{Ox}:{Ox+3}], v[{v0w}:{v0w+3}], v[{Pp}:{Pp+3}], 0')
            o.e(f'{MF} v[{Ox+4}:{Ox+7}], v[{v1w}:{v1w+3}], v[{Pp}:{Pp+3}], 0')
            o.e(f'v_rcp_f32 v{Ox+8}, v{Ox+8}')
            o.e(f'v_mov_b32 v{Ox+9}, v{Ox+8}')
            for r in (0, 2, 4, 6): o.e(f'v_pk_mul_f32 {P2(Ox+r)}, {P2(Ox+r)}, {P2(Ox+8)}')
            for r in range(4): o.e(f'v_cvt_pk_bf16_f32 v{dst+r}, v{Ox+2*r}, v{Ox+2*r+1}')
        def zipper(A, B):
            A = [x.text for x in A.ins]; B = [x.text for x in B.ins]
            for i_ in range(max(len(A), len(B))):
                if i_ < len(A): a.e(A[i_])
                if i_ < len(B): a.e(B[i_])
        o = Asm()
        o.e(f's_lshl_b32 s60, s{sRB}, 14'); o.e(f's_lshl_b32 s61, s{sWM}, 13'); o.e('s_add_u32 s60, s60, s61')
        o.e(f'v_lshl_add_u32 v{vO}, v{vLANE}, 4, s60'); o.e(f'v_add_u32 v{vO+1}, 4096, v{vO}')
        o.e(f's_mul_i32 s62, s{sJ}, 7'); o.e(f's_and_b32 s63, s{sJ}, 1'); o.e('s_add_u32 s62, s62, s63'); o.e('s_lshr_b32 s62, s62, 1')
        o.e('s_add_u32 s62, s62, 32'); o.e('s_lshl_b32 s62, s62, 17')
        o.e('s_add_u32 s64, s62, 131072'); o.e('s_add_u32 s65, s62, 262144')
        o.e(f's_lshl_b32 s60, s{sWM}, 14'); o.e('s_add_u32 s60, s60, 4096')
        o.e(f'v_lshl_add_u32 v{vX}, v{vLANE}, 4, s60')
        o.e(f'v_and_b32 v{vT}, 15, v{vLANE}'); o.e(f'v_lshrrev_b32 v{vT+1}, 4, v{vLANE}')
        o.e(f'v_lshl_add_u32 v{vX+1}, v{vT}, 5, s60'); o.e(f'v_lshl_add_u32 v{vX+1}, v{vT+1}, 3, v{vX+1}')
        o.e(f's_mul_i32 s60, s{sWM}, 40960'); o.e('s_sub_u32 s61, 40960, s60')
        o.e(f'v_lshl_add_u32 v{vX+2}, v{vLANE}, 4, s60')
        o.e(f'v_lshl_add_u32 v{vX+3}, v{vT+1}, 7, s61'); o.e(f'v_lshl_add_u32 v{vX+3}, v{vT}, 1, v{vX+3}')
        hb = fetch(o, acc['halo'], vT)
        o.e(f'v_cvt_pk_bf16_f32 v{vT+4}, v{hb}, v{hb+1}'); o.e(f'v_cvt_pk_bf16_f32 v{vT+5}, v{hb+2}, v{hb+3}')
        o.e(f'ds_write_b64 v{vX+2}, v[{vT+4}:{vT+5}] offset:{8*wn}')
        of = 1024 + wn*512
        o.e(f'ds_write_b16 v{vX+3}, v{vT+4} offset:{of}'); o.e(f'ds_write_b16_d16_hi v{vX+3}, v{vT+4} offset:{of+32}')
        o.e(f'ds_write_b16 v{vX+3}, v{vT+5} offset:{of+64}'); o.e(f'ds_write_b16_d16_hi v{vX+3}, v{vT+5} offset:{of+96}')
        o.e('s_mov_b32 s94, 0x3e8293ee'); o.e('s_mov_b32 s95, 0x3e8293ee')
        o.e(f's_lshl_b32 s67, s{sJ}, 17')
        if wn == 0:
            def packqk(o, n0, n1, m):
                d = acc[(n0, m)][1]
                b1 = fetch(o, acc[(n1, m)], vT + 4*(m & 1))
                o.e(f'v_cvt_pk_bf16_f32 v{d}, v{d}, v{d+1}'); o.e(f'v_cvt_pk_bf16_f32 v{d+1}, v{d+2}, v{d+3}')
                o.e(f'v_cvt_pk_bf16_f32 v{d+2}, v{b1}, v{b1+1}'); o.e(f'v_cvt_pk_bf16_f32 v{d+3}, v{b1+2}, v{b1+3}')
                return d
            PV0 = acc[('v0', 0)][1]; PV1 = acc[('v1', 0)][1]
            def packv(o, Pv, m, off):
                b_ = Pv + 4*m
                c1 = f'v_cvt_pk_bf16_f32 v{Pv+2+2*m}, v{b_}, v{b_+1}'; c2 = f'v_cvt_pk_bf16_f32 v{Pv+3+2*m}, v{b_+2}, v{b_+3}'
                for x in ((c2, c1) if m == 0 else (c1, c2)): o.e(x)
                if m >= 3: o.e(f'ds_write_b64 v{vX+1}, v[{Pv+2+2*m}:{Pv+3+2*m}] offset:{(m-3)*2048+off}')
            for m in range(3, 8):
                d = packqk(o, 'k0', 'k1', m); o.e(f'ds_write_b128 v{vX}, v[{d}:{d+3}] offset:{(m-3)*2048}')
            for m in range(4, 8):
                d = packqk(o, 'q0', 'q1', m); o.e(f'ds_write_b128 v{vX}, v[{d}:{d+3}] offset:{10240+(m-4)*1024}')
            for m in range(8): packv(o, PV0, m, 1024)
            for m in range(8): packv(o, PV1, m, 1536)
        else:
            o.e('s_add_u32 s66, s62, 393216'); o.e('s_sub_u32 s61, s62, 131072'); o.e('s_add_u32 s61, s61, 512')
            o.e('s_cmp_eq_u32 s63, 1'); o.e('s_cselect_b32 s66, s61, s66')
            for m in range(8): hblock(o, 'g2', 'u2', 'g3', 'u3', m, 's64', vT)
        period(31, 'Q', side=[x.text for x in o.ins])
        st.at(2, 1); st.at(1, 3)
        a.e('s_waitcnt lgkmcnt(0)'); a.e('s_barrier')
        if wn == 0:
            KP = PV0 + 18; BI = PV1 + 18
            a.e(f's_lshl_b32 s60, s{sWM}, 12'); a.e('s_add_u32 s60, s60, 4096')
            a.e(f'v_subrev_u32 v{vX}, s60, v{vX}'); a.e(f'v_subrev_u32 v{vX+1}, s60, v{vX+1}')
            a.e(f'ds_read_b128 v[{KP}:{KP+3}], v{vX}')
            a.e(f'ds_read_b64 v[{PV0}:{PV0+1}], v{vX+1} offset:1024')
            a.e(f'ds_read_b64 v[{PV1}:{PV1+1}], v{vX+1} offset:1536')
            for m in range(8): hblock(a, 'g0', 'u0', 'g1', 'u1', m, 's62', vT)
            st.at(3, 1); st.at(2, 3)
            for m in range(3): packqk(a, 'k0', 'k1', m)
            for m in range(4): packqk(a, 'q0', 'q1', m)
            for r in range(12): a.e(f'v_accvgpr_read_b32 v{BI+r}, a{aBI+r}')
            blk = [(acc[('q0', m)][1], acc[('k0', m-1)][1] if m else KP, acc[('k0', m)][1], PV0+2*m, PV1+2*m, BI+(8 if m == 0 else 4), BI) for m in range(4)]
            W1 = acc[('g1', 0)][1]; W2 = acc[('u0', 0)][1]
            mo = 0
        else:
            F = acc[('u2', 0)][1]
            KR = F; V0 = F + 20; V1 = F + 30; QR = F + 40; BI = F + 56
            for i_ in range(5):
                a.e(f'ds_read_b128 v[{KR+4*i_}:{KR+4*i_+3}], v{vX} offset:{i_*2048}')
                if i_: a.e(f'ds_read_b128 v[{QR+4*(i_-1)}:{QR+4*(i_-1)+3}], v{vX} offset:{10240+(i_-1)*1024}')
            for i_ in range(5):
                a.e(f'ds_read_b64 v[{V0+2*i_}:{V0+2*i_+1}], v{vX+1} offset:{i_*2048+1024}')
                a.e(f'ds_read_b64 v[{V1+2*i_}:{V1+2*i_+1}], v{vX+1} offset:{i_*2048+1536}')
            for m in range(8): hblock(a, 'g4', 'u4', 'g5', 'u5', m, 's65', vT)
            st.at(3, 1); st.at(2, 3)
            for r in range(8): a.e(f'v_accvgpr_read_b32 v{BI+r}, a{aBI+r}')
            blk = [(QR+4*i_, KR+4*i_, KR+4*i_+4, V0+2*i_, V1+2*i_, BI+4, BI) for i_ in range(4)]
            W1 = acc[('g3', 0)][1]; W2 = acc[('g5', 0)][1]
            mo = 4
        a.e('s_waitcnt lgkmcnt(0)')
        def pair(pr):
            A = Asm(); B = Asm()
            attn1(A, *blk[2*pr], W1, W1+16, XR+8*pr); attn1(B, *blk[2*pr+1], W2, W2+16, XR+8*pr+4)
            zipper(A, B)
        def halves():
            if wn == 1:
                for i_ in range(4):
                    d_ = acc[('g6', 2*i_)][1]
                    hmul(a, 'g6', 'u6', 2*i_, d_, vT); hmul(a, 'g6', 'u6', 2*i_+1, d_+2, vT+4)
                    a.e(f'v_permlane16_swap_b32 v{d_}, v{d_+2}'); a.e(f'v_permlane16_swap_b32 v{d_+1}, v{d_+3}')
                    for r in range(4): a.e(f'v_accvgpr_write_b32 a{4*i_+r}, v{d_+r}')
                a.e(f'v_lshrrev_b32 v{vT}, 4, v{vLANE}'); a.e(f'v_and_b32 v{vT+1}, 1, v{vT}'); a.e(f'v_lshrrev_b32 v{vT+2}, 1, v{vT}')
                a.e(f'v_lshlrev_b32 v{vT}, 8, v{vT}'); a.e(f'v_sub_u32 v{hO+1}, v{vO}, v{vT}')
                a.e(f'v_lshl_add_u32 v{hO+1}, v{vT+1}, 10, v{hO+1}'); a.e(f'v_lshl_add_u32 v{hO+1}, v{vT+2}, 8, v{hO+1}')
                a.e(f'v_add_u32 v{hO+2}, 4096, v{hO+1}')
            else:
                a.e('s_mov_b32 s66, 0x80000000'); a.e(f'v_mov_b32 v{hO+1}, v{vO}'); a.e(f'v_mov_b32 v{hO+2}, v{vO}')
        pair(0)
        g2_flagA(a, 0)
        g2_early(a)
        st.at(3, 3)
        pair(1)
        halves()
        a.e(f'v_add_u32 v{hO}, {mo*1024}, v{vO}')
        g2_poll_act(wn)
        if wn == 0: a.e('s_branch L2_late')

    a.label('L2_late')
    NB = 0
    a.e('s_load_dwordx2 s[56:57], s[0:1], 56')
    a.e('s_load_dwordx2 s[58:59], s[0:1], 0')
    a.e(f's_and_b32 s3, s{sWAVE}, 1')
    a.e(f's_mov_b32 s{gU}, 0')
    a.e(f's_lshl_b32 s60, s{sWM}, 12')
    a.e(f'v_lshl_add_u32 v{hA}, v{vLANE}, 4, s60'); a.e(f'v_add_u32 v{hA+1}, 65536, v{hA}')
    tA, tB, tC, tD = hT2, hT2+1, hT2+2, hT2+3
    a.e(f'v_lshrrev_b32 v{tA}, 2, v{vLANE}')
    a.e(f'v_and_b32 v{tB}, 7, v{tA}'); a.e(f'v_lshlrev_b32 v{tB}, 5, v{tB}')
    a.e(f'v_and_b32 v{tC}, 3, v{vLANE}'); a.e(f'v_lshlrev_b32 v{tC}, 3, v{tC}'); a.e(f'v_add_u32 v{tC}, {WB}, v{tC}')
    a.e(f'v_lshl_add_u32 v{hDH}, v{tA}, 8, v{tC}')
    a.e('s_lshl_b32 s60, s3, 6'); a.e(f's_lshl_b32 s{gKC}, s{gPART}, 7'); a.e(f's_add_u32 s{gKC}, s{gKC}, s60')
    for n in range(4):
        a.e(f's_xor_b32 s61, s{gKC}, {32*(n&1) + 128*(n>>1)}')
        a.e(f'v_xor_b32 v{tD}, s61, v{tB}')
        a.e(f'v_add_u32 v{hW+n}, v{tD}, v{hDH}'); a.e(f'v_add_u32 v{hW+4+n}, 65536, v{hW+n}')
    def areg(par, ks, m): return FR + par*64 + ks*16 + m*4
    def wreg(par, ks, n): return FR + par*64 + 32 + ks*16 + n*4
    def reads(slot, par, nn=4):
        hi = 1 if slot >= 4 else 0
        base = (slot & 3)*16384
        def ar_(ks, m): return [f'ds_read_b128 v[{areg(par,ks,m)}:{areg(par,ks,m)+3}], v{hA+hi} offset:{base + ks*8192 + m*1024}']
        def wr_(ks, n):
            if nn == 2: return [f'ds_read_b64_tr_b16 v[{wreg(par,ks,n)+2*h}:{wreg(par,ks,n)+2*h+1}], v{hWH+2*hi+n} offset:{base + ks*4096 + h*2048}' for h in range(2)]
            return [f'ds_read_b64_tr_b16 v[{wreg(par,ks,n)+2*h}:{wreg(par,ks,n)+2*h+1}], v{hW+4*hi+n} offset:{base + ks*8192 + h*4096}' for h in range(2)]
        L = wr_(0, 0) + ar_(0, 0) + wr_(1, 0) + ar_(1, 0)
        for m in range(1, 4): L += ar_(0, m) + ar_(1, m)
        for n in range(1, nn): L += wr_(0, n) + wr_(1, n)
        return L
    a.e(f's_waitcnt vmcnt({4*(NS-1) + NB})'); a.e('s_barrier')
    st.at(6, 1); st.at(7, 3)
    if st.on: a.e('s_waitcnt lgkmcnt(0)')
    for r in reads(0, 0): a.e(r)
    b = Asm()
    b.e(f's_lshl_b32 s{gM_H}, s{sWAVE}, 11'); b.e(f's_add_u32 s{gM_H}, s{gM_H}, {WB}')
    b.e(f'v_and_b32 v{tB}, 6, v{tA}'); b.e(f'v_lshlrev_b32 v{tB}, 4, v{tB}')
    b.e(f'v_lshl_add_u32 v{tC}, v{tA}, 7, v{tC}')
    b.e('s_lshl_b32 s46, s3, 6')
    for n in range(2):
        b.e(f's_or_b32 s61, s46, {32*n}')
        b.e(f'v_xor_b32 v{tD}, s61, v{tB}')
        b.e(f'v_add_u32 v{hWH+n}, v{tD}, v{tC}'); b.e(f'v_add_u32 v{hWH+2+n}, 65536, v{hWH+n}')
    b.e(f'v_lshrrev_b32 v{tA}, 3, v{vLANE}'); b.e(f'v_and_b32 v{tB}, 6, v{tA}'); b.e(f'v_and_b32 v{tC}, 7, v{vLANE}')
    b.e(f'v_xor_b32 v{tB}, v{tB}, v{tC}')
    b.e('s_lshl_b32 s46, s3, 15'); b.e(f's_lshl_b32 s61, s{gCB}, 8'); b.e('s_or_b32 s46, s46, s61')
    b.e(f's_lshl_b32 s61, s{gPART}, 7'); b.e('s_or_b32 s46, s46, s61')
    b.e(f'v_lshl_add_u32 v{tA}, v{tA}, 11, s46'); b.e(f'v_lshl_add_u32 v{hDH}, v{tB}, 4, v{tA}')
    b.e(f'v_add_u32 v{hDH+1}, 16384, v{hDH}')
    for (d_, lo, nb) in ((G_X, 58, 2048*1024*2), (G_OUT, 56, 2048*1024*2)):
        b.e(f's_mov_b32 s{d_}, s{lo}'); b.e(f's_mov_b32 s{d_+1}, s{lo+1}'); b.e(f's_mov_b32 s{d_+2}, {nb}'); b.e(f's_mov_b32 s{d_+3}, 0x20000')
    b.e(f's_lshl_b32 s46, s{gRB}, 18'); b.e(f's_lshl_b32 s61, s{sWM}, 17'); b.e('s_or_b32 s46, s46, s61')
    b.e(f's_lshl_b32 s61, s{gCB}, 8'); b.e('s_or_b32 s46, s46, s61'); b.e('s_or_b32 s46, s46, s45')
    b.e(f'v_and_b32 v{tB}, 15, v{vLANE}'); b.e(f'v_lshl_add_u32 v{tB}, v{tB}, 11, s46')
    b.e(f'v_lshrrev_b32 v{tA}, 4, v{vLANE}')
    b.e(f'v_and_b32 v{tC}, 1, v{tA}'); b.e(f'v_lshl_add_u32 v{tB}, v{tC}, 5, v{tB}')
    b.e(f'v_lshrrev_b32 v{tC}, 1, v{tA}'); b.e(f'v_lshl_add_u32 v{hXO}, v{tC}, 4, v{tB}')
    b.e(f's_lshl_b32 s46, s{gRB}, 6'); b.e(f's_lshl_b32 s61, s{gCB}, 3'); b.e('s_or_b32 s46, s46, s61')
    b.e(f's_lshl_b32 s61, s{gPART}, 2'); b.e('s_or_b32 s46, s46, s61'); b.e(f's_or_b32 s46, s46, s{sWAVE}')
    b.e('s_xor_b32 s47, s46, 4')
    b.e('s_lshl_b32 s61, s46, 7'); b.e(f'v_mov_b32 v{hFS}, s61')
    b.e('s_lshl_b32 s61, s47, 7'); b.e(f'v_mov_b32 v{hFL}, s61')
    b.e('s_lshl_b32 s46, s46, 12'); b.e('s_lshl_b32 s47, s47, 12')
    b.e(f'v_lshl_add_u32 v{hPS}, v{vLANE}, 4, s46'); b.e(f'v_lshl_add_u32 v{hPL}, v{vLANE}, 4, s47')
    srd(b, G_P, 6, 7, PART_BYTES, PART_OFF)
    b.e(f'v_add_u32 v{hTS+2}, {BFLAG_REL-AFLAG_REL}, v{hTS+2}')
    b.e(f's_lshl_b32 s46, s{sWAVE}, 4'); b.e(f'v_readlane_b32 s47, v{hTS+3}, s46'); b.e(f's_add_u32 s47, s47, {BFLAG_REL-AFLAG_REL}')
    b.e(f'v_bfe_u32 v{tA}, v{vLANE}, 1, 3'); b.e(f'v_lshl_add_u32 v{hTS+3}, v{tA}, 9, s47')
    b.e(f'v_and_b32 v{tA}, 1, v{vLANE}'); b.e(f'v_lshl_add_u32 v{hTS+3}, v{tA}, 7, v{hTS+3}')
    b.e(f's_mul_i32 s65, s{gPART}, {2*10+1}'); b.e('s_sub_u32 s65, s65, 1')
    b.e('s_mov_b32 s64, 0xffff0000'); b.e('s_mov_b32 s61, 32768'); b.e('s_mov_b32 s62, 65536'); b.e('s_mov_b32 s63, 98304')
    late = [x.text for x in b.ins]
    rowoff = ['0', 's61', 's62', 's63']
    VM2 = 8*(NS-2); UN = 2*NS; LS = FS - NS; uexit = (LS - 1) % UN
    def rec():
        if cfg.stamps != 7: return
        a.e('s_memrealtime s[86:87]'); a.e('s_waitcnt lgkmcnt(0)')
        a.e('v_mov_b32 v28, s86'); a.e(f'v_cmp_eq_u32 vcc, s88, v{vLANE}'); a.e('v_cndmask_b32 v29, v29, v28, vcc'); a.e('s_add_u32 s88, s88, 1')
    if cfg.stamps == 7: a.e('s_mov_b32 s88, 0')
    def full_step(u, wait, inloop, fill=(), head=(), post_vm=()):
        slot = u % NS; par = u & 1
        a.e(f's_waitcnt vmcnt({wait}) lgkmcnt(0)'); a.e('s_barrier'); rec()
        for x in head: a.e(x)
        sched = {}
        for i, r in enumerate(reads((slot+1) % NS, par ^ 1)): sched.setdefault(i, []).append(r)
        for i, (pre, ins, post) in enumerate(g2_dma(slot)):
            p = 1 + 3*i
            for x in pre: sched.setdefault(p-1, []).append(x)
            sched.setdefault(p, []).append(ins)
            for k_, x in enumerate(post): sched.setdefault(min(30, p + 1 + k_//2), []).append(x)
        pos_ = 0
        for k_, x in enumerate(fill):
            if not x.startswith('s_addc'):
                pos_ = (k_*22)//len(fill)
                if k_+1 < len(fill) and fill[k_+1].startswith('s_addc') and pos_ % 3 == 0: pos_ += 1
            sched.setdefault(pos_, []).append(x)
        for k_, x in enumerate(post_vm): sched.setdefault(24 + 2*k_, []).append(x)
        if inloop and u == uexit:
            sched.setdefault(31, []).append(f's_add_u32 s{gU}, s{gU}, {UN}')
            sched.setdefault(31, []).append(f's_cmp_ge_u32 s{gU}, {LS}')
        if inloop and u in (0, 1, 6, 7):
            sched.setdefault(31, []).append(f's_cmp_eq_u32 s{gU}, {("s65", UN, 0, 0, 0, 0, UN, 0)[u]}')
        i = 0
        for n in range(4):
            for m in range(4):
                for ks in range(2):
                    d = ACC + (n*4+m)*4
                    c = '0' if (u == 0 and not inloop and ks == 0) else f'v[{d}:{d+3}]'
                    a.e(f'{MF} v[{d}:{d+3}], v[{wreg(par,ks,n)}:{wreg(par,ks,n)+3}], v[{areg(par,ks,m)}:{areg(par,ks,m)+3}], {c}')
                    for x in sched.get(i, []): a.e(x)
                    i += 1
        if inloop and u in (0, 1, 6, 7):
            a.e(f's_cbranch_scc1 L2_b{u}'); a.label(f'L2_bret{u}')
    NPEEL = cfg.npeel
    assert uexit >= NPEEL and uexit not in (0, 1, 6, 7) and NPEEL <= 7
    nl_ = len(late)
    bst = [f'buffer_store_dwordx4 v[{XR+4*i_}:{XR+4*i_+3}], v{hO}, s[{S_O}:{S_O+3}], s67 offen offset:{i_*1024} sc1' for i_ in range(4)] + \
          [f'buffer_store_dwordx4 a[{4*m}:{4*m+3}], v{hO+1+(m>>1)}, s[{S_O}:{S_O+3}], s66 offen offset:{(m&1)*2048} sc1' for m in range(4)]
    q0 = [t_ for t_ in range(1, NS) for _ in range(4)]
    BP = cfg.bper
    assert 8 <= BP*3
    for u in range(NPEEL):
        last = max(i_ for i_, x in enumerate(q0) if x == u+1)
        full_step(u, len(q0) - 1 - last, False, fill=late[(u*nl_)//3:((u+1)*nl_)//3] if u < 3 else (), post_vm=bst[BP*u:BP*u+BP])
        q0 = q0[last+1:] + [u+NS]*8 + ['b']*len(bst[BP*u:BP*u+BP])
    a.e('s_branch L2_uin')
    a.label('L2_b0')
    a.e(f's_and_b32 s3, s{sWAVE}, 1'); a.e('s_mul_i32 s3, s3, -24576')
    for d in range(4):
        a.e(f'v_add_u32 v{hDW+d}, s3, v{hDW+d}'); a.e('s_add_u32 s3, s3, 8192')
    a.e('s_branch L2_bret0')
    a.label('L2_b7')
    a.e('s_mov_b64 exec, 1')
    a.e(f'buffer_store_dwordx2 v[{hTS}:{hTS+1}], v{hTS+2}, s[{G_F}:{G_F+3}], 0 offen sc1')
    a.e('s_mov_b64 exec, -1')
    a.e('s_branch L2_bret7')
    a.label('L2_b1')
    a.e(f'buffer_load_dwordx2 v[{hBF}:{hBF+1}], v{hTS+3}, s[{G_F}:{G_F+3}], 0 offen sc1')
    a.e('s_branch L2_bret1')
    a.label('L2_b6')
    a.e('s_mov_b32 s3, 0')
    a.label('L2_bchk')
    stamp_ok(a, hBF, 66); a.e('s_cbranch_scc1 L2_bret6')
    a.e('s_add_u32 s3, s3, 1'); a.e('s_cmp_gt_u32 s3, 0x8000'); a.e('s_cbranch_scc1 L2_bret6')
    a.e(f'buffer_load_dwordx2 v[{hBF}:{hBF+1}], v{hTS+3}, s[{G_F}:{G_F+3}], 0 offen sc1')
    a.e('s_waitcnt vmcnt(0)'); a.e('s_branch L2_bchk')
    a.label('L2_loop')
    for u in range(UN):
        if u == NPEEL: a.label('L2_uin')
        full_step(u, VM2, True)
        if u == uexit: a.e('s_cbranch_scc1 L2_half')
        if u == UN-1: a.e('s_branch L2_loop')
    a.label('L2_half')
    q = []
    for t in range(LS+1, FS): q += [('d', t)]*8
    def wait_for(pred, extra=''):
        last = max([i for i, x in enumerate(q) if pred(x)], default=-1)
        a.e(f's_waitcnt vmcnt({min(len(q) - 1 - last, 63)}){extra}')
        del q[:last+1]
    def fload(): a.e(f'buffer_load_dwordx2 v[{hBF}:{hBF+1}], v{hFL}, s[{G_F}:{G_F+3}], 0 offen sc1')
    def pl():
        for k_ in range(4): a.e(f'buffer_load_dwordx4 v[{ACC+32+4*k_}:{ACC+32+4*k_+3}], v{hPL}, s[{G_P}:{G_P+3}], 0 offen offset:{k_*1024} sc1')
    for t in range(LS, TOT):
        hs = t - FS; slot = t % NS; par = t & 1
        nn = 4 if hs < 0 else 2
        if any(x == ('d', t+1) for x in q): wait_for(lambda x: x == ('d', t+1), ' lgkmcnt(0)')
        else: a.e('s_waitcnt lgkmcnt(0)')
        if t+1 < TOT: a.e('s_barrier')
        rec()
        sched = {}
        def add(i, x, tag=None): sched.setdefault(i, []).append((x, tag))
        if t + 1 < TOT:
            for i, r in enumerate(reads((slot+1) % NS, par ^ 1, 4 if t+1 < FS else 2)): add(i, r)
        extra = []
        if t + NS < TOT:
            for pre, ins, post in g2_dma(slot, compact=True):
                extra += [(x, None) for x in pre] + [(ins, ('d', t+NS))] + [(x, None) for x in (post if t+NS+1 < TOT else [])]
        if hs == max(HS-NS, 1):
            extra += [(f'buffer_load_dwordx4 v[{XR+4*m}:{XR+4*m+3}], v{hXO}, s[{G_X}:{G_X+3}], {rowoff[m]} offen', ('x', 0)) for m in range(4)]
        if hs == 0:
            for k_ in range(4):
                c0 = ACC+32+4*k_; c1 = ACC+48+4*k_
                extra += [(f'v_cvt_pk_bf16_f32 v{c0}, v{c0}, v{c0+1}', None), (f'v_cvt_pk_bf16_f32 v{c0+1}, v{c0+2}, v{c0+3}', None),
                          (f'v_cvt_pk_bf16_f32 v{c0+2}, v{c1}, v{c1+1}', None), (f'v_cvt_pk_bf16_f32 v{c0+3}, v{c1+2}, v{c1+3}', None),
                          (f'buffer_store_dwordx4 v[{c0}:{c0+3}], v{hPS}, s[{G_P}:{G_P+3}], 0 offen offset:{k_*1024} sc1', ('s', 0))]
        for k_, (x, tag) in enumerate(extra): add((k_*8*nn)//max(len(extra), 1), x, tag)
        i = 0
        for n in range(nn):
            for m in range(4):
                for ks in range(2):
                    d = ACC + (n*4+m)*4
                    a.e(f'{MF} v[{d}:{d+3}], v[{wreg(par,ks,n)}:{wreg(par,ks,n)+3}], v[{areg(par,ks,m)}:{areg(par,ks,m)+3}], v[{d}:{d+3}]')
                    for x, tag in sched.get(i, []):
                        a.e(x)
                        if tag: q.append(tag)
                    i += 1
        if hs == cfg.k2_flg:
            wait_for(lambda x: x[0] == 's')
            a.e('s_mov_b64 exec, 1')
            a.e(f'buffer_store_dwordx2 v[{hTS}:{hTS+1}], v{hFS}, s[{G_F}:{G_F+3}], 0 offen sc1'); q.append(('f', 0))
            a.e('s_mov_b64 exec, -1')
        if hs == cfg.k2_chk-1:
            fload(); q.append(('p', 0))
        if hs == cfg.k2_chk:
            assert hs == HS-1
            wait_for(lambda x: x[0] == 'p')
    a.e('s_mov_b32 s3, 0')
    a.label('L2_chk')
    stamp_ok(a, hBF, 66); a.e('s_cbranch_scc1 L2_have')
    a.e('s_add_u32 s3, s3, 1'); a.e('s_cmp_gt_u32 s3, 0x40000'); a.e('s_cbranch_scc1 L2_have')
    fload(); a.e('s_waitcnt vmcnt(0)'); a.e('s_branch L2_chk')
    a.label('L2_have')
    rec()
    pl()
    st.at(7, 1)
    for m in range(4):
        Tm = FR + m*8; x = XR + 4*m
        for r in range(4):
            a.e(f'v_lshlrev_b32 v{Tm+2*r}, 16, v{x+r}'); a.e(f'v_and_b32 v{Tm+2*r+1}, s64, v{x+r}')
    for m in range(4):
        x = XR + 4*m; c0 = ACC + 4*m; c1 = ACC + 16 + 4*m; Tm = FR + m*8; pk = ACC + 32 + 4*m; U = FR + 32 + m*8
        a.e('s_waitcnt vmcnt(3)')
        for r in range(4):
            a.e(f'v_lshlrev_b32 v{U+2*r}, 16, v{pk+r}'); a.e(f'v_and_b32 v{U+2*r+1}, s64, v{pk+r}')
        for (c, p) in ((c0, U), (c1, U+4)):
            a.e(f'v_pk_add_f32 {P2(c)}, {P2(c)}, {P2(p)}'); a.e(f'v_pk_add_f32 {P2(c+2)}, {P2(c+2)}, {P2(p+2)}')
        for r in range(4): a.e(f'v_permlane16_swap_b32 v{c0+r}, v{c1+r}')
        a.e(f'v_pk_add_f32 {P2(c0)}, {P2(c0)}, {P2(Tm)}'); a.e(f'v_pk_add_f32 {P2(c0+2)}, {P2(c0+2)}, {P2(Tm+2)}')
        a.e(f'v_pk_add_f32 {P2(c1)}, {P2(c1)}, {P2(Tm+4)}'); a.e(f'v_pk_add_f32 {P2(c1+2)}, {P2(c1+2)}, {P2(Tm+6)}')
        a.e(f'v_cvt_pk_bf16_f32 v{x}, v{c0}, v{c0+1}'); a.e(f'v_cvt_pk_bf16_f32 v{x+1}, v{c0+2}, v{c0+3}')
        a.e(f'v_cvt_pk_bf16_f32 v{x+2}, v{c1}, v{c1+1}'); a.e(f'v_cvt_pk_bf16_f32 v{x+3}, v{c1+2}, v{c1+3}')
        a.e(f'buffer_store_dwordx4 v[{x}:{x+3}], v{hXO}, s[{G_OUT}:{G_OUT+3}], {rowoff[m]} offen')
    if st.on:
        a.e('s_waitcnt vmcnt(0)'); st.at(3, 2)
    if cfg.stamps == 7:
        a.e('s_waitcnt vmcnt(0)'); rec()
        srd(a, 92, 6, 7, 1 << 20, STAMP_OFF + (1 << 19))
        a.e('s_lshl_b32 s96, s2, 10'); a.e(f's_lshl_b32 s97, s{sWAVE}, 8'); a.e('s_add_u32 s96, s96, s97')
        a.e(f'v_lshl_add_u32 v{hT2}, v{vLANE}, 2, s96')
        a.e(f'buffer_store_dword v29, v{hT2}, s[92:95], 0 offen')
    st.flush(sWAVE, hT2, hT2+1)
    a.label('L_end')
    a.e('s_endpgm')
    return name

def build(cfg):
    a = Asm()
    a.e('.amdgcn_target "amdgcn-amd-amdhsa--gfx950"'); a.e('.text')
    name = gen(a, cfg)
    a.fix()
    head = open('cdna_kernels/' + NAME + '.s.ref').read().split('\n')
    hdr = [l for l in head[:13] if l.startswith(';') and '@launch' not in l and 'Override' not in l and 'grid=ceil' not in l]
    out = '\n'.join(hdr) + '\n; @launch grid=(256,1,1) block=(256,1,1) lds=163840\n' + a.text()
    out += f'''.section .rodata,"a"
.p2align 6
.amdhsa_kernel {name}
  .amdhsa_next_free_vgpr 512
  .amdhsa_next_free_sgpr 102
  .amdhsa_accum_offset 256
  .amdhsa_group_segment_fixed_size 0
  .amdhsa_kernarg_size 80
  .amdhsa_user_sgpr_count 2
  .amdhsa_user_sgpr_kernarg_segment_ptr 1
  .amdhsa_system_sgpr_workgroup_id_x 1
.end_amdhsa_kernel
'''
    return out

if __name__ == '__main__':
    cfg = Cfg()
    outp = sys.argv[1] if len(sys.argv) > 1 else 'cdna_kernels/' + NAME + '.s'
    for kv in sys.argv[2:]:
        k, v = kv.split('='); assert hasattr(cfg, k), k; setattr(cfg, k, int(v))
    open(outp, 'w').write(build(cfg))
    sys.path.insert(0, 'cdna_kernels')
    import subprocess, cdna_launch as cl
    h = cl.with_harness_metadata(open(outp).read(), NAME + '_kernel', 10, launch_lists=True)
    open('h.s', 'w').write(h)
    r = subprocess.run(['clang', '-x', 'assembler', '-target', 'amdgcn-amd-amdhsa', '-mcpu=gfx950', 'h.s', '-o', 'h.co'], capture_output=True, text=True)
    if r.returncode: print(r.stderr[:1500]); sys.exit(1)
    print('wrote', outp, 'check:', cl.address_register_problem('h.co', NAME + '_kernel', None))
```

```python
import sys
sys.path.insert(0, 'dev')
from asmlib import *

NAME = 'parallel_sum__sliding_local_dilated__glu_gated_bilinear__prompt'
XN_OFF = 0;            XN_BYTES = 32*128*1024
ACT2_OFF = 4 << 20;    ACT2_BYTES = 144*128*1024
PART_OFF = 24 << 20;   PART_BYTES = 1024*4096
FLAG_OFF = 32 << 20
PFLAG_REL = 0; XFLAG_REL = 256 << 10; AFLAG_REL = 512 << 10; BFLAG_REL = 640 << 10
STAMP_OFF = 40 << 20

class Cfg:
    stamps = 0
    pfd = 8; pf3n = 56; pf3w = 27; f0ne = 4; f0sl = 0
    k2_fs = 34; k2_flg = 2; k2_chk = 3
    g1sl = 0
    ncpf = 6
    dsp = 3
    d0 = 1
    rd0 = 0
    rsp = 24
    pfx = 1
    hk = 0
    wlate = 0
    cpf2 = 0
    w0late = 0
    epub = 1
    ost = 0
    ilv = 0
    bper = 3
    npeel = 7
    fa_at = 2
    def __init__(self, **kw):
        for k, v in kw.items(): setattr(self, k, v)

def srd(a, d, lo, hi, nbytes, off=0):
    if off:
        a.e(f's_add_u32 s{d}, s{lo}, {off}'); a.e(f's_addc_u32 s{d+1}, s{hi}, 0')
    else:
        a.e(f's_mov_b32 s{d}, s{lo}'); a.e(f's_mov_b32 s{d+1}, s{hi}')
    a.e(f's_mov_b32 s{d+2}, {nbytes}'); a.e(f's_mov_b32 s{d+3}, 0x20000')

def code_pf(a, start, end, vlane, vtmp, vdum, spc, nins):
    a.e(f's_getpc_b64 s[{spc}:{spc+1}]')
    lab = f'Lpc_{start}'
    a.label(lab)
    a.e(f's_add_u32 s{spc}, s{spc}, {start}-{lab}')
    a.e(f's_addc_u32 s{spc+1}, s{spc+1}, 0')
    for i in range(nins):
        a.e(f'v_lshlrev_b32 v{vtmp}, 7, v{vlane}')
        if i: a.e(f'v_add_u32 v{vtmp}, {i*8192}, v{vtmp}')
        a.e(f'v_min_u32 v{vtmp}, {end}-{start}-4, v{vtmp}')
        a.e(f'global_load_dword v{vdum}, v{vtmp}, s[{spc}:{spc+1}]')

class Stamper:
    def __init__(self, a, on): self.a = a; self.on = on
    def at(self, i, mode=1):
        if self.on == mode or (self.on and i == 0): self.a.e(f's_memrealtime s[{70+2*i}:{71+2*i}]')
    def flush(self, wave, vt0, vt1):
        if not self.on: return
        a = self.a
        a.e('s_waitcnt lgkmcnt(0)')
        srd(a, 92, 6, 7, 1 << 20, STAMP_OFF)
        a.e('s_lshl_b32 s96, s2, 8'); a.e(f's_lshl_b32 s97, s{wave}, 6'); a.e('s_add_u32 s96, s96, s97')
        a.e(f'v_mov_b32 v{vt0}, s96')
        a.e('s_mov_b64 exec, 1')
        for i in range(8):
            a.e(f'v_mov_b32 v{vt1}, s{70+2*i}')
            a.e(f'buffer_store_dword v{vt1}, v{vt0}, s[92:95], 0 offen offset:{4*i}')
        a.e('s_mov_b64 exec, -1')

class LgkmTracker:
    def __init__(self, a): self.a = a; self.q = []
    def read(self, text):
        self.a.e(text); self.q.append(set(Ins(text).dst))
    def other(self): self.q.append(set())
    def need(self, regs):
        regs = set(regs); last = -1
        for i, d in enumerate(self.q):
            if d & regs: last = i
        if last < 0: return
        n = min(len(self.q) - 1 - last, 15)
        self.a.e(f's_waitcnt lgkmcnt({n})')
        self.q = self.q[len(self.q) - n:] if n else []
    def drain(self): self.q = []
    def state(self): return [tuple(sorted(x)) for x in self.q]

def P2(r): return f'v[{r}:{r+1}]'
def AR(r): return f'a[{r}:{r+3}]'
MF = 'v_mfma_f32_16x16x32_bf16'

L1_W = 65536; L1_HALO = 147456; L1_STAT = 151552
sT0 = 100; sCHK = 101; sWAVE = 51; BACK = 2500; WIN = 1 << 17

def stamp_ok(a, v, stmp):
    a.e(f'v_xor_b32 v{v+1}, v{v}, v{v+1}'); a.e(f'v_subrev_u32 v{v}, s{sT0}, v{v}')
    a.e(f'v_lshrrev_b32 v{v}, 17, v{v}')
    a.e(f'v_cmp_eq_u32 vcc, s{sCHK}, v{v+1}'); a.e(f'v_cmp_eq_u32 s[{stmp}:{stmp+1}], 0, v{v}')
    a.e(f's_and_b64 vcc, vcc, s[{stmp}:{stmp+1}]')
    a.e('s_cmp_eq_u64 vcc, exec')

def gen(a, cfg):
    name = NAME + '_kernel'
    a.e(f'.globl {name}'); a.e('.p2align 8'); a.e(f'.type {name},@function'); a.label(name)
    st = Stamper(a, cfg.stamps)
    S_XN = 8; S_W = 12; S_O = 32
    sACT = 36; sWO = 37; sWS = 42; sM_ACT = 47; sM_W = 48; sM_H = 49; sCNT = 50; sWM = 52; sRB = 54; sJ = 55
    S_PF = 88; sPFO = 86; sPFS = 87
    vLANE = 1; vDA = 2; vDH = 3; vDW = 4
    vA = 9; vHA = 10; vGU = 11; vQa = 13; vQb = 15; vHW = 17; vPF = 19; vT = 20; vDUM = 31
    aBI = 200
    a.e('s_cmp_ge_u32 s2, 256'); a.e('s_cbranch_scc1 L_end')
    st.at(0)
    a.e('s_load_dwordx2 s[96:97], s[0:1], 0')
    a.e('s_load_dwordx2 s[4:5], s[0:1], 8')
    a.e('s_load_dwordx4 s[56:59], s[0:1], 32')
    a.e('s_load_dwordx2 s[6:7], s[0:1], 72')
    a.e('s_load_dwordx2 s[68:69], s[0:1], 48')
    a.e('s_load_dwordx2 s[92:93], s[0:1], 16')
    a.e('s_memrealtime s[60:61]')
    a.e(f'v_lshrrev_b32 v{vT}, 6, v0')
    a.e(f'v_and_b32 v{vLANE}, 63, v0')
    a.e(f'v_readfirstlane_b32 s{sWAVE}, v{vT}')
    a.e(f's_cmp_lg_u32 s{sWAVE}, 3'); a.e('s_cbranch_scc1 L1_nocpf0')
    code_pf(a, 'L1_nocpf0', 'L1_wn1', vLANE, 134, 135, 94, 1)
    a.label('L1_nocpf0')
    a.e(f'v_lshrrev_b32 v128, 3, v{vLANE}'); a.e(f'v_and_b32 v129, 7, v{vLANE}')
    a.e('s_lshl_b32 s3, s2, 14')
    a.e('v_lshl_add_u32 v130, v128, 11, s3'); a.e(f'v_lshl_add_u32 v130, v{vT}, 9, v130'); a.e('v_lshl_add_u32 v130, v129, 4, v130')
    a.e('s_mov_b32 s98, 0x400000'); a.e('s_mov_b32 s99, 0x20000')
    a.e('s_waitcnt lgkmcnt(0)')
    for it in range(4): a.e(f'buffer_load_dwordx4 v[{32+4*it}:{35+4*it}], v130, s[96:99], 0 offen offset:{it*128}')
    a.e(f's_sub_u32 s{sT0}, s60, {BACK}')
    a.e(f's_not_b32 s{sCHK}, s61')
    a.e(f's_and_b32 s{sJ}, s2, 7'); a.e(f's_lshl_b32 s{sJ}, s{sJ}, 2')
    a.e('s_lshr_b32 s3, s2, 3')
    a.e(f's_lshr_b32 s{sRB}, s3, 2'); a.e('s_and_b32 s3, s3, 3'); a.e(f's_add_u32 s{sJ}, s{sJ}, s3')
    a.e(f's_lshr_b32 s{sWM}, s{sWAVE}, 1')
    a.e(f's_lshl_b32 s62, s{sJ}, 6'); a.e(f's_mul_i32 s63, s{sJ}, 224')
    a.e(f's_and_b32 s64, s{sJ}, 1'); a.e('s_lshl_b32 s64, s64, 1')
    a.e('s_movk_i32 s65, 6144'); a.e('s_movk_i32 s66, 7168')
    for w in (1, 2, 3):
        a.e(f's_cmp_eq_u32 s{sWAVE}, {w}'); a.e(f's_cbranch_scc1 L1_set{w}')
    for w in range(4):
        if w: a.label(f'L1_set{w}')
        t0, t1, t2, t3 = vT+1, vT+2, vT+3, vT+4
        if w < 3:
            a.e(f'v_mul_u32_u24 v{t0}, 21846, v{vLANE}'); a.e(f'v_lshrrev_b32 v{t0}, 16, v{t0}')
            a.e(f'v_mul_u32_u24 v{t1}, 3, v{t0}'); a.e(f'v_sub_u32 v{t1}, v{vLANE}, v{t1}')
            a.e(f's_lshl_b32 s60, s{sRB}, 2'); a.e(f'v_add_u32 v{t0}, s60, v{t0}')
            if w == 0:
                a.e(f'v_lshlrev_b32 v{t1}, 11, v{t1}'); a.e(f'v_add_u32 v{t1}, s62, v{t1}')
            else:
                a.e(f'v_lshlrev_b32 v{t1}, 7, v{t1}'); a.e(f'v_min_u32 v{t1}, 220, v{t1}'); a.e(f'v_add_u32 v{t1}, s63, v{t1}')
            a.e(f'v_mad_u32_u24 v{vPF}, v{t0}, s{65 if w == 0 else 66}, v{t1}')
            nl = 12
            a.e(f's_mov_b32 s{sPFS}, {32*(6144 if w == 0 else 7168)}'); a.e(f's_mov_b32 s{sPFO}, 0')
            srd(a, S_PF, *((4, 5, 1024*3072*2), (56, 57, 1024*3584*2), (58, 59, 1024*3584*2))[w])
        else:
            a.e(f'v_lshlrev_b32 v{vPF}, 7, v{vLANE}')
            nl = cfg.pf3n
            a.e(f's_mov_b32 s{sPFS}, {nl*128}'); a.e(f's_mov_b32 s{sPFO}, {(-(cfg.pf3w + cfg.pfd-3)*nl*128) & 0xffffffff}')
            a.e(f's_mul_i32 s60, s2, {224*128}')
            a.e(f's_add_u32 s{S_PF}, s68, s60'); a.e(f's_addc_u32 s{S_PF+1}, s69, 0')
            a.e(f's_mov_b32 s{S_PF+2}, {224*128}'); a.e(f's_mov_b32 s{S_PF+3}, 0x20000')
        a.e(f'v_mov_b32 v{t2}, 0x80000000')
        a.e(f'v_cmp_gt_u32 vcc, {nl}, v{vLANE}')
        a.e(f'v_cndmask_b32 v{vPF}, v{t2}, v{vPF}, vcc')
        for _ in range(cfg.f0ne if not cfg.pfx else cfg.pfx-1):
            a.e(f'buffer_load_dword v{vDUM}, v{vPF}, s[{S_PF}:{S_PF+3}], s{sPFO} offen'); a.e(f's_add_u32 s{sPFO}, s{sPFO}, s{sPFS}')
        for d in range(5):
            p = 5*w + d
            if p < 6: kind, pl, C, magic = 'q', p, 12, 5462
            elif p < 13: kind, pl, C, magic = 'g', p-6, 14, 4682
            else: kind, pl, C, magic = 'u', p-13, 14, 4682
            a.e(f'v_add_u32 v{t0}, {64*pl}, v{vLANE}')
            a.e(f'v_mul_u32_u24 v{t1}, {magic}, v{t0}')
            a.e(f'v_lshrrev_b32 v{t1}, 16, v{t1}')
            a.e(f'v_mul_u32_u24 v{t2}, {C}, v{t1}')
            a.e(f'v_sub_u32 v{t0}, v{t0}, v{t2}')
            if kind == 'q':
                a.e(f'v_lshrrev_b32 v{t2}, 1, v{t1}'); a.e(f'v_and_b32 v{t2}, 2, v{t2}')
                a.e(f'v_xor_b32 v{t0}, v{t0}, v{t2}')
                a.e(f'v_lshrrev_b32 v{t2}, 2, v{t0}'); a.e(f'v_lshlrev_b32 v{t2}, 11, v{t2}')
                a.e(f'v_and_b32 v{t0}, 3, v{t0}')
                a.e(f'v_lshl_add_u32 v{t0}, v{t0}, 4, v{t2}')
                a.e(f'v_add_u32 v{t0}, s62, v{t0}')
            else:
                a.e(f'v_add_u32 v{t0}, s64, v{t0}')
                a.e(f'v_subrev_u32 v{t2}, 14, v{t0}')
                a.e(f'v_min_u32 v{t0}, v{t0}, v{t2}')
                a.e(f'v_lshl_add_u32 v{t0}, v{t0}, 4, s63')
            a.e(f'v_and_b32 v{t2}, 3, v{t1}')
            a.e(f'v_bfe_u32 v{t3}, v{t1}, 2, 2')
            a.e(f'v_lshl_add_u32 v{t2}, v{t3}, 3, v{t2}')
            a.e(f'v_lshrrev_b32 v{t3}, 4, v{t1}')
            a.e(f'v_lshl_add_u32 v{t2}, v{t3}, 2, v{t2}')
            a.e(f'v_mad_u32_u24 v{vDW+d}, v{t2}, s{65 if kind == "q" else 66}, v{t0}')
            srd(a, S_W+4*d, *{'q': (4, 5, 1024*3072*2), 'g': (56, 57, 1024*3584*2), 'u': (58, 59, 1024*3584*2)}[kind])
            a.e(f's_mov_b32 s{sWS+d}, {32*(6144 if kind == "q" else 7168)}')
        if w < 3: a.e('s_branch L1_setdone')
    a.label('L1_setdone')
    srd(a, S_XN, 6, 7, XN_BYTES)
    srd(a, 96, 6, 7, 1 << 20, FLAG_OFF)
    a.e('v_lshrrev_b32 v131, 2, v129'); a.e(f'v_lshl_add_u32 v131, v{vT}, 3, v131'); a.e('v_lshlrev_b32 v131, 17, v131')
    a.e('v_and_b32 v132, 3, v129'); a.e('v_lshl_add_u32 v131, v132, 8, v131'); a.e('v_lshl_add_u32 v131, v128, 4, v131')
    a.e('s_lshr_b32 s60, s2, 1'); a.e('s_lshl_b32 s60, s60, 10'); a.e('s_and_b32 s61, s2, 1'); a.e('s_lshl_b32 s61, s61, 7'); a.e('s_add_u32 s60, s60, s61')
    a.e('v_add_u32 v131, s60, v131')
    a.e('v_lshlrev_b32 v132, 5, v128'); a.e(f'v_add_u32 v132, {L1_STAT}, v132'); a.e(f'v_lshl_add_u32 v133, v{vT}, 3, v132')
    a.e('s_mov_b32 s60, 0xffff0000'); a.e('s_mov_b32 s61, 262144'); a.e('s_mov_b32 s62, 524288'); a.e('s_mov_b32 s63, 786432')
    a.e('v_mov_b32 v120, 0x43800000'); a.e('v_mov_b32 v121, 0x3727c5ac'); a.e('v_mov_b32 v122, 0x3a800000')
    st.at(4, 2)
    a.e(f's_waitcnt vmcnt({cfg.f0ne if not cfg.pfx else cfg.pfx-1})')
    st.at(5, 2)
    if cfg.pfx:
        for _ in range(cfg.f0ne - (cfg.pfx-1)):
            a.e(f'buffer_load_dword v{vDUM}, v{vPF}, s[{S_PF}:{S_PF+3}], s{sPFO} offen'); a.e(f's_add_u32 s{sPFO}, s{sPFO}, s{sPFS}')
    if cfg.hk:
        a.e(f's_cmp_lg_u32 s{sWAVE}, 3'); a.e('s_cbranch_scc1 L1_hkd')
        code_pf(a, 'L1_polled', 'L_end', vLANE, 134, 135, 94, cfg.ncpf)
        a.e('s_mov_b32 s94, 0x200000'); a.e('s_mov_b32 s95, 0x20000')
        a.e('s_lshl_b32 s3, s2, 13'); a.e(f'v_lshlrev_b32 v134, 7, v{vLANE}')
        a.e('buffer_load_dword v135, v134, s[92:95], s3 offen')
        a.label('L1_hkd')
    X = 48; T = 80
    def red8(r):
        a.e(f'v_add_f32_dpp v{r}, v{r}, v{r} quad_perm:[1,0,3,2] row_mask:0xf bank_mask:0xf')
        a.e(f'v_add_f32_dpp v{r}, v{r}, v{r} quad_perm:[2,3,0,1] row_mask:0xf bank_mask:0xf')
        a.e(f'v_add_f32_dpp v{r}, v{r}, v{r} row_half_mirror row_mask:0xf bank_mask:0xf')
    def tree():
        for sp in (4, 2, 1):
            for i_ in range(sp): a.e(f'v_pk_add_f32 {P2(T+2*i_)}, {P2(T+2*i_)}, {P2(T+2*i_+2*sp)}')
    for i_ in range(16):
        a.e(f'v_lshlrev_b32 v{X+2*i_}, 16, v{32+i_}'); a.e(f'v_and_b32 v{X+2*i_+1}, s60, v{32+i_}')
    for i_ in range(8): a.e(f'v_pk_add_f32 {P2(T+2*i_)}, {P2(X+4*i_)}, {P2(X+4*i_+2)}')
    tree()
    a.e(f'v_add_f32 v{T}, v{T}, v{T+1}'); red8(T)
    a.e(f'v_mul_f32 v96, 0xbb800000, v{T}'); a.e('v_mov_b32 v97, v96')
    for i_ in range(16): a.e(f'v_pk_add_f32 {P2(X+2*i_)}, {P2(X+2*i_)}, v[96:97]')
    for i_ in range(8): a.e(f'v_pk_mul_f32 {P2(T+2*i_)}, {P2(X+4*i_)}, {P2(X+4*i_)}')
    for i_ in range(8): a.e(f'v_pk_fma_f32 {P2(T+2*i_)}, {P2(X+4*i_+2)}, {P2(X+4*i_+2)}, {P2(T+2*i_)}')
    tree()
    a.e(f'v_add_f32 v97, v{T}, v{T+1}'); red8(97)
    a.e('ds_write_b64 v133, v[96:97]')
    a.e('s_waitcnt lgkmcnt(0)'); a.e('s_barrier')
    st.at(6, 2)
    a.e('ds_read_b128 v[100:103], v132'); a.e('ds_read_b128 v[104:107], v132 offset:16')
    a.e('s_waitcnt lgkmcnt(0)')
    a.e('v_pk_add_f32 v[108:109], v[100:101], v[102:103]'); a.e('v_pk_add_f32 v[110:111], v[104:105], v[106:107]')
    a.e('v_pk_add_f32 v[108:109], v[108:109], v[110:111]')
    a.e('v_mul_f32 v108, 0x3e800000, v108')
    for r in (100, 102, 104, 106): a.e(f'v_sub_f32 v{r}, v{r}, v108')
    a.e('v_mul_f32 v110, v100, v100'); a.e('v_mul_f32 v111, v102, v102'); a.e('v_fmac_f32 v110, v104, v104'); a.e('v_fmac_f32 v111, v106, v106')
    a.e('v_add_f32 v110, v110, v111')
    a.e('v_fmac_f32 v109, v110, v120'); a.e('v_fmac_f32 v121, v109, v122')
    a.e('v_rsq_f32 v120, v121')
    a.e('v_sub_f32 v122, v108, v96'); a.e('v_mov_b32 v121, v120'); a.e('v_mul_f32 v122, v122, v120'); a.e('v_mov_b32 v123, v122')
    so_ = ['0', 's61', 's62', 's63']
    for it in range(4):
        for i_ in range(4*it, 4*it+4): a.e(f'v_pk_fma_f32 {P2(X+2*i_)}, {P2(X+2*i_)}, v[120:121], v[122:123]')
        for i_ in range(4*it, 4*it+4): a.e(f'v_cvt_pk_bf16_f32 v{32+i_}, v{X+2*i_}, v{X+2*i_+1}')
        a.e(f'buffer_store_dwordx4 v[{32+4*it}:{35+4*it}], v131, s[{S_XN}:{S_XN+3}], {so_[it]} offen sc1')
    st.at(7, 2)
    a.e(f's_lshl_b32 s{sM_ACT}, s{sWAVE}, 12')
    a.e(f's_mul_i32 s{sM_W}, s{sWAVE}, 5120'); a.e(f's_add_u32 s{sM_W}, s{sM_W}, {L1_W}')
    a.e(f's_lshl_b32 s{sM_H}, s{sWAVE}, 8'); a.e(f's_add_u32 s{sM_H}, s{sM_H}, {L1_HALO}')
    a.e(f's_mov_b32 s{sACT}, 0')
    for d in range(5): a.e(f's_mov_b32 s{sWO+d}, 0')
    def dma_list(slot):
        L = []
        for d in range(5):
            L.append((f's_add_u32 m0, s{sM_W}, {slot*20480 + d*1024}',
                      f'buffer_load_dwordx4 v{vDW+d}, s[{S_W+4*d}:{S_W+4*d+3}], s{sWO+d} offen lds',
                      f's_add_u32 s{sWO+d}, s{sWO+d}, s{sWS+d}'))
        for d in range(4):
            L.append((f's_add_u32 m0, s{sM_ACT}, {slot*16384}' if d == 0 else None,
                      f'buffer_load_dwordx4 v{vDA}, s[{S_XN}:{S_XN+3}], s{sACT} offen offset:{d*1024} lds', None))
        L.append((f's_add_u32 m0, s{sM_H}, {slot*1024}',
                  f'buffer_load_dword v{vDH}, s[{S_XN}:{S_XN+3}], s{sACT} offen lds', f's_add_u32 s{sACT}, s{sACT}, 131072'))
        L.append((None, f'buffer_load_dword v{vDUM}, v{vPF}, s[{S_PF}:{S_PF+3}], s{sPFO} offen', f's_add_u32 s{sPFO}, s{sPFO}, s{sPFS}'))
        return L
    def flat(dl): return [x for t_ in dl for x in t_ if x]
    VMW = 12
    if not cfg.wlate:
        for x in flat(dma_list(0)[:5] + dma_list(1)[:5]): a.e(x)
    latepf = [dma_list(0)[10]]*(cfg.pfd-1-cfg.f0ne)
    srd(a, S_O, 6, 7, ACT2_BYTES, ACT2_OFF)
    a.e(f's_lshl_b32 s60, s{sRB}, 14'); a.e(f's_lshl_b32 s61, s{sWAVE}, 12'); a.e('s_add_u32 s61, s61, s60')
    a.e(f'v_lshl_add_u32 v{vDA}, v{vLANE}, 4, s61')
    a.e('s_max_u32 s60, s60, 1024'); a.e('s_sub_u32 s60, s60, 1024')
    a.e(f's_lshl_b32 s61, s{sWAVE}, 8'); a.e('s_add_u32 s61, s61, s60')
    a.e(f'v_lshl_add_u32 v{vDH}, v{vLANE}, 2, s61')
    a.e(f's_lshl_b32 s60, s{sRB}, 5'); a.e('s_sub_u32 s60, s60, 2')
    a.e(f'v_min_u32 v134, 33, v{vLANE}'); a.e('v_add_u32 v134, s60, v134'); a.e('v_max_i32 v134, 0, v134'); a.e('v_lshlrev_b32 v134, 7, v134')
    a.e(f'v_add_u32 v134, {XFLAG_REL}, v134')
    a.e('s_lshl_b32 s60, s2, 7'); a.e(f's_add_u32 s60, s60, {XFLAG_REL}'); a.e('v_mov_b32 v135, s60')
    a.e(f's_add_u32 s60, s{sT0}, {BACK}'); a.e('v_mov_b32 v136, s60'); a.e(f'v_xor_b32 v137, s{sCHK}, v136')
    t0, t1, t2 = vT, vT+1, vT+2
    a.e(f's_lshl_b32 s60, s{sWM}, 13')
    a.e(f'v_lshl_add_u32 v{vA}, v{vLANE}, 4, s60')
    a.e(f'v_lshlrev_b32 v{vHA}, 4, v{vLANE}'); a.e(f'v_add_u32 v{vHA}, {L1_HALO}, v{vHA}')
    a.e(f'v_lshrrev_b32 v{t0}, 2, v{vLANE}')
    a.e(f'v_and_b32 v{t1}, 3, v{vLANE}'); a.e(f'v_lshlrev_b32 v{t1}, 3, v{t1}'); a.e(f'v_add_u32 v{t1}, {L1_W}, v{t1}')
    a.e(f'v_mul_u32_u24 v{t2}, 224, v{t0}'); a.e(f'v_add_u32 v{vGU}, v{t2}, v{t1}'); a.e(f'v_add_u32 v{vGU+1}, 40960, v{vGU}')
    a.e(f'v_mul_u32_u24 v{t2}, 192, v{t0}'); a.e(f'v_add_u32 v{t2}, v{t2}, v{t1}')
    a.e(f'v_lshlrev_b32 v{t0}, 1, v{vLANE}'); a.e(f'v_and_b32 v{t0}, 32, v{t0}')
    a.e(f'v_add_u32 v{vQa}, v{t2}, v{t0}'); a.e(f'v_sub_u32 v{vQb}, v{t2}, v{t0}')
    a.e(f'v_add_u32 v{vQa+1}, 40960, v{vQa}'); a.e(f'v_add_u32 v{vQb+1}, 40960, v{vQb}')
    a.e(f's_lshl_b32 s60, s{sWAVE}, 5'); a.e('s_add_u32 s60, s60, 64')
    a.e(f'v_xor_b32 v{t0}, s60, v{t0}')
    a.e(f'v_add_u32 v{vHW}, v{t2}, v{t0}'); a.e(f'v_add_u32 v{vHW+1}, 40960, v{vHW}')
    a.e(f's_mov_b32 s{sCNT}, 0')
    a.e(f's_waitcnt vmcnt({0 if cfg.wlate else 10})'); a.e('s_barrier')
    st.at(1, 2)
    a.e(f's_cmp_eq_u32 s{sWAVE}, 0'); a.e('s_cbranch_scc1 L1_pub')
    if cfg.hk: a.e('s_branch L1_consts')
    else:
        a.e(f's_cmp_eq_u32 s{sWAVE}, 2'); a.e('s_cbranch_scc1 L1_consts')
        a.e(f's_cmp_eq_u32 s{sWAVE}, 1'); a.e('s_cbranch_scc1 L1_wopf')
        code_pf(a, 'L1_polled', 'L_end', vLANE, 134, 135, 94, cfg.ncpf)
        a.e('s_branch L1_consts')
        a.label('L1_wopf')
        a.e('s_mov_b32 s94, 0x200000'); a.e('s_mov_b32 s95, 0x20000')
        a.e('s_lshl_b32 s60, s2, 13'); a.e(f'v_lshlrev_b32 v134, 7, v{vLANE}')
        a.e('buffer_load_dword v135, v134, s[92:95], s60 offen')
        a.e('s_branch L1_consts')
    a.label('L1_pub')
    a.e('s_mov_b64 exec, 1')
    a.e('buffer_store_dwordx2 v[136:137], v135, s[96:99], 0 offen sc1')
    a.e('s_mov_b64 exec, -1')
    a.label('L1_consts')
    if cfg.wlate:
        for x in flat(dma_list(0)[:5] + dma_list(1)[:5]): a.e(x)
    a.e(f'v_and_b32 v{t0}, 15, v{vLANE}'); a.e(f'v_lshrrev_b32 v{t1}, 4, v{vLANE}'); a.e(f'v_lshlrev_b32 v{t1}, 2, v{t1}')
    a.e(f'v_sub_u32 v{t0}, v{t0}, v{t1}')
    a.e(f'v_mov_b32 v{vT+3}, 0xf149f2ca')
    a.e(f's_or_b32 s60, s{sRB}, s{sWM}'); a.e('s_cmp_eq_u32 s60, 0'); a.e('s_cselect_b64 s[60:61], -1, 0')
    for isprev in range(2):
        for r in range(4):
            a.e(f'v_add_u32 v{t1}, {16*isprev - r}, v{t0}')
            a.e(f'v_and_b32 v{t2}, 0xfffffff1, v{t1}')
            a.e(f'v_cmp_eq_u32 vcc, 0, v{t2}')
            a.e(f'v_cndmask_b32_e64 v{vT+4}, v{vT+3}, 0, vcc')
            a.e(f'v_accvgpr_write_b32 a{aBI+4*isprev+r}, v{vT+4}')
            if isprev:
                a.e(f'v_cndmask_b32_e64 v{vT+4}, v{vT+4}, v{vT+3}, s[60:61]')
                a.e(f'v_accvgpr_write_b32 a{aBI+8+r}, v{vT+4}')
    a.e(f'v_mov_b32 v{vT+4}, 0x3f803f80')
    for r in range(4): a.e(f'v_accvgpr_write_b32 a{aBI+12+r}, v{vT+4}')
    a.e(f's_cmp_lg_u32 s{sWAVE}, 0'); a.e('s_cbranch_scc1 L1_polled')
    a.e('s_mov_b32 s62, 0')
    if cfg.f0sl: a.e(f's_sleep {cfg.f0sl}')
    a.label('L1_poll')
    a.e('buffer_load_dwordx2 v[138:139], v134, s[96:99], 0 offen sc1')
    a.e('s_add_u32 s62, s62, 1')
    a.e('s_waitcnt vmcnt(0)')
    stamp_ok(a, 138, 60); a.e('s_cbranch_scc1 L1_polled')
    a.e('s_cmp_lt_u32 s62, 0x8000'); a.e('s_cbranch_scc1 L1_poll')
    a.label('L1_polled')
    a.e('s_barrier')
    for x in flat(dma_list(0)[5:10] + dma_list(1)[5:10] + latepf): a.e(x)
    a.e(f's_and_b32 s60, s{sWAVE}, 1'); a.e('s_cmp_eq_u32 s60, 1'); a.e('s_cbranch_scc1 L1_wn1')

    NS = 5; FS = cfg.k2_fs; HS = 2*(36-FS); TOT = FS + HS; WB = NS*16384
    G_A = 8; G_W = 12; G_P = 16; G_X = 20; G_OUT = 24
    gACT = 36; gWO = 37; gM_A = 38; gM_W = 39; gU = 40; gPART = 41; gRB = 42; gCB = 43; gIDX = 53; gSZ0 = 54; gSZ1 = 55
    gM_H = 44; gKC = 45; gT1 = 46; gT2 = 47; G_F = 96
    hDA = 32; hDW = 33; hTS = 38; hSEQ = 42; hT = 44
    hA = 2; hW = 4; hXO = 12; hPS = 14; hPL = 15; hFS = 16; hFL = 17; hDH = 18; hWH = 20; hT2 = 24; hBF = 30; hO = 45
    XR = 48; ACC = 64; FR = 128
    NA = FS - 12
    def g2_next():
        return [f's_add_u32 s{gIDX}, s{gIDX}, 1',
                f'v_readlane_b32 s{gWO}, v{hSEQ}, s{gIDX}',
                f's_lshl_b32 s{gACT}, s{gWO}, 17',
                f's_cmp_lt_u32 s{gWO}, 32',
                f's_cselect_b32 s{G_W}, s92, s68', f's_cselect_b32 s{G_W+1}, s93, s69', f's_cselect_b32 s{G_W+2}, s{gSZ0}, s{gSZ1}',
                f's_cselect_b32 s60, 0, 32',
                f's_sub_u32 s{gWO}, s{gWO}, s60',
                f's_lshl_b32 s{gWO}, s{gWO}, 16']
    def g2_dma(slot, compact=False):
        L = []
        for d in range(2 if compact else 4):
            L.append(([f's_add_u32 m0, s{gM_H if compact else gM_W}, {slot*16384 + d*1024}'],
                      f'buffer_load_dwordx4 v{(hDH if compact else hDW)+d}, s[{G_W}:{G_W+3}], s{gWO} offen lds', []))
        for d in range(4):
            L.append(([f's_add_u32 m0, s{gM_A}, {slot*16384}'] if d == 0 else [],
                      f'buffer_load_dwordx4 v{hDA}, s[{G_A}:{G_A+3}], s{gACT} offen offset:{d*1024} lds', []))
        L[-1] = (L[-1][0], L[-1][1], g2_next())
        return L
    def g2_early(o):
        o.e('s_and_b32 s3, s2, 7'); o.e(f's_lshr_b32 s{gPART}, s3, 2'); o.e('s_and_b32 s3, s3, 3'); o.e('s_lshl_b32 s3, s3, 2')
        o.e('s_lshr_b32 s60, s2, 3'); o.e(f's_and_b32 s{gCB}, s60, 7'); o.e('s_lshr_b32 s60, s60, 3'); o.e(f's_add_u32 s{gRB}, s3, s60')
        o.e(f's_and_b32 s3, s{sWAVE}, 1')
        o.e(f's_mul_i32 s60, s{gPART}, {NA}')
        o.e(f'v_add_u32 v{hT}, s60, v{vLANE}'); o.e(f'v_add_u32 v{hT+1}, {2*NA-FS}, v{vLANE}')
        o.e(f'v_cmp_gt_u32 vcc, {NA}, v{vLANE}'); o.e(f'v_cndmask_b32 v{hT}, v{hT+1}, v{hT}, vcc')
        o.e(f'v_mul_u32_u24 v{hT+1}, 21846, v{hT}'); o.e(f'v_lshrrev_b32 v{hT+1}, 16, v{hT+1}')
        o.e(f'v_lshl_add_u32 v{hT}, v{hT+1}, 2, v{hT}')
        o.e(f's_lshl_b32 s60, s{sWM}, 2'); o.e('s_add_u32 s60, s60, 32'); o.e(f'v_add_u32 v{hT}, s60, v{hT}')
        o.e(f's_mul_i32 s60, s{gPART}, 24'); o.e(f's_add_u32 s60, s60, s{sWM}'); o.e(f's_sub_u32 s60, s60, {2*NA}')
        o.e(f'v_lshl_add_u32 v{hT+1}, v{vLANE}, 1, s60')
        o.e(f's_mul_i32 s60, s{sWM}, 7'); o.e(f's_sub_u32 s60, s60, {14*(NA+4)-35}')
        o.e(f'v_mul_u32_u24 v{hT+2}, 14, v{vLANE}'); o.e(f'v_add_u32 v{hT+2}, s60, v{hT+2}')
        o.e(f's_cmp_eq_u32 s{gPART}, 0'); o.e(f's_cselect_b32 s60, 63, {NA+4}')
        o.e(f'v_cmp_gt_u32 vcc, s60, v{vLANE}'); o.e(f'v_cndmask_b32 v{hT+1}, v{hT+2}, v{hT+1}, vcc')
        o.e(f'v_subrev_u32 v{hT+2}, {NA}, v{vLANE}'); o.e(f'v_cmp_gt_u32 vcc, 12, v{hT+2}')
        o.e(f'v_cndmask_b32 v{hSEQ}, v{hT}, v{hT+1}, vcc')
        o.e('s_lshl_b32 s60, s3, 12'); o.e(f's_lshl_b32 s61, s{gRB}, 13'); o.e('s_add_u32 s60, s60, s61')
        o.e(f'v_lshl_add_u32 v{hDA}, v{vLANE}, 4, s60')
        o.e(f's_lshl_b32 s{gM_A}, s{sWAVE}, 12'); o.e(f's_add_u32 s{gM_W}, s{gM_A}, {WB}')
        o.e(f'v_lshrrev_b32 v{hT}, 4, v{vLANE}'); o.e(f'v_and_b32 v{hT+1}, 15, v{vLANE}')
        o.e('s_lshl_b32 s60, s3, 15'); o.e(f's_lshl_b32 s61, s{gCB}, 8'); o.e('s_add_u32 s60, s60, s61')
        o.e(f'v_lshl_add_u32 v{hT+3}, v{hT}, 11, s60')
        o.e(f'v_lshlrev_b32 v{hT+2}, 1, v{hT}'); o.e(f'v_xor_b32 v{hT+2}, v{hT+2}, v{hT+1}')
        o.e(f'v_lshl_add_u32 v{hDW}, v{hT+2}, 4, v{hT+3}')
        o.e(f'v_xor_b32 v{hDW+1}, 128, v{hDW}'); o.e(f'v_add_u32 v{hDW+1}, 8192, v{hDW+1}')
        o.e(f'v_add_u32 v{hDW+2}, 16384, v{hDW}'); o.e(f'v_add_u32 v{hDW+3}, 16384, v{hDW+1}')
        o.e(f's_mov_b32 s{gSZ0}, {1024*1024*2}'); o.e(f's_mov_b32 s{gSZ1}, {3584*1024*2}'); o.e(f's_mov_b32 s{G_W+3}, 0x20000')
        srd(o, G_A, 6, 7, ACT2_BYTES, ACT2_OFF)
        o.e(f's_lshr_b32 s60, s{gRB}, 1'); o.e('s_lshl_b32 s60, s60, 14'); o.e(f's_and_b32 s61, s{gRB}, 1'); o.e('s_lshl_b32 s61, s61, 8')
        o.e('s_add_u32 s60, s60, s61'); o.e(f's_add_u32 s60, s60, {AFLAG_REL}')
        o.e(f'v_lshrrev_b32 v{hT}, 1, v{vLANE}'); o.e(f'v_lshl_add_u32 v{hTS+3}, v{hT}, 9, s60')
        o.e(f'v_and_b32 v{hT}, 1, v{vLANE}'); o.e(f'v_lshl_add_u32 v{hTS+3}, v{hT}, 7, v{hTS+3}')
        o.e(f's_mov_b32 s{gIDX}, -1')
        for x in g2_next(): o.e(x)
    def g2_wdma(o):
        for s_ in range(NS):
            d_ = g2_dma(s_)
            for pre, ins, post in d_[:4]:
                for x in pre: o.e(x)
                o.e(ins)
            for x in d_[7][2]: o.e(x)
    def g2_flagA(o, younger):
        o.e(f's_add_u32 s60, s{sT0}, {BACK}'); o.e(f'v_mov_b32 v{hTS}, s60'); o.e(f'v_xor_b32 v{hTS+1}, s{sCHK}, v{hTS}')
        o.e('s_lshl_b32 s60, s2, 2'); o.e(f's_add_u32 s60, s60, s{sWAVE}'); o.e('s_lshl_b32 s60, s60, 7'); o.e(f's_add_u32 s60, s60, {AFLAG_REL}')
        o.e(f'v_mov_b32 v{hTS+2}, s60')
        o.e(f's_waitcnt vmcnt({younger})')
        o.e('s_mov_b64 exec, 1')
        o.e(f'buffer_store_dwordx2 v[{hTS}:{hTS+1}], v{hTS+2}, s[{G_F}:{G_F+3}], 0 offen sc1')
        o.e('s_mov_b64 exec, -1')
        st.at(4, 3)
    def g2_poll_act(wn):
        st.at(4, 1); st.at(5, 3)
        if wn == 0:
            a.e(f's_cmp_lg_u32 s{sWAVE}, 0'); a.e(f's_cbranch_scc1 L2_aok')
            a.e('s_mov_b32 s3, 0')
            if cfg.g1sl: a.e(f's_sleep {cfg.g1sl}')
            a.label('L2_apoll')
            a.e(f'buffer_load_dwordx2 v[{hT2}:{hT2+1}], v{hTS+3}, s[{G_F}:{G_F+3}], 0 offen sc1')
            a.e('s_add_u32 s3, s3, 1')
            a.e('s_waitcnt vmcnt(0)')
            stamp_ok(a, hT2, 60); a.e('s_cbranch_scc1 L2_aok')
            a.e('s_sleep 4')
            a.e('s_cmp_lt_u32 s3, 0x8000'); a.e('s_cbranch_scc1 L2_apoll')
            a.label('L2_aok')
        a.e('s_barrier')
        st.at(5, 1); st.at(6, 3)
        for s_ in range(NS):
            a.e(f'v_readlane_b32 s60, v{hSEQ}, {s_}'); a.e('s_lshl_b32 s60, s60, 17')
            a.e(f's_add_u32 m0, s{gM_A}, {s_*16384}')
            for d in range(4): a.e(f'buffer_load_dwordx4 v{hDA}, s[{G_A}:{G_A+3}], s60 offen offset:{d*1024} lds')

    aACT = 0; aHA = 64; aHW = 88; aACC = 96; aW2 = 216
    for wn in range(2):
        if wn == 1: a.label('L1_wn1')
        if wn == 0:
            names = ['q0', 'q1', 'k0', 'k1', 'v0', 'v1', 'g0', 'g1', 'u0', 'u1']
            units = [('q', 0), ('q', 2), ('q', 4), ('q', 6), ('q', 8), ('q', 10), ('g', 0), ('g', 2), ('u', 0), ('u', 2)]
            order_v = ['g0', 'g1', 'u0', 'q0', 'k0', 'v0', 'v1']; order_a = ['q1', 'k1', 'u1']
        else:
            names = ['g2', 'u2', 'g3', 'u3', 'g6', 'g4', 'u4', 'g5', 'u5', 'u6']
            units = [(nm[0], 2*int(nm[1])) for nm in names]
            order_v = ['g2', 'g3', 'g4', 'g5', 'g6', 'u2', 'u3']; order_a = ['u4', 'u5', 'u6']
        acc = {}
        for i, nm in enumerate(order_v):
            for m in range(8): acc[(nm, m)] = ('v', 32 + (i*8+m)*4)
        for i, nm in enumerate(order_a):
            for m in range(8): acc[(nm, m)] = ('a', aACC + (i*8+m)*4)
        acc['halo'] = ('a', aACC + 96)
        def R(x): return f'{x[0]}[{x[1]}:{x[1]+3}]'
        def hreads(slot):
            return [f'ds_read_b128 {AR(aHA)}, v{vHA} offset:{slot*1024}'] + \
                   [f'ds_read_b64_tr_b16 a[{aHW+2*h}:{aHW+2*h+1}], v{vHW+(slot>>1)} offset:{(slot&1)*20480+h*3072}' for h in range(2)]
        def wfrag(slot, n, reg):
            kind, c0 = units[n]; out = []
            for h_ in range(2):
                if kind == 'q':
                    base = (vQa if c0 % 4 == 0 else vQb) + (slot >> 1); off = (slot & 1)*20480 + c0*16 + h_*3072
                else:
                    base = vGU + (slot >> 1); off = (slot & 1)*20480 + (6144 if kind == 'g' else 13312) + c0*16 + h_*3584
                out.append(f'ds_read_b64_tr_b16 a[{reg+2*h_}:{reg+2*h_+1}], v{base} offset:{off}')
            return out
        def wr(p, n, second): return aW2 + 8*((5*p + n) & 3) + 4*second
        def areg_(stage, m): return aACT + (stage & 1)*32 + 4*m
        tr = LgkmTracker(a)
        carry = flat(dma_list(2))
        def period(h, kind, side=None):
            nonlocal carry
            p = h + 1
            first = kind != 'P'; second = kind != 'Q'
            g0 = 0 if h % 2 == 0 else 5
            gn = 5 - g0
            secs = [x for x in (0, 1) if (first if x == 0 else second)]
            mf = [(n, m, sec) for n in range(3) for m in range(8) for sec in secs]
            L = 8*len(secs); T0 = len(mf)
            mf += [(n, m, sec) for m in range(8) for n in (3, 4) for sec in secs]
            N = len(mf)
            gaps = [[] for _ in range(N)]
            def place(item, lo, hi, cap=1):
                for g in range(lo, hi+1):
                    if len(gaps[g]) < cap:
                        gaps[g].append(item); return g
                return None
            def wf(n):
                return (wfrag(h % 4, g0+n, wr(p, n, 0)) if first else []) + (wfrag((h+1) % 4, g0+n, wr(p, n, 1)) if second else [])
            for n, lst in ((0, wf(1)), (1, wf(2)), (2, wf(3) + wf(4))):
                for k_, r in enumerate(lst): gaps[n*L + k_].append(('r', r))
            if kind != 'Q':
                cur = 1
                for x in carry:
                    g = place(('x', x), cur, T0-5, 1 if first else 2); assert g is not None
                    cur = g + (1 if (first or x.startswith('s_add_u32 m0')) else 0)
                per = 2*len(secs)
                for m in range(8):
                    gaps[T0 + per*m + (per - 2 if first else 0)].append(('r', f'ds_read_b128 {AR(areg_(h+2, m))}, v{vA} offset:{((h+2) % 4)*16384 + m*1024}'))
                tail = wfrag((h+1) % 4, gn, wr(p+1, 0, 0)) + wfrag((h+2) % 4, gn, wr(p+1, 0, 1)) + hreads((h+2) % 4)
                for k_, r in enumerate(tail):
                    g = place(('r', r), T0 + (per*k_ if first else 2*k_), N-1, 1); assert g is not None
                items = flat(dma_list(h % 4))
                cur = T0
                hi = N-1 if not (kind == 'H' and h % 4 == 2) else N-4
                while items:
                    g = place(('x', items[0]), cur, hi, 1)
                    if g is None: break
                    cur = g + 1; items.pop(0)
                carry = items
                if kind == 'H' and h % 4 == 2:
                    gaps[N-3].append(('x', f's_add_u32 s{sCNT}, s{sCNT}, 1')); gaps[N-2].append(('x', f's_cmp_eq_u32 s{sCNT}, 8'))
                if kind == 'H' and h % 4 == 0:
                    gaps[T0-4].append(('x', f's_cmp_eq_u32 s{sCNT}, 7'))
                    for k_, r_ in enumerate((sM_W, sM_ACT, sM_H)): gaps[T0-3+k_].append(('x', f's_cselect_b32 s{r_}, 170000, s{r_}'))
            if side:
                for k_, x in enumerate(side):
                    gaps[min(N-1, 3 + (k_*(N-3))//len(side))].append(('w' if x.startswith('ds_write') else 'x', x))
            if kind == 'Q': mf = [(n, m, 0) for n in range(5) for m in range(8)]
            for i, (n, m, sec) in enumerate(mf):
                nm = names[g0+n]
                if kind != 'Q' and i == T0:
                    a.e(f's_waitcnt vmcnt({VMW-1+len(latepf) if kind == "P" else VMW}) lgkmcnt(0)'); tr.drain(); a.e('s_barrier')
                    if cfg.stamps == 8:
                        a.e('s_memrealtime s[84:85]'); a.e('s_waitcnt lgkmcnt(0)')
                        if kind == 'P': a.e('s_mov_b32 s83, 0')
                        a.e('v_mov_b32 v28, s84'); a.e(f'v_cmp_eq_u32 vcc, s83, v{vLANE}'); a.e('v_cndmask_b32 v29, v29, v28, vcc'); a.e('s_add_u32 s83, s83, 1')
                wreg = AR(wr(p, n, sec)); areg = AR(areg_(h+sec, m))
                tr.need(regs_of(wreg) + regs_of(areg) + (regs_of(AR(wr(p, n, 1))) if (n > 0 and second) else []))
                d = R(acc[(nm, m)])
                c = '0' if (kind == 'P' or (kind == 'H0' and sec == 0)) else d
                a.e(f'{MF} {d}, {areg}, {wreg}, {c}' if nm[0] == 'v' else f'{MF} {d}, {wreg}, {areg}, {c}')
                for k_, x in gaps[i]:
                    if k_ == 'r': tr.read(x)
                    elif k_ == 'w': a.e(x); tr.other()
                    else: a.e(x)
                if kind != 'Q' and i == L + 5:
                    tr.need(regs_of(AR(aHA)) + regs_of(AR(aHW)))
                    d = R(acc['halo'])
                    a.e(f'{MF} {d}, {AR(aHW)}, {AR(aHA)}, {"0" if kind == "P" else d}')
        a.e(f's_waitcnt vmcnt({5 + len(latepf)})'); a.e('s_barrier')
        st.at(1, 1); st.at(2, 2)
        if st.on: a.e('s_waitcnt lgkmcnt(0)')
        for r in wfrag(0, 5, wr(0, 0, 1)) + [f'ds_read_b128 {AR(areg_(0, m))}, v{vA} offset:{m*1024}' for m in range(8)] + hreads(0): tr.read(r)
        period(-1, 'P'); period(0, 'H0')
        entry_state = tr.state(); entry_carry = list(carry)
        a.label(f'L1_loop{wn}')
        period(1, 'H'); period(2, 'H')
        exit_q = list(tr.q)
        a.e(f's_cbranch_scc1 L1_tail{wn}')
        period(3, 'H'); period(4, 'H')
        assert tr.state() == entry_state and carry == entry_carry
        if wn == 0 and cfg.cpf2:
            a.e(f's_add_u32 s60, s{sCNT}, s{sWAVE}'); a.e(f's_cmp_eq_u32 s60, {cfg.cpf2 + 2}'); a.e(f's_cbranch_scc0 L1_loop{wn}')
            a.e(f's_cmp_eq_u32 s{sWAVE}, 2'); a.e(f's_cbranch_scc0 L1_loop{wn}')
            code_pf(a, 'L1_tail0', 'L_end', vLANE, 28, vDUM, 94, 5)
        a.e(f's_branch L1_loop{wn}')
        a.label(f'L1_tail{wn}')
        tr.q = exit_q
        vO = vDA; vX = vDW
        def fetch(o, x, tmp):
            if x[0] == 'v': return x[1]
            for r in range(4): o.e(f'v_accvgpr_read_b32 v{tmp+r}, a{x[1]+r}')
            return tmp
        def hmul(o, g, u_, m, dst, tmp):
            gb = acc[(g, m)][1]; ub = fetch(o, acc[(u_, m)], tmp)
            o.e(f'v_pk_mul_f32 {P2(gb)}, {P2(gb)}, {P2(ub)}'); o.e(f'v_pk_mul_f32 {P2(gb+2)}, {P2(gb+2)}, {P2(ub+2)}')
            o.e(f'v_cvt_pk_bf16_f32 v{dst}, v{gb}, v{gb+1}'); o.e(f'v_cvt_pk_bf16_f32 v{dst+1}, v{gb+2}, v{gb+3}')
        def ostore(o, src, m, soff, n=4):
            op = {4: 'buffer_store_dwordx4', 2: 'buffer_store_dwordx2'}[n]
            o.e(f'{op} v[{src}:{src+n-1}], v{vO + (m >> 2)}, s[{S_O}:{S_O+3}], {soff} offen offset:{(m&3)*1024} sc1')
        def hblock(o, ga, ua, gb_, ub_, m, so, tmp):
            dst = acc[(ga, m)][1]
            hmul(o, ga, ua, m, dst, tmp); hmul(o, gb_, ub_, m, dst+2, tmp+4); ostore(o, dst, m, so)
        def attn1(o, q, kp, kc, v0w, v1w, bp, BI, Sx, Ox, dst):
            o.e(f'{MF} v[{Sx}:{Sx+3}], v[{kp}:{kp+3}], v[{q}:{q+3}], 0')
            o.e(f'{MF} v[{Sx+4}:{Sx+7}], v[{kc}:{kc+3}], v[{q}:{q+3}], 0')
            for r in (0, 2): o.e(f'v_pk_fma_f32 {P2(Sx+r)}, {P2(Sx+r)}, s[94:95], {P2(bp+r)}')
            for r in (0, 2): o.e(f'v_pk_fma_f32 {P2(Sx+4+r)}, {P2(Sx+4+r)}, s[94:95], {P2(BI+r)}')
            M = Sx + 8
            o.e(f'v_max3_f32 v{M}, v{Sx}, v{Sx+1}, v{Sx+2}'); o.e(f'v_max3_f32 v{M+1}, v{Sx+3}, v{Sx+4}, v{Sx+5}')
            o.e(f'v_max3_f32 v{M}, v{M}, v{Sx+6}, v{Sx+7}'); o.e(f'v_max_f32 v{M}, v{M}, v{M+1}')
            o.e(f'v_mov_b32 v{M+1}, v{M}')
            o.e(f'v_permlane32_swap_b32 v{M}, v{M+1}')
            o.e(f'v_max_f32 v{M}, v{M}, v{M+1}'); o.e(f'v_mov_b32 v{M+1}, v{M}')
            o.e(f'v_permlane16_swap_b32 v{M}, v{M+1}')
            o.e(f'v_max_f32 v{M}, v{M}, v{M+1}'); o.e(f'v_mov_b32 v{M+1}, v{M}')
            for r in (0, 2, 4, 6): o.e(f'v_pk_add_f32 {P2(Sx+r)}, {P2(Sx+r)}, {P2(M)} neg_lo:[0,1] neg_hi:[0,1]')
            for r in range(8): o.e(f'v_exp_f32 v{Sx+r}, v{Sx+r}')
            for r in range(4): o.e(f'v_cvt_pk_bf16_f32 v{Sx+12+r}, v{Sx+2*r}, v{Sx+2*r+1}')
            Pp = Sx + 12
            o.e(f'{MF} v[{Ox+8}:{Ox+11}], a[{aBI+12}:{aBI+15}], v[{Pp}:{Pp+3}], 0')
            o.e(f'{MF} v[{Ox}:{Ox+3}], v[{v0w}:{v0w+3}], v[{Pp}:{Pp+3}], 0')
            o.e(f'{MF} v[{Ox+4}:{Ox+7}], v[{v1w}:{v1w+3}], v[{Pp}:{Pp+3}], 0')
            o.e(f'v_rcp_f32 v{Ox+8}, v{Ox+8}')
            o.e(f'v_mov_b32 v{Ox+9}, v{Ox+8}')
            for r in (0, 2, 4, 6): o.e(f'v_pk_mul_f32 {P2(Ox+r)}, {P2(Ox+r)}, {P2(Ox+8)}')
            for r in range(4): o.e(f'v_cvt_pk_bf16_f32 v{dst+r}, v{Ox+2*r}, v{Ox+2*r+1}')
        def zipper(A, B):
            A = [x.text for x in A.ins]; B = [x.text for x in B.ins]
            for i_ in range(max(len(A), len(B))):
                if i_ < len(A): a.e(A[i_])
                if i_ < len(B): a.e(B[i_])
        o = Asm()
        o.e(f's_lshl_b32 s60, s{sRB}, 14'); o.e(f's_lshl_b32 s61, s{sWM}, 13'); o.e('s_add_u32 s60, s60, s61')
        o.e(f'v_lshl_add_u32 v{vO}, v{vLANE}, 4, s60'); o.e(f'v_add_u32 v{vO+1}, 4096, v{vO}')
        o.e(f's_mul_i32 s62, s{sJ}, 7'); o.e(f's_and_b32 s63, s{sJ}, 1'); o.e('s_add_u32 s62, s62, s63'); o.e('s_lshr_b32 s62, s62, 1')
        o.e('s_add_u32 s62, s62, 32'); o.e('s_lshl_b32 s62, s62, 17')
        o.e('s_add_u32 s64, s62, 131072'); o.e('s_add_u32 s65, s62, 262144')
        o.e(f's_lshl_b32 s60, s{sWM}, 14'); o.e('s_add_u32 s60, s60, 4096')
        o.e(f'v_lshl_add_u32 v{vX}, v{vLANE}, 4, s60')
        o.e(f'v_and_b32 v{vT}, 15, v{vLANE}'); o.e(f'v_lshrrev_b32 v{vT+1}, 4, v{vLANE}')
        o.e(f'v_lshl_add_u32 v{vX+1}, v{vT}, 5, s60'); o.e(f'v_lshl_add_u32 v{vX+1}, v{vT+1}, 3, v{vX+1}')
        o.e(f's_mul_i32 s60, s{sWM}, 40960'); o.e('s_sub_u32 s61, 40960, s60')
        o.e(f'v_lshl_add_u32 v{vX+2}, v{vLANE}, 4, s60')
        o.e(f'v_lshl_add_u32 v{vX+3}, v{vT+1}, 7, s61'); o.e(f'v_lshl_add_u32 v{vX+3}, v{vT}, 1, v{vX+3}')
        hb = fetch(o, acc['halo'], vT)
        o.e(f'v_cvt_pk_bf16_f32 v{vT+4}, v{hb}, v{hb+1}'); o.e(f'v_cvt_pk_bf16_f32 v{vT+5}, v{hb+2}, v{hb+3}')
        o.e(f'ds_write_b64 v{vX+2}, v[{vT+4}:{vT+5}] offset:{8*wn}')
        of = 1024 + wn*512
        o.e(f'ds_write_b16 v{vX+3}, v{vT+4} offset:{of}'); o.e(f'ds_write_b16_d16_hi v{vX+3}, v{vT+4} offset:{of+32}')
        o.e(f'ds_write_b16 v{vX+3}, v{vT+5} offset:{of+64}'); o.e(f'ds_write_b16_d16_hi v{vX+3}, v{vT+5} offset:{of+96}')
        o.e('s_mov_b32 s94, 0x3e8293ee'); o.e('s_mov_b32 s95, 0x3e8293ee')
        o.e(f's_lshl_b32 s67, s{sJ}, 17')
        if wn == 0:
            def packqk(o, n0, n1, m):
                d = acc[(n0, m)][1]
                b1 = fetch(o, acc[(n1, m)], vT + 4*(m & 1))
                o.e(f'v_cvt_pk_bf16_f32 v{d}, v{d}, v{d+1}'); o.e(f'v_cvt_pk_bf16_f32 v{d+1}, v{d+2}, v{d+3}')
                o.e(f'v_cvt_pk_bf16_f32 v{d+2}, v{b1}, v{b1+1}'); o.e(f'v_cvt_pk_bf16_f32 v{d+3}, v{b1+2}, v{b1+3}')
                return d
            PV0 = acc[('v0', 0)][1]; PV1 = acc[('v1', 0)][1]
            def packv(o, Pv, m, off):
                b_ = Pv + 4*m
                c1 = f'v_cvt_pk_bf16_f32 v{Pv+2+2*m}, v{b_}, v{b_+1}'; c2 = f'v_cvt_pk_bf16_f32 v{Pv+3+2*m}, v{b_+2}, v{b_+3}'
                for x in ((c2, c1) if m == 0 else (c1, c2)): o.e(x)
                if m >= 3: o.e(f'ds_write_b64 v{vX+1}, v[{Pv+2+2*m}:{Pv+3+2*m}] offset:{(m-3)*2048+off}')
            for m in range(3, 8):
                d = packqk(o, 'k0', 'k1', m); o.e(f'ds_write_b128 v{vX}, v[{d}:{d+3}] offset:{(m-3)*2048}')
            for m in range(4, 8):
                d = packqk(o, 'q0', 'q1', m); o.e(f'ds_write_b128 v{vX}, v[{d}:{d+3}] offset:{10240+(m-4)*1024}')
            for m in range(8): packv(o, PV0, m, 1024)
            for m in range(8): packv(o, PV1, m, 1536)
        else:
            o.e('s_add_u32 s66, s62, 393216'); o.e('s_sub_u32 s61, s62, 131072'); o.e('s_add_u32 s61, s61, 512')
            o.e('s_cmp_eq_u32 s63, 1'); o.e('s_cselect_b32 s66, s61, s66')
            for m in range(8): hblock(o, 'g2', 'u2', 'g3', 'u3', m, 's64', vT)
        period(31, 'Q', side=[x.text for x in o.ins])
        st.at(2, 1); st.at(1, 3)
        a.e('s_waitcnt lgkmcnt(0)'); a.e('s_barrier')
        if wn == 0:
            KP = PV0 + 18; BI = PV1 + 18
            a.e(f's_lshl_b32 s60, s{sWM}, 12'); a.e('s_add_u32 s60, s60, 4096')
            a.e(f'v_subrev_u32 v{vX}, s60, v{vX}'); a.e(f'v_subrev_u32 v{vX+1}, s60, v{vX+1}')
            a.e(f'ds_read_b128 v[{KP}:{KP+3}], v{vX}')
            a.e(f'ds_read_b64 v[{PV0}:{PV0+1}], v{vX+1} offset:1024')
            a.e(f'ds_read_b64 v[{PV1}:{PV1+1}], v{vX+1} offset:1536')
            for m in range(8): hblock(a, 'g0', 'u0', 'g1', 'u1', m, 's62', vT)
            st.at(3, 1); st.at(2, 3)
            for m in range(3): packqk(a, 'k0', 'k1', m)
            for m in range(4): packqk(a, 'q0', 'q1', m)
            for r in range(12): a.e(f'v_accvgpr_read_b32 v{BI+r}, a{aBI+r}')
            blk = [(acc[('q0', m)][1], acc[('k0', m-1)][1] if m else KP, acc[('k0', m)][1], PV0+2*m, PV1+2*m, BI+(8 if m == 0 else 4), BI) for m in range(4)]
            W1 = acc[('g1', 0)][1]; W2 = acc[('u0', 0)][1]
            mo = 0
        else:
            F = acc[('u2', 0)][1]
            KR = F; V0 = F + 20; V1 = F + 30; QR = F + 40; BI = F + 56
            for i_ in range(5):
                a.e(f'ds_read_b128 v[{KR+4*i_}:{KR+4*i_+3}], v{vX} offset:{i_*2048}')
                if i_: a.e(f'ds_read_b128 v[{QR+4*(i_-1)}:{QR+4*(i_-1)+3}], v{vX} offset:{10240+(i_-1)*1024}')
            for i_ in range(5):
                a.e(f'ds_read_b64 v[{V0+2*i_}:{V0+2*i_+1}], v{vX+1} offset:{i_*2048+1024}')
                a.e(f'ds_read_b64 v[{V1+2*i_}:{V1+2*i_+1}], v{vX+1} offset:{i_*2048+1536}')
            for m in range(8): hblock(a, 'g4', 'u4', 'g5', 'u5', m, 's65', vT)
            st.at(3, 1); st.at(2, 3)
            for r in range(8): a.e(f'v_accvgpr_read_b32 v{BI+r}, a{aBI+r}')
            blk = [(QR+4*i_, KR+4*i_, KR+4*i_+4, V0+2*i_, V1+2*i_, BI+4, BI) for i_ in range(4)]
            W1 = acc[('g3', 0)][1]; W2 = acc[('g5', 0)][1]
            mo = 4
        a.e('s_waitcnt lgkmcnt(0)')
        def pair(pr):
            A = Asm(); B = Asm()
            attn1(A, *blk[2*pr], W1, W1+16, XR+8*pr); attn1(B, *blk[2*pr+1], W2, W2+16, XR+8*pr+4)
            zipper(A, B)
        def halves():
            if wn == 1:
                for i_ in range(4):
                    d_ = acc[('g6', 2*i_)][1]
                    hmul(a, 'g6', 'u6', 2*i_, d_, vT); hmul(a, 'g6', 'u6', 2*i_+1, d_+2, vT+4)
                    a.e(f'v_permlane16_swap_b32 v{d_}, v{d_+2}'); a.e(f'v_permlane16_swap_b32 v{d_+1}, v{d_+3}')
                    for r in range(4): a.e(f'v_accvgpr_write_b32 a{4*i_+r}, v{d_+r}')
                a.e(f'v_lshrrev_b32 v{vT}, 4, v{vLANE}'); a.e(f'v_and_b32 v{vT+1}, 1, v{vT}'); a.e(f'v_lshrrev_b32 v{vT+2}, 1, v{vT}')
                a.e(f'v_lshlrev_b32 v{vT}, 8, v{vT}'); a.e(f'v_sub_u32 v{hO+1}, v{vO}, v{vT}')
                a.e(f'v_lshl_add_u32 v{hO+1}, v{vT+1}, 10, v{hO+1}'); a.e(f'v_lshl_add_u32 v{hO+1}, v{vT+2}, 8, v{hO+1}')
                a.e(f'v_add_u32 v{hO+2}, 4096, v{hO+1}')
            else:
                a.e('s_mov_b32 s66, 0x80000000'); a.e(f'v_mov_b32 v{hO+1}, v{vO}'); a.e(f'v_mov_b32 v{hO+2}, v{vO}')
        pair(0)
        g2_flagA(a, 0)
        g2_early(a)
        st.at(3, 3)
        if cfg.ilv:
            A = Asm(); B = Asm(); D = Asm(); Z = Asm()
            attn1(A, *blk[2], W1, W1+16, XR+8); attn1(B, *blk[3], W2, W2+16, XR+12); g2_wdma(D)
            za = [x.text for p_ in zip(A.ins, B.ins) for x in p_]; zd = [x.text for x in D.ins]
            k_ = 0
            for i_, x in enumerate(za):
                a.e(x)
                while k_ < len(zd) and k_ < ((i_+1)*len(zd))//len(za): a.e(zd[k_]); k_ += 1
        else:
            g2_wdma(a)
            if wn == 0 and cfg.w0late:
                a.e(f's_cmp_eq_u32 s{sWAVE}, 0'); a.e('s_cbranch_scc1 L2_skip1')
            pair(1)
            if wn == 0 and cfg.w0late: a.label('L2_skip1')
        halves()
        a.e(f'v_add_u32 v{hO}, {mo*1024}, v{vO}')
        g2_poll_act(wn)
        if wn == 0 and cfg.w0late:
            a.e(f's_cmp_lg_u32 s{sWAVE}, 0'); a.e('s_cbranch_scc1 L2_late')
            pair(1)
        if wn == 0: a.e('s_branch L2_late')

    a.label('L2_late')
    NB = 0
    a.e('s_load_dwordx2 s[56:57], s[0:1], 56')
    a.e('s_load_dwordx2 s[58:59], s[0:1], 0')
    a.e(f's_and_b32 s3, s{sWAVE}, 1')
    a.e(f's_mov_b32 s{gU}, 0')
    a.e(f's_lshl_b32 s60, s{sWM}, 12')
    a.e(f'v_lshl_add_u32 v{hA}, v{vLANE}, 4, s60'); a.e(f'v_add_u32 v{hA+1}, 65536, v{hA}')
    tA, tB, tC, tD = hT2, hT2+1, hT2+2, hT2+3
    a.e(f'v_lshrrev_b32 v{tA}, 2, v{vLANE}')
    a.e(f'v_and_b32 v{tB}, 7, v{tA}'); a.e(f'v_lshlrev_b32 v{tB}, 5, v{tB}')
    a.e(f'v_and_b32 v{tC}, 3, v{vLANE}'); a.e(f'v_lshlrev_b32 v{tC}, 3, v{tC}'); a.e(f'v_add_u32 v{tC}, {WB}, v{tC}')
    a.e(f'v_lshl_add_u32 v{hDH}, v{tA}, 8, v{tC}')
    a.e('s_lshl_b32 s60, s3, 6'); a.e(f's_lshl_b32 s{gKC}, s{gPART}, 7'); a.e(f's_add_u32 s{gKC}, s{gKC}, s60')
    for n in range(4):
        a.e(f's_xor_b32 s61, s{gKC}, {32*(n&1) + 128*(n>>1)}')
        a.e(f'v_xor_b32 v{tD}, s61, v{tB}')
        a.e(f'v_add_u32 v{hW+n}, v{tD}, v{hDH}'); a.e(f'v_add_u32 v{hW+4+n}, 65536, v{hW+n}')
    def areg(par, ks, m): return FR + par*64 + ks*16 + m*4
    def wreg(par, ks, n): return FR + par*64 + 32 + ks*16 + n*4
    def reads(slot, par, nn=4):
        hi = 1 if slot >= 4 else 0
        base = (slot & 3)*16384
        def ar_(ks, m): return [f'ds_read_b128 v[{areg(par,ks,m)}:{areg(par,ks,m)+3}], v{hA+hi} offset:{base + ks*8192 + m*1024}']
        def wr_(ks, n):
            if nn == 2: return [f'ds_read_b64_tr_b16 v[{wreg(par,ks,n)+2*h}:{wreg(par,ks,n)+2*h+1}], v{hWH+2*hi+n} offset:{base + ks*4096 + h*2048}' for h in range(2)]
            return [f'ds_read_b64_tr_b16 v[{wreg(par,ks,n)+2*h}:{wreg(par,ks,n)+2*h+1}], v{hW+4*hi+n} offset:{base + ks*8192 + h*4096}' for h in range(2)]
        L = wr_(0, 0) + ar_(0, 0) + wr_(1, 0) + ar_(1, 0)
        for m in range(1, 4): L += ar_(0, m) + ar_(1, m)
        for n in range(1, nn): L += wr_(0, n) + wr_(1, n)
        return L
    a.e(f's_waitcnt vmcnt({4*(NS-1) + NB})'); a.e('s_barrier')
    st.at(6, 1); st.at(7, 3)
    if st.on: a.e('s_waitcnt lgkmcnt(0)')
    for r in reads(0, 0): a.e(r)
    b = Asm()
    b.e(f's_lshl_b32 s{gM_H}, s{sWAVE}, 11'); b.e(f's_add_u32 s{gM_H}, s{gM_H}, {WB}')
    b.e(f'v_and_b32 v{tB}, 6, v{tA}'); b.e(f'v_lshlrev_b32 v{tB}, 4, v{tB}')
    b.e(f'v_lshl_add_u32 v{tC}, v{tA}, 7, v{tC}')
    b.e('s_lshl_b32 s46, s3, 6')
    for n in range(2):
        b.e(f's_or_b32 s61, s46, {32*n}')
        b.e(f'v_xor_b32 v{tD}, s61, v{tB}')
        b.e(f'v_add_u32 v{hWH+n}, v{tD}, v{tC}'); b.e(f'v_add_u32 v{hWH+2+n}, 65536, v{hWH+n}')
    b.e(f'v_lshrrev_b32 v{tA}, 3, v{vLANE}'); b.e(f'v_and_b32 v{tB}, 6, v{tA}'); b.e(f'v_and_b32 v{tC}, 7, v{vLANE}')
    b.e(f'v_xor_b32 v{tB}, v{tB}, v{tC}')
    b.e('s_lshl_b32 s46, s3, 15'); b.e(f's_lshl_b32 s61, s{gCB}, 8'); b.e('s_or_b32 s46, s46, s61')
    b.e(f's_lshl_b32 s61, s{gPART}, 7'); b.e('s_or_b32 s46, s46, s61')
    b.e(f'v_lshl_add_u32 v{tA}, v{tA}, 11, s46'); b.e(f'v_lshl_add_u32 v{hDH}, v{tB}, 4, v{tA}')
    b.e(f'v_add_u32 v{hDH+1}, 16384, v{hDH}')
    for (d_, lo, nb) in ((G_X, 58, 2048*1024*2), (G_OUT, 56, 2048*1024*2)):
        b.e(f's_mov_b32 s{d_}, s{lo}'); b.e(f's_mov_b32 s{d_+1}, s{lo+1}'); b.e(f's_mov_b32 s{d_+2}, {nb}'); b.e(f's_mov_b32 s{d_+3}, 0x20000')
    b.e(f's_lshl_b32 s46, s{gRB}, 18'); b.e(f's_lshl_b32 s61, s{sWM}, 17'); b.e('s_or_b32 s46, s46, s61')
    b.e(f's_lshl_b32 s61, s{gCB}, 8'); b.e('s_or_b32 s46, s46, s61'); b.e('s_or_b32 s46, s46, s45')
    b.e(f'v_and_b32 v{tB}, 15, v{vLANE}'); b.e(f'v_lshl_add_u32 v{tB}, v{tB}, 11, s46')
    b.e(f'v_lshrrev_b32 v{tA}, 4, v{vLANE}')
    b.e(f'v_and_b32 v{tC}, 1, v{tA}'); b.e(f'v_lshl_add_u32 v{tB}, v{tC}, 5, v{tB}')
    b.e(f'v_lshrrev_b32 v{tC}, 1, v{tA}'); b.e(f'v_lshl_add_u32 v{hXO}, v{tC}, 4, v{tB}')
    b.e(f's_lshl_b32 s46, s{gRB}, 6'); b.e(f's_lshl_b32 s61, s{gCB}, 3'); b.e('s_or_b32 s46, s46, s61')
    b.e(f's_lshl_b32 s61, s{gPART}, 2'); b.e('s_or_b32 s46, s46, s61'); b.e(f's_or_b32 s46, s46, s{sWAVE}')
    b.e('s_xor_b32 s47, s46, 4')
    b.e('s_lshl_b32 s61, s46, 7'); b.e(f'v_mov_b32 v{hFS}, s61')
    b.e('s_lshl_b32 s61, s47, 7'); b.e(f'v_mov_b32 v{hFL}, s61')
    b.e('s_lshl_b32 s46, s46, 12'); b.e('s_lshl_b32 s47, s47, 12')
    b.e(f'v_lshl_add_u32 v{hPS}, v{vLANE}, 4, s46'); b.e(f'v_lshl_add_u32 v{hPL}, v{vLANE}, 4, s47')
    srd(b, G_P, 6, 7, PART_BYTES, PART_OFF)
    b.e(f'v_add_u32 v{hTS+2}, {BFLAG_REL-AFLAG_REL}, v{hTS+2}')
    b.e(f's_lshl_b32 s46, s{sWAVE}, 4'); b.e(f'v_readlane_b32 s47, v{hTS+3}, s46'); b.e(f's_add_u32 s47, s47, {BFLAG_REL-AFLAG_REL}')
    b.e(f'v_bfe_u32 v{tA}, v{vLANE}, 1, 3'); b.e(f'v_lshl_add_u32 v{hTS+3}, v{tA}, 9, s47')
    b.e(f'v_and_b32 v{tA}, 1, v{vLANE}'); b.e(f'v_lshl_add_u32 v{hTS+3}, v{tA}, 7, v{hTS+3}')
    b.e('s_mov_b32 s64, 0xffff0000'); b.e('s_mov_b32 s61, 32768'); b.e('s_mov_b32 s62, 65536'); b.e('s_mov_b32 s63, 98304')
    late = [x.text for x in b.ins]
    rowoff = ['0', 's61', 's62', 's63']
    VM2 = 8*(NS-2); UN = 2*NS; LS = FS - NS; uexit = (LS - 1) % UN
    def gu_at(step): return UN*len([t_ for t_ in range(cfg.npeel, step) if t_ % UN == uexit])
    hooks = {}
    def hook(name, steps, opnd=None):
        for stp in steps:
            if stp % UN != uexit and stp % UN not in hooks and stp >= cfg.npeel and all(gu_at(stp) != gu_at(o_) for o_ in range(cfg.npeel + (stp - cfg.npeel) % UN, LS, UN) if o_ != stp):
                hooks[stp % UN] = (name, opnd or gu_at(stp)); return stp
        raise RuntimeError(name)
    hN = hook('nat', [NA-2], 's65')
    hC = hook('chk', range(NA-6, NA-9, -1))
    hA_ = hook('ask', range(hC-5, hC-8, -1))
    hF = hook('flg', range(7, 10))
    late.insert(len(late)-4, f's_mul_i32 s65, s{gPART}, {gu_at(hN)+1}'); late.insert(len(late)-4, 's_sub_u32 s65, s65, 1')
    def rec():
        if cfg.stamps != 7: return
        a.e('s_memrealtime s[86:87]'); a.e('s_waitcnt lgkmcnt(0)')
        a.e('v_mov_b32 v28, s86'); a.e(f'v_cmp_eq_u32 vcc, s88, v{vLANE}'); a.e('v_cndmask_b32 v29, v29, v28, vcc'); a.e('s_add_u32 s88, s88, 1')
    if cfg.stamps == 7: a.e('s_mov_b32 s88, 0')
    def full_step(u, wait, inloop, fill=(), head=(), post_vm=()):
        slot = u % NS; par = u & 1
        a.e(f's_waitcnt vmcnt({wait}) lgkmcnt(0)'); a.e('s_barrier'); rec()
        for x in head: a.e(x)
        sched = {}
        for i, r in enumerate(reads((slot+1) % NS, par ^ 1)): sched.setdefault((i*cfg.rsp)//24 + cfg.rd0, []).append(r)
        if cfg.dsp == 3 or fill or post_vm:
            for i, (pre, ins, post) in enumerate(g2_dma(slot)):
                p = 1 + 3*i
                for x in pre: sched.setdefault(p-1, []).append(x)
                sched.setdefault(p, []).append(ins)
                for k_, x in enumerate(post): sched.setdefault(min(30, p + 1 + k_//2), []).append(x)
        else:
            for i, (pre, ins, post) in enumerate(g2_dma(slot)):
                p = cfg.d0 + 4*i
                for x in pre: sched.setdefault(p-1, []).append(x)
                sched.setdefault(p, []).append(ins)
            nx = g2_next()
            adv = [nx[0], nx[1], f's_lshl_b32 s89, s{gWO}, 17'] + nx[3:]
            pos = [cfg.d0+13, cfg.d0+14, cfg.d0+17, cfg.d0+17, cfg.d0+18, cfg.d0+18, cfg.d0+19, cfg.d0+19, cfg.d0+21, cfg.d0+22]
            for p_, x in zip(pos, adv): sched.setdefault(p_, []).append(x)
            sched.setdefault(cfg.d0+28, []).append(f's_mov_b32 s{gACT}, s89')
        pos_ = 0
        for k_, x in enumerate(fill):
            if not x.startswith('s_addc'):
                pos_ = (k_*22)//len(fill)
                if k_+1 < len(fill) and fill[k_+1].startswith('s_addc') and pos_ % 3 == 0: pos_ += 1
            sched.setdefault(pos_, []).append(x)
        for k_, x in enumerate(post_vm): sched.setdefault(24 + 2*k_, []).append(x)
        if inloop and u == uexit:
            sched.setdefault(31, []).append(f's_add_u32 s{gU}, s{gU}, {UN}')
            sched.setdefault(31, []).append(f's_cmp_ge_u32 s{gU}, {LS}')
        if inloop and u in hooks:
            sched.setdefault(31, []).append(f's_cmp_eq_u32 s{gU}, {hooks[u][1]}')
        i = 0
        for n in range(4):
            for m in range(4):
                for ks in range(2):
                    d = ACC + (n*4+m)*4
                    c = '0' if (u == 0 and not inloop and ks == 0) else f'v[{d}:{d+3}]'
                    a.e(f'{MF} v[{d}:{d+3}], v[{wreg(par,ks,n)}:{wreg(par,ks,n)+3}], v[{areg(par,ks,m)}:{areg(par,ks,m)+3}], {c}')
                    for x in sched.get(i, []): a.e(x)
                    i += 1
        if inloop and u in hooks:
            a.e(f's_cbranch_scc1 L2_b{hooks[u][0]}'); a.label(f'L2_bret{hooks[u][0]}')
    NPEEL = cfg.npeel
    assert uexit >= NPEEL or LS > UN
    nl_ = len(late)
    bst = [f'buffer_store_dwordx4 v[{XR+4*i_}:{XR+4*i_+3}], v{hO}, s[{S_O}:{S_O+3}], s67 offen offset:{i_*1024} sc1' for i_ in range(4)] + \
          [f'buffer_store_dwordx4 a[{4*m}:{4*m+3}], v{hO+1+(m>>1)}, s[{S_O}:{S_O+3}], s66 offen offset:{(m&1)*2048} sc1' for m in range(4)]
    q0 = [t_ for t_ in range(1, NS) for _ in range(4)]
    BP = cfg.bper
    assert 8 <= BP*3
    for u in range(NPEEL):
        last = max(i_ for i_, x in enumerate(q0) if x == u+1)
        full_step(u, len(q0) - 1 - last, False, fill=late[(u*nl_)//3:((u+1)*nl_)//3] if u < 3 else (), post_vm=bst[BP*u:BP*u+BP])
        q0 = q0[last+1:] + [u+NS]*8 + ['b']*len(bst[BP*u:BP*u+BP])
    a.e('s_branch L2_uin')
    a.label('L2_bnat')
    a.e(f's_and_b32 s3, s{sWAVE}, 1'); a.e('s_mul_i32 s3, s3, -24576')
    for d in range(4):
        a.e(f'v_add_u32 v{hDW+d}, s3, v{hDW+d}'); a.e('s_add_u32 s3, s3, 8192')
    a.e('s_branch L2_bretnat')
    a.label('L2_bflg')
    a.e('s_mov_b64 exec, 1')
    a.e(f'buffer_store_dwordx2 v[{hTS}:{hTS+1}], v{hTS+2}, s[{G_F}:{G_F+3}], 0 offen sc1')
    a.e('s_mov_b64 exec, -1')
    a.e('s_branch L2_bretflg')
    a.label('L2_bask')
    a.e(f'buffer_load_dwordx2 v[{hBF}:{hBF+1}], v{hTS+3}, s[{G_F}:{G_F+3}], 0 offen sc1')
    a.e('s_branch L2_bretask')
    a.label('L2_bchk')
    a.e('s_mov_b32 s3, 0')
    a.label('L2_bspin')
    stamp_ok(a, hBF, 66); a.e('s_cbranch_scc1 L2_bretchk')
    a.e('s_add_u32 s3, s3, 1'); a.e('s_cmp_gt_u32 s3, 0x8000'); a.e('s_cbranch_scc1 L2_bretchk')
    a.e(f'buffer_load_dwordx2 v[{hBF}:{hBF+1}], v{hTS+3}, s[{G_F}:{G_F+3}], 0 offen sc1')
    a.e('s_waitcnt vmcnt(0)'); a.e('s_branch L2_bspin')
    a.label('L2_loop')
    for u in range(UN):
        if u == NPEEL: a.label('L2_uin')
        full_step(u, VM2, True)
        if u == uexit: a.e('s_cbranch_scc1 L2_half')
        if u == UN-1: a.e('s_branch L2_loop')
    a.label('L2_half')
    q = []
    for t in range(LS+1, FS): q += [('d', t)]*8
    def wait_for(pred, extra=''):
        last = max([i for i, x in enumerate(q) if pred(x)], default=-1)
        a.e(f's_waitcnt vmcnt({min(len(q) - 1 - last, 63)}){extra}')
        del q[:last+1]
    def fload(): a.e(f'buffer_load_dwordx2 v[{hBF}:{hBF+1}], v{hFL}, s[{G_F}:{G_F+3}], 0 offen sc1')
    def pl():
        for k_ in range(4): a.e(f'buffer_load_dwordx4 v[{ACC+32+4*k_}:{ACC+32+4*k_+3}], v{hPL}, s[{G_P}:{G_P+3}], 0 offen offset:{k_*1024} sc1')
    for t in range(LS, TOT):
        hs = t - FS; slot = t % NS; par = t & 1
        nn = 4 if hs < 0 else 2
        if any(x == ('d', t+1) for x in q): wait_for(lambda x: x == ('d', t+1), ' lgkmcnt(0)')
        else: a.e('s_waitcnt lgkmcnt(0)')
        if t+1 < TOT: a.e('s_barrier')
        rec()
        sched = {}
        def add(i, x, tag=None): sched.setdefault(i, []).append((x, tag))
        if t + 1 < TOT:
            for i, r in enumerate(reads((slot+1) % NS, par ^ 1, 4 if t+1 < FS else 2)): add(i, r)
        extra = []
        if t + NS < TOT:
            for pre, ins, post in g2_dma(slot, compact=True):
                extra += [(x, None) for x in pre] + [(ins, ('d', t+NS))] + [(x, None) for x in (post if t+NS+1 < TOT else [])]
        if hs == max(HS-NS, 1):
            extra += [(f'buffer_load_dwordx4 v[{XR+4*m}:{XR+4*m+3}], v{hXO}, s[{G_X}:{G_X+3}], {rowoff[m]} offen', ('x', 0)) for m in range(4)]
        pub = []
        for k_ in range(4):
            c0 = ACC+32+4*k_; c1 = ACC+48+4*k_
            pub += [(f'v_cvt_pk_bf16_f32 v{c0}, v{c0}, v{c0+1}', None), (f'v_cvt_pk_bf16_f32 v{c0+1}, v{c0+2}, v{c0+3}', None),
                    (f'v_cvt_pk_bf16_f32 v{c0+2}, v{c1}, v{c1+1}', None), (f'v_cvt_pk_bf16_f32 v{c0+3}, v{c1+2}, v{c1+3}', None),
                    (f'buffer_store_dwordx4 v[{c0}:{c0+3}], v{hPS}, s[{G_P}:{G_P+3}], 0 offen offset:{k_*1024} sc1', ('s', 0))]
        if hs == 0 and not cfg.epub: extra += pub
        if hs == -1 and cfg.epub:
            assert not extra
            for k_, (x, tag) in enumerate(pub): add(20 + (k_*12)//len(pub), x, tag)
        for k_, (x, tag) in enumerate(extra): add((k_*8*nn)//max(len(extra), 1), x, tag)
        i = 0
        for n in ((2, 3, 0, 1) if (hs == -1 and cfg.epub) else range(nn)):
            for m in range(4):
                for ks in range(2):
                    d = ACC + (n*4+m)*4
                    a.e(f'{MF} v[{d}:{d+3}], v[{wreg(par,ks,n)}:{wreg(par,ks,n)+3}], v[{areg(par,ks,m)}:{areg(par,ks,m)+3}], v[{d}:{d+3}]')
                    for x, tag in sched.get(i, []):
                        a.e(x)
                        if tag: q.append(tag)
                    i += 1
        if hs == cfg.k2_flg:
            wait_for(lambda x: x[0] == 's')
            a.e('s_mov_b64 exec, 1')
            a.e(f'buffer_store_dwordx2 v[{hTS}:{hTS+1}], v{hFS}, s[{G_F}:{G_F+3}], 0 offen sc1'); q.append(('f', 0))
            a.e('s_mov_b64 exec, -1')
        if hs == HS-2:
            fload(); q.append(('p', 0))
        if hs == HS-1:
            wait_for(lambda x: x[0] == 'p')
    a.e('s_mov_b32 s3, 0')
    a.label('L2_chk')
    stamp_ok(a, hBF, 66); a.e('s_cbranch_scc1 L2_have')
    a.e('s_add_u32 s3, s3, 1'); a.e('s_cmp_gt_u32 s3, 0x40000'); a.e('s_cbranch_scc1 L2_have')
    fload(); a.e('s_waitcnt vmcnt(0)'); a.e('s_branch L2_chk')
    a.label('L2_have')
    rec()
    pl()
    st.at(7, 1)
    for m in range(4):
        Tm = FR + m*8; x = XR + 4*m
        for r in range(4):
            a.e(f'v_lshlrev_b32 v{Tm+2*r}, 16, v{x+r}'); a.e(f'v_and_b32 v{Tm+2*r+1}, s64, v{x+r}')
    for m in range(4):
        x = XR + 4*m; c0 = ACC + 4*m; c1 = ACC + 16 + 4*m; Tm = FR + m*8; pk = ACC + 32 + 4*m; U = FR + 32 + m*8
        a.e('s_waitcnt vmcnt(3)')
        for r in range(4):
            a.e(f'v_lshlrev_b32 v{U+2*r}, 16, v{pk+r}'); a.e(f'v_and_b32 v{U+2*r+1}, s64, v{pk+r}')
        for (c, p) in ((c0, U), (c1, U+4)):
            a.e(f'v_pk_add_f32 {P2(c)}, {P2(c)}, {P2(p)}'); a.e(f'v_pk_add_f32 {P2(c+2)}, {P2(c+2)}, {P2(p+2)}')
        for r in range(4): a.e(f'v_permlane16_swap_b32 v{c0+r}, v{c1+r}')
        a.e(f'v_pk_add_f32 {P2(c0)}, {P2(c0)}, {P2(Tm)}'); a.e(f'v_pk_add_f32 {P2(c0+2)}, {P2(c0+2)}, {P2(Tm+2)}')
        a.e(f'v_pk_add_f32 {P2(c1)}, {P2(c1)}, {P2(Tm+4)}'); a.e(f'v_pk_add_f32 {P2(c1+2)}, {P2(c1+2)}, {P2(Tm+6)}')
        a.e(f'v_cvt_pk_bf16_f32 v{x}, v{c0}, v{c0+1}'); a.e(f'v_cvt_pk_bf16_f32 v{x+1}, v{c0+2}, v{c0+3}')
        a.e(f'v_cvt_pk_bf16_f32 v{x+2}, v{c1}, v{c1+1}'); a.e(f'v_cvt_pk_bf16_f32 v{x+3}, v{c1+2}, v{c1+3}')
        a.e(f'buffer_store_dwordx4 v[{x}:{x+3}], v{hXO}, s[{G_OUT}:{G_OUT+3}], {rowoff[m]} offen' + ['', ' sc1', ' nt'][cfg.ost])
    if st.on:
        a.e('s_waitcnt vmcnt(0)'); st.at(3, 2)
    if cfg.stamps in (7, 8):
        a.e('s_waitcnt vmcnt(0)'); rec()
        srd(a, 92, 6, 7, 1 << 20, STAMP_OFF + (1 << 19))
        a.e('s_lshl_b32 s96, s2, 10'); a.e(f's_lshl_b32 s97, s{sWAVE}, 8'); a.e('s_add_u32 s96, s96, s97')
        a.e(f'v_lshl_add_u32 v{hT2}, v{vLANE}, 2, s96')
        a.e(f'buffer_store_dword v29, v{hT2}, s[92:95], 0 offen')
    st.flush(sWAVE, hT2, hT2+1)
    a.label('L_end')
    a.e('s_endpgm')
    return name

def build(cfg):
    a = Asm()
    a.e('.amdgcn_target "amdgcn-amd-amdhsa--gfx950"'); a.e('.text')
    name = gen(a, cfg)
    for x in a.ins:
        if x.kind == 'vmem' and x.lds: x.text = x.text.replace(' lds', ' sc1 lds')
    a.fix()
    head = open('cdna_kernels/' + NAME + '.s.ref').read().split('\n')
    hdr = [l for l in head[:13] if l.startswith(';') and '@launch' not in l and 'Override' not in l and 'grid=ceil' not in l]
    out = '\n'.join(hdr) + '\n; @launch grid=(256,1,1) block=(256,1,1) lds=163840\n' + a.text()
    out += f'''.section .rodata,"a"
.p2align 6
.amdhsa_kernel {name}
  .amdhsa_next_free_vgpr 512
  .amdhsa_next_free_sgpr 102
  .amdhsa_accum_offset 256
  .amdhsa_group_segment_fixed_size 0
  .amdhsa_kernarg_size 80
  .amdhsa_user_sgpr_count 2
  .amdhsa_user_sgpr_kernarg_segment_ptr 1
  .amdhsa_system_sgpr_workgroup_id_x 1
.end_amdhsa_kernel
'''
    return out

if __name__ == '__main__':
    cfg = Cfg()
    outp = sys.argv[1] if len(sys.argv) > 1 else 'cdna_kernels/' + NAME + '.s'
    for kv in sys.argv[2:]:
        k, v = kv.split('='); assert hasattr(cfg, k), k; setattr(cfg, k, int(v))
    open(outp, 'w').write(build(cfg))
    sys.path.insert(0, 'cdna_kernels')
    import subprocess, cdna_launch as cl
    h = cl.with_harness_metadata(open(outp).read(), NAME + '_kernel', 10, launch_lists=True)
    open('h.s', 'w').write(h)
    r = subprocess.run(['clang', '-x', 'assembler', '-target', 'amdgcn-amd-amdhsa', '-mcpu=gfx950', 'h.s', '-o', 'h.co'], capture_output=True, text=True)
    if r.returncode: print(r.stderr[:1500]); sys.exit(1)
    print('wrote', outp, 'check:', cl.address_register_problem('h.co', NAME + '_kernel', None))
```

```python
import sys
sys.path.insert(0, 'dev')
from asmlib import *

NAME = 'parallel_sum__sliding_local_dilated__glu_gated_bilinear__prompt'
XN_OFF = 0;            XN_BYTES = 32*128*1024
ACT2_OFF = 4 << 20;    ACT2_BYTES = 144*128*1024
PART_OFF = 24 << 20;   PART_BYTES = 1024*4096
FLAG_OFF = 32 << 20
PFLAG_REL = 0; XFLAG_REL = 256 << 10; AFLAG_REL = 512 << 10; BFLAG_REL = 640 << 10
STAMP_OFF = 40 << 20

class Cfg:
    stamps = 0
    pfd = 8; pf3n = 56; pf3w = 27; f0ne = 4; f0sl = 0
    k2_fs = 34; k2_flg = 2; k2_chk = 3
    g1sl = 0
    ncpf = 6
    afirst = 1
    vsp = 4
    dbg = 0
    dsp = 3
    d0 = 1
    rd0 = 0
    rsp = 24
    pfx = 1
    hk = 0
    wlate = 0
    cpf2 = 0
    w0late = 0
    epub = 1
    ost = 0
    ilv = 0
    bper = 3
    npeel = 7
    fa_at = 2
    def __init__(self, **kw):
        for k, v in kw.items(): setattr(self, k, v)

def srd(a, d, lo, hi, nbytes, off=0):
    if off:
        a.e(f's_add_u32 s{d}, s{lo}, {off}'); a.e(f's_addc_u32 s{d+1}, s{hi}, 0')
    else:
        a.e(f's_mov_b32 s{d}, s{lo}'); a.e(f's_mov_b32 s{d+1}, s{hi}')
    a.e(f's_mov_b32 s{d+2}, {nbytes}'); a.e(f's_mov_b32 s{d+3}, 0x20000')

def code_pf(a, start, end, vlane, vtmp, vdum, spc, nins):
    a.e(f's_getpc_b64 s[{spc}:{spc+1}]')
    lab = f'Lpc_{start}'
    a.label(lab)
    a.e(f's_add_u32 s{spc}, s{spc}, {start}-{lab}')
    a.e(f's_addc_u32 s{spc+1}, s{spc+1}, 0')
    for i in range(nins):
        a.e(f'v_lshlrev_b32 v{vtmp}, 7, v{vlane}')
        if i: a.e(f'v_add_u32 v{vtmp}, {i*8192}, v{vtmp}')
        a.e(f'v_min_u32 v{vtmp}, {end}-{start}-4, v{vtmp}')
        a.e(f'global_load_dword v{vdum}, v{vtmp}, s[{spc}:{spc+1}]')

class Stamper:
    def __init__(self, a, on): self.a = a; self.on = on
    def at(self, i, mode=1):
        if self.on == mode or (self.on and i == 0): self.a.e(f's_memrealtime s[{70+2*i}:{71+2*i}]')
    def flush(self, wave, vt0, vt1):
        if not self.on: return
        a = self.a
        a.e('s_waitcnt lgkmcnt(0)')
        srd(a, 92, 6, 7, 1 << 20, STAMP_OFF)
        a.e('s_lshl_b32 s96, s2, 8'); a.e(f's_lshl_b32 s97, s{wave}, 6'); a.e('s_add_u32 s96, s96, s97')
        a.e(f'v_mov_b32 v{vt0}, s96')
        a.e('s_mov_b64 exec, 1')
        for i in range(8):
            a.e(f'v_mov_b32 v{vt1}, s{70+2*i}')
            a.e(f'buffer_store_dword v{vt1}, v{vt0}, s[92:95], 0 offen offset:{4*i}')
        a.e('s_mov_b64 exec, -1')

class LgkmTracker:
    def __init__(self, a): self.a = a; self.q = []
    def read(self, text):
        self.a.e(text); self.q.append(set(Ins(text).dst))
    def other(self): self.q.append(set())
    def need(self, regs):
        regs = set(regs); last = -1
        for i, d in enumerate(self.q):
            if d & regs: last = i
        if last < 0: return
        n = min(len(self.q) - 1 - last, 15)
        self.a.e(f's_waitcnt lgkmcnt({n})')
        self.q = self.q[len(self.q) - n:] if n else []
    def drain(self): self.q = []
    def state(self): return [tuple(sorted(x)) for x in self.q]

def P2(r): return f'v[{r}:{r+1}]'
def AR(r): return f'a[{r}:{r+3}]'
MF = 'v_mfma_f32_16x16x32_bf16'

L1_W = 65536; L1_HALO = 147456; L1_STAT = 151552
sT0 = 100; sCHK = 101; sWAVE = 51; BACK = 2500; WIN = 1 << 17

def stamp_ok(a, v, stmp):
    a.e(f'v_xor_b32 v{v+1}, v{v}, v{v+1}'); a.e(f'v_subrev_u32 v{v}, s{sT0}, v{v}')
    a.e(f'v_lshrrev_b32 v{v}, 17, v{v}')
    a.e(f'v_cmp_eq_u32 vcc, s{sCHK}, v{v+1}'); a.e(f'v_cmp_eq_u32 s[{stmp}:{stmp+1}], 0, v{v}')
    a.e(f's_and_b64 vcc, vcc, s[{stmp}:{stmp+1}]')
    a.e('s_cmp_eq_u64 vcc, exec')

def gen(a, cfg):
    name = NAME + '_kernel'
    a.e(f'.globl {name}'); a.e('.p2align 8'); a.e(f'.type {name},@function'); a.label(name)
    st = Stamper(a, cfg.stamps)
    S_XN = 8; S_W = 12; S_O = 32
    sACT = 36; sWO = 37; sWS = 42; sM_ACT = 47; sM_W = 48; sM_H = 49; sCNT = 50; sWM = 52; sRB = 54; sJ = 55
    S_PF = 88; sPFO = 86; sPFS = 87
    vLANE = 1; vDA = 2; vDH = 3; vDW = 4
    vA = 9; vHA = 10; vGU = 11; vQa = 13; vQb = 15; vHW = 17; vPF = 19; vT = 20; vDUM = 31
    aBI = 200
    a.e('s_cmp_ge_u32 s2, 256'); a.e('s_cbranch_scc1 L_end')
    st.at(0)
    a.e('s_load_dwordx2 s[96:97], s[0:1], 0')
    a.e('s_load_dwordx2 s[4:5], s[0:1], 8')
    a.e('s_load_dwordx4 s[56:59], s[0:1], 32')
    a.e('s_load_dwordx2 s[6:7], s[0:1], 72')
    a.e('s_load_dwordx2 s[68:69], s[0:1], 48')
    a.e('s_load_dwordx2 s[92:93], s[0:1], 16')
    a.e('s_memrealtime s[60:61]')
    a.e(f'v_lshrrev_b32 v{vT}, 6, v0')
    a.e(f'v_and_b32 v{vLANE}, 63, v0')
    a.e(f'v_readfirstlane_b32 s{sWAVE}, v{vT}')
    a.e(f's_cmp_lg_u32 s{sWAVE}, 3'); a.e('s_cbranch_scc1 L1_nocpf0')
    code_pf(a, 'L1_nocpf0', 'L1_wn1', vLANE, 134, 135, 94, 1)
    a.label('L1_nocpf0')
    a.e(f'v_lshrrev_b32 v128, 3, v{vLANE}'); a.e(f'v_and_b32 v129, 7, v{vLANE}')
    a.e('s_lshl_b32 s3, s2, 14')
    a.e('v_lshl_add_u32 v130, v128, 11, s3'); a.e(f'v_lshl_add_u32 v130, v{vT}, 9, v130'); a.e('v_lshl_add_u32 v130, v129, 4, v130')
    a.e('s_mov_b32 s98, 0x400000'); a.e('s_mov_b32 s99, 0x20000')
    a.e('s_waitcnt lgkmcnt(0)')
    for it in range(4): a.e(f'buffer_load_dwordx4 v[{32+4*it}:{35+4*it}], v130, s[96:99], 0 offen offset:{it*128}')
    a.e(f's_sub_u32 s{sT0}, s60, {BACK}')
    a.e(f's_not_b32 s{sCHK}, s61')
    a.e(f's_and_b32 s{sJ}, s2, 7'); a.e(f's_lshl_b32 s{sJ}, s{sJ}, 2')
    a.e('s_lshr_b32 s3, s2, 3')
    a.e(f's_lshr_b32 s{sRB}, s3, 2'); a.e('s_and_b32 s3, s3, 3'); a.e(f's_add_u32 s{sJ}, s{sJ}, s3')
    a.e(f's_lshr_b32 s{sWM}, s{sWAVE}, 1')
    a.e(f's_lshl_b32 s62, s{sJ}, 6'); a.e(f's_mul_i32 s63, s{sJ}, 224')
    a.e(f's_and_b32 s64, s{sJ}, 1'); a.e('s_lshl_b32 s64, s64, 1')
    a.e('s_movk_i32 s65, 6144'); a.e('s_movk_i32 s66, 7168')
    for w in (1, 2, 3):
        a.e(f's_cmp_eq_u32 s{sWAVE}, {w}'); a.e(f's_cbranch_scc1 L1_set{w}')
    for w in range(4):
        if w: a.label(f'L1_set{w}')
        t0, t1, t2, t3 = vT+1, vT+2, vT+3, vT+4
        if w < 3:
            a.e(f'v_mul_u32_u24 v{t0}, 21846, v{vLANE}'); a.e(f'v_lshrrev_b32 v{t0}, 16, v{t0}')
            a.e(f'v_mul_u32_u24 v{t1}, 3, v{t0}'); a.e(f'v_sub_u32 v{t1}, v{vLANE}, v{t1}')
            a.e(f's_lshl_b32 s60, s{sRB}, 2'); a.e(f'v_add_u32 v{t0}, s60, v{t0}')
            if w == 0:
                a.e(f'v_lshlrev_b32 v{t1}, 11, v{t1}'); a.e(f'v_add_u32 v{t1}, s62, v{t1}')
            else:
                a.e(f'v_lshlrev_b32 v{t1}, 7, v{t1}'); a.e(f'v_min_u32 v{t1}, 220, v{t1}'); a.e(f'v_add_u32 v{t1}, s63, v{t1}')
            a.e(f'v_mad_u32_u24 v{vPF}, v{t0}, s{65 if w == 0 else 66}, v{t1}')
            nl = 12
            a.e(f's_mov_b32 s{sPFS}, {32*(6144 if w == 0 else 7168)}'); a.e(f's_mov_b32 s{sPFO}, 0')
            srd(a, S_PF, *((4, 5, 1024*3072*2), (56, 57, 1024*3584*2), (58, 59, 1024*3584*2))[w])
        else:
            a.e(f'v_lshlrev_b32 v{vPF}, 7, v{vLANE}')
            nl = cfg.pf3n
            a.e(f's_mov_b32 s{sPFS}, {nl*128}'); a.e(f's_mov_b32 s{sPFO}, {(-(cfg.pf3w + cfg.pfd-3)*nl*128) & 0xffffffff}')
            a.e(f's_mul_i32 s60, s2, {224*128}')
            a.e(f's_add_u32 s{S_PF}, s68, s60'); a.e(f's_addc_u32 s{S_PF+1}, s69, 0')
            a.e(f's_mov_b32 s{S_PF+2}, {224*128}'); a.e(f's_mov_b32 s{S_PF+3}, 0x20000')
        a.e(f'v_mov_b32 v{t2}, 0x80000000')
        a.e(f'v_cmp_gt_u32 vcc, {nl}, v{vLANE}')
        a.e(f'v_cndmask_b32 v{vPF}, v{t2}, v{vPF}, vcc')
        for _ in range(cfg.f0ne if not cfg.pfx else cfg.pfx-1):
            a.e(f'buffer_load_dword v{vDUM}, v{vPF}, s[{S_PF}:{S_PF+3}], s{sPFO} offen'); a.e(f's_add_u32 s{sPFO}, s{sPFO}, s{sPFS}')
        for d in range(5):
            p = 5*w + d
            if p < 6: kind, pl, C, magic = 'q', p, 12, 5462
            elif p < 13: kind, pl, C, magic = 'g', p-6, 14, 4682
            else: kind, pl, C, magic = 'u', p-13, 14, 4682
            a.e(f'v_add_u32 v{t0}, {64*pl}, v{vLANE}')
            a.e(f'v_mul_u32_u24 v{t1}, {magic}, v{t0}')
            a.e(f'v_lshrrev_b32 v{t1}, 16, v{t1}')
            a.e(f'v_mul_u32_u24 v{t2}, {C}, v{t1}')
            a.e(f'v_sub_u32 v{t0}, v{t0}, v{t2}')
            if kind == 'q':
                a.e(f'v_lshrrev_b32 v{t2}, 1, v{t1}'); a.e(f'v_and_b32 v{t2}, 2, v{t2}')
                a.e(f'v_xor_b32 v{t0}, v{t0}, v{t2}')
                a.e(f'v_lshrrev_b32 v{t2}, 2, v{t0}'); a.e(f'v_lshlrev_b32 v{t2}, 11, v{t2}')
                a.e(f'v_and_b32 v{t0}, 3, v{t0}')
                a.e(f'v_lshl_add_u32 v{t0}, v{t0}, 4, v{t2}')
                a.e(f'v_add_u32 v{t0}, s62, v{t0}')
            else:
                a.e(f'v_add_u32 v{t0}, s64, v{t0}')
                a.e(f'v_subrev_u32 v{t2}, 14, v{t0}')
                a.e(f'v_min_u32 v{t0}, v{t0}, v{t2}')
                a.e(f'v_lshl_add_u32 v{t0}, v{t0}, 4, s63')
            a.e(f'v_and_b32 v{t2}, 3, v{t1}')
            a.e(f'v_bfe_u32 v{t3}, v{t1}, 2, 2')
            a.e(f'v_lshl_add_u32 v{t2}, v{t3}, 3, v{t2}')
            a.e(f'v_lshrrev_b32 v{t3}, 4, v{t1}')
            a.e(f'v_lshl_add_u32 v{t2}, v{t3}, 2, v{t2}')
            a.e(f'v_mad_u32_u24 v{vDW+d}, v{t2}, s{65 if kind == "q" else 66}, v{t0}')
            srd(a, S_W+4*d, *{'q': (4, 5, 1024*3072*2), 'g': (56, 57, 1024*3584*2), 'u': (58, 59, 1024*3584*2)}[kind])
            a.e(f's_mov_b32 s{sWS+d}, {32*(6144 if kind == "q" else 7168)}')
        if w < 3: a.e('s_branch L1_setdone')
    a.label('L1_setdone')
    srd(a, S_XN, 6, 7, XN_BYTES)
    srd(a, 96, 6, 7, 1 << 20, FLAG_OFF)
    a.e('v_lshrrev_b32 v131, 2, v129'); a.e(f'v_lshl_add_u32 v131, v{vT}, 3, v131'); a.e('v_lshlrev_b32 v131, 17, v131')
    a.e('v_and_b32 v132, 3, v129'); a.e('v_lshl_add_u32 v131, v132, 8, v131'); a.e('v_lshl_add_u32 v131, v128, 4, v131')
    a.e('s_lshr_b32 s60, s2, 1'); a.e('s_lshl_b32 s60, s60, 10'); a.e('s_and_b32 s61, s2, 1'); a.e('s_lshl_b32 s61, s61, 7'); a.e('s_add_u32 s60, s60, s61')
    a.e('v_add_u32 v131, s60, v131')
    a.e('v_lshlrev_b32 v132, 5, v128'); a.e(f'v_add_u32 v132, {L1_STAT}, v132'); a.e(f'v_lshl_add_u32 v133, v{vT}, 3, v132')
    a.e('s_mov_b32 s60, 0xffff0000'); a.e('s_mov_b32 s61, 262144'); a.e('s_mov_b32 s62, 524288'); a.e('s_mov_b32 s63, 786432')
    a.e('v_mov_b32 v120, 0x43800000'); a.e('v_mov_b32 v121, 0x3727c5ac'); a.e('v_mov_b32 v122, 0x3a800000')
    st.at(4, 2)
    a.e(f's_waitcnt vmcnt({cfg.f0ne if not cfg.pfx else cfg.pfx-1})')
    st.at(5, 2)
    if cfg.pfx:
        for _ in range(cfg.f0ne - (cfg.pfx-1)):
            a.e(f'buffer_load_dword v{vDUM}, v{vPF}, s[{S_PF}:{S_PF+3}], s{sPFO} offen'); a.e(f's_add_u32 s{sPFO}, s{sPFO}, s{sPFS}')
    if cfg.hk:
        a.e(f's_cmp_lg_u32 s{sWAVE}, 3'); a.e('s_cbranch_scc1 L1_hkd')
        code_pf(a, 'L1_polled', 'L_end', vLANE, 134, 135, 94, cfg.ncpf)
        a.e('s_mov_b32 s94, 0x200000'); a.e('s_mov_b32 s95, 0x20000')
        a.e('s_lshl_b32 s3, s2, 13'); a.e(f'v_lshlrev_b32 v134, 7, v{vLANE}')
        a.e('buffer_load_dword v135, v134, s[92:95], s3 offen')
        a.label('L1_hkd')
    X = 48; T = 80
    def red8(r):
        a.e(f'v_add_f32_dpp v{r}, v{r}, v{r} quad_perm:[1,0,3,2] row_mask:0xf bank_mask:0xf')
        a.e(f'v_add_f32_dpp v{r}, v{r}, v{r} quad_perm:[2,3,0,1] row_mask:0xf bank_mask:0xf')
        a.e(f'v_add_f32_dpp v{r}, v{r}, v{r} row_half_mirror row_mask:0xf bank_mask:0xf')
    def tree():
        for sp in (4, 2, 1):
            for i_ in range(sp): a.e(f'v_pk_add_f32 {P2(T+2*i_)}, {P2(T+2*i_)}, {P2(T+2*i_+2*sp)}')
    for i_ in range(16):
        a.e(f'v_lshlrev_b32 v{X+2*i_}, 16, v{32+i_}'); a.e(f'v_and_b32 v{X+2*i_+1}, s60, v{32+i_}')
    for i_ in range(8): a.e(f'v_pk_add_f32 {P2(T+2*i_)}, {P2(X+4*i_)}, {P2(X+4*i_+2)}')
    tree()
    a.e(f'v_add_f32 v{T}, v{T}, v{T+1}'); red8(T)
    a.e(f'v_mul_f32 v96, 0xbb800000, v{T}'); a.e('v_mov_b32 v97, v96')
    for i_ in range(16): a.e(f'v_pk_add_f32 {P2(X+2*i_)}, {P2(X+2*i_)}, v[96:97]')
    for i_ in range(8): a.e(f'v_pk_mul_f32 {P2(T+2*i_)}, {P2(X+4*i_)}, {P2(X+4*i_)}')
    for i_ in range(8): a.e(f'v_pk_fma_f32 {P2(T+2*i_)}, {P2(X+4*i_+2)}, {P2(X+4*i_+2)}, {P2(T+2*i_)}')
    tree()
    a.e(f'v_add_f32 v97, v{T}, v{T+1}'); red8(97)
    a.e('ds_write_b64 v133, v[96:97]')
    a.e('s_waitcnt lgkmcnt(0)'); a.e('s_barrier')
    st.at(6, 2)
    a.e('ds_read_b128 v[100:103], v132'); a.e('ds_read_b128 v[104:107], v132 offset:16')
    a.e('s_waitcnt lgkmcnt(0)')
    a.e('v_pk_add_f32 v[108:109], v[100:101], v[102:103]'); a.e('v_pk_add_f32 v[110:111], v[104:105], v[106:107]')
    a.e('v_pk_add_f32 v[108:109], v[108:109], v[110:111]')
    a.e('v_mul_f32 v108, 0x3e800000, v108')
    for r in (100, 102, 104, 106): a.e(f'v_sub_f32 v{r}, v{r}, v108')
    a.e('v_mul_f32 v110, v100, v100'); a.e('v_mul_f32 v111, v102, v102'); a.e('v_fmac_f32 v110, v104, v104'); a.e('v_fmac_f32 v111, v106, v106')
    a.e('v_add_f32 v110, v110, v111')
    a.e('v_fmac_f32 v109, v110, v120'); a.e('v_fmac_f32 v121, v109, v122')
    a.e('v_rsq_f32 v120, v121')
    a.e('v_sub_f32 v122, v108, v96'); a.e('v_mov_b32 v121, v120'); a.e('v_mul_f32 v122, v122, v120'); a.e('v_mov_b32 v123, v122')
    so_ = ['0', 's61', 's62', 's63']
    for it in range(4):
        for i_ in range(4*it, 4*it+4): a.e(f'v_pk_fma_f32 {P2(X+2*i_)}, {P2(X+2*i_)}, v[120:121], v[122:123]')
        for i_ in range(4*it, 4*it+4): a.e(f'v_cvt_pk_bf16_f32 v{32+i_}, v{X+2*i_}, v{X+2*i_+1}')
        a.e(f'buffer_store_dwordx4 v[{32+4*it}:{35+4*it}], v131, s[{S_XN}:{S_XN+3}], {so_[it]} offen sc1')
    st.at(7, 2)
    a.e(f's_lshl_b32 s{sM_ACT}, s{sWAVE}, 12')
    a.e(f's_mul_i32 s{sM_W}, s{sWAVE}, 5120'); a.e(f's_add_u32 s{sM_W}, s{sM_W}, {L1_W}')
    a.e(f's_lshl_b32 s{sM_H}, s{sWAVE}, 8'); a.e(f's_add_u32 s{sM_H}, s{sM_H}, {L1_HALO}')
    a.e(f's_mov_b32 s{sACT}, 0')
    for d in range(5): a.e(f's_mov_b32 s{sWO+d}, 0')
    def dma_list(slot):
        L = []
        for d in range(5):
            L.append((f's_add_u32 m0, s{sM_W}, {slot*20480 + d*1024}',
                      f'buffer_load_dwordx4 v{vDW+d}, s[{S_W+4*d}:{S_W+4*d+3}], s{sWO+d} offen lds',
                      f's_add_u32 s{sWO+d}, s{sWO+d}, s{sWS+d}'))
        for d in range(4):
            L.append((f's_add_u32 m0, s{sM_ACT}, {slot*16384}' if d == 0 else None,
                      f'buffer_load_dwordx4 v{vDA}, s[{S_XN}:{S_XN+3}], s{sACT} offen offset:{d*1024} lds', None))
        L.append((f's_add_u32 m0, s{sM_H}, {slot*1024}',
                  f'buffer_load_dword v{vDH}, s[{S_XN}:{S_XN+3}], s{sACT} offen lds', f's_add_u32 s{sACT}, s{sACT}, 131072'))
        L.append((None, f'buffer_load_dword v{vDUM}, v{vPF}, s[{S_PF}:{S_PF+3}], s{sPFO} offen', f's_add_u32 s{sPFO}, s{sPFO}, s{sPFS}'))
        return L
    def flat(dl): return [x for t_ in dl for x in t_ if x]
    VMW = 12
    if not cfg.wlate:
        for x in flat(dma_list(0)[:5] + dma_list(1)[:5]): a.e(x)
    latepf = [dma_list(0)[10]]*(cfg.pfd-1-cfg.f0ne)
    srd(a, S_O, 6, 7, ACT2_BYTES, ACT2_OFF)
    a.e(f's_lshl_b32 s60, s{sRB}, 14'); a.e(f's_lshl_b32 s61, s{sWAVE}, 12'); a.e('s_add_u32 s61, s61, s60')
    a.e(f'v_lshl_add_u32 v{vDA}, v{vLANE}, 4, s61')
    a.e('s_max_u32 s60, s60, 1024'); a.e('s_sub_u32 s60, s60, 1024')
    a.e(f's_lshl_b32 s61, s{sWAVE}, 8'); a.e('s_add_u32 s61, s61, s60')
    a.e(f'v_lshl_add_u32 v{vDH}, v{vLANE}, 2, s61')
    a.e(f's_lshl_b32 s60, s{sRB}, 5'); a.e('s_sub_u32 s60, s60, 2')
    a.e(f'v_min_u32 v134, 33, v{vLANE}'); a.e('v_add_u32 v134, s60, v134'); a.e('v_max_i32 v134, 0, v134'); a.e('v_lshlrev_b32 v134, 7, v134')
    a.e(f'v_add_u32 v134, {XFLAG_REL}, v134')
    a.e('s_lshl_b32 s60, s2, 7'); a.e(f's_add_u32 s60, s60, {XFLAG_REL}'); a.e('v_mov_b32 v135, s60')
    a.e(f's_add_u32 s60, s{sT0}, {BACK}'); a.e('v_mov_b32 v136, s60'); a.e(f'v_xor_b32 v137, s{sCHK}, v136')
    t0, t1, t2 = vT, vT+1, vT+2
    a.e(f's_lshl_b32 s60, s{sWM}, 13')
    a.e(f'v_lshl_add_u32 v{vA}, v{vLANE}, 4, s60')
    a.e(f'v_lshlrev_b32 v{vHA}, 4, v{vLANE}'); a.e(f'v_add_u32 v{vHA}, {L1_HALO}, v{vHA}')
    a.e(f'v_lshrrev_b32 v{t0}, 2, v{vLANE}')
    a.e(f'v_and_b32 v{t1}, 3, v{vLANE}'); a.e(f'v_lshlrev_b32 v{t1}, 3, v{t1}'); a.e(f'v_add_u32 v{t1}, {L1_W}, v{t1}')
    a.e(f'v_mul_u32_u24 v{t2}, 224, v{t0}'); a.e(f'v_add_u32 v{vGU}, v{t2}, v{t1}'); a.e(f'v_add_u32 v{vGU+1}, 40960, v{vGU}')
    a.e(f'v_mul_u32_u24 v{t2}, 192, v{t0}'); a.e(f'v_add_u32 v{t2}, v{t2}, v{t1}')
    a.e(f'v_lshlrev_b32 v{t0}, 1, v{vLANE}'); a.e(f'v_and_b32 v{t0}, 32, v{t0}')
    a.e(f'v_add_u32 v{vQa}, v{t2}, v{t0}'); a.e(f'v_sub_u32 v{vQb}, v{t2}, v{t0}')
    a.e(f'v_add_u32 v{vQa+1}, 40960, v{vQa}'); a.e(f'v_add_u32 v{vQb+1}, 40960, v{vQb}')
    a.e(f's_lshl_b32 s60, s{sWAVE}, 5'); a.e('s_add_u32 s60, s60, 64')
    a.e(f'v_xor_b32 v{t0}, s60, v{t0}')
    a.e(f'v_add_u32 v{vHW}, v{t2}, v{t0}'); a.e(f'v_add_u32 v{vHW+1}, 40960, v{vHW}')
    a.e(f's_mov_b32 s{sCNT}, 0')
    a.e(f's_waitcnt vmcnt({0 if cfg.wlate else 10})'); a.e('s_barrier')
    st.at(1, 2)
    a.e(f's_cmp_eq_u32 s{sWAVE}, 0'); a.e('s_cbranch_scc1 L1_pub')
    if cfg.hk: a.e('s_branch L1_consts')
    else:
        a.e(f's_cmp_eq_u32 s{sWAVE}, 2'); a.e('s_cbranch_scc1 L1_consts')
        a.e(f's_cmp_eq_u32 s{sWAVE}, 1'); a.e('s_cbranch_scc1 L1_wopf')
        code_pf(a, 'L1_polled', 'L_end', vLANE, 134, 135, 94, cfg.ncpf)
        a.e('s_branch L1_consts')
        a.label('L1_wopf')
        a.e('s_mov_b32 s94, 0x200000'); a.e('s_mov_b32 s95, 0x20000')
        a.e('s_lshl_b32 s60, s2, 13'); a.e(f'v_lshlrev_b32 v134, 7, v{vLANE}')
        a.e('buffer_load_dword v135, v134, s[92:95], s60 offen')
        a.e('s_branch L1_consts')
    a.label('L1_pub')
    a.e('s_mov_b64 exec, 1')
    a.e('buffer_store_dwordx2 v[136:137], v135, s[96:99], 0 offen sc1')
    a.e('s_mov_b64 exec, -1')
    a.label('L1_consts')
    if cfg.wlate:
        for x in flat(dma_list(0)[:5] + dma_list(1)[:5]): a.e(x)
    a.e(f'v_and_b32 v{t0}, 15, v{vLANE}'); a.e(f'v_lshrrev_b32 v{t1}, 4, v{vLANE}'); a.e(f'v_lshlrev_b32 v{t1}, 2, v{t1}')
    a.e(f'v_sub_u32 v{t0}, v{t0}, v{t1}')
    a.e(f'v_mov_b32 v{vT+3}, 0xf149f2ca')
    a.e(f's_or_b32 s60, s{sRB}, s{sWM}'); a.e('s_cmp_eq_u32 s60, 0'); a.e('s_cselect_b64 s[60:61], -1, 0')
    for isprev in range(2):
        for r in range(4):
            a.e(f'v_add_u32 v{t1}, {16*isprev - r}, v{t0}')
            a.e(f'v_and_b32 v{t2}, 0xfffffff1, v{t1}')
            a.e(f'v_cmp_eq_u32 vcc, 0, v{t2}')
            a.e(f'v_cndmask_b32_e64 v{vT+4}, v{vT+3}, 0, vcc')
            a.e(f'v_accvgpr_write_b32 a{aBI+4*isprev+r}, v{vT+4}')
            if isprev:
                a.e(f'v_cndmask_b32_e64 v{vT+4}, v{vT+4}, v{vT+3}, s[60:61]')
                a.e(f'v_accvgpr_write_b32 a{aBI+8+r}, v{vT+4}')
    a.e(f'v_mov_b32 v{vT+4}, 0x3f803f80')
    for r in range(4): a.e(f'v_accvgpr_write_b32 a{aBI+12+r}, v{vT+4}')
    a.e(f's_cmp_lg_u32 s{sWAVE}, 0'); a.e('s_cbranch_scc1 L1_polled')
    a.e('s_mov_b32 s62, 0')
    if cfg.f0sl: a.e(f's_sleep {cfg.f0sl}')
    a.label('L1_poll')
    a.e('buffer_load_dwordx2 v[138:139], v134, s[96:99], 0 offen sc1')
    a.e('s_add_u32 s62, s62, 1')
    a.e('s_waitcnt vmcnt(0)')
    stamp_ok(a, 138, 60); a.e('s_cbranch_scc1 L1_polled')
    a.e('s_cmp_lt_u32 s62, 0x8000'); a.e('s_cbranch_scc1 L1_poll')
    a.label('L1_polled')
    a.e('s_barrier')
    for x in flat(dma_list(0)[5:10] + dma_list(1)[5:10] + latepf): a.e(x)
    a.e(f's_and_b32 s60, s{sWAVE}, 1'); a.e('s_cmp_eq_u32 s60, 1'); a.e('s_cbranch_scc1 L1_wn1')

    NS = 5; FS = cfg.k2_fs; HS = 2*(36-FS); TOT = FS + HS; WB = NS*16384
    G_A = 8; G_W = 12; G_P = 16; G_X = 20; G_OUT = 24
    gACT = 36; gWO = 37; gM_A = 38; gM_W = 39; gU = 40; gPART = 41; gRB = 42; gCB = 43; gIDX = 53; gSZ0 = 54; gSZ1 = 55
    gM_H = 44; gKC = 45; gT1 = 46; gT2 = 47; G_F = 96
    hDA = 32; hDW = 33; hTS = 38; hSEQ = 42; hT = 44
    hA = 2; hW = 4; hXO = 12; hPS = 14; hPL = 15; hFS = 16; hFL = 17; hDH = 18; hWH = 20; hT2 = 24; hBF = 30; hO = 45
    XR = 48; ACC = 64; FR = 128
    NA = FS - 12
    def g2_next():
        return [f's_add_u32 s{gIDX}, s{gIDX}, 1',
                f'v_readlane_b32 s{gWO}, v{hSEQ}, s{gIDX}',
                f's_lshl_b32 s{gACT}, s{gWO}, 17',
                f's_cmp_lt_u32 s{gWO}, 32',
                f's_cselect_b32 s{G_W}, s92, s68', f's_cselect_b32 s{G_W+1}, s93, s69', f's_cselect_b32 s{G_W+2}, s{gSZ0}, s{gSZ1}',
                f's_cselect_b32 s60, 0, 32',
                f's_sub_u32 s{gWO}, s{gWO}, s60',
                f's_lshl_b32 s{gWO}, s{gWO}, 16']
    def g2_dma(slot, compact=False):
        L = []
        for d in range(2 if compact else 4):
            L.append(([f's_add_u32 m0, s{gM_H if compact else gM_W}, {slot*16384 + d*1024}'],
                      f'buffer_load_dwordx4 v{(hDH if compact else hDW)+d}, s[{G_W}:{G_W+3}], s{gWO} offen lds', []))
        for d in range(4):
            L.append(([f's_add_u32 m0, s{gM_A}, {slot*16384}'] if d == 0 else [],
                      f'buffer_load_dwordx4 v{hDA}, s[{G_A}:{G_A+3}], s{gACT} offen offset:{d*1024} lds', []))
        L[-1] = (L[-1][0], L[-1][1], g2_next())
        return L
    def g2_early(o):
        o.e('s_and_b32 s3, s2, 7'); o.e(f's_lshr_b32 s{gPART}, s3, 2'); o.e('s_and_b32 s3, s3, 3'); o.e('s_lshl_b32 s3, s3, 2')
        o.e('s_lshr_b32 s60, s2, 3'); o.e(f's_and_b32 s{gCB}, s60, 7'); o.e('s_lshr_b32 s60, s60, 3'); o.e(f's_add_u32 s{gRB}, s3, s60')
        o.e(f's_and_b32 s3, s{sWAVE}, 1')
        o.e(f's_mul_i32 s60, s{gPART}, {NA}')
        o.e(f'v_add_u32 v{hT}, s60, v{vLANE}'); o.e(f'v_add_u32 v{hT+1}, {2*NA-FS}, v{vLANE}')
        o.e(f'v_cmp_gt_u32 vcc, {NA}, v{vLANE}'); o.e(f'v_cndmask_b32 v{hT}, v{hT+1}, v{hT}, vcc')
        o.e(f'v_mul_u32_u24 v{hT+1}, 21846, v{hT}'); o.e(f'v_lshrrev_b32 v{hT+1}, 16, v{hT+1}')
        o.e(f'v_lshl_add_u32 v{hT}, v{hT+1}, 2, v{hT}')
        o.e(f's_lshl_b32 s60, s{sWM}, 2'); o.e('s_add_u32 s60, s60, 32'); o.e(f'v_add_u32 v{hT}, s60, v{hT}')
        o.e(f's_mul_i32 s60, s{gPART}, 24'); o.e(f's_add_u32 s60, s60, s{sWM}'); o.e(f's_sub_u32 s60, s60, {2*NA}')
        o.e(f'v_lshl_add_u32 v{hT+1}, v{vLANE}, 1, s60')
        o.e(f's_mul_i32 s60, s{sWM}, 7'); o.e(f's_sub_u32 s60, s60, {14*(NA+4)-35}')
        o.e(f'v_mul_u32_u24 v{hT+2}, 14, v{vLANE}'); o.e(f'v_add_u32 v{hT+2}, s60, v{hT+2}')
        o.e(f's_cmp_eq_u32 s{gPART}, 0'); o.e(f's_cselect_b32 s60, 63, {NA+4}')
        o.e(f'v_cmp_gt_u32 vcc, s60, v{vLANE}'); o.e(f'v_cndmask_b32 v{hT+1}, v{hT+2}, v{hT+1}, vcc')
        o.e(f'v_subrev_u32 v{hT+2}, {NA}, v{vLANE}'); o.e(f'v_cmp_gt_u32 vcc, 12, v{hT+2}')
        o.e(f'v_cndmask_b32 v{hSEQ}, v{hT}, v{hT+1}, vcc')
        o.e('s_lshl_b32 s60, s3, 12'); o.e(f's_lshl_b32 s61, s{gRB}, 13'); o.e('s_add_u32 s60, s60, s61')
        o.e(f'v_lshl_add_u32 v{hDA}, v{vLANE}, 4, s60')
        o.e(f's_lshl_b32 s{gM_A}, s{sWAVE}, 12'); o.e(f's_add_u32 s{gM_W}, s{gM_A}, {WB}')
        o.e(f'v_lshrrev_b32 v{hT}, 4, v{vLANE}'); o.e(f'v_and_b32 v{hT+1}, 15, v{vLANE}')
        o.e('s_lshl_b32 s60, s3, 15'); o.e(f's_lshl_b32 s61, s{gCB}, 8'); o.e('s_add_u32 s60, s60, s61')
        o.e(f'v_lshl_add_u32 v{hT+3}, v{hT}, 11, s60')
        o.e(f'v_lshlrev_b32 v{hT+2}, 1, v{hT}'); o.e(f'v_xor_b32 v{hT+2}, v{hT+2}, v{hT+1}')
        o.e(f'v_lshl_add_u32 v{hDW}, v{hT+2}, 4, v{hT+3}')
        o.e(f'v_xor_b32 v{hDW+1}, 128, v{hDW}'); o.e(f'v_add_u32 v{hDW+1}, 8192, v{hDW+1}')
        o.e(f'v_add_u32 v{hDW+2}, 16384, v{hDW}'); o.e(f'v_add_u32 v{hDW+3}, 16384, v{hDW+1}')
        o.e(f's_mov_b32 s{gSZ0}, {1024*1024*2}'); o.e(f's_mov_b32 s{gSZ1}, {3584*1024*2}'); o.e(f's_mov_b32 s{G_W+3}, 0x20000')
        srd(o, G_A, 6, 7, ACT2_BYTES, ACT2_OFF)
        o.e(f's_lshr_b32 s60, s{gRB}, 1'); o.e('s_lshl_b32 s60, s60, 14'); o.e(f's_and_b32 s61, s{gRB}, 1'); o.e('s_lshl_b32 s61, s61, 8')
        o.e('s_add_u32 s60, s60, s61'); o.e(f's_add_u32 s60, s60, {AFLAG_REL}')
        o.e(f'v_lshrrev_b32 v{hT}, 1, v{vLANE}'); o.e(f'v_lshl_add_u32 v{hTS+3}, v{hT}, 9, s60')
        o.e(f'v_and_b32 v{hT}, 1, v{vLANE}'); o.e(f'v_lshl_add_u32 v{hTS+3}, v{hT}, 7, v{hTS+3}')
        o.e(f's_mov_b32 s{gIDX}, -1')
        for x in g2_next(): o.e(x)
    def g2_wdma(o):
        for s_ in range(NS):
            d_ = g2_dma(s_)
            for pre, ins, post in d_[:4]:
                for x in pre: o.e(x)
                o.e(ins)
            for x in d_[7][2]: o.e(x)
    def g2_flagA(o, younger):
        o.e(f's_add_u32 s60, s{sT0}, {BACK}'); o.e(f'v_mov_b32 v{hTS}, s60'); o.e(f'v_xor_b32 v{hTS+1}, s{sCHK}, v{hTS}')
        o.e('s_lshl_b32 s60, s2, 2'); o.e(f's_add_u32 s60, s60, s{sWAVE}'); o.e('s_lshl_b32 s60, s60, 7'); o.e(f's_add_u32 s60, s60, {AFLAG_REL}')
        o.e(f'v_mov_b32 v{hTS+2}, s60')
        o.e(f's_waitcnt vmcnt({younger})')
        o.e('s_mov_b64 exec, 1')
        o.e(f'buffer_store_dwordx2 v[{hTS}:{hTS+1}], v{hTS+2}, s[{G_F}:{G_F+3}], 0 offen sc1')
        o.e('s_mov_b64 exec, -1')
        st.at(4, 3)
    def g2_poll_act(wn):
        st.at(4, 1); st.at(5, 3)
        if wn == 0:
            a.e(f's_cmp_lg_u32 s{sWAVE}, 0'); a.e(f's_cbranch_scc1 L2_aok')
            a.e('s_mov_b32 s3, 0')
            if cfg.g1sl: a.e(f's_sleep {cfg.g1sl}')
            a.label('L2_apoll')
            a.e(f'buffer_load_dwordx2 v[{hT2}:{hT2+1}], v{hTS+3}, s[{G_F}:{G_F+3}], 0 offen sc1')
            a.e('s_add_u32 s3, s3, 1')
            a.e('s_waitcnt vmcnt(0)')
            stamp_ok(a, hT2, 60); a.e('s_cbranch_scc1 L2_aok')
            a.e('s_sleep 4')
            a.e('s_cmp_lt_u32 s3, 0x8000'); a.e('s_cbranch_scc1 L2_apoll')
            a.label('L2_aok')
        a.e('s_barrier')
        st.at(5, 1); st.at(6, 3)
        for s_ in range(NS):
            a.e(f'v_readlane_b32 s60, v{hSEQ}, {s_}'); a.e('s_lshl_b32 s60, s60, 17')
            a.e(f's_add_u32 m0, s{gM_A}, {s_*16384}')
            for d in range(4): a.e(f'buffer_load_dwordx4 v{hDA}, s[{G_A}:{G_A+3}], s60 offen offset:{d*1024} lds')

    aACT = 0; aHA = 64; aHW = 88; aACC = 96; aW2 = 216
    for wn in range(2):
        if wn == 1: a.label('L1_wn1')
        if wn == 0:
            names = ['q0', 'q1', 'k0', 'k1', 'v0', 'v1', 'g0', 'g1', 'u0', 'u1']
            units = [('q', 0), ('q', 2), ('q', 4), ('q', 6), ('q', 8), ('q', 10), ('g', 0), ('g', 2), ('u', 0), ('u', 2)]
            order_v = ['g0', 'g1', 'u0', 'q0', 'k0', 'v0', 'v1']; order_a = ['q1', 'k1', 'u1']
        else:
            names = ['g2', 'u2', 'g3', 'u3', 'g6', 'g4', 'u4', 'g5', 'u5', 'u6']
            units = [(nm[0], 2*int(nm[1])) for nm in names]
            order_v = ['g2', 'g3', 'g4', 'g5', 'g6', 'u2', 'u3']; order_a = ['u4', 'u5', 'u6']
        acc = {}
        for i, nm in enumerate(order_v):
            for m in range(8): acc[(nm, m)] = ('v', 32 + (i*8+m)*4)
        for i, nm in enumerate(order_a):
            for m in range(8): acc[(nm, m)] = ('a', aACC + (i*8+m)*4)
        acc['halo'] = ('a', aACC + 96)
        def R(x): return f'{x[0]}[{x[1]}:{x[1]+3}]'
        def hreads(slot):
            return [f'ds_read_b128 {AR(aHA)}, v{vHA} offset:{slot*1024}'] + \
                   [f'ds_read_b64_tr_b16 a[{aHW+2*h}:{aHW+2*h+1}], v{vHW+(slot>>1)} offset:{(slot&1)*20480+h*3072}' for h in range(2)]
        def wfrag(slot, n, reg):
            kind, c0 = units[n]; out = []
            for h_ in range(2):
                if kind == 'q':
                    base = (vQa if c0 % 4 == 0 else vQb) + (slot >> 1); off = (slot & 1)*20480 + c0*16 + h_*3072
                else:
                    base = vGU + (slot >> 1); off = (slot & 1)*20480 + (6144 if kind == 'g' else 13312) + c0*16 + h_*3584
                out.append(f'ds_read_b64_tr_b16 a[{reg+2*h_}:{reg+2*h_+1}], v{base} offset:{off}')
            return out
        def wr(p, n, second): return aW2 + 8*((5*p + n) & 3) + 4*second
        def areg_(stage, m): return aACT + (stage & 1)*32 + 4*m
        tr = LgkmTracker(a)
        carry = flat(dma_list(2)[5:10] + dma_list(2)[:5] + dma_list(2)[10:] if cfg.afirst else dma_list(2))
        carry_last = -99
        def period(h, kind, side=None):
            nonlocal carry, carry_last
            p = h + 1
            first = kind != 'P'; second = kind != 'Q'
            g0 = 0 if h % 2 == 0 else 5
            gn = 5 - g0
            secs = [x for x in (0, 1) if (first if x == 0 else second)]
            mf = [(n, m, sec) for n in range(3) for m in range(8) for sec in secs]
            L = 8*len(secs); T0 = len(mf)
            mf += [(n, m, sec) for m in range(8) for n in (3, 4) for sec in secs]
            N = len(mf)
            gaps = [[] for _ in range(N)]
            def place(item, lo, hi, cap=1):
                for g in range(lo, hi+1):
                    if len(gaps[g]) < cap:
                        gaps[g].append(item); return g
                return None
            def wf(n):
                return (wfrag(h % 4, g0+n, wr(p, n, 0)) if first else []) + (wfrag((h+1) % 4, g0+n, wr(p, n, 1)) if second else [])
            for n, lst in ((0, wf(1)), (1, wf(2)), (2, wf(3) + wf(4))):
                for k_, r in enumerate(lst): gaps[n*L + k_].append(('r', r))
            if kind != 'Q':
                cur = 1; lastv = carry_last - (N if not first else N)
                for x in carry:
                    lo = cur; vs_ = cfg.vsp if kind == 'H' else 2
                    if x.startswith('buffer') and first: lo = max(lo, lastv + vs_)
                    if x.startswith('s_add_u32 m0') and first: lo = max(lo, lastv + vs_ - 2)
                    g = place(('x', x), lo, T0-5, 1 if first else 2); assert g is not None
                    if x.startswith('buffer'): lastv = g
                    cur = g + (1 if (first or x.startswith('s_add_u32 m0')) else 0)
                per = 2*len(secs)
                for m in range(8):
                    gaps[T0 + per*m + (per - 2 if first else 0)].append(('r', f'ds_read_b128 {AR(areg_(h+2, m))}, v{vA} offset:{((h+2) % 4)*16384 + m*1024}'))
                tail = wfrag((h+1) % 4, gn, wr(p+1, 0, 0)) + wfrag((h+2) % 4, gn, wr(p+1, 0, 1)) + hreads((h+2) % 4)
                for k_, r in enumerate(tail):
                    g = place(('r', r), T0 + (per*k_ if first else 2*k_), N-1, 1); assert g is not None
                dl_ = dma_list(h % 4)
                items = flat(dl_[5:10] + dl_[:5] + dl_[10:] if cfg.afirst else dl_)
                cur = T0
                hi = N-1 if not (kind == 'H' and h % 4 == 2) else N-4
                lastv = -99
                while items:
                    x = items[0]; lo = cur
                    if x.startswith('buffer') and first: lo = max(lo, lastv + cfg.vsp)
                    if x.startswith('s_add_u32 m0') and first: lo = max(lo, lastv + cfg.vsp - 2)
                    g = place(('x', x), lo, hi, 1)
                    if g is None: break
                    if x.startswith('buffer'): lastv = g
                    cur = g + 1; items.pop(0)
                carry_last = lastv + (80 - N)
                carry = items
                if kind == 'H' and h % 4 == 2:
                    gaps[N-3].append(('x', f's_add_u32 s{sCNT}, s{sCNT}, 1')); gaps[N-2].append(('x', f's_cmp_eq_u32 s{sCNT}, 8'))
                if kind == 'H' and h % 4 == 0:
                    gaps[T0-4].append(('x', f's_cmp_eq_u32 s{sCNT}, 7'))
                    for k_, r_ in enumerate((sM_W, sM_ACT, sM_H)): gaps[T0-3+k_].append(('x', f's_cselect_b32 s{r_}, 170000, s{r_}'))
            if side:
                for k_, x in enumerate(side):
                    gaps[min(N-1, 3 + (k_*(N-3))//len(side))].append(('w' if x.startswith('ds_write') else 'x', x))
            if kind == 'Q': mf = [(n, m, 0) for n in range(5) for m in range(8)]
            for i, (n, m, sec) in enumerate(mf):
                nm = names[g0+n]
                if kind != 'Q' and i == T0:
                    a.e(f's_waitcnt vmcnt({VMW-1+len(latepf) if kind == "P" else VMW}) lgkmcnt(0)'); tr.drain()
                    if not (cfg.dbg & 2 and kind == 'H'): a.e('s_barrier')
                    if cfg.stamps == 8:
                        a.e('s_memrealtime s[84:85]'); a.e('s_waitcnt lgkmcnt(0)')
                        if kind == 'P': a.e('s_mov_b32 s83, 0')
                        a.e('v_mov_b32 v28, s84'); a.e(f'v_cmp_eq_u32 vcc, s83, v{vLANE}'); a.e('v_cndmask_b32 v29, v29, v28, vcc'); a.e('s_add_u32 s83, s83, 1')
                wreg = AR(wr(p, n, sec)); areg = AR(areg_(h+sec, m))
                tr.need(regs_of(wreg) + regs_of(areg) + (regs_of(AR(wr(p, n, 1))) if (n > 0 and second) else []))
                d = R(acc[(nm, m)])
                c = '0' if (kind == 'P' or (kind == 'H0' and sec == 0)) else d
                a.e(f'{MF} {d}, {areg}, {wreg}, {c}' if nm[0] == 'v' else f'{MF} {d}, {wreg}, {areg}, {c}')
                for k_, x in gaps[i]:
                    if kind == 'H' and ((cfg.dbg & 1 and x.startswith('buffer_load')) or (cfg.dbg & 8 and x.startswith('s_add_u32') and 's50' not in x)): continue
                    if kind == 'H' and cfg.dbg & 4 and k_ == 'r': continue
                    if k_ == 'r': tr.read(x)
                    elif k_ == 'w': a.e(x); tr.other()
                    else: a.e(x)
                if kind != 'Q' and i == L + 5:
                    tr.need(regs_of(AR(aHA)) + regs_of(AR(aHW)))
                    d = R(acc['halo'])
                    a.e(f'{MF} {d}, {AR(aHW)}, {AR(aHA)}, {"0" if kind == "P" else d}')
        a.e(f's_waitcnt vmcnt({5 + len(latepf)})'); a.e('s_barrier')
        st.at(1, 1); st.at(2, 2)
        if st.on: a.e('s_waitcnt lgkmcnt(0)')
        for r in wfrag(0, 5, wr(0, 0, 1)) + [f'ds_read_b128 {AR(areg_(0, m))}, v{vA} offset:{m*1024}' for m in range(8)] + hreads(0): tr.read(r)
        period(-1, 'P'); period(0, 'H0')
        entry_state = tr.state(); entry_carry = list(carry)
        if cfg.stamps == 9: a.e('s_memtime s[72:73]'); a.e('s_memrealtime s[76:77]'); a.e('s_waitcnt lgkmcnt(0)'); tr.drain(); entry_state = None
        a.label(f'L1_loop{wn}')
        period(1, 'H'); period(2, 'H')
        exit_q = list(tr.q)
        a.e(f's_cbranch_scc1 L1_tail{wn}')
        period(3, 'H'); period(4, 'H')
        assert cfg.dbg or cfg.stamps == 9 or (tr.state() == entry_state and carry == entry_carry)
        if wn == 0 and cfg.cpf2:
            a.e(f's_add_u32 s60, s{sCNT}, s{sWAVE}'); a.e(f's_cmp_eq_u32 s60, {cfg.cpf2 + 2}'); a.e(f's_cbranch_scc0 L1_loop{wn}')
            a.e(f's_cmp_eq_u32 s{sWAVE}, 2'); a.e(f's_cbranch_scc0 L1_loop{wn}')
            code_pf(a, 'L1_tail0', 'L_end', vLANE, 28, vDUM, 94, 5)
        a.e(f's_branch L1_loop{wn}')
        a.label(f'L1_tail{wn}')
        if cfg.stamps == 9: a.e('s_memtime s[74:75]'); a.e('s_memrealtime s[78:79]'); a.e('s_waitcnt lgkmcnt(0)')
        tr.q = exit_q
        vO = vDA; vX = vDW
        def fetch(o, x, tmp):
            if x[0] == 'v': return x[1]
            for r in range(4): o.e(f'v_accvgpr_read_b32 v{tmp+r}, a{x[1]+r}')
            return tmp
        def hmul(o, g, u_, m, dst, tmp):
            gb = acc[(g, m)][1]; ub = fetch(o, acc[(u_, m)], tmp)
            o.e(f'v_pk_mul_f32 {P2(gb)}, {P2(gb)}, {P2(ub)}'); o.e(f'v_pk_mul_f32 {P2(gb+2)}, {P2(gb+2)}, {P2(ub+2)}')
            o.e(f'v_cvt_pk_bf16_f32 v{dst}, v{gb}, v{gb+1}'); o.e(f'v_cvt_pk_bf16_f32 v{dst+1}, v{gb+2}, v{gb+3}')
        def ostore(o, src, m, soff, n=4):
            op = {4: 'buffer_store_dwordx4', 2: 'buffer_store_dwordx2'}[n]
            o.e(f'{op} v[{src}:{src+n-1}], v{vO + (m >> 2)}, s[{S_O}:{S_O+3}], {soff} offen offset:{(m&3)*1024} sc1')
        def hblock(o, ga, ua, gb_, ub_, m, so, tmp):
            dst = acc[(ga, m)][1]
            hmul(o, ga, ua, m, dst, tmp); hmul(o, gb_, ub_, m, dst+2, tmp+4); ostore(o, dst, m, so)
        def attn1(o, q, kp, kc, v0w, v1w, bp, BI, Sx, Ox, dst):
            o.e(f'{MF} v[{Sx}:{Sx+3}], v[{kp}:{kp+3}], v[{q}:{q+3}], 0')
            o.e(f'{MF} v[{Sx+4}:{Sx+7}], v[{kc}:{kc+3}], v[{q}:{q+3}], 0')
            for r in (0, 2): o.e(f'v_pk_fma_f32 {P2(Sx+r)}, {P2(Sx+r)}, s[94:95], {P2(bp+r)}')
            for r in (0, 2): o.e(f'v_pk_fma_f32 {P2(Sx+4+r)}, {P2(Sx+4+r)}, s[94:95], {P2(BI+r)}')
            M = Sx + 8
            o.e(f'v_max3_f32 v{M}, v{Sx}, v{Sx+1}, v{Sx+2}'); o.e(f'v_max3_f32 v{M+1}, v{Sx+3}, v{Sx+4}, v{Sx+5}')
            o.e(f'v_max3_f32 v{M}, v{M}, v{Sx+6}, v{Sx+7}'); o.e(f'v_max_f32 v{M}, v{M}, v{M+1}')
            o.e(f'v_mov_b32 v{M+1}, v{M}')
            o.e(f'v_permlane32_swap_b32 v{M}, v{M+1}')
            o.e(f'v_max_f32 v{M}, v{M}, v{M+1}'); o.e(f'v_mov_b32 v{M+1}, v{M}')
            o.e(f'v_permlane16_swap_b32 v{M}, v{M+1}')
            o.e(f'v_max_f32 v{M}, v{M}, v{M+1}'); o.e(f'v_mov_b32 v{M+1}, v{M}')
            for r in (0, 2, 4, 6): o.e(f'v_pk_add_f32 {P2(Sx+r)}, {P2(Sx+r)}, {P2(M)} neg_lo:[0,1] neg_hi:[0,1]')
            for r in range(8): o.e(f'v_exp_f32 v{Sx+r}, v{Sx+r}')
            for r in range(4): o.e(f'v_cvt_pk_bf16_f32 v{Sx+12+r}, v{Sx+2*r}, v{Sx+2*r+1}')
            Pp = Sx + 12
            o.e(f'{MF} v[{Ox+8}:{Ox+11}], a[{aBI+12}:{aBI+15}], v[{Pp}:{Pp+3}], 0')
            o.e(f'{MF} v[{Ox}:{Ox+3}], v[{v0w}:{v0w+3}], v[{Pp}:{Pp+3}], 0')
            o.e(f'{MF} v[{Ox+4}:{Ox+7}], v[{v1w}:{v1w+3}], v[{Pp}:{Pp+3}], 0')
            o.e(f'v_rcp_f32 v{Ox+8}, v{Ox+8}')
            o.e(f'v_mov_b32 v{Ox+9}, v{Ox+8}')
            for r in (0, 2, 4, 6): o.e(f'v_pk_mul_f32 {P2(Ox+r)}, {P2(Ox+r)}, {P2(Ox+8)}')
            for r in range(4): o.e(f'v_cvt_pk_bf16_f32 v{dst+r}, v{Ox+2*r}, v{Ox+2*r+1}')
        def zipper(A, B):
            A = [x.text for x in A.ins]; B = [x.text for x in B.ins]
            for i_ in range(max(len(A), len(B))):
                if i_ < len(A): a.e(A[i_])
                if i_ < len(B): a.e(B[i_])
        o = Asm()
        o.e(f's_lshl_b32 s60, s{sRB}, 14'); o.e(f's_lshl_b32 s61, s{sWM}, 13'); o.e('s_add_u32 s60, s60, s61')
        o.e(f'v_lshl_add_u32 v{vO}, v{vLANE}, 4, s60'); o.e(f'v_add_u32 v{vO+1}, 4096, v{vO}')
        o.e(f's_mul_i32 s62, s{sJ}, 7'); o.e(f's_and_b32 s63, s{sJ}, 1'); o.e('s_add_u32 s62, s62, s63'); o.e('s_lshr_b32 s62, s62, 1')
        o.e('s_add_u32 s62, s62, 32'); o.e('s_lshl_b32 s62, s62, 17')
        o.e('s_add_u32 s64, s62, 131072'); o.e('s_add_u32 s65, s62, 262144')
        o.e(f's_lshl_b32 s60, s{sWM}, 14'); o.e('s_add_u32 s60, s60, 4096')
        o.e(f'v_lshl_add_u32 v{vX}, v{vLANE}, 4, s60')
        o.e(f'v_and_b32 v{vT}, 15, v{vLANE}'); o.e(f'v_lshrrev_b32 v{vT+1}, 4, v{vLANE}')
        o.e(f'v_lshl_add_u32 v{vX+1}, v{vT}, 5, s60'); o.e(f'v_lshl_add_u32 v{vX+1}, v{vT+1}, 3, v{vX+1}')
        o.e(f's_mul_i32 s60, s{sWM}, 40960'); o.e('s_sub_u32 s61, 40960, s60')
        o.e(f'v_lshl_add_u32 v{vX+2}, v{vLANE}, 4, s60')
        o.e(f'v_lshl_add_u32 v{vX+3}, v{vT+1}, 7, s61'); o.e(f'v_lshl_add_u32 v{vX+3}, v{vT}, 1, v{vX+3}')
        hb = fetch(o, acc['halo'], vT)
        o.e(f'v_cvt_pk_bf16_f32 v{vT+4}, v{hb}, v{hb+1}'); o.e(f'v_cvt_pk_bf16_f32 v{vT+5}, v{hb+2}, v{hb+3}')
        o.e(f'ds_write_b64 v{vX+2}, v[{vT+4}:{vT+5}] offset:{8*wn}')
        of = 1024 + wn*512
        o.e(f'ds_write_b16 v{vX+3}, v{vT+4} offset:{of}'); o.e(f'ds_write_b16_d16_hi v{vX+3}, v{vT+4} offset:{of+32}')
        o.e(f'ds_write_b16 v{vX+3}, v{vT+5} offset:{of+64}'); o.e(f'ds_write_b16_d16_hi v{vX+3}, v{vT+5} offset:{of+96}')
        o.e('s_mov_b32 s94, 0x3e8293ee'); o.e('s_mov_b32 s95, 0x3e8293ee')
        o.e(f's_lshl_b32 s67, s{sJ}, 17')
        if wn == 0:
            def packqk(o, n0, n1, m):
                d = acc[(n0, m)][1]
                b1 = fetch(o, acc[(n1, m)], vT + 4*(m & 1))
                o.e(f'v_cvt_pk_bf16_f32 v{d}, v{d}, v{d+1}'); o.e(f'v_cvt_pk_bf16_f32 v{d+1}, v{d+2}, v{d+3}')
                o.e(f'v_cvt_pk_bf16_f32 v{d+2}, v{b1}, v{b1+1}'); o.e(f'v_cvt_pk_bf16_f32 v{d+3}, v{b1+2}, v{b1+3}')
                return d
            PV0 = acc[('v0', 0)][1]; PV1 = acc[('v1', 0)][1]
            def packv(o, Pv, m, off):
                b_ = Pv + 4*m
                c1 = f'v_cvt_pk_bf16_f32 v{Pv+2+2*m}, v{b_}, v{b_+1}'; c2 = f'v_cvt_pk_bf16_f32 v{Pv+3+2*m}, v{b_+2}, v{b_+3}'
                for x in ((c2, c1) if m == 0 else (c1, c2)): o.e(x)
                if m >= 3: o.e(f'ds_write_b64 v{vX+1}, v[{Pv+2+2*m}:{Pv+3+2*m}] offset:{(m-3)*2048+off}')
            for m in range(3, 8):
                d = packqk(o, 'k0', 'k1', m); o.e(f'ds_write_b128 v{vX}, v[{d}:{d+3}] offset:{(m-3)*2048}')
            for m in range(4, 8):
                d = packqk(o, 'q0', 'q1', m); o.e(f'ds_write_b128 v{vX}, v[{d}:{d+3}] offset:{10240+(m-4)*1024}')
            for m in range(8): packv(o, PV0, m, 1024)
            for m in range(8): packv(o, PV1, m, 1536)
        else:
            o.e('s_add_u32 s66, s62, 393216'); o.e('s_sub_u32 s61, s62, 131072'); o.e('s_add_u32 s61, s61, 512')
            o.e('s_cmp_eq_u32 s63, 1'); o.e('s_cselect_b32 s66, s61, s66')
            for m in range(8): hblock(o, 'g2', 'u2', 'g3', 'u3', m, 's64', vT)
        period(31, 'Q', side=[x.text for x in o.ins])
        st.at(2, 1); st.at(1, 3)
        a.e('s_waitcnt lgkmcnt(0)'); a.e('s_barrier')
        if wn == 0:
            KP = PV0 + 18; BI = PV1 + 18
            a.e(f's_lshl_b32 s60, s{sWM}, 12'); a.e('s_add_u32 s60, s60, 4096')
            a.e(f'v_subrev_u32 v{vX}, s60, v{vX}'); a.e(f'v_subrev_u32 v{vX+1}, s60, v{vX+1}')
            a.e(f'ds_read_b128 v[{KP}:{KP+3}], v{vX}')
            a.e(f'ds_read_b64 v[{PV0}:{PV0+1}], v{vX+1} offset:1024')
            a.e(f'ds_read_b64 v[{PV1}:{PV1+1}], v{vX+1} offset:1536')
            for m in range(8): hblock(a, 'g0', 'u0', 'g1', 'u1', m, 's62', vT)
            st.at(3, 1); st.at(2, 3)
            for m in range(3): packqk(a, 'k0', 'k1', m)
            for m in range(4): packqk(a, 'q0', 'q1', m)
            for r in range(12): a.e(f'v_accvgpr_read_b32 v{BI+r}, a{aBI+r}')
            blk = [(acc[('q0', m)][1], acc[('k0', m-1)][1] if m else KP, acc[('k0', m)][1], PV0+2*m, PV1+2*m, BI+(8 if m == 0 else 4), BI) for m in range(4)]
            W1 = acc[('g1', 0)][1]; W2 = acc[('u0', 0)][1]
            mo = 0
        else:
            F = acc[('u2', 0)][1]
            KR = F; V0 = F + 20; V1 = F + 30; QR = F + 40; BI = F + 56
            for i_ in range(5):
                a.e(f'ds_read_b128 v[{KR+4*i_}:{KR+4*i_+3}], v{vX} offset:{i_*2048}')
                if i_: a.e(f'ds_read_b128 v[{QR+4*(i_-1)}:{QR+4*(i_-1)+3}], v{vX} offset:{10240+(i_-1)*1024}')
            for i_ in range(5):
                a.e(f'ds_read_b64 v[{V0+2*i_}:{V0+2*i_+1}], v{vX+1} offset:{i_*2048+1024}')
                a.e(f'ds_read_b64 v[{V1+2*i_}:{V1+2*i_+1}], v{vX+1} offset:{i_*2048+1536}')
            for m in range(8): hblock(a, 'g4', 'u4', 'g5', 'u5', m, 's65', vT)
            st.at(3, 1); st.at(2, 3)
            for r in range(8): a.e(f'v_accvgpr_read_b32 v{BI+r}, a{aBI+r}')
            blk = [(QR+4*i_, KR+4*i_, KR+4*i_+4, V0+2*i_, V1+2*i_, BI+4, BI) for i_ in range(4)]
            W1 = acc[('g3', 0)][1]; W2 = acc[('g5', 0)][1]
            mo = 4
        a.e('s_waitcnt lgkmcnt(0)')
        def pair(pr):
            A = Asm(); B = Asm()
            attn1(A, *blk[2*pr], W1, W1+16, XR+8*pr); attn1(B, *blk[2*pr+1], W2, W2+16, XR+8*pr+4)
            zipper(A, B)
        def halves():
            if wn == 1:
                for i_ in range(4):
                    d_ = acc[('g6', 2*i_)][1]
                    hmul(a, 'g6', 'u6', 2*i_, d_, vT); hmul(a, 'g6', 'u6', 2*i_+1, d_+2, vT+4)
                    a.e(f'v_permlane16_swap_b32 v{d_}, v{d_+2}'); a.e(f'v_permlane16_swap_b32 v{d_+1}, v{d_+3}')
                    for r in range(4): a.e(f'v_accvgpr_write_b32 a{4*i_+r}, v{d_+r}')
                a.e(f'v_lshrrev_b32 v{vT}, 4, v{vLANE}'); a.e(f'v_and_b32 v{vT+1}, 1, v{vT}'); a.e(f'v_lshrrev_b32 v{vT+2}, 1, v{vT}')
                a.e(f'v_lshlrev_b32 v{vT}, 8, v{vT}'); a.e(f'v_sub_u32 v{hO+1}, v{vO}, v{vT}')
                a.e(f'v_lshl_add_u32 v{hO+1}, v{vT+1}, 10, v{hO+1}'); a.e(f'v_lshl_add_u32 v{hO+1}, v{vT+2}, 8, v{hO+1}')
                a.e(f'v_add_u32 v{hO+2}, 4096, v{hO+1}')
            else:
                a.e('s_mov_b32 s66, 0x80000000'); a.e(f'v_mov_b32 v{hO+1}, v{vO}'); a.e(f'v_mov_b32 v{hO+2}, v{vO}')
        pair(0)
        g2_flagA(a, 0)
        g2_early(a)
        st.at(3, 3)
        if cfg.ilv:
            A = Asm(); B = Asm(); D = Asm(); Z = Asm()
            attn1(A, *blk[2], W1, W1+16, XR+8); attn1(B, *blk[3], W2, W2+16, XR+12); g2_wdma(D)
            za = [x.text for p_ in zip(A.ins, B.ins) for x in p_]; zd = [x.text for x in D.ins]
            k_ = 0
            for i_, x in enumerate(za):
                a.e(x)
                while k_ < len(zd) and k_ < ((i_+1)*len(zd))//len(za): a.e(zd[k_]); k_ += 1
        else:
            g2_wdma(a)
            if wn == 0 and cfg.w0late:
                a.e(f's_cmp_eq_u32 s{sWAVE}, 0'); a.e('s_cbranch_scc1 L2_skip1')
            pair(1)
            if wn == 0 and cfg.w0late: a.label('L2_skip1')
        halves()
        a.e(f'v_add_u32 v{hO}, {mo*1024}, v{vO}')
        g2_poll_act(wn)
        if wn == 0 and cfg.w0late:
            a.e(f's_cmp_lg_u32 s{sWAVE}, 0'); a.e('s_cbranch_scc1 L2_late')
            pair(1)
        if wn == 0: a.e('s_branch L2_late')

    a.label('L2_late')
    NB = 0
    a.e('s_load_dwordx2 s[56:57], s[0:1], 56')
    a.e('s_load_dwordx2 s[58:59], s[0:1], 0')
    a.e(f's_and_b32 s3, s{sWAVE}, 1')
    a.e(f's_mov_b32 s{gU}, 0')
    a.e(f's_lshl_b32 s60, s{sWM}, 12')
    a.e(f'v_lshl_add_u32 v{hA}, v{vLANE}, 4, s60'); a.e(f'v_add_u32 v{hA+1}, 65536, v{hA}')
    tA, tB, tC, tD = hT2, hT2+1, hT2+2, hT2+3
    a.e(f'v_lshrrev_b32 v{tA}, 2, v{vLANE}')
    a.e(f'v_and_b32 v{tB}, 7, v{tA}'); a.e(f'v_lshlrev_b32 v{tB}, 5, v{tB}')
    a.e(f'v_and_b32 v{tC}, 3, v{vLANE}'); a.e(f'v_lshlrev_b32 v{tC}, 3, v{tC}'); a.e(f'v_add_u32 v{tC}, {WB}, v{tC}')
    a.e(f'v_lshl_add_u32 v{hDH}, v{tA}, 8, v{tC}')
    a.e('s_lshl_b32 s60, s3, 6'); a.e(f's_lshl_b32 s{gKC}, s{gPART}, 7'); a.e(f's_add_u32 s{gKC}, s{gKC}, s60')
    for n in range(4):
        a.e(f's_xor_b32 s61, s{gKC}, {32*(n&1) + 128*(n>>1)}')
        a.e(f'v_xor_b32 v{tD}, s61, v{tB}')
        a.e(f'v_add_u32 v{hW+n}, v{tD}, v{hDH}'); a.e(f'v_add_u32 v{hW+4+n}, 65536, v{hW+n}')
    def areg(par, ks, m): return FR + par*64 + ks*16 + m*4
    def wreg(par, ks, n): return FR + par*64 + 32 + ks*16 + n*4
    def reads(slot, par, nn=4):
        hi = 1 if slot >= 4 else 0
        base = (slot & 3)*16384
        def ar_(ks, m): return [f'ds_read_b128 v[{areg(par,ks,m)}:{areg(par,ks,m)+3}], v{hA+hi} offset:{base + ks*8192 + m*1024}']
        def wr_(ks, n):
            if nn == 2: return [f'ds_read_b64_tr_b16 v[{wreg(par,ks,n)+2*h}:{wreg(par,ks,n)+2*h+1}], v{hWH+2*hi+n} offset:{base + ks*4096 + h*2048}' for h in range(2)]
            return [f'ds_read_b64_tr_b16 v[{wreg(par,ks,n)+2*h}:{wreg(par,ks,n)+2*h+1}], v{hW+4*hi+n} offset:{base + ks*8192 + h*4096}' for h in range(2)]
        L = wr_(0, 0) + ar_(0, 0) + wr_(1, 0) + ar_(1, 0)
        for m in range(1, 4): L += ar_(0, m) + ar_(1, m)
        for n in range(1, nn): L += wr_(0, n) + wr_(1, n)
        return L
    a.e(f's_waitcnt vmcnt({4*(NS-1) + NB})'); a.e('s_barrier')
    st.at(6, 1); st.at(7, 3)
    if st.on: a.e('s_waitcnt lgkmcnt(0)')
    for r in reads(0, 0): a.e(r)
    b = Asm()
    b.e(f's_lshl_b32 s{gM_H}, s{sWAVE}, 11'); b.e(f's_add_u32 s{gM_H}, s{gM_H}, {WB}')
    b.e(f'v_and_b32 v{tB}, 6, v{tA}'); b.e(f'v_lshlrev_b32 v{tB}, 4, v{tB}')
    b.e(f'v_lshl_add_u32 v{tC}, v{tA}, 7, v{tC}')
    b.e('s_lshl_b32 s46, s3, 6')
    for n in range(2):
        b.e(f's_or_b32 s61, s46, {32*n}')
        b.e(f'v_xor_b32 v{tD}, s61, v{tB}')
        b.e(f'v_add_u32 v{hWH+n}, v{tD}, v{tC}'); b.e(f'v_add_u32 v{hWH+2+n}, 65536, v{hWH+n}')
    b.e(f'v_lshrrev_b32 v{tA}, 3, v{vLANE}'); b.e(f'v_and_b32 v{tB}, 6, v{tA}'); b.e(f'v_and_b32 v{tC}, 7, v{vLANE}')
    b.e(f'v_xor_b32 v{tB}, v{tB}, v{tC}')
    b.e('s_lshl_b32 s46, s3, 15'); b.e(f's_lshl_b32 s61, s{gCB}, 8'); b.e('s_or_b32 s46, s46, s61')
    b.e(f's_lshl_b32 s61, s{gPART}, 7'); b.e('s_or_b32 s46, s46, s61')
    b.e(f'v_lshl_add_u32 v{tA}, v{tA}, 11, s46'); b.e(f'v_lshl_add_u32 v{hDH}, v{tB}, 4, v{tA}')
    b.e(f'v_add_u32 v{hDH+1}, 16384, v{hDH}')
    for (d_, lo, nb) in ((G_X, 58, 2048*1024*2), (G_OUT, 56, 2048*1024*2)):
        b.e(f's_mov_b32 s{d_}, s{lo}'); b.e(f's_mov_b32 s{d_+1}, s{lo+1}'); b.e(f's_mov_b32 s{d_+2}, {nb}'); b.e(f's_mov_b32 s{d_+3}, 0x20000')
    b.e(f's_lshl_b32 s46, s{gRB}, 18'); b.e(f's_lshl_b32 s61, s{sWM}, 17'); b.e('s_or_b32 s46, s46, s61')
    b.e(f's_lshl_b32 s61, s{gCB}, 8'); b.e('s_or_b32 s46, s46, s61'); b.e('s_or_b32 s46, s46, s45')
    b.e(f'v_and_b32 v{tB}, 15, v{vLANE}'); b.e(f'v_lshl_add_u32 v{tB}, v{tB}, 11, s46')
    b.e(f'v_lshrrev_b32 v{tA}, 4, v{vLANE}')
    b.e(f'v_and_b32 v{tC}, 1, v{tA}'); b.e(f'v_lshl_add_u32 v{tB}, v{tC}, 5, v{tB}')
    b.e(f'v_lshrrev_b32 v{tC}, 1, v{tA}'); b.e(f'v_lshl_add_u32 v{hXO}, v{tC}, 4, v{tB}')
    b.e(f's_lshl_b32 s46, s{gRB}, 6'); b.e(f's_lshl_b32 s61, s{gCB}, 3'); b.e('s_or_b32 s46, s46, s61')
    b.e(f's_lshl_b32 s61, s{gPART}, 2'); b.e('s_or_b32 s46, s46, s61'); b.e(f's_or_b32 s46, s46, s{sWAVE}')
    b.e('s_xor_b32 s47, s46, 4')
    b.e('s_lshl_b32 s61, s46, 7'); b.e(f'v_mov_b32 v{hFS}, s61')
    b.e('s_lshl_b32 s61, s47, 7'); b.e(f'v_mov_b32 v{hFL}, s61')
    b.e('s_lshl_b32 s46, s46, 12'); b.e('s_lshl_b32 s47, s47, 12')
    b.e(f'v_lshl_add_u32 v{hPS}, v{vLANE}, 4, s46'); b.e(f'v_lshl_add_u32 v{hPL}, v{vLANE}, 4, s47')
    srd(b, G_P, 6, 7, PART_BYTES, PART_OFF)
    b.e(f'v_add_u32 v{hTS+2}, {BFLAG_REL-AFLAG_REL}, v{hTS+2}')
    b.e(f's_lshl_b32 s46, s{sWAVE}, 4'); b.e(f'v_readlane_b32 s47, v{hTS+3}, s46'); b.e(f's_add_u32 s47, s47, {BFLAG_REL-AFLAG_REL}')
    b.e(f'v_bfe_u32 v{tA}, v{vLANE}, 1, 3'); b.e(f'v_lshl_add_u32 v{hTS+3}, v{tA}, 9, s47')
    b.e(f'v_and_b32 v{tA}, 1, v{vLANE}'); b.e(f'v_lshl_add_u32 v{hTS+3}, v{tA}, 7, v{hTS+3}')
    b.e('s_mov_b32 s64, 0xffff0000'); b.e('s_mov_b32 s61, 32768'); b.e('s_mov_b32 s62, 65536'); b.e('s_mov_b32 s63, 98304')
    late = [x.text for x in b.ins]
    rowoff = ['0', 's61', 's62', 's63']
    VM2 = 8*(NS-2); UN = 2*NS; LS = FS - NS; uexit = (LS - 1) % UN
    def gu_at(step): return UN*len([t_ for t_ in range(cfg.npeel, step) if t_ % UN == uexit])
    hooks = {}
    def hook(name, steps, opnd=None):
        for stp in steps:
            if stp % UN != uexit and stp % UN not in hooks and stp >= cfg.npeel and all(gu_at(stp) != gu_at(o_) for o_ in range(cfg.npeel + (stp - cfg.npeel) % UN, LS, UN) if o_ != stp):
                hooks[stp % UN] = (name, opnd or gu_at(stp)); return stp
        raise RuntimeError(name)
    hN = hook('nat', [NA-2], 's65')
    hC = hook('chk', range(NA-6, NA-9, -1))
    hA_ = hook('ask', range(hC-5, hC-8, -1))
    hF = hook('flg', range(7, 10))
    late.insert(len(late)-4, f's_mul_i32 s65, s{gPART}, {gu_at(hN)+1}'); late.insert(len(late)-4, 's_sub_u32 s65, s65, 1')
    def rec():
        if cfg.stamps != 7: return
        a.e('s_memrealtime s[86:87]'); a.e('s_waitcnt lgkmcnt(0)')
        a.e('v_mov_b32 v28, s86'); a.e(f'v_cmp_eq_u32 vcc, s88, v{vLANE}'); a.e('v_cndmask_b32 v29, v29, v28, vcc'); a.e('s_add_u32 s88, s88, 1')
    if cfg.stamps == 7: a.e('s_mov_b32 s88, 0')
    def full_step(u, wait, inloop, fill=(), head=(), post_vm=()):
        slot = u % NS; par = u & 1
        a.e(f's_waitcnt vmcnt({wait}) lgkmcnt(0)'); a.e('s_barrier'); rec()
        for x in head: a.e(x)
        sched = {}
        for i, r in enumerate(reads((slot+1) % NS, par ^ 1)): sched.setdefault((i*cfg.rsp)//24 + cfg.rd0, []).append(r)
        if cfg.dsp == 3 or fill or post_vm:
            for i, (pre, ins, post) in enumerate(g2_dma(slot)):
                p = 1 + 3*i
                for x in pre: sched.setdefault(p-1, []).append(x)
                sched.setdefault(p, []).append(ins)
                for k_, x in enumerate(post): sched.setdefault(min(30, p + 1 + k_//2), []).append(x)
        else:
            for i, (pre, ins, post) in enumerate(g2_dma(slot)):
                p = cfg.d0 + 4*i
                for x in pre: sched.setdefault(p-1, []).append(x)
                sched.setdefault(p, []).append(ins)
            nx = g2_next()
            adv = [nx[0], nx[1], f's_lshl_b32 s89, s{gWO}, 17'] + nx[3:]
            pos = [cfg.d0+13, cfg.d0+14, cfg.d0+17, cfg.d0+17, cfg.d0+18, cfg.d0+18, cfg.d0+19, cfg.d0+19, cfg.d0+21, cfg.d0+22]
            for p_, x in zip(pos, adv): sched.setdefault(p_, []).append(x)
            sched.setdefault(cfg.d0+28, []).append(f's_mov_b32 s{gACT}, s89')
        pos_ = 0
        for k_, x in enumerate(fill):
            if not x.startswith('s_addc'):
                pos_ = (k_*22)//len(fill)
                if k_+1 < len(fill) and fill[k_+1].startswith('s_addc') and pos_ % 3 == 0: pos_ += 1
            sched.setdefault(pos_, []).append(x)
        for k_, x in enumerate(post_vm): sched.setdefault(24 + 2*k_, []).append(x)
        if inloop and u == uexit:
            sched.setdefault(31, []).append(f's_add_u32 s{gU}, s{gU}, {UN}')
            sched.setdefault(31, []).append(f's_cmp_ge_u32 s{gU}, {LS}')
        if inloop and u in hooks:
            sched.setdefault(31, []).append(f's_cmp_eq_u32 s{gU}, {hooks[u][1]}')
        i = 0
        for n in range(4):
            for m in range(4):
                for ks in range(2):
                    d = ACC + (n*4+m)*4
                    c = '0' if (u == 0 and not inloop and ks == 0) else f'v[{d}:{d+3}]'
                    a.e(f'{MF} v[{d}:{d+3}], v[{wreg(par,ks,n)}:{wreg(par,ks,n)+3}], v[{areg(par,ks,m)}:{areg(par,ks,m)+3}], {c}')
                    for x in sched.get(i, []): a.e(x)
                    i += 1
        if inloop and u in hooks:
            a.e(f's_cbranch_scc1 L2_b{hooks[u][0]}'); a.label(f'L2_bret{hooks[u][0]}')
    NPEEL = cfg.npeel
    assert uexit >= NPEEL or LS > UN
    nl_ = len(late)
    bst = [f'buffer_store_dwordx4 v[{XR+4*i_}:{XR+4*i_+3}], v{hO}, s[{S_O}:{S_O+3}], s67 offen offset:{i_*1024} sc1' for i_ in range(4)] + \
          [f'buffer_store_dwordx4 a[{4*m}:{4*m+3}], v{hO+1+(m>>1)}, s[{S_O}:{S_O+3}], s66 offen offset:{(m&1)*2048} sc1' for m in range(4)]
    q0 = [t_ for t_ in range(1, NS) for _ in range(4)]
    BP = cfg.bper
    assert 8 <= BP*3
    for u in range(NPEEL):
        last = max(i_ for i_, x in enumerate(q0) if x == u+1)
        full_step(u, len(q0) - 1 - last, False, fill=late[(u*nl_)//3:((u+1)*nl_)//3] if u < 3 else (), post_vm=bst[BP*u:BP*u+BP])
        q0 = q0[last+1:] + [u+NS]*8 + ['b']*len(bst[BP*u:BP*u+BP])
    a.e('s_branch L2_uin')
    a.label('L2_bnat')
    a.e(f's_and_b32 s3, s{sWAVE}, 1'); a.e('s_mul_i32 s3, s3, -24576')
    for d in range(4):
        a.e(f'v_add_u32 v{hDW+d}, s3, v{hDW+d}'); a.e('s_add_u32 s3, s3, 8192')
    a.e('s_branch L2_bretnat')
    a.label('L2_bflg')
    a.e('s_mov_b64 exec, 1')
    a.e(f'buffer_store_dwordx2 v[{hTS}:{hTS+1}], v{hTS+2}, s[{G_F}:{G_F+3}], 0 offen sc1')
    a.e('s_mov_b64 exec, -1')
    a.e('s_branch L2_bretflg')
    a.label('L2_bask')
    a.e(f'buffer_load_dwordx2 v[{hBF}:{hBF+1}], v{hTS+3}, s[{G_F}:{G_F+3}], 0 offen sc1')
    a.e('s_branch L2_bretask')
    a.label('L2_bchk')
    a.e('s_mov_b32 s3, 0')
    a.label('L2_bspin')
    stamp_ok(a, hBF, 66); a.e('s_cbranch_scc1 L2_bretchk')
    a.e('s_add_u32 s3, s3, 1'); a.e('s_cmp_gt_u32 s3, 0x8000'); a.e('s_cbranch_scc1 L2_bretchk')
    a.e(f'buffer_load_dwordx2 v[{hBF}:{hBF+1}], v{hTS+3}, s[{G_F}:{G_F+3}], 0 offen sc1')
    a.e('s_waitcnt vmcnt(0)'); a.e('s_branch L2_bspin')
    a.label('L2_loop')
    for u in range(UN):
        if u == NPEEL: a.label('L2_uin')
        full_step(u, VM2, True)
        if u == uexit: a.e('s_cbranch_scc1 L2_half')
        if u == UN-1: a.e('s_branch L2_loop')
    a.label('L2_half')
    q = []
    for t in range(LS+1, FS): q += [('d', t)]*8
    def wait_for(pred, extra=''):
        last = max([i for i, x in enumerate(q) if pred(x)], default=-1)
        a.e(f's_waitcnt vmcnt({min(len(q) - 1 - last, 63)}){extra}')
        del q[:last+1]
    def fload(): a.e(f'buffer_load_dwordx2 v[{hBF}:{hBF+1}], v{hFL}, s[{G_F}:{G_F+3}], 0 offen sc1')
    def pl():
        for k_ in range(4): a.e(f'buffer_load_dwordx4 v[{ACC+32+4*k_}:{ACC+32+4*k_+3}], v{hPL}, s[{G_P}:{G_P+3}], 0 offen offset:{k_*1024} sc1')
    for t in range(LS, TOT):
        hs = t - FS; slot = t % NS; par = t & 1
        nn = 4 if hs < 0 else 2
        if any(x == ('d', t+1) for x in q): wait_for(lambda x: x == ('d', t+1), ' lgkmcnt(0)')
        else: a.e('s_waitcnt lgkmcnt(0)')
        if t+1 < TOT: a.e('s_barrier')
        rec()
        sched = {}
        def add(i, x, tag=None): sched.setdefault(i, []).append((x, tag))
        if t + 1 < TOT:
            for i, r in enumerate(reads((slot+1) % NS, par ^ 1, 4 if t+1 < FS else 2)): add(i, r)
        extra = []
        if t + NS < TOT:
            for pre, ins, post in g2_dma(slot, compact=True):
                extra += [(x, None) for x in pre] + [(ins, ('d', t+NS))] + [(x, None) for x in (post if t+NS+1 < TOT else [])]
        if hs == max(HS-NS, 1):
            extra += [(f'buffer_load_dwordx4 v[{XR+4*m}:{XR+4*m+3}], v{hXO}, s[{G_X}:{G_X+3}], {rowoff[m]} offen', ('x', 0)) for m in range(4)]
        pub = []
        for k_ in range(4):
            c0 = ACC+32+4*k_; c1 = ACC+48+4*k_
            pub += [(f'v_cvt_pk_bf16_f32 v{c0}, v{c0}, v{c0+1}', None), (f'v_cvt_pk_bf16_f32 v{c0+1}, v{c0+2}, v{c0+3}', None),
                    (f'v_cvt_pk_bf16_f32 v{c0+2}, v{c1}, v{c1+1}', None), (f'v_cvt_pk_bf16_f32 v{c0+3}, v{c1+2}, v{c1+3}', None),
                    (f'buffer_store_dwordx4 v[{c0}:{c0+3}], v{hPS}, s[{G_P}:{G_P+3}], 0 offen offset:{k_*1024} sc1', ('s', 0))]
        if hs == 0 and not cfg.epub: extra += pub
        if hs == -1 and cfg.epub:
            assert not extra
            for k_, (x, tag) in enumerate(pub): add(20 + (k_*12)//len(pub), x, tag)
        for k_, (x, tag) in enumerate(extra): add((k_*8*nn)//max(len(extra), 1), x, tag)
        i = 0
        for n in ((2, 3, 0, 1) if (hs == -1 and cfg.epub) else range(nn)):
            for m in range(4):
                for ks in range(2):
                    d = ACC + (n*4+m)*4
                    a.e(f'{MF} v[{d}:{d+3}], v[{wreg(par,ks,n)}:{wreg(par,ks,n)+3}], v[{areg(par,ks,m)}:{areg(par,ks,m)+3}], v[{d}:{d+3}]')
                    for x, tag in sched.get(i, []):
                        a.e(x)
                        if tag: q.append(tag)
                    i += 1
        if hs == cfg.k2_flg:
            wait_for(lambda x: x[0] == 's')
            a.e('s_mov_b64 exec, 1')
            a.e(f'buffer_store_dwordx2 v[{hTS}:{hTS+1}], v{hFS}, s[{G_F}:{G_F+3}], 0 offen sc1'); q.append(('f', 0))
            a.e('s_mov_b64 exec, -1')
        if hs == HS-2:
            fload(); q.append(('p', 0))
        if hs == HS-1:
            wait_for(lambda x: x[0] == 'p')
    a.e('s_mov_b32 s3, 0')
    a.label('L2_chk')
    stamp_ok(a, hBF, 66); a.e('s_cbranch_scc1 L2_have')
    a.e('s_add_u32 s3, s3, 1'); a.e('s_cmp_gt_u32 s3, 0x40000'); a.e('s_cbranch_scc1 L2_have')
    fload(); a.e('s_waitcnt vmcnt(0)'); a.e('s_branch L2_chk')
    a.label('L2_have')
    rec()
    pl()
    st.at(7, 1)
    for m in range(4):
        Tm = FR + m*8; x = XR + 4*m
        for r in range(4):
            a.e(f'v_lshlrev_b32 v{Tm+2*r}, 16, v{x+r}'); a.e(f'v_and_b32 v{Tm+2*r+1}, s64, v{x+r}')
    for m in range(4):
        x = XR + 4*m; c0 = ACC + 4*m; c1 = ACC + 16 + 4*m; Tm = FR + m*8; pk = ACC + 32 + 4*m; U = FR + 32 + m*8
        a.e('s_waitcnt vmcnt(3)')
        for r in range(4):
            a.e(f'v_lshlrev_b32 v{U+2*r}, 16, v{pk+r}'); a.e(f'v_and_b32 v{U+2*r+1}, s64, v{pk+r}')
        for (c, p) in ((c0, U), (c1, U+4)):
            a.e(f'v_pk_add_f32 {P2(c)}, {P2(c)}, {P2(p)}'); a.e(f'v_pk_add_f32 {P2(c+2)}, {P2(c+2)}, {P2(p+2)}')
        for r in range(4): a.e(f'v_permlane16_swap_b32 v{c0+r}, v{c1+r}')
        a.e(f'v_pk_add_f32 {P2(c0)}, {P2(c0)}, {P2(Tm)}'); a.e(f'v_pk_add_f32 {P2(c0+2)}, {P2(c0+2)}, {P2(Tm+2)}')
        a.e(f'v_pk_add_f32 {P2(c1)}, {P2(c1)}, {P2(Tm+4)}'); a.e(f'v_pk_add_f32 {P2(c1+2)}, {P2(c1+2)}, {P2(Tm+6)}')
        a.e(f'v_cvt_pk_bf16_f32 v{x}, v{c0}, v{c0+1}'); a.e(f'v_cvt_pk_bf16_f32 v{x+1}, v{c0+2}, v{c0+3}')
        a.e(f'v_cvt_pk_bf16_f32 v{x+2}, v{c1}, v{c1+1}'); a.e(f'v_cvt_pk_bf16_f32 v{x+3}, v{c1+2}, v{c1+3}')
        a.e(f'buffer_store_dwordx4 v[{x}:{x+3}], v{hXO}, s[{G_OUT}:{G_OUT+3}], {rowoff[m]} offen' + ['', ' sc1', ' nt'][cfg.ost])
    if st.on:
        a.e('s_waitcnt vmcnt(0)'); st.at(3, 2)
    if cfg.stamps in (7, 8):
        a.e('s_waitcnt vmcnt(0)'); rec()
        srd(a, 92, 6, 7, 1 << 20, STAMP_OFF + (1 << 19))
        a.e('s_lshl_b32 s96, s2, 10'); a.e(f's_lshl_b32 s97, s{sWAVE}, 8'); a.e('s_add_u32 s96, s96, s97')
        a.e(f'v_lshl_add_u32 v{hT2}, v{vLANE}, 2, s96')
        a.e(f'buffer_store_dword v29, v{hT2}, s[92:95], 0 offen')
    st.flush(sWAVE, hT2, hT2+1)
    a.label('L_end')
    a.e('s_endpgm')
    return name

def build(cfg):
    a = Asm()
    a.e('.amdgcn_target "amdgcn-amd-amdhsa--gfx950"'); a.e('.text')
    name = gen(a, cfg)
    for x in a.ins:
        if x.kind == 'vmem' and x.lds: x.text = x.text.replace(' lds', ' sc1 lds')
    a.fix()
    head = open('cdna_kernels/' + NAME + '.s.ref').read().split('\n')
    hdr = [l for l in head[:13] if l.startswith(';') and '@launch' not in l and 'Override' not in l and 'grid=ceil' not in l]
    out = '\n'.join(hdr) + '\n; @launch grid=(256,1,1) block=(256,1,1) lds=163840\n' + a.text()
    out += f'''.section .rodata,"a"
.p2align 6
.amdhsa_kernel {name}
  .amdhsa_next_free_vgpr 512
  .amdhsa_next_free_sgpr 102
  .amdhsa_accum_offset 256
  .amdhsa_group_segment_fixed_size 0
  .amdhsa_kernarg_size 80
  .amdhsa_user_sgpr_count 2
  .amdhsa_user_sgpr_kernarg_segment_ptr 1
  .amdhsa_system_sgpr_workgroup_id_x 1
.end_amdhsa_kernel
'''
    return out

if __name__ == '__main__':
    cfg = Cfg()
    outp = sys.argv[1] if len(sys.argv) > 1 else 'cdna_kernels/' + NAME + '.s'
    for kv in sys.argv[2:]:
        k, v = kv.split('='); assert hasattr(cfg, k), k; setattr(cfg, k, int(v))
    open(outp, 'w').write(build(cfg))
    sys.path.insert(0, 'cdna_kernels')
    import subprocess, cdna_launch as cl
    h = cl.with_harness_metadata(open(outp).read(), NAME + '_kernel', 10, launch_lists=True)
    open('h.s', 'w').write(h)
    r = subprocess.run(['clang', '-x', 'assembler', '-target', 'amdgcn-amd-amdhsa', '-mcpu=gfx950', 'h.s', '-o', 'h.co'], capture_output=True, text=True)
    if r.returncode: print(r.stderr[:1500]); sys.exit(1)
    print('wrote', outp, 'check:', cl.address_register_problem('h.co', NAME + '_kernel', None))
```

```python
import sys
sys.path.insert(0, 'dev')
from asmlib import *

NAME = 'parallel_sum__sliding_local_dilated__glu_gated_bilinear__prompt'
XN_OFF = 0;            XN_BYTES = 32*128*1024
ACT2_OFF = 4 << 20;    ACT2_BYTES = 144*128*1024
PART_OFF = 24 << 20;   PART_BYTES = 1024*4096
FLAG_OFF = 32 << 20
PFLAG_REL = 0; XFLAG_REL = 256 << 10; AFLAG_REL = 512 << 10; BFLAG_REL = 640 << 10
STAMP_OFF = 40 << 20

class Cfg:
    stamps = 0
    pfd = 8; pf3n = 56; pf3w = 27; f0ne = 4; f0sl = 0
    k2_fs = 34; k2_flg = 2; k2_chk = 3
    g1sl = 0
    ncpf = 6
    mp = 3
    ms0 = 0
    ms1 = 0
    tr2 = 0
    g2pf = 0
    g2af = 0
    dbg2 = 0
    afirst = 1
    vsp = 4
    dbg = 0
    dsp = 3
    d0 = 1
    rd0 = 0
    rsp = 24
    pfx = 1
    hk = 0
    wlate = 0
    cpf2 = 0
    w0late = 0
    epub = 1
    ost = 0
    ilv = 0
    bper = 3
    npeel = 7
    fa_at = 2
    def __init__(self, **kw):
        for k, v in kw.items(): setattr(self, k, v)

def srd(a, d, lo, hi, nbytes, off=0):
    if off:
        a.e(f's_add_u32 s{d}, s{lo}, {off}'); a.e(f's_addc_u32 s{d+1}, s{hi}, 0')
    else:
        a.e(f's_mov_b32 s{d}, s{lo}'); a.e(f's_mov_b32 s{d+1}, s{hi}')
    a.e(f's_mov_b32 s{d+2}, {nbytes}'); a.e(f's_mov_b32 s{d+3}, 0x20000')

def code_pf(a, start, end, vlane, vtmp, vdum, spc, nins):
    a.e(f's_getpc_b64 s[{spc}:{spc+1}]')
    lab = f'Lpc_{start}'
    a.label(lab)
    a.e(f's_add_u32 s{spc}, s{spc}, {start}-{lab}')
    a.e(f's_addc_u32 s{spc+1}, s{spc+1}, 0')
    for i in range(nins):
        a.e(f'v_lshlrev_b32 v{vtmp}, 7, v{vlane}')
        if i: a.e(f'v_add_u32 v{vtmp}, {i*8192}, v{vtmp}')
        a.e(f'v_min_u32 v{vtmp}, {end}-{start}-4, v{vtmp}')
        a.e(f'global_load_dword v{vdum}, v{vtmp}, s[{spc}:{spc+1}]')

class Stamper:
    def __init__(self, a, on): self.a = a; self.on = on
    def at(self, i, mode=1):
        if self.on == mode or (self.on and i == 0): self.a.e(f's_memrealtime s[{70+2*i}:{71+2*i}]')
    def flush(self, wave, vt0, vt1):
        if not self.on: return
        a = self.a
        a.e('s_waitcnt lgkmcnt(0)')
        srd(a, 92, 6, 7, 1 << 20, STAMP_OFF)
        a.e('s_lshl_b32 s96, s2, 8'); a.e(f's_lshl_b32 s97, s{wave}, 6'); a.e('s_add_u32 s96, s96, s97')
        a.e(f'v_mov_b32 v{vt0}, s96')
        a.e('s_mov_b64 exec, 1')
        for i in range(8):
            a.e(f'v_mov_b32 v{vt1}, s{70+2*i}')
            a.e(f'buffer_store_dword v{vt1}, v{vt0}, s[92:95], 0 offen offset:{4*i}')
        a.e('s_mov_b64 exec, -1')

class LgkmTracker:
    def __init__(self, a): self.a = a; self.q = []
    def read(self, text):
        self.a.e(text); self.q.append(set(Ins(text).dst))
    def other(self): self.q.append(set())
    def need(self, regs):
        regs = set(regs); last = -1
        for i, d in enumerate(self.q):
            if d & regs: last = i
        if last < 0: return
        n = min(len(self.q) - 1 - last, 15)
        self.a.e(f's_waitcnt lgkmcnt({n})')
        self.q = self.q[len(self.q) - n:] if n else []
    def drain(self): self.q = []
    def state(self): return [tuple(sorted(x)) for x in self.q]

def P2(r): return f'v[{r}:{r+1}]'
def AR(r): return f'a[{r}:{r+3}]'
MF = 'v_mfma_f32_16x16x32_bf16'

L1_W = 65536; L1_HALO = 147456; L1_STAT = 151552
sT0 = 100; sCHK = 101; sWAVE = 51; BACK = 2500; WIN = 1 << 17

def stamp_ok(a, v, stmp):
    a.e(f'v_xor_b32 v{v+1}, v{v}, v{v+1}'); a.e(f'v_subrev_u32 v{v}, s{sT0}, v{v}')
    a.e(f'v_lshrrev_b32 v{v}, 17, v{v}')
    a.e(f'v_cmp_eq_u32 vcc, s{sCHK}, v{v+1}'); a.e(f'v_cmp_eq_u32 s[{stmp}:{stmp+1}], 0, v{v}')
    a.e(f's_and_b64 vcc, vcc, s[{stmp}:{stmp+1}]')
    a.e('s_cmp_eq_u64 vcc, exec')

def poll_masked(a, lab, v, vaddr, srd_, stmp, scnt, sleep):
    a.e(f's_mov_b32 s{scnt}, 0')
    a.label(lab)
    a.e(f'buffer_load_dwordx2 v[{v}:{v+1}], v{vaddr}, s[{srd_}:{srd_+3}], 0 offen sc1')
    a.e(f's_add_u32 s{scnt}, s{scnt}, 1')
    a.e('s_waitcnt vmcnt(0)')
    a.e(f'v_xor_b32 v{v+1}, v{v}, v{v+1}'); a.e(f'v_subrev_u32 v{v}, s{sT0}, v{v}')
    a.e(f'v_lshrrev_b32 v{v}, 17, v{v}')
    a.e(f'v_cmp_ne_u32 vcc, s{sCHK}, v{v+1}'); a.e(f'v_cmp_ne_u32 s[{stmp}:{stmp+1}], 0, v{v}')
    a.e(f's_or_b64 exec, vcc, s[{stmp}:{stmp+1}]')
    a.e(f's_cbranch_execz {lab}_done')
    if sleep: a.e(f's_sleep {sleep}')
    a.e(f's_cmp_lt_u32 s{scnt}, 0x8000'); a.e(f's_cbranch_scc1 {lab}')
    a.label(f'{lab}_done')
    a.e('s_mov_b64 exec, -1')

def gen(a, cfg):
    name = NAME + '_kernel'
    a.e(f'.globl {name}'); a.e('.p2align 8'); a.e(f'.type {name},@function'); a.label(name)
    st = Stamper(a, cfg.stamps)
    S_XN = 8; S_W = 12; S_O = 32
    sACT = 36; sWO = 37; sWS = 42; sM_ACT = 47; sM_W = 48; sM_H = 49; sCNT = 50; sWM = 52; sRB = 54; sJ = 55
    S_PF = 88; sPFO = 86; sPFS = 87
    vLANE = 1; vDA = 2; vDH = 3; vDW = 4
    vA = 9; vHA = 10; vGU = 11; vQa = 13; vQb = 15; vHW = 17; vPF = 19; vT = 20; vDUM = 31
    aBI = 200
    a.e('s_cmp_ge_u32 s2, 256'); a.e('s_cbranch_scc1 L_end')
    st.at(0)
    a.e('s_load_dwordx2 s[96:97], s[0:1], 0')
    a.e('s_load_dwordx2 s[4:5], s[0:1], 8')
    a.e('s_load_dwordx4 s[56:59], s[0:1], 32')
    a.e('s_load_dwordx2 s[6:7], s[0:1], 72')
    a.e('s_load_dwordx2 s[68:69], s[0:1], 48')
    a.e('s_load_dwordx2 s[92:93], s[0:1], 16')
    a.e('s_memrealtime s[60:61]')
    a.e(f'v_lshrrev_b32 v{vT}, 6, v0')
    a.e(f'v_and_b32 v{vLANE}, 63, v0')
    a.e(f'v_readfirstlane_b32 s{sWAVE}, v{vT}')
    a.e(f's_cmp_lg_u32 s{sWAVE}, 3'); a.e('s_cbranch_scc1 L1_nocpf0')
    code_pf(a, 'L1_nocpf0', 'L1_wn1', vLANE, 134, 135, 94, 1)
    a.label('L1_nocpf0')
    a.e(f'v_lshrrev_b32 v128, 3, v{vLANE}'); a.e(f'v_and_b32 v129, 7, v{vLANE}')
    a.e('s_lshl_b32 s3, s2, 14')
    a.e('v_lshl_add_u32 v130, v128, 11, s3'); a.e(f'v_lshl_add_u32 v130, v{vT}, 9, v130'); a.e('v_lshl_add_u32 v130, v129, 4, v130')
    a.e('s_mov_b32 s98, 0x400000'); a.e('s_mov_b32 s99, 0x20000')
    a.e('s_waitcnt lgkmcnt(0)')
    for it in range(4): a.e(f'buffer_load_dwordx4 v[{32+4*it}:{35+4*it}], v130, s[96:99], 0 offen offset:{it*128}')
    a.e(f's_sub_u32 s{sT0}, s60, {BACK}')
    a.e(f's_not_b32 s{sCHK}, s61')
    a.e(f's_and_b32 s{sJ}, s2, 7'); a.e(f's_lshl_b32 s{sJ}, s{sJ}, 2')
    a.e('s_lshr_b32 s3, s2, 3')
    a.e(f's_lshr_b32 s{sRB}, s3, 2'); a.e('s_and_b32 s3, s3, 3'); a.e(f's_add_u32 s{sJ}, s{sJ}, s3')
    a.e(f's_lshr_b32 s{sWM}, s{sWAVE}, 1')
    a.e(f's_lshl_b32 s62, s{sJ}, 6'); a.e(f's_mul_i32 s63, s{sJ}, 224')
    a.e(f's_and_b32 s64, s{sJ}, 1'); a.e('s_lshl_b32 s64, s64, 1')
    a.e('s_movk_i32 s65, 6144'); a.e('s_movk_i32 s66, 7168')
    for w in (1, 2, 3):
        a.e(f's_cmp_eq_u32 s{sWAVE}, {w}'); a.e(f's_cbranch_scc1 L1_set{w}')
    for w in range(4):
        if w: a.label(f'L1_set{w}')
        t0, t1, t2, t3 = vT+1, vT+2, vT+3, vT+4
        if w < 3:
            a.e(f'v_mul_u32_u24 v{t0}, 21846, v{vLANE}'); a.e(f'v_lshrrev_b32 v{t0}, 16, v{t0}')
            a.e(f'v_mul_u32_u24 v{t1}, 3, v{t0}'); a.e(f'v_sub_u32 v{t1}, v{vLANE}, v{t1}')
            a.e(f's_lshl_b32 s60, s{sRB}, 2'); a.e(f'v_add_u32 v{t0}, s60, v{t0}')
            if w == 0:
                a.e(f'v_lshlrev_b32 v{t1}, 11, v{t1}'); a.e(f'v_add_u32 v{t1}, s62, v{t1}')
            else:
                a.e(f'v_lshlrev_b32 v{t1}, 7, v{t1}'); a.e(f'v_min_u32 v{t1}, 220, v{t1}'); a.e(f'v_add_u32 v{t1}, s63, v{t1}')
            a.e(f'v_mad_u32_u24 v{vPF}, v{t0}, s{65 if w == 0 else 66}, v{t1}')
            nl = 12
            a.e(f's_mov_b32 s{sPFS}, {32*(6144 if w == 0 else 7168)}'); a.e(f's_mov_b32 s{sPFO}, 0')
            srd(a, S_PF, *((4, 5, 1024*3072*2), (56, 57, 1024*3584*2), (58, 59, 1024*3584*2))[w])
        else:
            a.e(f'v_lshlrev_b32 v{vPF}, 7, v{vLANE}')
            nl = cfg.pf3n
            a.e(f's_mov_b32 s{sPFS}, {nl*128}'); a.e(f's_mov_b32 s{sPFO}, {(-(cfg.pf3w + cfg.pfd-3)*nl*128) & 0xffffffff}')
            a.e(f's_mul_i32 s60, s2, {224*128}')
            a.e(f's_add_u32 s{S_PF}, s68, s60'); a.e(f's_addc_u32 s{S_PF+1}, s69, 0')
            a.e(f's_mov_b32 s{S_PF+2}, {224*128}'); a.e(f's_mov_b32 s{S_PF+3}, 0x20000')
        a.e(f'v_mov_b32 v{t2}, 0x80000000')
        a.e(f'v_cmp_gt_u32 vcc, {nl}, v{vLANE}')
        a.e(f'v_cndmask_b32 v{vPF}, v{t2}, v{vPF}, vcc')
        for _ in range(cfg.f0ne if not cfg.pfx else cfg.pfx-1):
            a.e(f'buffer_load_dword v{vDUM}, v{vPF}, s[{S_PF}:{S_PF+3}], s{sPFO} offen'); a.e(f's_add_u32 s{sPFO}, s{sPFO}, s{sPFS}')
        for d in range(5):
            p = 5*w + d
            if p < 6: kind, pl, C, magic = 'q', p, 12, 5462
            elif p < 13: kind, pl, C, magic = 'g', p-6, 14, 4682
            else: kind, pl, C, magic = 'u', p-13, 14, 4682
            a.e(f'v_add_u32 v{t0}, {64*pl}, v{vLANE}')
            a.e(f'v_mul_u32_u24 v{t1}, {magic}, v{t0}')
            a.e(f'v_lshrrev_b32 v{t1}, 16, v{t1}')
            a.e(f'v_mul_u32_u24 v{t2}, {C}, v{t1}')
            a.e(f'v_sub_u32 v{t0}, v{t0}, v{t2}')
            if kind == 'q':
                a.e(f'v_lshrrev_b32 v{t2}, 1, v{t1}'); a.e(f'v_and_b32 v{t2}, 2, v{t2}')
                a.e(f'v_xor_b32 v{t0}, v{t0}, v{t2}')
                a.e(f'v_lshrrev_b32 v{t2}, 2, v{t0}'); a.e(f'v_lshlrev_b32 v{t2}, 11, v{t2}')
                a.e(f'v_and_b32 v{t0}, 3, v{t0}')
                a.e(f'v_lshl_add_u32 v{t0}, v{t0}, 4, v{t2}')
                a.e(f'v_add_u32 v{t0}, s62, v{t0}')
            else:
                a.e(f'v_add_u32 v{t0}, s64, v{t0}')
                a.e(f'v_subrev_u32 v{t2}, 14, v{t0}')
                a.e(f'v_min_u32 v{t0}, v{t0}, v{t2}')
                a.e(f'v_lshl_add_u32 v{t0}, v{t0}, 4, s63')
            a.e(f'v_and_b32 v{t2}, 3, v{t1}')
            a.e(f'v_bfe_u32 v{t3}, v{t1}, 2, 2')
            a.e(f'v_lshl_add_u32 v{t2}, v{t3}, 3, v{t2}')
            a.e(f'v_lshrrev_b32 v{t3}, 4, v{t1}')
            a.e(f'v_lshl_add_u32 v{t2}, v{t3}, 2, v{t2}')
            a.e(f'v_mad_u32_u24 v{vDW+d}, v{t2}, s{65 if kind == "q" else 66}, v{t0}')
            srd(a, S_W+4*d, *{'q': (4, 5, 1024*3072*2), 'g': (56, 57, 1024*3584*2), 'u': (58, 59, 1024*3584*2)}[kind])
            a.e(f's_mov_b32 s{sWS+d}, {32*(6144 if kind == "q" else 7168)}')
        if w < 3: a.e('s_branch L1_setdone')
    a.label('L1_setdone')
    srd(a, S_XN, 6, 7, XN_BYTES)
    srd(a, 96, 6, 7, 1 << 20, FLAG_OFF)
    a.e('v_lshrrev_b32 v131, 2, v129'); a.e(f'v_lshl_add_u32 v131, v{vT}, 3, v131'); a.e('v_lshlrev_b32 v131, 17, v131')
    a.e('v_and_b32 v132, 3, v129'); a.e('v_lshl_add_u32 v131, v132, 8, v131'); a.e('v_lshl_add_u32 v131, v128, 4, v131')
    a.e('s_lshr_b32 s60, s2, 1'); a.e('s_lshl_b32 s60, s60, 10'); a.e('s_and_b32 s61, s2, 1'); a.e('s_lshl_b32 s61, s61, 7'); a.e('s_add_u32 s60, s60, s61')
    a.e('v_add_u32 v131, s60, v131')
    a.e('v_lshlrev_b32 v132, 5, v128'); a.e(f'v_add_u32 v132, {L1_STAT}, v132'); a.e(f'v_lshl_add_u32 v133, v{vT}, 3, v132')
    a.e('s_mov_b32 s60, 0xffff0000'); a.e('s_mov_b32 s61, 262144'); a.e('s_mov_b32 s62, 524288'); a.e('s_mov_b32 s63, 786432')
    a.e('v_mov_b32 v120, 0x43800000'); a.e('v_mov_b32 v121, 0x3727c5ac'); a.e('v_mov_b32 v122, 0x3a800000')
    st.at(4, 2)
    a.e(f's_waitcnt vmcnt({cfg.f0ne if not cfg.pfx else cfg.pfx-1})')
    st.at(5, 2)
    if cfg.pfx:
        for _ in range(cfg.f0ne - (cfg.pfx-1)):
            a.e(f'buffer_load_dword v{vDUM}, v{vPF}, s[{S_PF}:{S_PF+3}], s{sPFO} offen'); a.e(f's_add_u32 s{sPFO}, s{sPFO}, s{sPFS}')
    if cfg.hk:
        a.e(f's_cmp_lg_u32 s{sWAVE}, 3'); a.e('s_cbranch_scc1 L1_hkd')
        code_pf(a, 'L1_polled', 'L_end', vLANE, 134, 135, 94, cfg.ncpf)
        a.e('s_mov_b32 s94, 0x200000'); a.e('s_mov_b32 s95, 0x20000')
        a.e('s_lshl_b32 s3, s2, 13'); a.e(f'v_lshlrev_b32 v134, 7, v{vLANE}')
        a.e('buffer_load_dword v135, v134, s[92:95], s3 offen')
        a.label('L1_hkd')
    X = 48; T = 80
    def red8(r):
        a.e(f'v_add_f32_dpp v{r}, v{r}, v{r} quad_perm:[1,0,3,2] row_mask:0xf bank_mask:0xf')
        a.e(f'v_add_f32_dpp v{r}, v{r}, v{r} quad_perm:[2,3,0,1] row_mask:0xf bank_mask:0xf')
        a.e(f'v_add_f32_dpp v{r}, v{r}, v{r} row_half_mirror row_mask:0xf bank_mask:0xf')
    def tree():
        for sp in (4, 2, 1):
            for i_ in range(sp): a.e(f'v_pk_add_f32 {P2(T+2*i_)}, {P2(T+2*i_)}, {P2(T+2*i_+2*sp)}')
    for i_ in range(16):
        a.e(f'v_lshlrev_b32 v{X+2*i_}, 16, v{32+i_}'); a.e(f'v_and_b32 v{X+2*i_+1}, s60, v{32+i_}')
    for i_ in range(8): a.e(f'v_pk_add_f32 {P2(T+2*i_)}, {P2(X+4*i_)}, {P2(X+4*i_+2)}')
    tree()
    a.e(f'v_add_f32 v{T}, v{T}, v{T+1}'); red8(T)
    a.e(f'v_mul_f32 v96, 0xbb800000, v{T}'); a.e('v_mov_b32 v97, v96')
    for i_ in range(16): a.e(f'v_pk_add_f32 {P2(X+2*i_)}, {P2(X+2*i_)}, v[96:97]')
    for i_ in range(8): a.e(f'v_pk_mul_f32 {P2(T+2*i_)}, {P2(X+4*i_)}, {P2(X+4*i_)}')
    for i_ in range(8): a.e(f'v_pk_fma_f32 {P2(T+2*i_)}, {P2(X+4*i_+2)}, {P2(X+4*i_+2)}, {P2(T+2*i_)}')
    tree()
    a.e(f'v_add_f32 v97, v{T}, v{T+1}'); red8(97)
    a.e('ds_write_b64 v133, v[96:97]')
    a.e('s_waitcnt lgkmcnt(0)'); a.e('s_barrier')
    st.at(6, 2)
    a.e('ds_read_b128 v[100:103], v132'); a.e('ds_read_b128 v[104:107], v132 offset:16')
    a.e('s_waitcnt lgkmcnt(0)')
    a.e('v_pk_add_f32 v[108:109], v[100:101], v[102:103]'); a.e('v_pk_add_f32 v[110:111], v[104:105], v[106:107]')
    a.e('v_pk_add_f32 v[108:109], v[108:109], v[110:111]')
    a.e('v_mul_f32 v108, 0x3e800000, v108')
    for r in (100, 102, 104, 106): a.e(f'v_sub_f32 v{r}, v{r}, v108')
    a.e('v_mul_f32 v110, v100, v100'); a.e('v_mul_f32 v111, v102, v102'); a.e('v_fmac_f32 v110, v104, v104'); a.e('v_fmac_f32 v111, v106, v106')
    a.e('v_add_f32 v110, v110, v111')
    a.e('v_fmac_f32 v109, v110, v120'); a.e('v_fmac_f32 v121, v109, v122')
    a.e('v_rsq_f32 v120, v121')
    a.e('v_sub_f32 v122, v108, v96'); a.e('v_mov_b32 v121, v120'); a.e('v_mul_f32 v122, v122, v120'); a.e('v_mov_b32 v123, v122')
    so_ = ['0', 's61', 's62', 's63']
    for it in range(4):
        for i_ in range(4*it, 4*it+4): a.e(f'v_pk_fma_f32 {P2(X+2*i_)}, {P2(X+2*i_)}, v[120:121], v[122:123]')
        for i_ in range(4*it, 4*it+4): a.e(f'v_cvt_pk_bf16_f32 v{32+i_}, v{X+2*i_}, v{X+2*i_+1}')
        a.e(f'buffer_store_dwordx4 v[{32+4*it}:{35+4*it}], v131, s[{S_XN}:{S_XN+3}], {so_[it]} offen sc1')
    st.at(7, 2)
    a.e(f's_lshl_b32 s{sM_ACT}, s{sWAVE}, 12')
    a.e(f's_mul_i32 s{sM_W}, s{sWAVE}, 5120'); a.e(f's_add_u32 s{sM_W}, s{sM_W}, {L1_W}')
    a.e(f's_lshl_b32 s{sM_H}, s{sWAVE}, 8'); a.e(f's_add_u32 s{sM_H}, s{sM_H}, {L1_HALO}')
    a.e(f's_mov_b32 s{sACT}, 0')
    for d in range(5): a.e(f's_mov_b32 s{sWO+d}, 0')
    def dma_list(slot):
        L = []
        for d in range(5):
            L.append((f's_add_u32 m0, s{sM_W}, {slot*20480 + d*1024}',
                      f'buffer_load_dwordx4 v{vDW+d}, s[{S_W+4*d}:{S_W+4*d+3}], s{sWO+d} offen lds',
                      f's_add_u32 s{sWO+d}, s{sWO+d}, s{sWS+d}'))
        for d in range(4):
            L.append((f's_add_u32 m0, s{sM_ACT}, {slot*16384}' if d == 0 else None,
                      f'buffer_load_dwordx4 v{vDA}, s[{S_XN}:{S_XN+3}], s{sACT} offen offset:{d*1024} lds', None))
        L.append((f's_add_u32 m0, s{sM_H}, {slot*1024}',
                  f'buffer_load_dword v{vDH}, s[{S_XN}:{S_XN+3}], s{sACT} offen lds', f's_add_u32 s{sACT}, s{sACT}, 131072'))
        L.append((None, f'buffer_load_dword v{vDUM}, v{vPF}, s[{S_PF}:{S_PF+3}], s{sPFO} offen', f's_add_u32 s{sPFO}, s{sPFO}, s{sPFS}'))
        return L
    def flat(dl): return [x for t_ in dl for x in t_ if x]
    VMW = 12
    if not cfg.wlate:
        for x in flat(dma_list(0)[:5] + dma_list(1)[:5]): a.e(x)
    latepf = [dma_list(0)[10]]*(cfg.pfd-1-cfg.f0ne)
    srd(a, S_O, 6, 7, ACT2_BYTES, ACT2_OFF)
    a.e(f's_lshl_b32 s60, s{sRB}, 14'); a.e(f's_lshl_b32 s61, s{sWAVE}, 12'); a.e('s_add_u32 s61, s61, s60')
    a.e(f'v_lshl_add_u32 v{vDA}, v{vLANE}, 4, s61')
    a.e('s_max_u32 s60, s60, 1024'); a.e('s_sub_u32 s60, s60, 1024')
    a.e(f's_lshl_b32 s61, s{sWAVE}, 8'); a.e('s_add_u32 s61, s61, s60')
    a.e(f'v_lshl_add_u32 v{vDH}, v{vLANE}, 2, s61')
    a.e(f's_lshl_b32 s60, s{sRB}, 5'); a.e('s_sub_u32 s60, s60, 2')
    a.e(f'v_min_u32 v134, 33, v{vLANE}'); a.e('v_add_u32 v134, s60, v134'); a.e('v_max_i32 v134, 0, v134'); a.e('v_lshlrev_b32 v134, 7, v134')
    a.e(f'v_add_u32 v134, {XFLAG_REL}, v134')
    a.e('s_lshl_b32 s60, s2, 7'); a.e(f's_add_u32 s60, s60, {XFLAG_REL}'); a.e('v_mov_b32 v135, s60')
    a.e(f's_add_u32 s60, s{sT0}, {BACK}'); a.e('v_mov_b32 v136, s60'); a.e(f'v_xor_b32 v137, s{sCHK}, v136')
    t0, t1, t2 = vT, vT+1, vT+2
    a.e(f's_lshl_b32 s60, s{sWM}, 13')
    a.e(f'v_lshl_add_u32 v{vA}, v{vLANE}, 4, s60')
    a.e(f'v_lshlrev_b32 v{vHA}, 4, v{vLANE}'); a.e(f'v_add_u32 v{vHA}, {L1_HALO}, v{vHA}')
    a.e(f'v_lshrrev_b32 v{t0}, 2, v{vLANE}')
    a.e(f'v_and_b32 v{t1}, 3, v{vLANE}'); a.e(f'v_lshlrev_b32 v{t1}, 3, v{t1}'); a.e(f'v_add_u32 v{t1}, {L1_W}, v{t1}')
    a.e(f'v_mul_u32_u24 v{t2}, 224, v{t0}'); a.e(f'v_add_u32 v{vGU}, v{t2}, v{t1}'); a.e(f'v_add_u32 v{vGU+1}, 40960, v{vGU}')
    a.e(f'v_mul_u32_u24 v{t2}, 192, v{t0}'); a.e(f'v_add_u32 v{t2}, v{t2}, v{t1}')
    a.e(f'v_lshlrev_b32 v{t0}, 1, v{vLANE}'); a.e(f'v_and_b32 v{t0}, 32, v{t0}')
    a.e(f'v_add_u32 v{vQa}, v{t2}, v{t0}'); a.e(f'v_sub_u32 v{vQb}, v{t2}, v{t0}')
    a.e(f'v_add_u32 v{vQa+1}, 40960, v{vQa}'); a.e(f'v_add_u32 v{vQb+1}, 40960, v{vQb}')
    a.e(f's_lshl_b32 s60, s{sWAVE}, 5'); a.e('s_add_u32 s60, s60, 64')
    a.e(f'v_xor_b32 v{t0}, s60, v{t0}')
    a.e(f'v_add_u32 v{vHW}, v{t2}, v{t0}'); a.e(f'v_add_u32 v{vHW+1}, 40960, v{vHW}')
    a.e(f's_mov_b32 s{sCNT}, 0')
    a.e(f's_waitcnt vmcnt({0 if cfg.wlate else 10})'); a.e('s_barrier')
    st.at(1, 2)
    a.e(f's_cmp_eq_u32 s{sWAVE}, 0'); a.e('s_cbranch_scc1 L1_pub')
    if cfg.hk: a.e('s_branch L1_consts')
    else:
        a.e(f's_cmp_eq_u32 s{sWAVE}, 2'); a.e('s_cbranch_scc1 L1_consts')
        a.e(f's_cmp_eq_u32 s{sWAVE}, 1'); a.e('s_cbranch_scc1 L1_wopf')
        code_pf(a, 'L1_polled', 'L_end', vLANE, 134, 135, 94, cfg.ncpf)
        a.e('s_branch L1_consts')
        a.label('L1_wopf')
        a.e('s_mov_b32 s94, 0x200000'); a.e('s_mov_b32 s95, 0x20000')
        a.e('s_lshl_b32 s60, s2, 13'); a.e(f'v_lshlrev_b32 v134, 7, v{vLANE}')
        a.e('buffer_load_dword v135, v134, s[92:95], s60 offen')
        a.e('s_branch L1_consts')
    a.label('L1_pub')
    a.e('s_mov_b64 exec, 1')
    a.e('buffer_store_dwordx2 v[136:137], v135, s[96:99], 0 offen sc1')
    a.e('s_mov_b64 exec, -1')
    a.label('L1_consts')
    if cfg.wlate:
        for x in flat(dma_list(0)[:5] + dma_list(1)[:5]): a.e(x)
    a.e(f'v_and_b32 v{t0}, 15, v{vLANE}'); a.e(f'v_lshrrev_b32 v{t1}, 4, v{vLANE}'); a.e(f'v_lshlrev_b32 v{t1}, 2, v{t1}')
    a.e(f'v_sub_u32 v{t0}, v{t0}, v{t1}')
    a.e(f'v_mov_b32 v{vT+3}, 0xf149f2ca')
    a.e(f's_or_b32 s60, s{sRB}, s{sWM}'); a.e('s_cmp_eq_u32 s60, 0'); a.e('s_cselect_b64 s[60:61], -1, 0')
    for isprev in range(2):
        for r in range(4):
            a.e(f'v_add_u32 v{t1}, {16*isprev - r}, v{t0}')
            a.e(f'v_and_b32 v{t2}, 0xfffffff1, v{t1}')
            a.e(f'v_cmp_eq_u32 vcc, 0, v{t2}')
            a.e(f'v_cndmask_b32_e64 v{vT+4}, v{vT+3}, 0, vcc')
            a.e(f'v_accvgpr_write_b32 a{aBI+4*isprev+r}, v{vT+4}')
            if isprev:
                a.e(f'v_cndmask_b32_e64 v{vT+4}, v{vT+4}, v{vT+3}, s[60:61]')
                a.e(f'v_accvgpr_write_b32 a{aBI+8+r}, v{vT+4}')
    a.e(f'v_mov_b32 v{vT+4}, 0x3f803f80')
    for r in range(4): a.e(f'v_accvgpr_write_b32 a{aBI+12+r}, v{vT+4}')
    a.e(f's_cmp_lg_u32 s{sWAVE}, 0'); a.e('s_cbranch_scc1 L1_polled')
    if cfg.mp & 1: poll_masked(a, 'L1_poll', 138, 134, 96, 60, 62, cfg.ms0)
    else:
        a.e('s_mov_b32 s62, 0')
        if cfg.f0sl: a.e(f's_sleep {cfg.f0sl}')
        a.label('L1_poll')
        a.e('buffer_load_dwordx2 v[138:139], v134, s[96:99], 0 offen sc1')
        a.e('s_add_u32 s62, s62, 1')
        a.e('s_waitcnt vmcnt(0)')
        stamp_ok(a, 138, 60); a.e('s_cbranch_scc1 L1_polled')
        a.e('s_cmp_lt_u32 s62, 0x8000'); a.e('s_cbranch_scc1 L1_poll')
    a.label('L1_polled')
    a.e('s_barrier')
    for x in flat(dma_list(0)[5:10] + dma_list(1)[5:10] + latepf): a.e(x)
    a.e(f's_and_b32 s60, s{sWAVE}, 1'); a.e('s_cmp_eq_u32 s60, 1'); a.e('s_cbranch_scc1 L1_wn1')

    NS = 5; FS = cfg.k2_fs; HS = 2*(36-FS); TOT = FS + HS; WB = NS*16384
    G_A = 8; G_W = 12; G_P = 16; G_X = 20; G_OUT = 24
    gACT = 36; gWO = 37; gM_A = 38; gM_W = 39; gU = 40; gPART = 41; gRB = 42; gCB = 43; gIDX = 53; gSZ0 = 54; gSZ1 = 55
    gM_H = 44; gKC = 45; gT1 = 46; gT2 = 47; G_F = 96
    hDA = 32; hDW = 33; hTS = 38; hSEQ = 42; hT = 44
    hA = 2; hW = 4; hXO = 12; hPS = 14; hPL = 15; hFS = 16; hFL = 17; hDH = 18; hWH = 20; hT2 = 24; hBF = 30; hO = 45
    XR = 48; ACC = 64; FR = 128
    NA = FS - 12
    def g2_next():
        return [f's_add_u32 s{gIDX}, s{gIDX}, 1',
                f'v_readlane_b32 s{gWO}, v{hSEQ}, s{gIDX}',
                f's_lshl_b32 s{gACT}, s{gWO}, 17',
                f's_cmp_lt_u32 s{gWO}, 32',
                f's_cselect_b32 s{G_W}, s92, s68', f's_cselect_b32 s{G_W+1}, s93, s69', f's_cselect_b32 s{G_W+2}, s{gSZ0}, s{gSZ1}',
                f's_cselect_b32 s60, 0, 32',
                f's_sub_u32 s{gWO}, s{gWO}, s60',
                f's_lshl_b32 s{gWO}, s{gWO}, 16']
    def g2_dma(slot, compact=False):
        L = []
        for d in range(2 if compact else 4):
            L.append(([f's_add_u32 m0, s{gM_H if compact else gM_W}, {slot*16384 + d*1024}'],
                      f'buffer_load_dwordx4 v{(hDH if compact else hDW)+d}, s[{G_W}:{G_W+3}], s{gWO} offen lds', []))
        for d in range(4):
            L.append(([f's_add_u32 m0, s{gM_A}, {slot*16384}'] if d == 0 else [],
                      f'buffer_load_dwordx4 v{hDA}, s[{G_A}:{G_A+3}], s{gACT} offen offset:{d*1024} lds', []))
        L[-1] = (L[-1][0], L[-1][1], g2_next())
        return L
    def g2_early(o):
        o.e('s_and_b32 s3, s2, 7'); o.e(f's_lshr_b32 s{gPART}, s3, 2'); o.e('s_and_b32 s3, s3, 3'); o.e('s_lshl_b32 s3, s3, 2')
        o.e('s_lshr_b32 s60, s2, 3'); o.e(f's_and_b32 s{gCB}, s60, 7'); o.e('s_lshr_b32 s60, s60, 3'); o.e(f's_add_u32 s{gRB}, s3, s60')
        o.e(f's_and_b32 s3, s{sWAVE}, 1')
        o.e(f's_mul_i32 s60, s{gPART}, {NA}')
        o.e(f'v_add_u32 v{hT}, s60, v{vLANE}'); o.e(f'v_add_u32 v{hT+1}, {2*NA-FS}, v{vLANE}')
        o.e(f'v_cmp_gt_u32 vcc, {NA}, v{vLANE}'); o.e(f'v_cndmask_b32 v{hT}, v{hT+1}, v{hT}, vcc')
        o.e(f'v_mul_u32_u24 v{hT+1}, 21846, v{hT}'); o.e(f'v_lshrrev_b32 v{hT+1}, 16, v{hT+1}')
        o.e(f'v_lshl_add_u32 v{hT}, v{hT+1}, 2, v{hT}')
        o.e(f's_lshl_b32 s60, s{sWM}, 2'); o.e('s_add_u32 s60, s60, 32'); o.e(f'v_add_u32 v{hT}, s60, v{hT}')
        o.e(f's_mul_i32 s60, s{gPART}, 24'); o.e(f's_add_u32 s60, s60, s{sWM}'); o.e(f's_sub_u32 s60, s60, {2*NA}')
        o.e(f'v_lshl_add_u32 v{hT+1}, v{vLANE}, 1, s60')
        o.e(f's_mul_i32 s60, s{sWM}, 7'); o.e(f's_sub_u32 s60, s60, {14*(NA+4)-35}')
        o.e(f'v_mul_u32_u24 v{hT+2}, 14, v{vLANE}'); o.e(f'v_add_u32 v{hT+2}, s60, v{hT+2}')
        o.e(f's_cmp_eq_u32 s{gPART}, 0'); o.e(f's_cselect_b32 s60, 63, {NA+4}')
        o.e(f'v_cmp_gt_u32 vcc, s60, v{vLANE}'); o.e(f'v_cndmask_b32 v{hT+1}, v{hT+2}, v{hT+1}, vcc')
        o.e(f'v_subrev_u32 v{hT+2}, {NA}, v{vLANE}'); o.e(f'v_cmp_gt_u32 vcc, 12, v{hT+2}')
        o.e(f'v_cndmask_b32 v{hSEQ}, v{hT}, v{hT+1}, vcc')
        o.e('s_lshl_b32 s60, s3, 12'); o.e(f's_lshl_b32 s61, s{gRB}, 13'); o.e('s_add_u32 s60, s60, s61')
        o.e(f'v_lshl_add_u32 v{hDA}, v{vLANE}, 4, s60')
        o.e(f's_lshl_b32 s{gM_A}, s{sWAVE}, 12'); o.e(f's_add_u32 s{gM_W}, s{gM_A}, {WB}')
        o.e(f'v_lshrrev_b32 v{hT}, 4, v{vLANE}'); o.e(f'v_and_b32 v{hT+1}, 15, v{vLANE}')
        o.e('s_lshl_b32 s60, s3, 15'); o.e(f's_lshl_b32 s61, s{gCB}, 8'); o.e('s_add_u32 s60, s60, s61')
        o.e(f'v_lshl_add_u32 v{hT+3}, v{hT}, 11, s60')
        o.e(f'v_lshlrev_b32 v{hT+2}, 1, v{hT}'); o.e(f'v_xor_b32 v{hT+2}, v{hT+2}, v{hT+1}')
        o.e(f'v_lshl_add_u32 v{hDW}, v{hT+2}, 4, v{hT+3}')
        o.e(f'v_xor_b32 v{hDW+1}, 128, v{hDW}'); o.e(f'v_add_u32 v{hDW+1}, 8192, v{hDW+1}')
        o.e(f'v_add_u32 v{hDW+2}, 16384, v{hDW}'); o.e(f'v_add_u32 v{hDW+3}, 16384, v{hDW+1}')
        o.e(f's_mov_b32 s{gSZ0}, {1024*1024*2}'); o.e(f's_mov_b32 s{gSZ1}, {3584*1024*2}'); o.e(f's_mov_b32 s{G_W+3}, 0x20000')
        srd(o, G_A, 6, 7, ACT2_BYTES, ACT2_OFF)
        o.e(f's_lshr_b32 s60, s{gRB}, 1'); o.e('s_lshl_b32 s60, s60, 14'); o.e(f's_and_b32 s61, s{gRB}, 1'); o.e('s_lshl_b32 s61, s61, 8')
        o.e('s_add_u32 s60, s60, s61'); o.e(f's_add_u32 s60, s60, {AFLAG_REL}')
        o.e(f'v_lshrrev_b32 v{hT}, 1, v{vLANE}'); o.e(f'v_lshl_add_u32 v{hTS+3}, v{hT}, 9, s60')
        o.e(f'v_and_b32 v{hT}, 1, v{vLANE}'); o.e(f'v_lshl_add_u32 v{hTS+3}, v{hT}, 7, v{hTS+3}')
        o.e(f's_mov_b32 s{gIDX}, -1')
        for x in g2_next(): o.e(x)
    def g2_wdma(o):
        for s_ in range(NS):
            d_ = g2_dma(s_)
            for pre, ins, post in d_[:4]:
                for x in pre: o.e(x)
                o.e(ins)
            for x in d_[7][2]: o.e(x)
    def g2_flagA(o, younger):
        o.e(f's_add_u32 s60, s{sT0}, {BACK}'); o.e(f'v_mov_b32 v{hTS}, s60'); o.e(f'v_xor_b32 v{hTS+1}, s{sCHK}, v{hTS}')
        o.e('s_lshl_b32 s60, s2, 2'); o.e(f's_add_u32 s60, s60, s{sWAVE}'); o.e('s_lshl_b32 s60, s60, 7'); o.e(f's_add_u32 s60, s60, {AFLAG_REL}')
        o.e(f'v_mov_b32 v{hTS+2}, s60')
        o.e(f's_waitcnt vmcnt({younger})')
        o.e('s_mov_b64 exec, 1')
        o.e(f'buffer_store_dwordx2 v[{hTS}:{hTS+1}], v{hTS+2}, s[{G_F}:{G_F+3}], 0 offen sc1')
        o.e('s_mov_b64 exec, -1')
        st.at(4, 3)
    def g2_poll_act(wn):
        st.at(4, 1); st.at(5, 3)
        if wn == 0:
            a.e(f's_cmp_lg_u32 s{sWAVE}, 0'); a.e(f's_cbranch_scc1 L2_aok')
            if cfg.mp & 2: poll_masked(a, 'L2_apoll', hT2, hTS+3, G_F, 60, 3, cfg.ms1)
            else:
                a.e('s_mov_b32 s3, 0')
                if cfg.g1sl: a.e(f's_sleep {cfg.g1sl}')
                a.label('L2_apoll')
                a.e(f'buffer_load_dwordx2 v[{hT2}:{hT2+1}], v{hTS+3}, s[{G_F}:{G_F+3}], 0 offen sc1')
                a.e('s_add_u32 s3, s3, 1')
                a.e('s_waitcnt vmcnt(0)')
                stamp_ok(a, hT2, 60); a.e('s_cbranch_scc1 L2_aok')
                a.e('s_sleep 4')
                a.e('s_cmp_lt_u32 s3, 0x8000'); a.e('s_cbranch_scc1 L2_apoll')
            a.label('L2_aok')
        a.e('s_barrier')
        st.at(5, 1); st.at(6, 3)
        for s_ in range(NS):
            a.e(f'v_readlane_b32 s60, v{hSEQ}, {s_}'); a.e('s_lshl_b32 s60, s60, 17')
            a.e(f's_add_u32 m0, s{gM_A}, {s_*16384}')
            for d in range(4): a.e(f'buffer_load_dwordx4 v{hDA}, s[{G_A}:{G_A+3}], s60 offen offset:{d*1024} lds')

    aACT = 0; aHA = 64; aHW = 88; aACC = 96; aW2 = 216
    for wn in range(2):
        if wn == 1: a.label('L1_wn1')
        if wn == 0:
            names = ['q0', 'q1', 'k0', 'k1', 'v0', 'v1', 'g0', 'g1', 'u0', 'u1']
            units = [('q', 0), ('q', 2), ('q', 4), ('q', 6), ('q', 8), ('q', 10), ('g', 0), ('g', 2), ('u', 0), ('u', 2)]
            order_v = ['g0', 'g1', 'u0', 'q0', 'k0', 'v0', 'v1']; order_a = ['q1', 'k1', 'u1']
        else:
            names = ['g2', 'u2', 'g3', 'u3', 'g6', 'g4', 'u4', 'g5', 'u5', 'u6']
            units = [(nm[0], 2*int(nm[1])) for nm in names]
            order_v = ['g2', 'g3', 'g4', 'g5', 'g6', 'u2', 'u3']; order_a = ['u4', 'u5', 'u6']
        acc = {}
        for i, nm in enumerate(order_v):
            for m in range(8): acc[(nm, m)] = ('v', 32 + (i*8+m)*4)
        for i, nm in enumerate(order_a):
            for m in range(8): acc[(nm, m)] = ('a', aACC + (i*8+m)*4)
        acc['halo'] = ('a', aACC + 96)
        def R(x): return f'{x[0]}[{x[1]}:{x[1]+3}]'
        def hreads(slot):
            return [f'ds_read_b128 {AR(aHA)}, v{vHA} offset:{slot*1024}'] + \
                   [f'ds_read_b64_tr_b16 a[{aHW+2*h}:{aHW+2*h+1}], v{vHW+(slot>>1)} offset:{(slot&1)*20480+h*3072}' for h in range(2)]
        def wfrag(slot, n, reg):
            kind, c0 = units[n]; out = []
            for h_ in range(2):
                if kind == 'q':
                    base = (vQa if c0 % 4 == 0 else vQb) + (slot >> 1); off = (slot & 1)*20480 + c0*16 + h_*3072
                else:
                    base = vGU + (slot >> 1); off = (slot & 1)*20480 + (6144 if kind == 'g' else 13312) + c0*16 + h_*3584
                out.append(f'ds_read_b64_tr_b16 a[{reg+2*h_}:{reg+2*h_+1}], v{base} offset:{off}')
            return out
        def wr(p, n, second): return aW2 + 8*((5*p + n) & 3) + 4*second
        def areg_(stage, m): return aACT + (stage & 1)*32 + 4*m
        tr = LgkmTracker(a)
        carry = flat(dma_list(2)[5:10] + dma_list(2)[:5] + dma_list(2)[10:] if cfg.afirst else dma_list(2))
        carry_last = -99
        def period(h, kind, side=None):
            nonlocal carry, carry_last
            p = h + 1
            first = kind != 'P'; second = kind != 'Q'
            g0 = 0 if h % 2 == 0 else 5
            gn = 5 - g0
            secs = [x for x in (0, 1) if (first if x == 0 else second)]
            mf = [(n, m, sec) for n in range(3) for m in range(8) for sec in secs]
            L = 8*len(secs); T0 = len(mf)
            mf += [(n, m, sec) for m in range(8) for n in (3, 4) for sec in secs]
            N = len(mf)
            gaps = [[] for _ in range(N)]
            def place(item, lo, hi, cap=1):
                for g in range(lo, hi+1):
                    if len(gaps[g]) < cap:
                        gaps[g].append(item); return g
                return None
            def wf(n):
                return (wfrag(h % 4, g0+n, wr(p, n, 0)) if first else []) + (wfrag((h+1) % 4, g0+n, wr(p, n, 1)) if second else [])
            for n, lst in ((0, wf(1)), (1, wf(2)), (2, wf(3) + wf(4))):
                for k_, r in enumerate(lst): gaps[n*L + k_].append(('r', r))
            if kind != 'Q':
                cur = 1; lastv = carry_last - (N if not first else N)
                for x in carry:
                    lo = cur; vs_ = cfg.vsp if kind == 'H' else 2
                    if x.startswith('buffer') and first: lo = max(lo, lastv + vs_)
                    if x.startswith('s_add_u32 m0') and first: lo = max(lo, lastv + vs_ - 2)
                    g = place(('x', x), lo, T0-5, 1 if first else 2); assert g is not None
                    if x.startswith('buffer'): lastv = g
                    cur = g + (1 if (first or x.startswith('s_add_u32 m0')) else 0)
                per = 2*len(secs)
                for m in range(8):
                    gaps[T0 + per*m + (per - 2 if first else 0)].append(('r', f'ds_read_b128 {AR(areg_(h+2, m))}, v{vA} offset:{((h+2) % 4)*16384 + m*1024}'))
                tail = wfrag((h+1) % 4, gn, wr(p+1, 0, 0)) + wfrag((h+2) % 4, gn, wr(p+1, 0, 1)) + hreads((h+2) % 4)
                for k_, r in enumerate(tail):
                    g = place(('r', r), T0 + (per*k_ if first else 2*k_), N-1, 1); assert g is not None
                dl_ = dma_list(h % 4)
                items = flat(dl_[5:10] + dl_[:5] + dl_[10:] if cfg.afirst else dl_)
                cur = T0
                hi = N-1 if not (kind == 'H' and h % 4 == 2) else N-4
                lastv = -99
                while items:
                    x = items[0]; lo = cur
                    if x.startswith('buffer') and first: lo = max(lo, lastv + cfg.vsp)
                    if x.startswith('s_add_u32 m0') and first: lo = max(lo, lastv + cfg.vsp - 2)
                    g = place(('x', x), lo, hi, 1)
                    if g is None: break
                    if x.startswith('buffer'): lastv = g
                    cur = g + 1; items.pop(0)
                carry_last = lastv + (80 - N)
                carry = items
                if kind == 'H' and h % 4 == 2:
                    gaps[N-3].append(('x', f's_add_u32 s{sCNT}, s{sCNT}, 1')); gaps[N-2].append(('x', f's_cmp_eq_u32 s{sCNT}, 8'))
                if kind == 'H' and h % 4 == 0:
                    gaps[T0-4].append(('x', f's_cmp_eq_u32 s{sCNT}, 7'))
                    for k_, r_ in enumerate((sM_W, sM_ACT, sM_H)): gaps[T0-3+k_].append(('x', f's_cselect_b32 s{r_}, 170000, s{r_}'))
            if side:
                for k_, x in enumerate(side):
                    gaps[min(N-1, 3 + (k_*(N-3))//len(side))].append(('w' if x.startswith('ds_write') else 'x', x))
            if kind == 'Q': mf = [(n, m, 0) for n in range(5) for m in range(8)]
            for i, (n, m, sec) in enumerate(mf):
                nm = names[g0+n]
                if kind != 'Q' and i == T0:
                    a.e(f's_waitcnt vmcnt({VMW-1+len(latepf) if kind == "P" else VMW}) lgkmcnt(0)'); tr.drain()
                    if not (cfg.dbg & 2 and kind == 'H'): a.e('s_barrier')
                    if cfg.stamps == 8:
                        a.e('s_memrealtime s[84:85]'); a.e('s_waitcnt lgkmcnt(0)')
                        if kind == 'P': a.e('s_mov_b32 s83, 0')
                        a.e('v_mov_b32 v28, s84'); a.e(f'v_cmp_eq_u32 vcc, s83, v{vLANE}'); a.e('v_cndmask_b32 v29, v29, v28, vcc'); a.e('s_add_u32 s83, s83, 1')
                wreg = AR(wr(p, n, sec)); areg = AR(areg_(h+sec, m))
                tr.need(regs_of(wreg) + regs_of(areg) + (regs_of(AR(wr(p, n, 1))) if (n > 0 and second) else []))
                d = R(acc[(nm, m)])
                c = '0' if (kind == 'P' or (kind == 'H0' and sec == 0)) else d
                a.e(f'{MF} {d}, {areg}, {wreg}, {c}' if nm[0] == 'v' else f'{MF} {d}, {wreg}, {areg}, {c}')
                for k_, x in gaps[i]:
                    if kind == 'H' and ((cfg.dbg & 1 and x.startswith('buffer_load')) or (cfg.dbg & 8 and x.startswith('s_add_u32') and 's50' not in x)): continue
                    if kind == 'H' and cfg.dbg & 4 and k_ == 'r': continue
                    if k_ == 'r': tr.read(x)
                    elif k_ == 'w': a.e(x); tr.other()
                    else: a.e(x)
                if kind != 'Q' and i == L + 5:
                    tr.need(regs_of(AR(aHA)) + regs_of(AR(aHW)))
                    d = R(acc['halo'])
                    a.e(f'{MF} {d}, {AR(aHW)}, {AR(aHA)}, {"0" if kind == "P" else d}')
        a.e(f's_waitcnt vmcnt({5 + len(latepf)})'); a.e('s_barrier')
        st.at(1, 1); st.at(2, 2)
        if st.on: a.e('s_waitcnt lgkmcnt(0)')
        for r in wfrag(0, 5, wr(0, 0, 1)) + [f'ds_read_b128 {AR(areg_(0, m))}, v{vA} offset:{m*1024}' for m in range(8)] + hreads(0): tr.read(r)
        period(-1, 'P'); period(0, 'H0')
        entry_state = tr.state(); entry_carry = list(carry)
        if cfg.stamps == 9: a.e('s_memtime s[72:73]'); a.e('s_memrealtime s[76:77]'); a.e('s_waitcnt lgkmcnt(0)'); tr.drain(); entry_state = None
        a.label(f'L1_loop{wn}')
        period(1, 'H'); period(2, 'H')
        exit_q = list(tr.q)
        a.e(f's_cbranch_scc1 L1_tail{wn}')
        period(3, 'H'); period(4, 'H')
        assert cfg.dbg or cfg.stamps == 9 or (tr.state() == entry_state and carry == entry_carry)
        if wn == 0 and cfg.cpf2:
            a.e(f's_add_u32 s60, s{sCNT}, s{sWAVE}'); a.e(f's_cmp_eq_u32 s60, {cfg.cpf2 + 2}'); a.e(f's_cbranch_scc0 L1_loop{wn}')
            a.e(f's_cmp_eq_u32 s{sWAVE}, 2'); a.e(f's_cbranch_scc0 L1_loop{wn}')
            code_pf(a, 'L1_tail0', 'L_end', vLANE, 28, vDUM, 94, 5)
        a.e(f's_branch L1_loop{wn}')
        a.label(f'L1_tail{wn}')
        if cfg.stamps == 9: a.e('s_memtime s[74:75]'); a.e('s_memrealtime s[78:79]'); a.e('s_waitcnt lgkmcnt(0)')
        tr.q = exit_q
        vO = vDA; vX = vDW
        def fetch(o, x, tmp):
            if x[0] == 'v': return x[1]
            for r in range(4): o.e(f'v_accvgpr_read_b32 v{tmp+r}, a{x[1]+r}')
            return tmp
        def hmul(o, g, u_, m, dst, tmp):
            gb = acc[(g, m)][1]; ub = fetch(o, acc[(u_, m)], tmp)
            o.e(f'v_pk_mul_f32 {P2(gb)}, {P2(gb)}, {P2(ub)}'); o.e(f'v_pk_mul_f32 {P2(gb+2)}, {P2(gb+2)}, {P2(ub+2)}')
            o.e(f'v_cvt_pk_bf16_f32 v{dst}, v{gb}, v{gb+1}'); o.e(f'v_cvt_pk_bf16_f32 v{dst+1}, v{gb+2}, v{gb+3}')
        def ostore(o, src, m, soff, n=4):
            op = {4: 'buffer_store_dwordx4', 2: 'buffer_store_dwordx2'}[n]
            o.e(f'{op} v[{src}:{src+n-1}], v{vO + (m >> 2)}, s[{S_O}:{S_O+3}], {soff} offen offset:{(m&3)*1024} sc1')
        def hblock(o, ga, ua, gb_, ub_, m, so, tmp):
            dst = acc[(ga, m)][1]
            hmul(o, ga, ua, m, dst, tmp); hmul(o, gb_, ub_, m, dst+2, tmp+4); ostore(o, dst, m, so)
        def attn1(o, q, kp, kc, v0w, v1w, bp, BI, Sx, Ox, dst):
            o.e(f'{MF} v[{Sx}:{Sx+3}], v[{kp}:{kp+3}], v[{q}:{q+3}], 0')
            o.e(f'{MF} v[{Sx+4}:{Sx+7}], v[{kc}:{kc+3}], v[{q}:{q+3}], 0')
            for r in (0, 2): o.e(f'v_pk_fma_f32 {P2(Sx+r)}, {P2(Sx+r)}, s[94:95], {P2(bp+r)}')
            for r in (0, 2): o.e(f'v_pk_fma_f32 {P2(Sx+4+r)}, {P2(Sx+4+r)}, s[94:95], {P2(BI+r)}')
            M = Sx + 8
            o.e(f'v_max3_f32 v{M}, v{Sx}, v{Sx+1}, v{Sx+2}'); o.e(f'v_max3_f32 v{M+1}, v{Sx+3}, v{Sx+4}, v{Sx+5}')
            o.e(f'v_max3_f32 v{M}, v{M}, v{Sx+6}, v{Sx+7}'); o.e(f'v_max_f32 v{M}, v{M}, v{M+1}')
            o.e(f'v_mov_b32 v{M+1}, v{M}')
            o.e(f'v_permlane32_swap_b32 v{M}, v{M+1}')
            o.e(f'v_max_f32 v{M}, v{M}, v{M+1}'); o.e(f'v_mov_b32 v{M+1}, v{M}')
            o.e(f'v_permlane16_swap_b32 v{M}, v{M+1}')
            o.e(f'v_max_f32 v{M}, v{M}, v{M+1}'); o.e(f'v_mov_b32 v{M+1}, v{M}')
            for r in (0, 2, 4, 6): o.e(f'v_pk_add_f32 {P2(Sx+r)}, {P2(Sx+r)}, {P2(M)} neg_lo:[0,1] neg_hi:[0,1]')
            for r in range(8): o.e(f'v_exp_f32 v{Sx+r}, v{Sx+r}')
            for r in range(4): o.e(f'v_cvt_pk_bf16_f32 v{Sx+12+r}, v{Sx+2*r}, v{Sx+2*r+1}')
            Pp = Sx + 12
            o.e(f'{MF} v[{Ox+8}:{Ox+11}], a[{aBI+12}:{aBI+15}], v[{Pp}:{Pp+3}], 0')
            o.e(f'{MF} v[{Ox}:{Ox+3}], v[{v0w}:{v0w+3}], v[{Pp}:{Pp+3}], 0')
            o.e(f'{MF} v[{Ox+4}:{Ox+7}], v[{v1w}:{v1w+3}], v[{Pp}:{Pp+3}], 0')
            o.e(f'v_rcp_f32 v{Ox+8}, v{Ox+8}')
            o.e(f'v_mov_b32 v{Ox+9}, v{Ox+8}')
            for r in (0, 2, 4, 6): o.e(f'v_pk_mul_f32 {P2(Ox+r)}, {P2(Ox+r)}, {P2(Ox+8)}')
            for r in range(4): o.e(f'v_cvt_pk_bf16_f32 v{dst+r}, v{Ox+2*r}, v{Ox+2*r+1}')
        def zipper(A, B):
            A = [x.text for x in A.ins]; B = [x.text for x in B.ins]
            for i_ in range(max(len(A), len(B))):
                if i_ < len(A): a.e(A[i_])
                if i_ < len(B): a.e(B[i_])
        o = Asm()
        o.e(f's_lshl_b32 s60, s{sRB}, 14'); o.e(f's_lshl_b32 s61, s{sWM}, 13'); o.e('s_add_u32 s60, s60, s61')
        o.e(f'v_lshl_add_u32 v{vO}, v{vLANE}, 4, s60'); o.e(f'v_add_u32 v{vO+1}, 4096, v{vO}')
        o.e(f's_mul_i32 s62, s{sJ}, 7'); o.e(f's_and_b32 s63, s{sJ}, 1'); o.e('s_add_u32 s62, s62, s63'); o.e('s_lshr_b32 s62, s62, 1')
        o.e('s_add_u32 s62, s62, 32'); o.e('s_lshl_b32 s62, s62, 17')
        o.e('s_add_u32 s64, s62, 131072'); o.e('s_add_u32 s65, s62, 262144')
        o.e(f's_lshl_b32 s60, s{sWM}, 14'); o.e('s_add_u32 s60, s60, 4096')
        o.e(f'v_lshl_add_u32 v{vX}, v{vLANE}, 4, s60')
        o.e(f'v_and_b32 v{vT}, 15, v{vLANE}'); o.e(f'v_lshrrev_b32 v{vT+1}, 4, v{vLANE}')
        o.e(f'v_lshl_add_u32 v{vX+1}, v{vT}, 5, s60'); o.e(f'v_lshl_add_u32 v{vX+1}, v{vT+1}, 3, v{vX+1}')
        o.e(f's_mul_i32 s60, s{sWM}, 40960'); o.e('s_sub_u32 s61, 40960, s60')
        o.e(f'v_lshl_add_u32 v{vX+2}, v{vLANE}, 4, s60')
        o.e(f'v_lshl_add_u32 v{vX+3}, v{vT+1}, 7, s61'); o.e(f'v_lshl_add_u32 v{vX+3}, v{vT}, 1, v{vX+3}')
        hb = fetch(o, acc['halo'], vT)
        o.e(f'v_cvt_pk_bf16_f32 v{vT+4}, v{hb}, v{hb+1}'); o.e(f'v_cvt_pk_bf16_f32 v{vT+5}, v{hb+2}, v{hb+3}')
        o.e(f'ds_write_b64 v{vX+2}, v[{vT+4}:{vT+5}] offset:{8*wn}')
        of = 1024 + wn*512
        o.e(f'ds_write_b16 v{vX+3}, v{vT+4} offset:{of}'); o.e(f'ds_write_b16_d16_hi v{vX+3}, v{vT+4} offset:{of+32}')
        o.e(f'ds_write_b16 v{vX+3}, v{vT+5} offset:{of+64}'); o.e(f'ds_write_b16_d16_hi v{vX+3}, v{vT+5} offset:{of+96}')
        o.e('s_mov_b32 s94, 0x3e8293ee'); o.e('s_mov_b32 s95, 0x3e8293ee')
        o.e(f's_lshl_b32 s67, s{sJ}, 17')
        if wn == 0:
            def packqk(o, n0, n1, m):
                d = acc[(n0, m)][1]
                b1 = fetch(o, acc[(n1, m)], vT + 4*(m & 1))
                o.e(f'v_cvt_pk_bf16_f32 v{d}, v{d}, v{d+1}'); o.e(f'v_cvt_pk_bf16_f32 v{d+1}, v{d+2}, v{d+3}')
                o.e(f'v_cvt_pk_bf16_f32 v{d+2}, v{b1}, v{b1+1}'); o.e(f'v_cvt_pk_bf16_f32 v{d+3}, v{b1+2}, v{b1+3}')
                return d
            PV0 = acc[('v0', 0)][1]; PV1 = acc[('v1', 0)][1]
            def packv(o, Pv, m, off):
                b_ = Pv + 4*m
                c1 = f'v_cvt_pk_bf16_f32 v{Pv+2+2*m}, v{b_}, v{b_+1}'; c2 = f'v_cvt_pk_bf16_f32 v{Pv+3+2*m}, v{b_+2}, v{b_+3}'
                for x in ((c2, c1) if m == 0 else (c1, c2)): o.e(x)
                if m >= 3: o.e(f'ds_write_b64 v{vX+1}, v[{Pv+2+2*m}:{Pv+3+2*m}] offset:{(m-3)*2048+off}')
            for m in range(3, 8):
                d = packqk(o, 'k0', 'k1', m); o.e(f'ds_write_b128 v{vX}, v[{d}:{d+3}] offset:{(m-3)*2048}')
            for m in range(4, 8):
                d = packqk(o, 'q0', 'q1', m); o.e(f'ds_write_b128 v{vX}, v[{d}:{d+3}] offset:{10240+(m-4)*1024}')
            for m in range(8): packv(o, PV0, m, 1024)
            for m in range(8): packv(o, PV1, m, 1536)
        else:
            o.e('s_add_u32 s66, s62, 393216'); o.e('s_sub_u32 s61, s62, 131072'); o.e('s_add_u32 s61, s61, 512')
            o.e('s_cmp_eq_u32 s63, 1'); o.e('s_cselect_b32 s66, s61, s66')
            for m in range(8): hblock(o, 'g2', 'u2', 'g3', 'u3', m, 's64', vT)
        period(31, 'Q', side=[x.text for x in o.ins])
        st.at(2, 1); st.at(1, 3)
        a.e('s_waitcnt lgkmcnt(0)'); a.e('s_barrier')
        if wn == 0:
            KP = PV0 + 18; BI = PV1 + 18
            a.e(f's_lshl_b32 s60, s{sWM}, 12'); a.e('s_add_u32 s60, s60, 4096')
            a.e(f'v_subrev_u32 v{vX}, s60, v{vX}'); a.e(f'v_subrev_u32 v{vX+1}, s60, v{vX+1}')
            a.e(f'ds_read_b128 v[{KP}:{KP+3}], v{vX}')
            a.e(f'ds_read_b64 v[{PV0}:{PV0+1}], v{vX+1} offset:1024')
            a.e(f'ds_read_b64 v[{PV1}:{PV1+1}], v{vX+1} offset:1536')
            for m in range(8): hblock(a, 'g0', 'u0', 'g1', 'u1', m, 's62', vT)
            st.at(3, 1); st.at(2, 3)
            for m in range(3): packqk(a, 'k0', 'k1', m)
            for m in range(4): packqk(a, 'q0', 'q1', m)
            for r in range(12): a.e(f'v_accvgpr_read_b32 v{BI+r}, a{aBI+r}')
            blk = [(acc[('q0', m)][1], acc[('k0', m-1)][1] if m else KP, acc[('k0', m)][1], PV0+2*m, PV1+2*m, BI+(8 if m == 0 else 4), BI) for m in range(4)]
            W1 = acc[('g1', 0)][1]; W2 = acc[('u0', 0)][1]
            mo = 0
        else:
            F = acc[('u2', 0)][1]
            KR = F; V0 = F + 20; V1 = F + 30; QR = F + 40; BI = F + 56
            for i_ in range(5):
                a.e(f'ds_read_b128 v[{KR+4*i_}:{KR+4*i_+3}], v{vX} offset:{i_*2048}')
                if i_: a.e(f'ds_read_b128 v[{QR+4*(i_-1)}:{QR+4*(i_-1)+3}], v{vX} offset:{10240+(i_-1)*1024}')
            for i_ in range(5):
                a.e(f'ds_read_b64 v[{V0+2*i_}:{V0+2*i_+1}], v{vX+1} offset:{i_*2048+1024}')
                a.e(f'ds_read_b64 v[{V1+2*i_}:{V1+2*i_+1}], v{vX+1} offset:{i_*2048+1536}')
            for m in range(8): hblock(a, 'g4', 'u4', 'g5', 'u5', m, 's65', vT)
            st.at(3, 1); st.at(2, 3)
            for r in range(8): a.e(f'v_accvgpr_read_b32 v{BI+r}, a{aBI+r}')
            blk = [(QR+4*i_, KR+4*i_, KR+4*i_+4, V0+2*i_, V1+2*i_, BI+4, BI) for i_ in range(4)]
            W1 = acc[('g3', 0)][1]; W2 = acc[('g5', 0)][1]
            mo = 4
        a.e('s_waitcnt lgkmcnt(0)')
        def pair(pr):
            A = Asm(); B = Asm()
            attn1(A, *blk[2*pr], W1, W1+16, XR+8*pr); attn1(B, *blk[2*pr+1], W2, W2+16, XR+8*pr+4)
            zipper(A, B)
        def halves():
            if wn == 1:
                for i_ in range(4):
                    d_ = acc[('g6', 2*i_)][1]
                    hmul(a, 'g6', 'u6', 2*i_, d_, vT); hmul(a, 'g6', 'u6', 2*i_+1, d_+2, vT+4)
                    a.e(f'v_permlane16_swap_b32 v{d_}, v{d_+2}'); a.e(f'v_permlane16_swap_b32 v{d_+1}, v{d_+3}')
                    for r in range(4): a.e(f'v_accvgpr_write_b32 a{4*i_+r}, v{d_+r}')
                a.e(f'v_lshrrev_b32 v{vT}, 4, v{vLANE}'); a.e(f'v_and_b32 v{vT+1}, 1, v{vT}'); a.e(f'v_lshrrev_b32 v{vT+2}, 1, v{vT}')
                a.e(f'v_lshlrev_b32 v{vT}, 8, v{vT}'); a.e(f'v_sub_u32 v{hO+1}, v{vO}, v{vT}')
                a.e(f'v_lshl_add_u32 v{hO+1}, v{vT+1}, 10, v{hO+1}'); a.e(f'v_lshl_add_u32 v{hO+1}, v{vT+2}, 8, v{hO+1}')
                a.e(f'v_add_u32 v{hO+2}, 4096, v{hO+1}')
            else:
                a.e('s_mov_b32 s66, 0x80000000'); a.e(f'v_mov_b32 v{hO+1}, v{vO}'); a.e(f'v_mov_b32 v{hO+2}, v{vO}')
        if cfg.tr2:
            g2_early(a)
            A = Asm(); B = Asm(); D = Asm(); Fl = Asm()
            attn1(A, *blk[0], W1, W1+16, XR); attn1(B, *blk[1], W2, W2+16, XR+4); g2_wdma(D); g2_flagA(Fl, cfg.tr2)
            za = [x.text for p_ in zip(A.ins, B.ins) for x in p_]; zd = [x.text for x in D.ins]
            cnt = 0; cut = 0
            for i_, x in enumerate(zd):
                if x.startswith('buffer'): cnt += 1
                if cnt == cfg.tr2: cut = i_ + 1; break
            k_ = 0
            for i_, x in enumerate(za):
                a.e(x)
                while k_ < cut and k_ < ((i_+1)*cut)//len(za): a.e(zd[k_]); k_ += 1
            for x in Fl.ins: a.e(x.text)
            A = Asm(); B = Asm()
            attn1(A, *blk[2], W1, W1+16, XR+8); attn1(B, *blk[3], W2, W2+16, XR+12)
            za = [x.text for p_ in zip(A.ins, B.ins) for x in p_]; n_ = len(zd) - cut
            for i_, x in enumerate(za):
                a.e(x)
                while k_ < len(zd) and k_ - cut < ((i_+1)*n_)//len(za): a.e(zd[k_]); k_ += 1
        else:
            pair(0)
            g2_flagA(a, 0)
            g2_early(a)
            st.at(3, 3)
            if cfg.ilv:
                A = Asm(); B = Asm(); D = Asm(); Z = Asm()
                attn1(A, *blk[2], W1, W1+16, XR+8); attn1(B, *blk[3], W2, W2+16, XR+12); g2_wdma(D)
                za = [x.text for p_ in zip(A.ins, B.ins) for x in p_]; zd = [x.text for x in D.ins]
                k_ = 0
                for i_, x in enumerate(za):
                    a.e(x)
                    while k_ < len(zd) and k_ < ((i_+1)*len(zd))//len(za): a.e(zd[k_]); k_ += 1
            else:
                g2_wdma(a)
                if wn == 0 and cfg.w0late:
                    a.e(f's_cmp_eq_u32 s{sWAVE}, 0'); a.e('s_cbranch_scc1 L2_skip1')
                pair(1)
                if wn == 0 and cfg.w0late: a.label('L2_skip1')
        halves()
        a.e(f'v_add_u32 v{hO}, {mo*1024}, v{vO}')
        g2_poll_act(wn)
        if wn == 0 and cfg.w0late:
            a.e(f's_cmp_lg_u32 s{sWAVE}, 0'); a.e('s_cbranch_scc1 L2_late')
            pair(1)
        if wn == 0: a.e('s_branch L2_late')

    a.label('L2_late')
    NB = 0
    a.e('s_load_dwordx2 s[56:57], s[0:1], 56')
    a.e('s_load_dwordx2 s[58:59], s[0:1], 0')
    a.e(f's_and_b32 s3, s{sWAVE}, 1')
    a.e(f's_mov_b32 s{gU}, 0')
    a.e(f's_lshl_b32 s60, s{sWM}, 12')
    a.e(f'v_lshl_add_u32 v{hA}, v{vLANE}, 4, s60'); a.e(f'v_add_u32 v{hA+1}, 65536, v{hA}')
    tA, tB, tC, tD = hT2, hT2+1, hT2+2, hT2+3
    a.e(f'v_lshrrev_b32 v{tA}, 2, v{vLANE}')
    a.e(f'v_and_b32 v{tB}, 7, v{tA}'); a.e(f'v_lshlrev_b32 v{tB}, 5, v{tB}')
    a.e(f'v_and_b32 v{tC}, 3, v{vLANE}'); a.e(f'v_lshlrev_b32 v{tC}, 3, v{tC}'); a.e(f'v_add_u32 v{tC}, {WB}, v{tC}')
    a.e(f'v_lshl_add_u32 v{hDH}, v{tA}, 8, v{tC}')
    a.e('s_lshl_b32 s60, s3, 6'); a.e(f's_lshl_b32 s{gKC}, s{gPART}, 7'); a.e(f's_add_u32 s{gKC}, s{gKC}, s60')
    for n in range(4):
        a.e(f's_xor_b32 s61, s{gKC}, {32*(n&1) + 128*(n>>1)}')
        a.e(f'v_xor_b32 v{tD}, s61, v{tB}')
        a.e(f'v_add_u32 v{hW+n}, v{tD}, v{hDH}'); a.e(f'v_add_u32 v{hW+4+n}, 65536, v{hW+n}')
    def areg(par, ks, m): return FR + par*64 + ks*16 + m*4
    def wreg(par, ks, n): return FR + par*64 + 32 + ks*16 + n*4
    def reads(slot, par, nn=4):
        hi = 1 if slot >= 4 else 0
        base = (slot & 3)*16384
        def ar_(ks, m): return [f'ds_read_b128 v[{areg(par,ks,m)}:{areg(par,ks,m)+3}], v{hA+hi} offset:{base + ks*8192 + m*1024}']
        def wr_(ks, n):
            if nn == 2: return [f'ds_read_b64_tr_b16 v[{wreg(par,ks,n)+2*h}:{wreg(par,ks,n)+2*h+1}], v{hWH+2*hi+n} offset:{base + ks*4096 + h*2048}' for h in range(2)]
            return [f'ds_read_b64_tr_b16 v[{wreg(par,ks,n)+2*h}:{wreg(par,ks,n)+2*h+1}], v{hW+4*hi+n} offset:{base + ks*8192 + h*4096}' for h in range(2)]
        L = wr_(0, 0) + ar_(0, 0) + wr_(1, 0) + ar_(1, 0)
        for m in range(1, 4): L += ar_(0, m) + ar_(1, m)
        for n in range(1, nn): L += wr_(0, n) + wr_(1, n)
        return L
    a.e(f's_waitcnt vmcnt({4*(NS-1) + NB})'); a.e('s_barrier')
    st.at(6, 1); st.at(7, 3)
    if st.on: a.e('s_waitcnt lgkmcnt(0)')
    for r in reads(0, 0): a.e(r)
    b = Asm()
    b.e(f's_lshl_b32 s{gM_H}, s{sWAVE}, 11'); b.e(f's_add_u32 s{gM_H}, s{gM_H}, {WB}')
    b.e(f'v_and_b32 v{tB}, 6, v{tA}'); b.e(f'v_lshlrev_b32 v{tB}, 4, v{tB}')
    b.e(f'v_lshl_add_u32 v{tC}, v{tA}, 7, v{tC}')
    b.e('s_lshl_b32 s46, s3, 6')
    for n in range(2):
        b.e(f's_or_b32 s61, s46, {32*n}')
        b.e(f'v_xor_b32 v{tD}, s61, v{tB}')
        b.e(f'v_add_u32 v{hWH+n}, v{tD}, v{tC}'); b.e(f'v_add_u32 v{hWH+2+n}, 65536, v{hWH+n}')
    b.e(f'v_lshrrev_b32 v{tA}, 3, v{vLANE}'); b.e(f'v_and_b32 v{tB}, 6, v{tA}'); b.e(f'v_and_b32 v{tC}, 7, v{vLANE}')
    b.e(f'v_xor_b32 v{tB}, v{tB}, v{tC}')
    b.e('s_lshl_b32 s46, s3, 15'); b.e(f's_lshl_b32 s61, s{gCB}, 8'); b.e('s_or_b32 s46, s46, s61')
    b.e(f's_lshl_b32 s61, s{gPART}, 7'); b.e('s_or_b32 s46, s46, s61')
    b.e(f'v_lshl_add_u32 v{tA}, v{tA}, 11, s46'); b.e(f'v_lshl_add_u32 v{hDH}, v{tB}, 4, v{tA}')
    b.e(f'v_add_u32 v{hDH+1}, 16384, v{hDH}')
    for (d_, lo, nb) in ((G_X, 58, 2048*1024*2), (G_OUT, 56, 2048*1024*2)):
        b.e(f's_mov_b32 s{d_}, s{lo}'); b.e(f's_mov_b32 s{d_+1}, s{lo+1}'); b.e(f's_mov_b32 s{d_+2}, {nb}'); b.e(f's_mov_b32 s{d_+3}, 0x20000')
    b.e(f's_lshl_b32 s46, s{gRB}, 18'); b.e(f's_lshl_b32 s61, s{sWM}, 17'); b.e('s_or_b32 s46, s46, s61')
    b.e(f's_lshl_b32 s61, s{gCB}, 8'); b.e('s_or_b32 s46, s46, s61'); b.e('s_or_b32 s46, s46, s45')
    b.e(f'v_and_b32 v{tB}, 15, v{vLANE}'); b.e(f'v_lshl_add_u32 v{tB}, v{tB}, 11, s46')
    b.e(f'v_lshrrev_b32 v{tA}, 4, v{vLANE}')
    b.e(f'v_and_b32 v{tC}, 1, v{tA}'); b.e(f'v_lshl_add_u32 v{tB}, v{tC}, 5, v{tB}')
    b.e(f'v_lshrrev_b32 v{tC}, 1, v{tA}'); b.e(f'v_lshl_add_u32 v{hXO}, v{tC}, 4, v{tB}')
    b.e(f's_lshl_b32 s46, s{gRB}, 6'); b.e(f's_lshl_b32 s61, s{gCB}, 3'); b.e('s_or_b32 s46, s46, s61')
    b.e(f's_lshl_b32 s61, s{gPART}, 2'); b.e('s_or_b32 s46, s46, s61'); b.e(f's_or_b32 s46, s46, s{sWAVE}')
    b.e('s_xor_b32 s47, s46, 4')
    b.e('s_lshl_b32 s61, s46, 7'); b.e(f'v_mov_b32 v{hFS}, s61')
    b.e('s_lshl_b32 s61, s47, 7'); b.e(f'v_mov_b32 v{hFL}, s61')
    b.e('s_lshl_b32 s46, s46, 12'); b.e('s_lshl_b32 s47, s47, 12')
    b.e(f'v_lshl_add_u32 v{hPS}, v{vLANE}, 4, s46'); b.e(f'v_lshl_add_u32 v{hPL}, v{vLANE}, 4, s47')
    srd(b, G_P, 6, 7, PART_BYTES, PART_OFF)
    b.e(f'v_add_u32 v{hTS+2}, {BFLAG_REL-AFLAG_REL}, v{hTS+2}')
    b.e(f's_lshl_b32 s46, s{sWAVE}, 4'); b.e(f'v_readlane_b32 s47, v{hTS+3}, s46'); b.e(f's_add_u32 s47, s47, {BFLAG_REL-AFLAG_REL}')
    b.e(f'v_bfe_u32 v{tA}, v{vLANE}, 1, 3'); b.e(f'v_lshl_add_u32 v{hTS+3}, v{tA}, 9, s47')
    b.e(f'v_and_b32 v{tA}, 1, v{vLANE}'); b.e(f'v_lshl_add_u32 v{hTS+3}, v{tA}, 7, v{hTS+3}')
    if cfg.g2pf:
        b.e('s_mov_b32 s91, 0x20000'); b.e('s_mov_b32 s88, s68'); b.e('s_mov_b32 s89, s69'); b.e('s_mov_b32 s90, 0')
        b.e(f's_and_b32 s46, s{gRB}, 3'); b.e('s_lshl_b32 s46, s46, 13'); b.e('s_lshl_b32 s47, s3, 15'); b.e('s_or_b32 s46, s46, s47')
        b.e(f's_lshl_b32 s47, s{gCB}, 8'); b.e('s_or_b32 s46, s46, s47')
        b.e(f'v_min_u32 v{tA}, 7, v{vLANE}'); b.e(f'v_lshrrev_b32 v{tB}, 1, v{tA}'); b.e(f'v_lshl_add_u32 v13, v{tB}, 11, s46')
        b.e(f'v_and_b32 v{tB}, 1, v{tA}'); b.e(f'v_lshl_add_u32 v13, v{tB}, 7, v13')
        b.e(f's_lshl_b32 s46, s{gRB}, 13'); b.e('s_lshl_b32 s47, s3, 12'); b.e('s_or_b32 s46, s46, s47'); b.e(f's_lshl_b32 s47, s{gCB}, 9'); b.e('s_or_b32 s46, s46, s47')
        b.e(f'v_min_u32 v{tA}, 3, v{vLANE}'); b.e(f'v_lshl_add_u32 v43, v{tA}, 7, s46')
    b.e('s_mov_b32 s64, 0xffff0000'); b.e('s_mov_b32 s61, 32768'); b.e('s_mov_b32 s62, 65536'); b.e('s_mov_b32 s63, 98304')
    late = [x.text for x in b.ins]
    rowoff = ['0', 's61', 's62', 's63']
    VM2 = 8*(NS-2) + (2*(NS-1) if cfg.g2pf else 0); UN = 2*NS; LS = FS - NS; uexit = (LS - 1) % UN
    def gu_at(step): return UN*len([t_ for t_ in range(cfg.npeel, step) if t_ % UN == uexit])
    hooks = {}
    def hook(name, steps, opnd=None):
        for stp in steps:
            if stp % UN != uexit and stp % UN not in hooks and stp >= cfg.npeel and all(gu_at(stp) != gu_at(o_) for o_ in range(cfg.npeel + (stp - cfg.npeel) % UN, LS, UN) if o_ != stp):
                hooks[stp % UN] = (name, opnd or gu_at(stp)); return stp
        raise RuntimeError(name)
    hN = hook('nat', [NA-2], 's65')
    hC = hook('chk', range(NA-6, NA-9, -1))
    hA_ = hook('ask', range(hC-5, hC-8, -1))
    hF = hook('flg', range(7, 10))
    late.insert(len(late)-4, f's_mul_i32 s65, s{gPART}, {gu_at(hN)+1}'); late.insert(len(late)-4, 's_sub_u32 s65, s65, 1')
    def rec():
        if cfg.stamps != 7: return
        a.e('s_memrealtime s[86:87]'); a.e('s_waitcnt lgkmcnt(0)')
        a.e('v_mov_b32 v28, s86'); a.e(f'v_cmp_eq_u32 vcc, s88, v{vLANE}'); a.e('v_cndmask_b32 v29, v29, v28, vcc'); a.e('s_add_u32 s88, s88, 1')
    if cfg.stamps == 7: a.e('s_mov_b32 s88, 0')
    def full_step(u, wait, inloop, fill=(), head=(), post_vm=()):
        slot = u % NS; par = u & 1
        a.e(f's_waitcnt vmcnt({wait}) lgkmcnt(0)')
        if not (cfg.dbg2 & 2 and inloop): a.e('s_barrier')
        rec()
        for x in head: a.e(x)
        sched = {}
        for i, r in enumerate(reads((slot+1) % NS, par ^ 1) if not (cfg.dbg2 & 4 and inloop) else []): sched.setdefault((i*cfg.rsp)//24 + cfg.rd0, []).append(r)
        if cfg.dsp == 3 or fill or post_vm:
            dl_ = g2_dma(slot)
            if cfg.g2af: dl_ = [(x[0], x[1], []) for x in dl_[4:]] + dl_[:3] + [(dl_[3][0], dl_[3][1], dl_[7][2])]
            if cfg.g2af == 2: dl_ = [dl_[0], dl_[1], dl_[2], dl_[3]] + dl_[4:]
            for i, (pre, ins, post) in enumerate(dl_):
                p = cfg.d0 + 3*i
                for x in pre: sched.setdefault(p-1, []).append(x)
                if not (cfg.dbg2 & 1 and inloop): sched.setdefault(p, []).append(ins)
                for k_, x in enumerate(post): sched.setdefault(min(30, p + 1 + k_//2), []).append(x)
        else:
            for i, (pre, ins, post) in enumerate(g2_dma(slot)):
                p = cfg.d0 + 4*i
                for x in pre: sched.setdefault(p-1, []).append(x)
                sched.setdefault(p, []).append(ins)
            nx = g2_next()
            adv = [nx[0], nx[1], f's_lshl_b32 s89, s{gWO}, 17'] + nx[3:]
            pos = [cfg.d0+13, cfg.d0+14, cfg.d0+17, cfg.d0+17, cfg.d0+18, cfg.d0+18, cfg.d0+19, cfg.d0+19, cfg.d0+21, cfg.d0+22]
            for p_, x in zip(pos, adv): sched.setdefault(p_, []).append(x)
            sched.setdefault(cfg.d0+28, []).append(f's_mov_b32 s{gACT}, s89')
        pos_ = 0
        for k_, x in enumerate(fill):
            if not x.startswith('s_addc'):
                pos_ = (k_*22)//len(fill)
                if k_+1 < len(fill) and fill[k_+1].startswith('s_addc') and pos_ % 3 == 0: pos_ += 1
            sched.setdefault(pos_, []).append(x)
        for k_, x in enumerate(post_vm): sched.setdefault(24 + 2*k_, []).append(x)
        if cfg.g2pf and u >= 3:
            pf_ = [f's_add_u32 s86, s{gIDX}, {cfg.g2pf}', f'v_readlane_b32 s86, v{hSEQ}, s86', 's_lshl_b32 s87, s86, 17', 's_cmp_lt_u32 s86, 32',
                   's_cselect_b32 s88, s92, s68', 's_cselect_b32 s89, s93, s69', f's_cselect_b32 s90, s{gSZ0}, s{gSZ1}', 's_cselect_b32 s85, 0, 32',
                   's_sub_u32 s86, s86, s85', 's_lshl_b32 s86, s86, 16']
            for p_, x in zip((1, 2, 4, 4, 4, 5, 5, 5, 7, 8), pf_): sched.setdefault(p_, []).append(x)
            sched.setdefault(25, []).append('buffer_load_dword v37, v13, s[88:91], s86 offen')
            sched.setdefault(28, []).append(f'buffer_load_dword v37, v43, s[{G_A}:{G_A+3}], s87 offen')
        if inloop and u == uexit:
            sched.setdefault(31, []).append(f's_add_u32 s{gU}, s{gU}, {UN}')
            sched.setdefault(31, []).append(f's_cmp_ge_u32 s{gU}, {LS}')
        if inloop and u in hooks:
            sched.setdefault(31, []).append(f's_cmp_eq_u32 s{gU}, {hooks[u][1]}')
        i = 0
        for n in range(4):
            for m in range(4):
                for ks in range(2):
                    d = ACC + (n*4+m)*4
                    c = '0' if (u == 0 and not inloop and ks == 0) else f'v[{d}:{d+3}]'
                    a.e(f'{MF} v[{d}:{d+3}], v[{wreg(par,ks,n)}:{wreg(par,ks,n)+3}], v[{areg(par,ks,m)}:{areg(par,ks,m)+3}], {c}')
                    for x in sched.get(i, []): a.e(x)
                    i += 1
        if inloop and u in hooks:
            a.e(f's_cbranch_scc1 L2_b{hooks[u][0]}'); a.label(f'L2_bret{hooks[u][0]}')
    NPEEL = cfg.npeel
    assert uexit >= NPEEL or LS > UN
    nl_ = len(late)
    bst = [f'buffer_store_dwordx4 v[{XR+4*i_}:{XR+4*i_+3}], v{hO}, s[{S_O}:{S_O+3}], s67 offen offset:{i_*1024} sc1' for i_ in range(4)] + \
          [f'buffer_store_dwordx4 a[{4*m}:{4*m+3}], v{hO+1+(m>>1)}, s[{S_O}:{S_O+3}], s66 offen offset:{(m&1)*2048} sc1' for m in range(4)]
    q0 = [t_ for t_ in range(1, NS) for _ in range(4)]
    BP = cfg.bper
    assert 8 <= BP*3
    for u in range(NPEEL):
        last = max(i_ for i_, x in enumerate(q0) if x == u+1)
        full_step(u, len(q0) - 1 - last, False, fill=late[(u*nl_)//3:((u+1)*nl_)//3] if u < 3 else (), post_vm=bst[BP*u:BP*u+BP])
        q0 = q0[last+1:] + [u+NS]*8 + ['b']*len(bst[BP*u:BP*u+BP]) + (['p']*2 if cfg.g2pf and u >= 3 else [])
    if cfg.stamps == 10: a.e('s_memtime s[72:73]'); a.e('s_memrealtime s[76:77]')
    a.e('s_branch L2_uin')
    a.label('L2_bnat')
    a.e(f's_and_b32 s3, s{sWAVE}, 1'); a.e('s_mul_i32 s3, s3, -24576')
    for d in range(4):
        a.e(f'v_add_u32 v{hDW+d}, s3, v{hDW+d}'); a.e('s_add_u32 s3, s3, 8192')
    a.e('s_branch L2_bretnat')
    a.label('L2_bflg')
    a.e('s_mov_b64 exec, 1')
    a.e(f'buffer_store_dwordx2 v[{hTS}:{hTS+1}], v{hTS+2}, s[{G_F}:{G_F+3}], 0 offen sc1')
    a.e('s_mov_b64 exec, -1')
    a.e('s_branch L2_bretflg')
    a.label('L2_bask')
    a.e(f'buffer_load_dwordx2 v[{hBF}:{hBF+1}], v{hTS+3}, s[{G_F}:{G_F+3}], 0 offen sc1')
    a.e('s_branch L2_bretask')
    a.label('L2_bchk')
    a.e('s_mov_b32 s3, 0')
    a.label('L2_bspin')
    stamp_ok(a, hBF, 66); a.e('s_cbranch_scc1 L2_bretchk')
    a.e('s_add_u32 s3, s3, 1'); a.e('s_cmp_gt_u32 s3, 0x8000'); a.e('s_cbranch_scc1 L2_bretchk')
    a.e(f'buffer_load_dwordx2 v[{hBF}:{hBF+1}], v{hTS+3}, s[{G_F}:{G_F+3}], 0 offen sc1')
    a.e('s_waitcnt vmcnt(0)'); a.e('s_branch L2_bspin')
    a.label('L2_loop')
    for u in range(UN):
        if u == NPEEL: a.label('L2_uin')
        full_step(u, VM2, True)
        if u == uexit: a.e('s_cbranch_scc1 L2_half')
        if u == UN-1: a.e('s_branch L2_loop')
    a.label('L2_half')
    if cfg.stamps == 10: a.e('s_memtime s[74:75]'); a.e('s_memrealtime s[78:79]')
    q = []
    if cfg.g2pf: q += [('pf', 0)]*2
    for t in range(LS+1, FS): q += [('d', t)]*8 + ([('pf', 0)]*2 if cfg.g2pf else [])
    def wait_for(pred, extra=''):
        last = max([i for i, x in enumerate(q) if pred(x)], default=-1)
        a.e(f's_waitcnt vmcnt({min(len(q) - 1 - last, 63)}){extra}')
        del q[:last+1]
    def fload(): a.e(f'buffer_load_dwordx2 v[{hBF}:{hBF+1}], v{hFL}, s[{G_F}:{G_F+3}], 0 offen sc1')
    def pl():
        for k_ in range(4): a.e(f'buffer_load_dwordx4 v[{ACC+32+4*k_}:{ACC+32+4*k_+3}], v{hPL}, s[{G_P}:{G_P+3}], 0 offen offset:{k_*1024} sc1')
    for t in range(LS, TOT):
        hs = t - FS; slot = t % NS; par = t & 1
        nn = 4 if hs < 0 else 2
        if any(x == ('d', t+1) for x in q): wait_for(lambda x: x == ('d', t+1), ' lgkmcnt(0)')
        else: a.e('s_waitcnt lgkmcnt(0)')
        if t+1 < TOT: a.e('s_barrier')
        rec()
        sched = {}
        def add(i, x, tag=None): sched.setdefault(i, []).append((x, tag))
        if t + 1 < TOT:
            for i, r in enumerate(reads((slot+1) % NS, par ^ 1, 4 if t+1 < FS else 2)): add(i, r)
        extra = []
        if t + NS < TOT:
            for pre, ins, post in g2_dma(slot, compact=True):
                extra += [(x, None) for x in pre] + [(ins, ('d', t+NS))] + [(x, None) for x in (post if t+NS+1 < TOT else [])]
        if hs == max(HS-NS, 1):
            extra += [(f'buffer_load_dwordx4 v[{XR+4*m}:{XR+4*m+3}], v{hXO}, s[{G_X}:{G_X+3}], {rowoff[m]} offen', ('x', 0)) for m in range(4)]
        pub = []
        for k_ in range(4):
            c0 = ACC+32+4*k_; c1 = ACC+48+4*k_
            pub += [(f'v_cvt_pk_bf16_f32 v{c0}, v{c0}, v{c0+1}', None), (f'v_cvt_pk_bf16_f32 v{c0+1}, v{c0+2}, v{c0+3}', None),
                    (f'v_cvt_pk_bf16_f32 v{c0+2}, v{c1}, v{c1+1}', None), (f'v_cvt_pk_bf16_f32 v{c0+3}, v{c1+2}, v{c1+3}', None),
                    (f'buffer_store_dwordx4 v[{c0}:{c0+3}], v{hPS}, s[{G_P}:{G_P+3}], 0 offen offset:{k_*1024} sc1', ('s', 0))]
        if hs == 0 and not cfg.epub: extra += pub
        if hs == -1 and cfg.epub:
            assert not extra
            for k_, (x, tag) in enumerate(pub): add(20 + (k_*12)//len(pub), x, tag)
        for k_, (x, tag) in enumerate(extra): add((k_*8*nn)//max(len(extra), 1), x, tag)
        i = 0
        for n in ((2, 3, 0, 1) if (hs == -1 and cfg.epub) else range(nn)):
            for m in range(4):
                for ks in range(2):
                    d = ACC + (n*4+m)*4
                    a.e(f'{MF} v[{d}:{d+3}], v[{wreg(par,ks,n)}:{wreg(par,ks,n)+3}], v[{areg(par,ks,m)}:{areg(par,ks,m)+3}], v[{d}:{d+3}]')
                    for x, tag in sched.get(i, []):
                        a.e(x)
                        if tag: q.append(tag)
                    i += 1
        if hs == cfg.k2_flg:
            wait_for(lambda x: x[0] == 's')
            a.e('s_mov_b64 exec, 1')
            a.e(f'buffer_store_dwordx2 v[{hTS}:{hTS+1}], v{hFS}, s[{G_F}:{G_F+3}], 0 offen sc1'); q.append(('f', 0))
            a.e('s_mov_b64 exec, -1')
        if hs == HS-2:
            fload(); q.append(('p', 0))
        if hs == HS-1:
            wait_for(lambda x: x[0] == 'p')
    a.e('s_mov_b32 s3, 0')
    a.label('L2_chk')
    stamp_ok(a, hBF, 66); a.e('s_cbranch_scc1 L2_have')
    a.e('s_add_u32 s3, s3, 1'); a.e('s_cmp_gt_u32 s3, 0x40000'); a.e('s_cbranch_scc1 L2_have')
    fload(); a.e('s_waitcnt vmcnt(0)'); a.e('s_branch L2_chk')
    a.label('L2_have')
    rec()
    pl()
    st.at(7, 1)
    for m in range(4):
        Tm = FR + m*8; x = XR + 4*m
        for r in range(4):
            a.e(f'v_lshlrev_b32 v{Tm+2*r}, 16, v{x+r}'); a.e(f'v_and_b32 v{Tm+2*r+1}, s64, v{x+r}')
    for m in range(4):
        x = XR + 4*m; c0 = ACC + 4*m; c1 = ACC + 16 + 4*m; Tm = FR + m*8; pk = ACC + 32 + 4*m; U = FR + 32 + m*8
        a.e('s_waitcnt vmcnt(3)')
        for r in range(4):
            a.e(f'v_lshlrev_b32 v{U+2*r}, 16, v{pk+r}'); a.e(f'v_and_b32 v{U+2*r+1}, s64, v{pk+r}')
        for (c, p) in ((c0, U), (c1, U+4)):
            a.e(f'v_pk_add_f32 {P2(c)}, {P2(c)}, {P2(p)}'); a.e(f'v_pk_add_f32 {P2(c+2)}, {P2(c+2)}, {P2(p+2)}')
        for r in range(4): a.e(f'v_permlane16_swap_b32 v{c0+r}, v{c1+r}')
        a.e(f'v_pk_add_f32 {P2(c0)}, {P2(c0)}, {P2(Tm)}'); a.e(f'v_pk_add_f32 {P2(c0+2)}, {P2(c0+2)}, {P2(Tm+2)}')
        a.e(f'v_pk_add_f32 {P2(c1)}, {P2(c1)}, {P2(Tm+4)}'); a.e(f'v_pk_add_f32 {P2(c1+2)}, {P2(c1+2)}, {P2(Tm+6)}')
        a.e(f'v_cvt_pk_bf16_f32 v{x}, v{c0}, v{c0+1}'); a.e(f'v_cvt_pk_bf16_f32 v{x+1}, v{c0+2}, v{c0+3}')
        a.e(f'v_cvt_pk_bf16_f32 v{x+2}, v{c1}, v{c1+1}'); a.e(f'v_cvt_pk_bf16_f32 v{x+3}, v{c1+2}, v{c1+3}')
        a.e(f'buffer_store_dwordx4 v[{x}:{x+3}], v{hXO}, s[{G_OUT}:{G_OUT+3}], {rowoff[m]} offen' + ['', ' sc1', ' nt'][cfg.ost])
    if st.on:
        a.e('s_waitcnt vmcnt(0)'); st.at(3, 2)
    if cfg.stamps in (7, 8):
        a.e('s_waitcnt vmcnt(0)'); rec()
        srd(a, 92, 6, 7, 1 << 20, STAMP_OFF + (1 << 19))
        a.e('s_lshl_b32 s96, s2, 10'); a.e(f's_lshl_b32 s97, s{sWAVE}, 8'); a.e('s_add_u32 s96, s96, s97')
        a.e(f'v_lshl_add_u32 v{hT2}, v{vLANE}, 2, s96')
        a.e(f'buffer_store_dword v29, v{hT2}, s[92:95], 0 offen')
    st.flush(sWAVE, hT2, hT2+1)
    a.label('L_end')
    a.e('s_endpgm')
    return name

def build(cfg):
    a = Asm()
    a.e('.amdgcn_target "amdgcn-amd-amdhsa--gfx950"'); a.e('.text')
    name = gen(a, cfg)
    for x in a.ins:
        if x.kind == 'vmem' and x.lds: x.text = x.text.replace(' lds', ' sc1 lds')
    a.fix()
    head = open('cdna_kernels/' + NAME + '.s.ref').read().split('\n')
    hdr = [l for l in head[:13] if l.startswith(';') and '@launch' not in l and 'Override' not in l and 'grid=ceil' not in l]
    out = '\n'.join(hdr) + '\n; @launch grid=(256,1,1) block=(256,1,1) lds=163840\n' + a.text()
    out += f'''.section .rodata,"a"
.p2align 6
.amdhsa_kernel {name}
  .amdhsa_next_free_vgpr 512
  .amdhsa_next_free_sgpr 102
  .amdhsa_accum_offset 256
  .amdhsa_group_segment_fixed_size 0
  .amdhsa_kernarg_size 80
  .amdhsa_user_sgpr_count 2
  .amdhsa_user_sgpr_kernarg_segment_ptr 1
  .amdhsa_system_sgpr_workgroup_id_x 1
.end_amdhsa_kernel
'''
    return out

if __name__ == '__main__':
    cfg = Cfg()
    outp = sys.argv[1] if len(sys.argv) > 1 else 'cdna_kernels/' + NAME + '.s'
    for kv in sys.argv[2:]:
        k, v = kv.split('='); assert hasattr(cfg, k), k; setattr(cfg, k, int(v))
    open(outp, 'w').write(build(cfg))
    sys.path.insert(0, 'cdna_kernels')
    import subprocess, cdna_launch as cl
    h = cl.with_harness_metadata(open(outp).read(), NAME + '_kernel', 10, launch_lists=True)
    open('h.s', 'w').write(h)
    r = subprocess.run(['clang', '-x', 'assembler', '-target', 'amdgcn-amd-amdhsa', '-mcpu=gfx950', 'h.s', '-o', 'h.co'], capture_output=True, text=True)
    if r.returncode: print(r.stderr[:1500]); sys.exit(1)
    print('wrote', outp, 'check:', cl.address_register_problem('h.co', NAME + '_kernel', None))
```

```python
import sys
sys.path.insert(0, 'dev')
from asmlib import *

NAME = 'parallel_sum__sliding_local_dilated__glu_gated_bilinear__prompt'
XN_OFF = 0;            XN_BYTES = 32*128*1024
ACT2_OFF = 4 << 20;    ACT2_BYTES = 144*128*1024
PART_OFF = 24 << 20;   PART_BYTES = 1024*4096
FLAG_OFF = 32 << 20
PFLAG_REL = 0; XFLAG_REL = 256 << 10; AFLAG_REL = 512 << 10; BFLAG_REL = 640 << 10
STAMP_OFF = 40 << 20

class Cfg:
    stamps = 0
    pfd = 8; pf3n = 56; pf3w = 27; f0ne = 4; f0sl = 0
    k2_fs = 34; k2_flg = 2; k2_chk = 3
    g1sl = 0
    ncpf = 6
    dbgout = 0
    mp = 3
    ms0 = 0
    ms1 = 0
    tr2 = 0
    g2pf = 0
    g2af = 0
    dbg2 = 0
    afirst = 1
    vsp = 4
    dbg = 0
    dsp = 3
    d0 = 1
    rd0 = 0
    rsp = 24
    pfx = 1
    hk = 0
    wlate = 0
    cpf2 = 0
    w0late = 0
    epub = 1
    ost = 0
    ilv = 0
    bper = 3
    npeel = 7
    fa_at = 2
    def __init__(self, **kw):
        for k, v in kw.items(): setattr(self, k, v)

def srd(a, d, lo, hi, nbytes, off=0):
    if off:
        a.e(f's_add_u32 s{d}, s{lo}, {off}'); a.e(f's_addc_u32 s{d+1}, s{hi}, 0')
    else:
        a.e(f's_mov_b32 s{d}, s{lo}'); a.e(f's_mov_b32 s{d+1}, s{hi}')
    a.e(f's_mov_b32 s{d+2}, {nbytes}'); a.e(f's_mov_b32 s{d+3}, 0x20000')

def code_pf(a, start, end, vlane, vtmp, vdum, spc, nins):
    a.e(f's_getpc_b64 s[{spc}:{spc+1}]')
    lab = f'Lpc_{start}'
    a.label(lab)
    a.e(f's_add_u32 s{spc}, s{spc}, {start}-{lab}')
    a.e(f's_addc_u32 s{spc+1}, s{spc+1}, 0')
    for i in range(nins):
        a.e(f'v_lshlrev_b32 v{vtmp}, 7, v{vlane}')
        if i: a.e(f'v_add_u32 v{vtmp}, {i*8192}, v{vtmp}')
        a.e(f'v_min_u32 v{vtmp}, {end}-{start}-4, v{vtmp}')
        a.e(f'global_load_dword v{vdum}, v{vtmp}, s[{spc}:{spc+1}]')

class Stamper:
    def __init__(self, a, on): self.a = a; self.on = on
    def at(self, i, mode=1):
        if self.on == mode or (self.on and i == 0): self.a.e(f's_memrealtime s[{70+2*i}:{71+2*i}]')
    def flush(self, wave, vt0, vt1):
        if not self.on: return
        a = self.a
        a.e('s_waitcnt lgkmcnt(0)')
        srd(a, 92, 6, 7, 1 << 20, STAMP_OFF)
        a.e('s_lshl_b32 s96, s2, 8'); a.e(f's_lshl_b32 s97, s{wave}, 6'); a.e('s_add_u32 s96, s96, s97')
        a.e(f'v_mov_b32 v{vt0}, s96')
        a.e('s_mov_b64 exec, 1')
        for i in range(8):
            a.e(f'v_mov_b32 v{vt1}, s{70+2*i}')
            a.e(f'buffer_store_dword v{vt1}, v{vt0}, s[92:95], 0 offen offset:{4*i}')
        a.e('s_mov_b64 exec, -1')

class LgkmTracker:
    def __init__(self, a): self.a = a; self.q = []
    def read(self, text):
        self.a.e(text); self.q.append(set(Ins(text).dst))
    def other(self): self.q.append(set())
    def need(self, regs):
        regs = set(regs); last = -1
        for i, d in enumerate(self.q):
            if d & regs: last = i
        if last < 0: return
        n = min(len(self.q) - 1 - last, 15)
        self.a.e(f's_waitcnt lgkmcnt({n})')
        self.q = self.q[len(self.q) - n:] if n else []
    def drain(self): self.q = []
    def state(self): return [tuple(sorted(x)) for x in self.q]

def P2(r): return f'v[{r}:{r+1}]'
def AR(r): return f'a[{r}:{r+3}]'
MF = 'v_mfma_f32_16x16x32_bf16'

L1_W = 65536; L1_HALO = 147456; L1_STAT = 151552
sT0 = 100; sCHK = 101; sWAVE = 51; BACK = 2500; WIN = 1 << 17

def stamp_ok(a, v, stmp):
    a.e(f'v_xor_b32 v{v+1}, v{v}, v{v+1}'); a.e(f'v_subrev_u32 v{v}, s{sT0}, v{v}')
    a.e(f'v_lshrrev_b32 v{v}, 17, v{v}')
    a.e(f'v_cmp_eq_u32 vcc, s{sCHK}, v{v+1}'); a.e(f'v_cmp_eq_u32 s[{stmp}:{stmp+1}], 0, v{v}')
    a.e(f's_and_b64 vcc, vcc, s[{stmp}:{stmp+1}]')
    a.e('s_cmp_eq_u64 vcc, exec')

def poll_masked(a, lab, v, vaddr, srd_, stmp, scnt, sleep):
    a.e(f's_mov_b32 s{scnt}, 0')
    a.label(lab)
    a.e(f'buffer_load_dwordx2 v[{v}:{v+1}], v{vaddr}, s[{srd_}:{srd_+3}], 0 offen sc1')
    a.e(f's_add_u32 s{scnt}, s{scnt}, 1')
    a.e('s_waitcnt vmcnt(0)')
    a.e(f'v_xor_b32 v{v+1}, v{v}, v{v+1}'); a.e(f'v_subrev_u32 v{v}, s{sT0}, v{v}')
    a.e(f'v_lshrrev_b32 v{v}, 17, v{v}')
    a.e(f'v_cmp_ne_u32 vcc, s{sCHK}, v{v+1}'); a.e(f'v_cmp_ne_u32 s[{stmp}:{stmp+1}], 0, v{v}')
    a.e(f's_or_b64 exec, vcc, s[{stmp}:{stmp+1}]')
    a.e(f's_cbranch_execz {lab}_done')
    if sleep: a.e(f's_sleep {sleep}')
    a.e(f's_cmp_lt_u32 s{scnt}, 0x8000'); a.e(f's_cbranch_scc1 {lab}')
    a.label(f'{lab}_done')
    a.e('s_mov_b64 exec, -1')

def gen(a, cfg):
    name = NAME + '_kernel'
    a.e(f'.globl {name}'); a.e('.p2align 8'); a.e(f'.type {name},@function'); a.label(name)
    st = Stamper(a, cfg.stamps)
    S_XN = 8; S_W = 12; S_O = 32
    sACT = 36; sWO = 37; sWS = 42; sM_ACT = 47; sM_W = 48; sM_H = 49; sCNT = 50; sWM = 52; sRB = 54; sJ = 55
    S_PF = 88; sPFO = 86; sPFS = 87
    vLANE = 1; vDA = 2; vDH = 3; vDW = 4
    vA = 9; vHA = 10; vGU = 11; vQa = 13; vQb = 15; vHW = 17; vPF = 19; vT = 20; vDUM = 31
    aBI = 200
    a.e('s_cmp_ge_u32 s2, 256'); a.e('s_cbranch_scc1 L_end')
    st.at(0)
    a.e('s_load_dwordx2 s[96:97], s[0:1], 0')
    a.e('s_load_dwordx2 s[4:5], s[0:1], 8')
    a.e('s_load_dwordx4 s[56:59], s[0:1], 32')
    a.e('s_load_dwordx2 s[6:7], s[0:1], 72')
    a.e('s_load_dwordx2 s[68:69], s[0:1], 48')
    a.e('s_load_dwordx2 s[92:93], s[0:1], 16')
    a.e('s_memrealtime s[60:61]')
    a.e(f'v_lshrrev_b32 v{vT}, 6, v0')
    a.e(f'v_and_b32 v{vLANE}, 63, v0')
    a.e(f'v_readfirstlane_b32 s{sWAVE}, v{vT}')
    a.e(f's_cmp_lg_u32 s{sWAVE}, 3'); a.e('s_cbranch_scc1 L1_nocpf0')
    code_pf(a, 'L1_nocpf0', 'L1_wn1', vLANE, 134, 135, 94, 1)
    a.label('L1_nocpf0')
    a.e(f'v_lshrrev_b32 v128, 3, v{vLANE}'); a.e(f'v_and_b32 v129, 7, v{vLANE}')
    a.e('s_lshl_b32 s3, s2, 14')
    a.e('v_lshl_add_u32 v130, v128, 11, s3'); a.e(f'v_lshl_add_u32 v130, v{vT}, 9, v130'); a.e('v_lshl_add_u32 v130, v129, 4, v130')
    a.e('s_mov_b32 s98, 0x400000'); a.e('s_mov_b32 s99, 0x20000')
    a.e('s_waitcnt lgkmcnt(0)')
    for it in range(4): a.e(f'buffer_load_dwordx4 v[{32+4*it}:{35+4*it}], v130, s[96:99], 0 offen offset:{it*128}')
    a.e(f's_sub_u32 s{sT0}, s60, {BACK}')
    a.e(f's_not_b32 s{sCHK}, s61')
    a.e(f's_and_b32 s{sJ}, s2, 7'); a.e(f's_lshl_b32 s{sJ}, s{sJ}, 2')
    a.e('s_lshr_b32 s3, s2, 3')
    a.e(f's_lshr_b32 s{sRB}, s3, 2'); a.e('s_and_b32 s3, s3, 3'); a.e(f's_add_u32 s{sJ}, s{sJ}, s3')
    a.e(f's_lshr_b32 s{sWM}, s{sWAVE}, 1')
    a.e(f's_lshl_b32 s62, s{sJ}, 6'); a.e(f's_mul_i32 s63, s{sJ}, 224')
    a.e(f's_and_b32 s64, s{sJ}, 1'); a.e('s_lshl_b32 s64, s64, 1')
    a.e('s_movk_i32 s65, 6144'); a.e('s_movk_i32 s66, 7168')
    for w in (1, 2, 3):
        a.e(f's_cmp_eq_u32 s{sWAVE}, {w}'); a.e(f's_cbranch_scc1 L1_set{w}')
    for w in range(4):
        if w: a.label(f'L1_set{w}')
        t0, t1, t2, t3 = vT+1, vT+2, vT+3, vT+4
        if w < 3:
            a.e(f'v_mul_u32_u24 v{t0}, 21846, v{vLANE}'); a.e(f'v_lshrrev_b32 v{t0}, 16, v{t0}')
            a.e(f'v_mul_u32_u24 v{t1}, 3, v{t0}'); a.e(f'v_sub_u32 v{t1}, v{vLANE}, v{t1}')
            a.e(f's_lshl_b32 s60, s{sRB}, 2'); a.e(f'v_add_u32 v{t0}, s60, v{t0}')
            if w == 0:
                a.e(f'v_lshlrev_b32 v{t1}, 11, v{t1}'); a.e(f'v_add_u32 v{t1}, s62, v{t1}')
            else:
                a.e(f'v_lshlrev_b32 v{t1}, 7, v{t1}'); a.e(f'v_min_u32 v{t1}, 220, v{t1}'); a.e(f'v_add_u32 v{t1}, s63, v{t1}')
            a.e(f'v_mad_u32_u24 v{vPF}, v{t0}, s{65 if w == 0 else 66}, v{t1}')
            nl = 12
            a.e(f's_mov_b32 s{sPFS}, {32*(6144 if w == 0 else 7168)}'); a.e(f's_mov_b32 s{sPFO}, 0')
            srd(a, S_PF, *((4, 5, 1024*3072*2), (56, 57, 1024*3584*2), (58, 59, 1024*3584*2))[w])
        else:
            a.e(f'v_lshlrev_b32 v{vPF}, 7, v{vLANE}')
            nl = cfg.pf3n
            a.e(f's_mov_b32 s{sPFS}, {nl*128}'); a.e(f's_mov_b32 s{sPFO}, {(-(cfg.pf3w + cfg.pfd-3)*nl*128) & 0xffffffff}')
            a.e(f's_mul_i32 s60, s2, {224*128}')
            a.e(f's_add_u32 s{S_PF}, s68, s60'); a.e(f's_addc_u32 s{S_PF+1}, s69, 0')
            a.e(f's_mov_b32 s{S_PF+2}, {224*128}'); a.e(f's_mov_b32 s{S_PF+3}, 0x20000')
        a.e(f'v_mov_b32 v{t2}, 0x80000000')
        a.e(f'v_cmp_gt_u32 vcc, {nl}, v{vLANE}')
        a.e(f'v_cndmask_b32 v{vPF}, v{t2}, v{vPF}, vcc')
        for _ in range(cfg.f0ne if not cfg.pfx else cfg.pfx-1):
            a.e(f'buffer_load_dword v{vDUM}, v{vPF}, s[{S_PF}:{S_PF+3}], s{sPFO} offen'); a.e(f's_add_u32 s{sPFO}, s{sPFO}, s{sPFS}')
        for d in range(5):
            p = 5*w + d
            if p < 6: kind, pl, C, magic = 'q', p, 12, 5462
            elif p < 13: kind, pl, C, magic = 'g', p-6, 14, 4682
            else: kind, pl, C, magic = 'u', p-13, 14, 4682
            a.e(f'v_add_u32 v{t0}, {64*pl}, v{vLANE}')
            a.e(f'v_mul_u32_u24 v{t1}, {magic}, v{t0}')
            a.e(f'v_lshrrev_b32 v{t1}, 16, v{t1}')
            a.e(f'v_mul_u32_u24 v{t2}, {C}, v{t1}')
            a.e(f'v_sub_u32 v{t0}, v{t0}, v{t2}')
            if kind == 'q':
                a.e(f'v_lshrrev_b32 v{t2}, 1, v{t1}'); a.e(f'v_and_b32 v{t2}, 2, v{t2}')
                a.e(f'v_xor_b32 v{t0}, v{t0}, v{t2}')
                a.e(f'v_lshrrev_b32 v{t2}, 2, v{t0}'); a.e(f'v_lshlrev_b32 v{t2}, 11, v{t2}')
                a.e(f'v_and_b32 v{t0}, 3, v{t0}')
                a.e(f'v_lshl_add_u32 v{t0}, v{t0}, 4, v{t2}')
                a.e(f'v_add_u32 v{t0}, s62, v{t0}')
            else:
                a.e(f'v_add_u32 v{t0}, s64, v{t0}')
                a.e(f'v_subrev_u32 v{t2}, 14, v{t0}')
                a.e(f'v_min_u32 v{t0}, v{t0}, v{t2}')
                a.e(f'v_lshl_add_u32 v{t0}, v{t0}, 4, s63')
            a.e(f'v_and_b32 v{t2}, 3, v{t1}')
            a.e(f'v_bfe_u32 v{t3}, v{t1}, 2, 2')
            a.e(f'v_lshl_add_u32 v{t2}, v{t3}, 3, v{t2}')
            a.e(f'v_lshrrev_b32 v{t3}, 4, v{t1}')
            a.e(f'v_lshl_add_u32 v{t2}, v{t3}, 2, v{t2}')
            a.e(f'v_mad_u32_u24 v{vDW+d}, v{t2}, s{65 if kind == "q" else 66}, v{t0}')
            srd(a, S_W+4*d, *{'q': (4, 5, 1024*3072*2), 'g': (56, 57, 1024*3584*2), 'u': (58, 59, 1024*3584*2)}[kind])
            a.e(f's_mov_b32 s{sWS+d}, {32*(6144 if kind == "q" else 7168)}')
        if w < 3: a.e('s_branch L1_setdone')
    a.label('L1_setdone')
    srd(a, S_XN, 6, 7, XN_BYTES)
    srd(a, 96, 6, 7, 1 << 20, FLAG_OFF)
    a.e('v_lshrrev_b32 v131, 2, v129'); a.e(f'v_lshl_add_u32 v131, v{vT}, 3, v131'); a.e('v_lshlrev_b32 v131, 17, v131')
    a.e('v_and_b32 v132, 3, v129'); a.e('v_lshl_add_u32 v131, v132, 8, v131'); a.e('v_lshl_add_u32 v131, v128, 4, v131')
    a.e('s_lshr_b32 s60, s2, 1'); a.e('s_lshl_b32 s60, s60, 10'); a.e('s_and_b32 s61, s2, 1'); a.e('s_lshl_b32 s61, s61, 7'); a.e('s_add_u32 s60, s60, s61')
    a.e('v_add_u32 v131, s60, v131')
    a.e('v_lshlrev_b32 v132, 5, v128'); a.e(f'v_add_u32 v132, {L1_STAT}, v132'); a.e(f'v_lshl_add_u32 v133, v{vT}, 3, v132')
    a.e('s_mov_b32 s60, 0xffff0000'); a.e('s_mov_b32 s61, 262144'); a.e('s_mov_b32 s62, 524288'); a.e('s_mov_b32 s63, 786432')
    a.e('v_mov_b32 v120, 0x43800000'); a.e('v_mov_b32 v121, 0x3727c5ac'); a.e('v_mov_b32 v122, 0x3a800000')
    st.at(4, 2)
    a.e(f's_waitcnt vmcnt({cfg.f0ne if not cfg.pfx else cfg.pfx-1})')
    st.at(5, 2)
    if cfg.pfx:
        for _ in range(cfg.f0ne - (cfg.pfx-1)):
            a.e(f'buffer_load_dword v{vDUM}, v{vPF}, s[{S_PF}:{S_PF+3}], s{sPFO} offen'); a.e(f's_add_u32 s{sPFO}, s{sPFO}, s{sPFS}')
    if cfg.hk:
        a.e(f's_cmp_lg_u32 s{sWAVE}, 3'); a.e('s_cbranch_scc1 L1_hkd')
        code_pf(a, 'L1_polled', 'L_end', vLANE, 134, 135, 94, cfg.ncpf)
        a.e('s_mov_b32 s94, 0x200000'); a.e('s_mov_b32 s95, 0x20000')
        a.e('s_lshl_b32 s3, s2, 13'); a.e(f'v_lshlrev_b32 v134, 7, v{vLANE}')
        a.e('buffer_load_dword v135, v134, s[92:95], s3 offen')
        a.label('L1_hkd')
    X = 48; T = 80
    def red8(r):
        a.e(f'v_add_f32_dpp v{r}, v{r}, v{r} quad_perm:[1,0,3,2] row_mask:0xf bank_mask:0xf')
        a.e(f'v_add_f32_dpp v{r}, v{r}, v{r} quad_perm:[2,3,0,1] row_mask:0xf bank_mask:0xf')
        a.e(f'v_add_f32_dpp v{r}, v{r}, v{r} row_half_mirror row_mask:0xf bank_mask:0xf')
    def tree():
        for sp in (4, 2, 1):
            for i_ in range(sp): a.e(f'v_pk_add_f32 {P2(T+2*i_)}, {P2(T+2*i_)}, {P2(T+2*i_+2*sp)}')
    for i_ in range(16):
        a.e(f'v_lshlrev_b32 v{X+2*i_}, 16, v{32+i_}'); a.e(f'v_and_b32 v{X+2*i_+1}, s60, v{32+i_}')
    for i_ in range(8): a.e(f'v_pk_add_f32 {P2(T+2*i_)}, {P2(X+4*i_)}, {P2(X+4*i_+2)}')
    tree()
    a.e(f'v_add_f32 v{T}, v{T}, v{T+1}'); red8(T)
    a.e(f'v_mul_f32 v96, 0xbb800000, v{T}'); a.e('v_mov_b32 v97, v96')
    for i_ in range(16): a.e(f'v_pk_add_f32 {P2(X+2*i_)}, {P2(X+2*i_)}, v[96:97]')
    for i_ in range(8): a.e(f'v_pk_mul_f32 {P2(T+2*i_)}, {P2(X+4*i_)}, {P2(X+4*i_)}')
    for i_ in range(8): a.e(f'v_pk_fma_f32 {P2(T+2*i_)}, {P2(X+4*i_+2)}, {P2(X+4*i_+2)}, {P2(T+2*i_)}')
    tree()
    a.e(f'v_add_f32 v97, v{T}, v{T+1}'); red8(97)
    a.e('ds_write_b64 v133, v[96:97]')
    a.e('s_waitcnt lgkmcnt(0)'); a.e('s_barrier')
    st.at(6, 2)
    a.e('ds_read_b128 v[100:103], v132'); a.e('ds_read_b128 v[104:107], v132 offset:16')
    a.e('s_waitcnt lgkmcnt(0)')
    a.e('v_pk_add_f32 v[108:109], v[100:101], v[102:103]'); a.e('v_pk_add_f32 v[110:111], v[104:105], v[106:107]')
    a.e('v_pk_add_f32 v[108:109], v[108:109], v[110:111]')
    a.e('v_mul_f32 v108, 0x3e800000, v108')
    for r in (100, 102, 104, 106): a.e(f'v_sub_f32 v{r}, v{r}, v108')
    a.e('v_mul_f32 v110, v100, v100'); a.e('v_mul_f32 v111, v102, v102'); a.e('v_fmac_f32 v110, v104, v104'); a.e('v_fmac_f32 v111, v106, v106')
    a.e('v_add_f32 v110, v110, v111')
    a.e('v_fmac_f32 v109, v110, v120'); a.e('v_fmac_f32 v121, v109, v122')
    a.e('v_rsq_f32 v120, v121')
    a.e('v_sub_f32 v122, v108, v96'); a.e('v_mov_b32 v121, v120'); a.e('v_mul_f32 v122, v122, v120'); a.e('v_mov_b32 v123, v122')
    so_ = ['0', 's61', 's62', 's63']
    for it in range(4):
        for i_ in range(4*it, 4*it+4): a.e(f'v_pk_fma_f32 {P2(X+2*i_)}, {P2(X+2*i_)}, v[120:121], v[122:123]')
        for i_ in range(4*it, 4*it+4): a.e(f'v_cvt_pk_bf16_f32 v{32+i_}, v{X+2*i_}, v{X+2*i_+1}')
        a.e(f'buffer_store_dwordx4 v[{32+4*it}:{35+4*it}], v131, s[{S_XN}:{S_XN+3}], {so_[it]} offen sc1')
    st.at(7, 2)
    a.e(f's_lshl_b32 s{sM_ACT}, s{sWAVE}, 12')
    a.e(f's_mul_i32 s{sM_W}, s{sWAVE}, 5120'); a.e(f's_add_u32 s{sM_W}, s{sM_W}, {L1_W}')
    a.e(f's_lshl_b32 s{sM_H}, s{sWAVE}, 8'); a.e(f's_add_u32 s{sM_H}, s{sM_H}, {L1_HALO}')
    a.e(f's_mov_b32 s{sACT}, 0')
    for d in range(5): a.e(f's_mov_b32 s{sWO+d}, 0')
    def dma_list(slot):
        L = []
        for d in range(5):
            L.append((f's_add_u32 m0, s{sM_W}, {slot*20480 + d*1024}',
                      f'buffer_load_dwordx4 v{vDW+d}, s[{S_W+4*d}:{S_W+4*d+3}], s{sWO+d} offen lds',
                      f's_add_u32 s{sWO+d}, s{sWO+d}, s{sWS+d}'))
        for d in range(4):
            L.append((f's_add_u32 m0, s{sM_ACT}, {slot*16384}' if d == 0 else None,
                      f'buffer_load_dwordx4 v{vDA}, s[{S_XN}:{S_XN+3}], s{sACT} offen offset:{d*1024} lds', None))
        L.append((f's_add_u32 m0, s{sM_H}, {slot*1024}',
                  f'buffer_load_dword v{vDH}, s[{S_XN}:{S_XN+3}], s{sACT} offen lds', f's_add_u32 s{sACT}, s{sACT}, 131072'))
        L.append((None, f'buffer_load_dword v{vDUM}, v{vPF}, s[{S_PF}:{S_PF+3}], s{sPFO} offen', f's_add_u32 s{sPFO}, s{sPFO}, s{sPFS}'))
        return L
    def flat(dl): return [x for t_ in dl for x in t_ if x]
    VMW = 12
    if not cfg.wlate:
        for x in flat(dma_list(0)[:5] + dma_list(1)[:5]): a.e(x)
    latepf = [dma_list(0)[10]]*(cfg.pfd-1-cfg.f0ne)
    srd(a, S_O, 6, 7, ACT2_BYTES, ACT2_OFF)
    a.e(f's_lshl_b32 s60, s{sRB}, 14'); a.e(f's_lshl_b32 s61, s{sWAVE}, 12'); a.e('s_add_u32 s61, s61, s60')
    a.e(f'v_lshl_add_u32 v{vDA}, v{vLANE}, 4, s61')
    a.e('s_max_u32 s60, s60, 1024'); a.e('s_sub_u32 s60, s60, 1024')
    a.e(f's_lshl_b32 s61, s{sWAVE}, 8'); a.e('s_add_u32 s61, s61, s60')
    a.e(f'v_lshl_add_u32 v{vDH}, v{vLANE}, 2, s61')
    a.e(f's_lshl_b32 s60, s{sRB}, 5'); a.e('s_sub_u32 s60, s60, 2')
    a.e(f'v_min_u32 v134, 33, v{vLANE}'); a.e('v_add_u32 v134, s60, v134'); a.e('v_max_i32 v134, 0, v134'); a.e('v_lshlrev_b32 v134, 7, v134')
    a.e(f'v_add_u32 v134, {XFLAG_REL}, v134')
    a.e('s_lshl_b32 s60, s2, 7'); a.e(f's_add_u32 s60, s60, {XFLAG_REL}'); a.e('v_mov_b32 v135, s60')
    a.e(f's_add_u32 s60, s{sT0}, {BACK}'); a.e('v_mov_b32 v136, s60'); a.e(f'v_xor_b32 v137, s{sCHK}, v136')
    t0, t1, t2 = vT, vT+1, vT+2
    a.e(f's_lshl_b32 s60, s{sWM}, 13')
    a.e(f'v_lshl_add_u32 v{vA}, v{vLANE}, 4, s60')
    a.e(f'v_lshlrev_b32 v{vHA}, 4, v{vLANE}'); a.e(f'v_add_u32 v{vHA}, {L1_HALO}, v{vHA}')
    a.e(f'v_lshrrev_b32 v{t0}, 2, v{vLANE}')
    a.e(f'v_and_b32 v{t1}, 3, v{vLANE}'); a.e(f'v_lshlrev_b32 v{t1}, 3, v{t1}'); a.e(f'v_add_u32 v{t1}, {L1_W}, v{t1}')
    a.e(f'v_mul_u32_u24 v{t2}, 224, v{t0}'); a.e(f'v_add_u32 v{vGU}, v{t2}, v{t1}'); a.e(f'v_add_u32 v{vGU+1}, 40960, v{vGU}')
    a.e(f'v_mul_u32_u24 v{t2}, 192, v{t0}'); a.e(f'v_add_u32 v{t2}, v{t2}, v{t1}')
    a.e(f'v_lshlrev_b32 v{t0}, 1, v{vLANE}'); a.e(f'v_and_b32 v{t0}, 32, v{t0}')
    a.e(f'v_add_u32 v{vQa}, v{t2}, v{t0}'); a.e(f'v_sub_u32 v{vQb}, v{t2}, v{t0}')
    a.e(f'v_add_u32 v{vQa+1}, 40960, v{vQa}'); a.e(f'v_add_u32 v{vQb+1}, 40960, v{vQb}')
    a.e(f's_lshl_b32 s60, s{sWAVE}, 5'); a.e('s_add_u32 s60, s60, 64')
    a.e(f'v_xor_b32 v{t0}, s60, v{t0}')
    a.e(f'v_add_u32 v{vHW}, v{t2}, v{t0}'); a.e(f'v_add_u32 v{vHW+1}, 40960, v{vHW}')
    a.e(f's_mov_b32 s{sCNT}, 0')
    a.e(f's_waitcnt vmcnt({0 if cfg.wlate else 10})'); a.e('s_barrier')
    st.at(1, 2)
    a.e(f's_cmp_eq_u32 s{sWAVE}, 0'); a.e('s_cbranch_scc1 L1_pub')
    if cfg.hk: a.e('s_branch L1_consts')
    else:
        a.e(f's_cmp_eq_u32 s{sWAVE}, 2'); a.e('s_cbranch_scc1 L1_consts')
        a.e(f's_cmp_eq_u32 s{sWAVE}, 1'); a.e('s_cbranch_scc1 L1_wopf')
        code_pf(a, 'L1_polled', 'L_end', vLANE, 134, 135, 94, cfg.ncpf)
        a.e('s_branch L1_consts')
        a.label('L1_wopf')
        a.e('s_mov_b32 s94, 0x200000'); a.e('s_mov_b32 s95, 0x20000')
        a.e('s_lshl_b32 s60, s2, 13'); a.e(f'v_lshlrev_b32 v134, 7, v{vLANE}')
        a.e('buffer_load_dword v135, v134, s[92:95], s60 offen')
        a.e('s_branch L1_consts')
    a.label('L1_pub')
    a.e('s_mov_b64 exec, 1')
    a.e('buffer_store_dwordx2 v[136:137], v135, s[96:99], 0 offen sc1')
    a.e('s_mov_b64 exec, -1')
    a.label('L1_consts')
    if cfg.wlate:
        for x in flat(dma_list(0)[:5] + dma_list(1)[:5]): a.e(x)
    a.e(f'v_and_b32 v{t0}, 15, v{vLANE}'); a.e(f'v_lshrrev_b32 v{t1}, 4, v{vLANE}'); a.e(f'v_lshlrev_b32 v{t1}, 2, v{t1}')
    a.e(f'v_sub_u32 v{t0}, v{t0}, v{t1}')
    a.e(f'v_mov_b32 v{vT+3}, 0xf149f2ca')
    a.e(f's_or_b32 s60, s{sRB}, s{sWM}'); a.e('s_cmp_eq_u32 s60, 0'); a.e('s_cselect_b64 s[60:61], -1, 0')
    for isprev in range(2):
        for r in range(4):
            a.e(f'v_add_u32 v{t1}, {16*isprev - r}, v{t0}')
            a.e(f'v_and_b32 v{t2}, 0xfffffff1, v{t1}')
            a.e(f'v_cmp_eq_u32 vcc, 0, v{t2}')
            a.e(f'v_cndmask_b32_e64 v{vT+4}, v{vT+3}, 0, vcc')
            a.e(f'v_accvgpr_write_b32 a{aBI+4*isprev+r}, v{vT+4}')
            if isprev:
                a.e(f'v_cndmask_b32_e64 v{vT+4}, v{vT+4}, v{vT+3}, s[60:61]')
                a.e(f'v_accvgpr_write_b32 a{aBI+8+r}, v{vT+4}')
    a.e(f'v_mov_b32 v{vT+4}, 0x3f803f80')
    for r in range(4): a.e(f'v_accvgpr_write_b32 a{aBI+12+r}, v{vT+4}')
    a.e(f's_cmp_lg_u32 s{sWAVE}, 0'); a.e('s_cbranch_scc1 L1_polled')
    if cfg.mp & 1: poll_masked(a, 'L1_poll', 138, 134, 96, 60, 62, cfg.ms0)
    else:
        a.e('s_mov_b32 s62, 0')
        if cfg.f0sl: a.e(f's_sleep {cfg.f0sl}')
        a.label('L1_poll')
        a.e('buffer_load_dwordx2 v[138:139], v134, s[96:99], 0 offen sc1')
        a.e('s_add_u32 s62, s62, 1')
        a.e('s_waitcnt vmcnt(0)')
        stamp_ok(a, 138, 60); a.e('s_cbranch_scc1 L1_polled')
        a.e('s_cmp_lt_u32 s62, 0x8000'); a.e('s_cbranch_scc1 L1_poll')
    a.label('L1_polled')
    a.e('s_barrier')
    for x in flat(dma_list(0)[5:10] + dma_list(1)[5:10] + latepf): a.e(x)
    a.e(f's_and_b32 s60, s{sWAVE}, 1'); a.e('s_cmp_eq_u32 s60, 1'); a.e('s_cbranch_scc1 L1_wn1')

    NS = 5; FS = cfg.k2_fs; HS = 2*(36-FS); TOT = FS + HS; WB = NS*16384
    G_A = 8; G_W = 12; G_P = 16; G_X = 20; G_OUT = 24
    gACT = 36; gWO = 37; gM_A = 38; gM_W = 39; gU = 40; gPART = 41; gRB = 42; gCB = 43; gIDX = 53; gSZ0 = 54; gSZ1 = 55
    gM_H = 44; gKC = 45; gT1 = 46; gT2 = 47; G_F = 96
    hDA = 32; hDW = 33; hTS = 38; hSEQ = 42; hT = 44
    hA = 2; hW = 4; hXO = 12; hPS = 14; hPL = 15; hFS = 16; hFL = 17; hDH = 18; hWH = 20; hT2 = 24; hBF = 30; hO = 45
    XR = 48; ACC = 64; FR = 128
    NA = FS - 12
    def g2_next():
        return [f's_add_u32 s{gIDX}, s{gIDX}, 1',
                f'v_readlane_b32 s{gWO}, v{hSEQ}, s{gIDX}',
                f's_lshl_b32 s{gACT}, s{gWO}, 17',
                f's_cmp_lt_u32 s{gWO}, 32',
                f's_cselect_b32 s{G_W}, s92, s68', f's_cselect_b32 s{G_W+1}, s93, s69', f's_cselect_b32 s{G_W+2}, s{gSZ0}, s{gSZ1}',
                f's_cselect_b32 s60, 0, 32',
                f's_sub_u32 s{gWO}, s{gWO}, s60',
                f's_lshl_b32 s{gWO}, s{gWO}, 16']
    def g2_dma(slot, compact=False):
        L = []
        for d in range(2 if compact else 4):
            L.append(([f's_add_u32 m0, s{gM_H if compact else gM_W}, {slot*16384 + d*1024}'],
                      f'buffer_load_dwordx4 v{(hDH if compact else hDW)+d}, s[{G_W}:{G_W+3}], s{gWO} offen lds', []))
        for d in range(4):
            L.append(([f's_add_u32 m0, s{gM_A}, {slot*16384}'] if d == 0 else [],
                      f'buffer_load_dwordx4 v{hDA}, s[{G_A}:{G_A+3}], s{gACT} offen offset:{d*1024} lds', []))
        L[-1] = (L[-1][0], L[-1][1], g2_next())
        return L
    def g2_early(o):
        o.e('s_and_b32 s3, s2, 7'); o.e(f's_lshr_b32 s{gPART}, s3, 2'); o.e('s_and_b32 s3, s3, 3'); o.e('s_lshl_b32 s3, s3, 2')
        o.e('s_lshr_b32 s60, s2, 3'); o.e(f's_and_b32 s{gCB}, s60, 7'); o.e('s_lshr_b32 s60, s60, 3'); o.e(f's_add_u32 s{gRB}, s3, s60')
        o.e(f's_and_b32 s3, s{sWAVE}, 1')
        o.e(f's_mul_i32 s60, s{gPART}, {NA}')
        o.e(f'v_add_u32 v{hT}, s60, v{vLANE}'); o.e(f'v_add_u32 v{hT+1}, {2*NA-FS}, v{vLANE}')
        o.e(f'v_cmp_gt_u32 vcc, {NA}, v{vLANE}'); o.e(f'v_cndmask_b32 v{hT}, v{hT+1}, v{hT}, vcc')
        o.e(f'v_mul_u32_u24 v{hT+1}, 21846, v{hT}'); o.e(f'v_lshrrev_b32 v{hT+1}, 16, v{hT+1}')
        o.e(f'v_lshl_add_u32 v{hT}, v{hT+1}, 2, v{hT}')
        o.e(f's_lshl_b32 s60, s{sWM}, 2'); o.e('s_add_u32 s60, s60, 32'); o.e(f'v_add_u32 v{hT}, s60, v{hT}')
        o.e(f's_mul_i32 s60, s{gPART}, 24'); o.e(f's_add_u32 s60, s60, s{sWM}'); o.e(f's_sub_u32 s60, s60, {2*NA}')
        o.e(f'v_lshl_add_u32 v{hT+1}, v{vLANE}, 1, s60')
        o.e(f's_mul_i32 s60, s{sWM}, 7'); o.e(f's_sub_u32 s60, s60, {14*(NA+4)-35}')
        o.e(f'v_mul_u32_u24 v{hT+2}, 14, v{vLANE}'); o.e(f'v_add_u32 v{hT+2}, s60, v{hT+2}')
        o.e(f's_cmp_eq_u32 s{gPART}, 0'); o.e(f's_cselect_b32 s60, 63, {NA+4}')
        o.e(f'v_cmp_gt_u32 vcc, s60, v{vLANE}'); o.e(f'v_cndmask_b32 v{hT+1}, v{hT+2}, v{hT+1}, vcc')
        o.e(f'v_subrev_u32 v{hT+2}, {NA}, v{vLANE}'); o.e(f'v_cmp_gt_u32 vcc, 12, v{hT+2}')
        o.e(f'v_cndmask_b32 v{hSEQ}, v{hT}, v{hT+1}, vcc')
        o.e('s_lshl_b32 s60, s3, 12'); o.e(f's_lshl_b32 s61, s{gRB}, 13'); o.e('s_add_u32 s60, s60, s61')
        o.e(f'v_lshl_add_u32 v{hDA}, v{vLANE}, 4, s60')
        o.e(f's_lshl_b32 s{gM_A}, s{sWAVE}, 12'); o.e(f's_add_u32 s{gM_W}, s{gM_A}, {WB}')
        o.e(f'v_lshrrev_b32 v{hT}, 4, v{vLANE}'); o.e(f'v_and_b32 v{hT+1}, 15, v{vLANE}')
        o.e('s_lshl_b32 s60, s3, 15'); o.e(f's_lshl_b32 s61, s{gCB}, 8'); o.e('s_add_u32 s60, s60, s61')
        o.e(f'v_lshl_add_u32 v{hT+3}, v{hT}, 11, s60')
        o.e(f'v_lshlrev_b32 v{hT+2}, 1, v{hT}'); o.e(f'v_xor_b32 v{hT+2}, v{hT+2}, v{hT+1}')
        o.e(f'v_lshl_add_u32 v{hDW}, v{hT+2}, 4, v{hT+3}')
        o.e(f'v_xor_b32 v{hDW+1}, 128, v{hDW}'); o.e(f'v_add_u32 v{hDW+1}, 8192, v{hDW+1}')
        o.e(f'v_add_u32 v{hDW+2}, 16384, v{hDW}'); o.e(f'v_add_u32 v{hDW+3}, 16384, v{hDW+1}')
        o.e(f's_mov_b32 s{gSZ0}, {1024*1024*2}'); o.e(f's_mov_b32 s{gSZ1}, {3584*1024*2}'); o.e(f's_mov_b32 s{G_W+3}, 0x20000')
        srd(o, G_A, 6, 7, ACT2_BYTES, ACT2_OFF)
        o.e(f's_lshr_b32 s60, s{gRB}, 1'); o.e('s_lshl_b32 s60, s60, 14'); o.e(f's_and_b32 s61, s{gRB}, 1'); o.e('s_lshl_b32 s61, s61, 8')
        o.e('s_add_u32 s60, s60, s61'); o.e(f's_add_u32 s60, s60, {AFLAG_REL}')
        o.e(f'v_lshrrev_b32 v{hT}, 1, v{vLANE}'); o.e(f'v_lshl_add_u32 v{hTS+3}, v{hT}, 9, s60')
        o.e(f'v_and_b32 v{hT}, 1, v{vLANE}'); o.e(f'v_lshl_add_u32 v{hTS+3}, v{hT}, 7, v{hTS+3}')
        o.e(f's_mov_b32 s{gIDX}, -1')
        for x in g2_next(): o.e(x)
    def g2_wdma(o):
        for s_ in range(NS):
            d_ = g2_dma(s_)
            for pre, ins, post in d_[:4]:
                for x in pre: o.e(x)
                o.e(ins)
            for x in d_[7][2]: o.e(x)
    def g2_flagA(o, younger):
        o.e(f's_add_u32 s60, s{sT0}, {BACK}'); o.e(f'v_mov_b32 v{hTS}, s60'); o.e(f'v_xor_b32 v{hTS+1}, s{sCHK}, v{hTS}')
        o.e('s_lshl_b32 s60, s2, 2'); o.e(f's_add_u32 s60, s60, s{sWAVE}'); o.e('s_lshl_b32 s60, s60, 7'); o.e(f's_add_u32 s60, s60, {AFLAG_REL}')
        o.e(f'v_mov_b32 v{hTS+2}, s60')
        o.e(f's_waitcnt vmcnt({younger})')
        o.e('s_mov_b64 exec, 1')
        o.e(f'buffer_store_dwordx2 v[{hTS}:{hTS+1}], v{hTS+2}, s[{G_F}:{G_F+3}], 0 offen sc1')
        o.e('s_mov_b64 exec, -1')
        st.at(4, 3)
    def g2_poll_act(wn):
        st.at(4, 1); st.at(5, 3)
        if wn == 0:
            a.e(f's_cmp_lg_u32 s{sWAVE}, 0'); a.e(f's_cbranch_scc1 L2_aok')
            if cfg.mp & 2: poll_masked(a, 'L2_apoll', hT2, hTS+3, G_F, 60, 3, cfg.ms1)
            else:
                a.e('s_mov_b32 s3, 0')
                if cfg.g1sl: a.e(f's_sleep {cfg.g1sl}')
                a.label('L2_apoll')
                a.e(f'buffer_load_dwordx2 v[{hT2}:{hT2+1}], v{hTS+3}, s[{G_F}:{G_F+3}], 0 offen sc1')
                a.e('s_add_u32 s3, s3, 1')
                a.e('s_waitcnt vmcnt(0)')
                stamp_ok(a, hT2, 60); a.e('s_cbranch_scc1 L2_aok')
                a.e('s_sleep 4')
                a.e('s_cmp_lt_u32 s3, 0x8000'); a.e('s_cbranch_scc1 L2_apoll')
            a.label('L2_aok')
        a.e('s_barrier')
        st.at(5, 1); st.at(6, 3)
        for s_ in range(NS):
            a.e(f'v_readlane_b32 s60, v{hSEQ}, {s_}'); a.e('s_lshl_b32 s60, s60, 17')
            a.e(f's_add_u32 m0, s{gM_A}, {s_*16384}')
            for d in range(4): a.e(f'buffer_load_dwordx4 v{hDA}, s[{G_A}:{G_A+3}], s60 offen offset:{d*1024} lds')

    aACT = 0; aHA = 64; aHW = 88; aACC = 96; aW2 = 216
    for wn in range(2):
        if wn == 1: a.label('L1_wn1')
        if wn == 0:
            names = ['q0', 'q1', 'k0', 'k1', 'v0', 'v1', 'g0', 'g1', 'u0', 'u1']
            units = [('q', 0), ('q', 2), ('q', 4), ('q', 6), ('q', 8), ('q', 10), ('g', 0), ('g', 2), ('u', 0), ('u', 2)]
            order_v = ['g0', 'g1', 'u0', 'q0', 'k0', 'v0', 'v1']; order_a = ['q1', 'k1', 'u1']
        else:
            names = ['g2', 'u2', 'g3', 'u3', 'g6', 'g4', 'u4', 'g5', 'u5', 'u6']
            units = [(nm[0], 2*int(nm[1])) for nm in names]
            order_v = ['g2', 'g3', 'g4', 'g5', 'g6', 'u2', 'u3']; order_a = ['u4', 'u5', 'u6']
        acc = {}
        for i, nm in enumerate(order_v):
            for m in range(8): acc[(nm, m)] = ('v', 32 + (i*8+m)*4)
        for i, nm in enumerate(order_a):
            for m in range(8): acc[(nm, m)] = ('a', aACC + (i*8+m)*4)
        acc['halo'] = ('a', aACC + 96)
        def R(x): return f'{x[0]}[{x[1]}:{x[1]+3}]'
        def hreads(slot):
            return [f'ds_read_b128 {AR(aHA)}, v{vHA} offset:{slot*1024}'] + \
                   [f'ds_read_b64_tr_b16 a[{aHW+2*h}:{aHW+2*h+1}], v{vHW+(slot>>1)} offset:{(slot&1)*20480+h*3072}' for h in range(2)]
        def wfrag(slot, n, reg):
            kind, c0 = units[n]; out = []
            for h_ in range(2):
                if kind == 'q':
                    base = (vQa if c0 % 4 == 0 else vQb) + (slot >> 1); off = (slot & 1)*20480 + c0*16 + h_*3072
                else:
                    base = vGU + (slot >> 1); off = (slot & 1)*20480 + (6144 if kind == 'g' else 13312) + c0*16 + h_*3584
                out.append(f'ds_read_b64_tr_b16 a[{reg+2*h_}:{reg+2*h_+1}], v{base} offset:{off}')
            return out
        def wr(p, n, second): return aW2 + 8*((5*p + n) & 3) + 4*second
        def areg_(stage, m): return aACT + (stage & 1)*32 + 4*m
        tr = LgkmTracker(a)
        carry = flat(dma_list(2)[5:10] + dma_list(2)[:5] + dma_list(2)[10:] if cfg.afirst else dma_list(2))
        carry_last = -99
        def period(h, kind, side=None):
            nonlocal carry, carry_last
            p = h + 1
            first = kind != 'P'; second = kind != 'Q'
            g0 = 0 if h % 2 == 0 else 5
            gn = 5 - g0
            secs = [x for x in (0, 1) if (first if x == 0 else second)]
            mf = [(n, m, sec) for n in range(3) for m in range(8) for sec in secs]
            L = 8*len(secs); T0 = len(mf)
            mf += [(n, m, sec) for m in range(8) for n in (3, 4) for sec in secs]
            N = len(mf)
            gaps = [[] for _ in range(N)]
            def place(item, lo, hi, cap=1):
                for g in range(lo, hi+1):
                    if len(gaps[g]) < cap:
                        gaps[g].append(item); return g
                return None
            def wf(n):
                return (wfrag(h % 4, g0+n, wr(p, n, 0)) if first else []) + (wfrag((h+1) % 4, g0+n, wr(p, n, 1)) if second else [])
            for n, lst in ((0, wf(1)), (1, wf(2)), (2, wf(3) + wf(4))):
                for k_, r in enumerate(lst): gaps[n*L + k_].append(('r', r))
            if kind != 'Q':
                cur = 1; lastv = carry_last - (N if not first else N)
                for x in carry:
                    lo = cur; vs_ = cfg.vsp if kind == 'H' else 2
                    if x.startswith('buffer') and first: lo = max(lo, lastv + vs_)
                    if x.startswith('s_add_u32 m0') and first: lo = max(lo, lastv + vs_ - 2)
                    g = place(('x', x), lo, T0-5, 1 if first else 2); assert g is not None
                    if x.startswith('buffer'): lastv = g
                    cur = g + (1 if (first or x.startswith('s_add_u32 m0')) else 0)
                per = 2*len(secs)
                for m in range(8):
                    gaps[T0 + per*m + (per - 2 if first else 0)].append(('r', f'ds_read_b128 {AR(areg_(h+2, m))}, v{vA} offset:{((h+2) % 4)*16384 + m*1024}'))
                tail = wfrag((h+1) % 4, gn, wr(p+1, 0, 0)) + wfrag((h+2) % 4, gn, wr(p+1, 0, 1)) + hreads((h+2) % 4)
                for k_, r in enumerate(tail):
                    g = place(('r', r), T0 + (per*k_ if first else 2*k_), N-1, 1); assert g is not None
                dl_ = dma_list(h % 4)
                items = flat(dl_[5:10] + dl_[:5] + dl_[10:] if cfg.afirst else dl_)
                cur = T0
                hi = N-1 if not (kind == 'H' and h % 4 == 2) else N-4
                lastv = -99
                while items:
                    x = items[0]; lo = cur
                    if x.startswith('buffer') and first: lo = max(lo, lastv + cfg.vsp)
                    if x.startswith('s_add_u32 m0') and first: lo = max(lo, lastv + cfg.vsp - 2)
                    g = place(('x', x), lo, hi, 1)
                    if g is None: break
                    if x.startswith('buffer'): lastv = g
                    cur = g + 1; items.pop(0)
                carry_last = lastv + (80 - N)
                carry = items
                if kind == 'H' and h % 4 == 2:
                    gaps[N-3].append(('x', f's_add_u32 s{sCNT}, s{sCNT}, 1')); gaps[N-2].append(('x', f's_cmp_eq_u32 s{sCNT}, 8'))
                if kind == 'H' and h % 4 == 0:
                    gaps[T0-4].append(('x', f's_cmp_eq_u32 s{sCNT}, 7'))
                    for k_, r_ in enumerate((sM_W, sM_ACT, sM_H)): gaps[T0-3+k_].append(('x', f's_cselect_b32 s{r_}, 170000, s{r_}'))
            if side:
                for k_, x in enumerate(side):
                    gaps[min(N-1, 3 + (k_*(N-3))//len(side))].append(('w' if x.startswith('ds_write') else 'x', x))
            if kind == 'Q': mf = [(n, m, 0) for n in range(5) for m in range(8)]
            for i, (n, m, sec) in enumerate(mf):
                nm = names[g0+n]
                if kind != 'Q' and i == T0:
                    a.e(f's_waitcnt vmcnt({VMW-1+len(latepf) if kind == "P" else VMW}) lgkmcnt(0)'); tr.drain()
                    if not (cfg.dbg & 2 and kind == 'H'): a.e('s_barrier')
                    if cfg.stamps == 8:
                        a.e('s_memrealtime s[84:85]'); a.e('s_waitcnt lgkmcnt(0)')
                        if kind == 'P': a.e('s_mov_b32 s83, 0')
                        a.e('v_mov_b32 v28, s84'); a.e(f'v_cmp_eq_u32 vcc, s83, v{vLANE}'); a.e('v_cndmask_b32 v29, v29, v28, vcc'); a.e('s_add_u32 s83, s83, 1')
                wreg = AR(wr(p, n, sec)); areg = AR(areg_(h+sec, m))
                tr.need(regs_of(wreg) + regs_of(areg) + (regs_of(AR(wr(p, n, 1))) if (n > 0 and second) else []))
                d = R(acc[(nm, m)])
                c = '0' if (kind == 'P' or (kind == 'H0' and sec == 0)) else d
                a.e(f'{MF} {d}, {areg}, {wreg}, {c}' if nm[0] == 'v' else f'{MF} {d}, {wreg}, {areg}, {c}')
                for k_, x in gaps[i]:
                    if kind == 'H' and ((cfg.dbg & 1 and x.startswith('buffer_load')) or (cfg.dbg & 8 and x.startswith('s_add_u32') and 's50' not in x)): continue
                    if kind == 'H' and cfg.dbg & 4 and k_ == 'r': continue
                    if k_ == 'r': tr.read(x)
                    elif k_ == 'w': a.e(x); tr.other()
                    else: a.e(x)
                if kind != 'Q' and i == L + 5:
                    tr.need(regs_of(AR(aHA)) + regs_of(AR(aHW)))
                    d = R(acc['halo'])
                    a.e(f'{MF} {d}, {AR(aHW)}, {AR(aHA)}, {"0" if kind == "P" else d}')
        a.e(f's_waitcnt vmcnt({5 + len(latepf)})'); a.e('s_barrier')
        st.at(1, 1); st.at(2, 2)
        if st.on: a.e('s_waitcnt lgkmcnt(0)')
        for r in wfrag(0, 5, wr(0, 0, 1)) + [f'ds_read_b128 {AR(areg_(0, m))}, v{vA} offset:{m*1024}' for m in range(8)] + hreads(0): tr.read(r)
        period(-1, 'P'); period(0, 'H0')
        entry_state = tr.state(); entry_carry = list(carry)
        if cfg.stamps == 9: a.e('s_memtime s[72:73]'); a.e('s_memrealtime s[76:77]'); a.e('s_waitcnt lgkmcnt(0)'); tr.drain(); entry_state = None
        a.label(f'L1_loop{wn}')
        period(1, 'H'); period(2, 'H')
        exit_q = list(tr.q)
        a.e(f's_cbranch_scc1 L1_tail{wn}')
        period(3, 'H'); period(4, 'H')
        assert cfg.dbg or cfg.stamps == 9 or (tr.state() == entry_state and carry == entry_carry)
        if wn == 0 and cfg.cpf2:
            a.e(f's_add_u32 s60, s{sCNT}, s{sWAVE}'); a.e(f's_cmp_eq_u32 s60, {cfg.cpf2 + 2}'); a.e(f's_cbranch_scc0 L1_loop{wn}')
            a.e(f's_cmp_eq_u32 s{sWAVE}, 2'); a.e(f's_cbranch_scc0 L1_loop{wn}')
            code_pf(a, 'L1_tail0', 'L_end', vLANE, 28, vDUM, 94, 5)
        a.e(f's_branch L1_loop{wn}')
        a.label(f'L1_tail{wn}')
        if cfg.stamps == 9: a.e('s_memtime s[74:75]'); a.e('s_memrealtime s[78:79]'); a.e('s_waitcnt lgkmcnt(0)')
        tr.q = exit_q
        vO = vDA; vX = vDW
        def fetch(o, x, tmp):
            if x[0] == 'v': return x[1]
            for r in range(4): o.e(f'v_accvgpr_read_b32 v{tmp+r}, a{x[1]+r}')
            return tmp
        def hmul(o, g, u_, m, dst, tmp):
            gb = acc[(g, m)][1]; ub = fetch(o, acc[(u_, m)], tmp)
            o.e(f'v_pk_mul_f32 {P2(gb)}, {P2(gb)}, {P2(ub)}'); o.e(f'v_pk_mul_f32 {P2(gb+2)}, {P2(gb+2)}, {P2(ub+2)}')
            o.e(f'v_cvt_pk_bf16_f32 v{dst}, v{gb}, v{gb+1}'); o.e(f'v_cvt_pk_bf16_f32 v{dst+1}, v{gb+2}, v{gb+3}')
        def ostore(o, src, m, soff, n=4):
            op = {4: 'buffer_store_dwordx4', 2: 'buffer_store_dwordx2'}[n]
            o.e(f'{op} v[{src}:{src+n-1}], v{vO + (m >> 2)}, s[{S_O}:{S_O+3}], {soff} offen offset:{(m&3)*1024} sc1')
        def hblock(o, ga, ua, gb_, ub_, m, so, tmp):
            dst = acc[(ga, m)][1]
            hmul(o, ga, ua, m, dst, tmp); hmul(o, gb_, ub_, m, dst+2, tmp+4); ostore(o, dst, m, so)
        def attn1(o, q, kp, kc, v0w, v1w, bp, BI, Sx, Ox, dst):
            o.e(f'{MF} v[{Sx}:{Sx+3}], v[{kp}:{kp+3}], v[{q}:{q+3}], 0')
            o.e(f'{MF} v[{Sx+4}:{Sx+7}], v[{kc}:{kc+3}], v[{q}:{q+3}], 0')
            for r in (0, 2): o.e(f'v_pk_fma_f32 {P2(Sx+r)}, {P2(Sx+r)}, s[94:95], {P2(bp+r)}')
            for r in (0, 2): o.e(f'v_pk_fma_f32 {P2(Sx+4+r)}, {P2(Sx+4+r)}, s[94:95], {P2(BI+r)}')
            M = Sx + 8
            o.e(f'v_max3_f32 v{M}, v{Sx}, v{Sx+1}, v{Sx+2}'); o.e(f'v_max3_f32 v{M+1}, v{Sx+3}, v{Sx+4}, v{Sx+5}')
            o.e(f'v_max3_f32 v{M}, v{M}, v{Sx+6}, v{Sx+7}'); o.e(f'v_max_f32 v{M}, v{M}, v{M+1}')
            o.e(f'v_mov_b32 v{M+1}, v{M}')
            o.e(f'v_permlane32_swap_b32 v{M}, v{M+1}')
            o.e(f'v_max_f32 v{M}, v{M}, v{M+1}'); o.e(f'v_mov_b32 v{M+1}, v{M}')
            o.e(f'v_permlane16_swap_b32 v{M}, v{M+1}')
            o.e(f'v_max_f32 v{M}, v{M}, v{M+1}'); o.e(f'v_mov_b32 v{M+1}, v{M}')
            for r in (0, 2, 4, 6): o.e(f'v_pk_add_f32 {P2(Sx+r)}, {P2(Sx+r)}, {P2(M)} neg_lo:[0,1] neg_hi:[0,1]')
            for r in range(8): o.e(f'v_exp_f32 v{Sx+r}, v{Sx+r}')
            for r in range(4): o.e(f'v_cvt_pk_bf16_f32 v{Sx+12+r}, v{Sx+2*r}, v{Sx+2*r+1}')
            Pp = Sx + 12
            o.e(f'{MF} v[{Ox+8}:{Ox+11}], a[{aBI+12}:{aBI+15}], v[{Pp}:{Pp+3}], 0')
            o.e(f'{MF} v[{Ox}:{Ox+3}], v[{v0w}:{v0w+3}], v[{Pp}:{Pp+3}], 0')
            o.e(f'{MF} v[{Ox+4}:{Ox+7}], v[{v1w}:{v1w+3}], v[{Pp}:{Pp+3}], 0')
            o.e(f'v_rcp_f32 v{Ox+8}, v{Ox+8}')
            o.e(f'v_mov_b32 v{Ox+9}, v{Ox+8}')
            for r in (0, 2, 4, 6): o.e(f'v_pk_mul_f32 {P2(Ox+r)}, {P2(Ox+r)}, {P2(Ox+8)}')
            for r in range(4): o.e(f'v_cvt_pk_bf16_f32 v{dst+r}, v{Ox+2*r}, v{Ox+2*r+1}')
        def zipper(A, B):
            A = [x.text for x in A.ins]; B = [x.text for x in B.ins]
            for i_ in range(max(len(A), len(B))):
                if i_ < len(A): a.e(A[i_])
                if i_ < len(B): a.e(B[i_])
        o = Asm()
        o.e(f's_lshl_b32 s60, s{sRB}, 14'); o.e(f's_lshl_b32 s61, s{sWM}, 13'); o.e('s_add_u32 s60, s60, s61')
        o.e(f'v_lshl_add_u32 v{vO}, v{vLANE}, 4, s60'); o.e(f'v_add_u32 v{vO+1}, 4096, v{vO}')
        o.e(f's_mul_i32 s62, s{sJ}, 7'); o.e(f's_and_b32 s63, s{sJ}, 1'); o.e('s_add_u32 s62, s62, s63'); o.e('s_lshr_b32 s62, s62, 1')
        o.e('s_add_u32 s62, s62, 32'); o.e('s_lshl_b32 s62, s62, 17')
        o.e('s_add_u32 s64, s62, 131072'); o.e('s_add_u32 s65, s62, 262144')
        o.e(f's_lshl_b32 s60, s{sWM}, 14'); o.e('s_add_u32 s60, s60, 4096')
        o.e(f'v_lshl_add_u32 v{vX}, v{vLANE}, 4, s60')
        o.e(f'v_and_b32 v{vT}, 15, v{vLANE}'); o.e(f'v_lshrrev_b32 v{vT+1}, 4, v{vLANE}')
        o.e(f'v_lshl_add_u32 v{vX+1}, v{vT}, 5, s60'); o.e(f'v_lshl_add_u32 v{vX+1}, v{vT+1}, 3, v{vX+1}')
        o.e(f's_mul_i32 s60, s{sWM}, 40960'); o.e('s_sub_u32 s61, 40960, s60')
        o.e(f'v_lshl_add_u32 v{vX+2}, v{vLANE}, 4, s60')
        o.e(f'v_lshl_add_u32 v{vX+3}, v{vT+1}, 7, s61'); o.e(f'v_lshl_add_u32 v{vX+3}, v{vT}, 1, v{vX+3}')
        hb = fetch(o, acc['halo'], vT)
        o.e(f'v_cvt_pk_bf16_f32 v{vT+4}, v{hb}, v{hb+1}'); o.e(f'v_cvt_pk_bf16_f32 v{vT+5}, v{hb+2}, v{hb+3}')
        o.e(f'ds_write_b64 v{vX+2}, v[{vT+4}:{vT+5}] offset:{8*wn}')
        of = 1024 + wn*512
        o.e(f'ds_write_b16 v{vX+3}, v{vT+4} offset:{of}'); o.e(f'ds_write_b16_d16_hi v{vX+3}, v{vT+4} offset:{of+32}')
        o.e(f'ds_write_b16 v{vX+3}, v{vT+5} offset:{of+64}'); o.e(f'ds_write_b16_d16_hi v{vX+3}, v{vT+5} offset:{of+96}')
        o.e('s_mov_b32 s94, 0x3e8293ee'); o.e('s_mov_b32 s95, 0x3e8293ee')
        o.e(f's_lshl_b32 s67, s{sJ}, 17')
        if wn == 0:
            def packqk(o, n0, n1, m):
                d = acc[(n0, m)][1]
                b1 = fetch(o, acc[(n1, m)], vT + 4*(m & 1))
                o.e(f'v_cvt_pk_bf16_f32 v{d}, v{d}, v{d+1}'); o.e(f'v_cvt_pk_bf16_f32 v{d+1}, v{d+2}, v{d+3}')
                o.e(f'v_cvt_pk_bf16_f32 v{d+2}, v{b1}, v{b1+1}'); o.e(f'v_cvt_pk_bf16_f32 v{d+3}, v{b1+2}, v{b1+3}')
                return d
            PV0 = acc[('v0', 0)][1]; PV1 = acc[('v1', 0)][1]
            def packv(o, Pv, m, off):
                b_ = Pv + 4*m
                c1 = f'v_cvt_pk_bf16_f32 v{Pv+2+2*m}, v{b_}, v{b_+1}'; c2 = f'v_cvt_pk_bf16_f32 v{Pv+3+2*m}, v{b_+2}, v{b_+3}'
                for x in ((c2, c1) if m == 0 else (c1, c2)): o.e(x)
                if m >= 3: o.e(f'ds_write_b64 v{vX+1}, v[{Pv+2+2*m}:{Pv+3+2*m}] offset:{(m-3)*2048+off}')
            for m in range(3, 8):
                d = packqk(o, 'k0', 'k1', m); o.e(f'ds_write_b128 v{vX}, v[{d}:{d+3}] offset:{(m-3)*2048}')
            for m in range(4, 8):
                d = packqk(o, 'q0', 'q1', m); o.e(f'ds_write_b128 v{vX}, v[{d}:{d+3}] offset:{10240+(m-4)*1024}')
            for m in range(8): packv(o, PV0, m, 1024)
            for m in range(8): packv(o, PV1, m, 1536)
        else:
            o.e('s_add_u32 s66, s62, 393216'); o.e('s_sub_u32 s61, s62, 131072'); o.e('s_add_u32 s61, s61, 512')
            o.e('s_cmp_eq_u32 s63, 1'); o.e('s_cselect_b32 s66, s61, s66')
            for m in range(8): hblock(o, 'g2', 'u2', 'g3', 'u3', m, 's64', vT)
        period(31, 'Q', side=[x.text for x in o.ins])
        st.at(2, 1); st.at(1, 3)
        a.e('s_waitcnt lgkmcnt(0)'); a.e('s_barrier')
        if wn == 0:
            KP = PV0 + 18; BI = PV1 + 18
            a.e(f's_lshl_b32 s60, s{sWM}, 12'); a.e('s_add_u32 s60, s60, 4096')
            a.e(f'v_subrev_u32 v{vX}, s60, v{vX}'); a.e(f'v_subrev_u32 v{vX+1}, s60, v{vX+1}')
            a.e(f'ds_read_b128 v[{KP}:{KP+3}], v{vX}')
            a.e(f'ds_read_b64 v[{PV0}:{PV0+1}], v{vX+1} offset:1024')
            a.e(f'ds_read_b64 v[{PV1}:{PV1+1}], v{vX+1} offset:1536')
            for m in range(8): hblock(a, 'g0', 'u0', 'g1', 'u1', m, 's62', vT)
            st.at(3, 1); st.at(2, 3)
            for m in range(3): packqk(a, 'k0', 'k1', m)
            for m in range(4): packqk(a, 'q0', 'q1', m)
            for r in range(12): a.e(f'v_accvgpr_read_b32 v{BI+r}, a{aBI+r}')
            blk = [(acc[('q0', m)][1], acc[('k0', m-1)][1] if m else KP, acc[('k0', m)][1], PV0+2*m, PV1+2*m, BI+(8 if m == 0 else 4), BI) for m in range(4)]
            W1 = acc[('g1', 0)][1]; W2 = acc[('u0', 0)][1]
            mo = 0
        else:
            F = acc[('u2', 0)][1]
            KR = F; V0 = F + 20; V1 = F + 30; QR = F + 40; BI = F + 56
            for i_ in range(5):
                a.e(f'ds_read_b128 v[{KR+4*i_}:{KR+4*i_+3}], v{vX} offset:{i_*2048}')
                if i_: a.e(f'ds_read_b128 v[{QR+4*(i_-1)}:{QR+4*(i_-1)+3}], v{vX} offset:{10240+(i_-1)*1024}')
            for i_ in range(5):
                a.e(f'ds_read_b64 v[{V0+2*i_}:{V0+2*i_+1}], v{vX+1} offset:{i_*2048+1024}')
                a.e(f'ds_read_b64 v[{V1+2*i_}:{V1+2*i_+1}], v{vX+1} offset:{i_*2048+1536}')
            for m in range(8): hblock(a, 'g4', 'u4', 'g5', 'u5', m, 's65', vT)
            st.at(3, 1); st.at(2, 3)
            for r in range(8): a.e(f'v_accvgpr_read_b32 v{BI+r}, a{aBI+r}')
            blk = [(QR+4*i_, KR+4*i_, KR+4*i_+4, V0+2*i_, V1+2*i_, BI+4, BI) for i_ in range(4)]
            W1 = acc[('g3', 0)][1]; W2 = acc[('g5', 0)][1]
            mo = 4
        a.e('s_waitcnt lgkmcnt(0)')
        def pair(pr):
            A = Asm(); B = Asm()
            attn1(A, *blk[2*pr], W1, W1+16, XR+8*pr); attn1(B, *blk[2*pr+1], W2, W2+16, XR+8*pr+4)
            zipper(A, B)
        def halves():
            if wn == 1:
                for i_ in range(4):
                    d_ = acc[('g6', 2*i_)][1]
                    hmul(a, 'g6', 'u6', 2*i_, d_, vT); hmul(a, 'g6', 'u6', 2*i_+1, d_+2, vT+4)
                    a.e(f'v_permlane16_swap_b32 v{d_}, v{d_+2}'); a.e(f'v_permlane16_swap_b32 v{d_+1}, v{d_+3}')
                    for r in range(4): a.e(f'v_accvgpr_write_b32 a{4*i_+r}, v{d_+r}')
                a.e(f'v_lshrrev_b32 v{vT}, 4, v{vLANE}'); a.e(f'v_and_b32 v{vT+1}, 1, v{vT}'); a.e(f'v_lshrrev_b32 v{vT+2}, 1, v{vT}')
                a.e(f'v_lshlrev_b32 v{vT}, 8, v{vT}'); a.e(f'v_sub_u32 v{hO+1}, v{vO}, v{vT}')
                a.e(f'v_lshl_add_u32 v{hO+1}, v{vT+1}, 10, v{hO+1}'); a.e(f'v_lshl_add_u32 v{hO+1}, v{vT+2}, 8, v{hO+1}')
                a.e(f'v_add_u32 v{hO+2}, 4096, v{hO+1}')
            else:
                a.e('s_mov_b32 s66, 0x80000000'); a.e(f'v_mov_b32 v{hO+1}, v{vO}'); a.e(f'v_mov_b32 v{hO+2}, v{vO}')
        if cfg.tr2:
            g2_early(a)
            A = Asm(); B = Asm(); D = Asm(); Fl = Asm()
            attn1(A, *blk[0], W1, W1+16, XR); attn1(B, *blk[1], W2, W2+16, XR+4); g2_wdma(D); g2_flagA(Fl, cfg.tr2)
            za = [x.text for p_ in zip(A.ins, B.ins) for x in p_]; zd = [x.text for x in D.ins]
            cnt = 0; cut = 0
            for i_, x in enumerate(zd):
                if x.startswith('buffer'): cnt += 1
                if cnt == cfg.tr2: cut = i_ + 1; break
            k_ = 0
            for i_, x in enumerate(za):
                a.e(x)
                while k_ < cut and k_ < ((i_+1)*cut)//len(za): a.e(zd[k_]); k_ += 1
            for x in Fl.ins: a.e(x.text)
            A = Asm(); B = Asm()
            attn1(A, *blk[2], W1, W1+16, XR+8); attn1(B, *blk[3], W2, W2+16, XR+12)
            za = [x.text for p_ in zip(A.ins, B.ins) for x in p_]; n_ = len(zd) - cut
            for i_, x in enumerate(za):
                a.e(x)
                while k_ < len(zd) and k_ - cut < ((i_+1)*n_)//len(za): a.e(zd[k_]); k_ += 1
        else:
            pair(0)
            g2_flagA(a, 0)
            g2_early(a)
            st.at(3, 3)
            if cfg.ilv:
                A = Asm(); B = Asm(); D = Asm(); Z = Asm()
                attn1(A, *blk[2], W1, W1+16, XR+8); attn1(B, *blk[3], W2, W2+16, XR+12); g2_wdma(D)
                za = [x.text for p_ in zip(A.ins, B.ins) for x in p_]; zd = [x.text for x in D.ins]
                k_ = 0
                for i_, x in enumerate(za):
                    a.e(x)
                    while k_ < len(zd) and k_ < ((i_+1)*len(zd))//len(za): a.e(zd[k_]); k_ += 1
            else:
                g2_wdma(a)
                if wn == 0 and cfg.w0late:
                    a.e(f's_cmp_eq_u32 s{sWAVE}, 0'); a.e('s_cbranch_scc1 L2_skip1')
                pair(1)
                if wn == 0 and cfg.w0late: a.label('L2_skip1')
        halves()
        a.e(f'v_add_u32 v{hO}, {mo*1024}, v{vO}')
        g2_poll_act(wn)
        if wn == 0 and cfg.w0late:
            a.e(f's_cmp_lg_u32 s{sWAVE}, 0'); a.e('s_cbranch_scc1 L2_late')
            pair(1)
        if wn == 0: a.e('s_branch L2_late')

    a.label('L2_late')
    NB = 0
    a.e('s_load_dwordx2 s[56:57], s[0:1], 56')
    a.e('s_load_dwordx2 s[58:59], s[0:1], 0')
    a.e(f's_and_b32 s3, s{sWAVE}, 1')
    a.e(f's_mov_b32 s{gU}, 0')
    a.e(f's_lshl_b32 s60, s{sWM}, 12')
    a.e(f'v_lshl_add_u32 v{hA}, v{vLANE}, 4, s60'); a.e(f'v_add_u32 v{hA+1}, 65536, v{hA}')
    tA, tB, tC, tD = hT2, hT2+1, hT2+2, hT2+3
    a.e(f'v_lshrrev_b32 v{tA}, 2, v{vLANE}')
    a.e(f'v_and_b32 v{tB}, 7, v{tA}'); a.e(f'v_lshlrev_b32 v{tB}, 5, v{tB}')
    a.e(f'v_and_b32 v{tC}, 3, v{vLANE}'); a.e(f'v_lshlrev_b32 v{tC}, 3, v{tC}'); a.e(f'v_add_u32 v{tC}, {WB}, v{tC}')
    a.e(f'v_lshl_add_u32 v{hDH}, v{tA}, 8, v{tC}')
    a.e('s_lshl_b32 s60, s3, 6'); a.e(f's_lshl_b32 s{gKC}, s{gPART}, 7'); a.e(f's_add_u32 s{gKC}, s{gKC}, s60')
    for n in range(4):
        a.e(f's_xor_b32 s61, s{gKC}, {32*(n&1) + 128*(n>>1)}')
        a.e(f'v_xor_b32 v{tD}, s61, v{tB}')
        a.e(f'v_add_u32 v{hW+n}, v{tD}, v{hDH}'); a.e(f'v_add_u32 v{hW+4+n}, 65536, v{hW+n}')
    def areg(par, ks, m): return FR + par*64 + ks*16 + m*4
    def wreg(par, ks, n): return FR + par*64 + 32 + ks*16 + n*4
    def reads(slot, par, nn=4):
        hi = 1 if slot >= 4 else 0
        base = (slot & 3)*16384
        def ar_(ks, m): return [f'ds_read_b128 v[{areg(par,ks,m)}:{areg(par,ks,m)+3}], v{hA+hi} offset:{base + ks*8192 + m*1024}']
        def wr_(ks, n):
            if nn == 2: return [f'ds_read_b64_tr_b16 v[{wreg(par,ks,n)+2*h}:{wreg(par,ks,n)+2*h+1}], v{hWH+2*hi+n} offset:{base + ks*4096 + h*2048}' for h in range(2)]
            return [f'ds_read_b64_tr_b16 v[{wreg(par,ks,n)+2*h}:{wreg(par,ks,n)+2*h+1}], v{hW+4*hi+n} offset:{base + ks*8192 + h*4096}' for h in range(2)]
        L = wr_(0, 0) + ar_(0, 0) + wr_(1, 0) + ar_(1, 0)
        for m in range(1, 4): L += ar_(0, m) + ar_(1, m)
        for n in range(1, nn): L += wr_(0, n) + wr_(1, n)
        return L
    a.e(f's_waitcnt vmcnt({4*(NS-1) + NB})'); a.e('s_barrier')
    st.at(6, 1); st.at(7, 3)
    if st.on: a.e('s_waitcnt lgkmcnt(0)')
    for r in reads(0, 0): a.e(r)
    b = Asm()
    b.e(f's_lshl_b32 s{gM_H}, s{sWAVE}, 11'); b.e(f's_add_u32 s{gM_H}, s{gM_H}, {WB}')
    b.e(f'v_and_b32 v{tB}, 6, v{tA}'); b.e(f'v_lshlrev_b32 v{tB}, 4, v{tB}')
    b.e(f'v_lshl_add_u32 v{tC}, v{tA}, 7, v{tC}')
    b.e('s_lshl_b32 s46, s3, 6')
    for n in range(2):
        b.e(f's_or_b32 s61, s46, {32*n}')
        b.e(f'v_xor_b32 v{tD}, s61, v{tB}')
        b.e(f'v_add_u32 v{hWH+n}, v{tD}, v{tC}'); b.e(f'v_add_u32 v{hWH+2+n}, 65536, v{hWH+n}')
    b.e(f'v_lshrrev_b32 v{tA}, 3, v{vLANE}'); b.e(f'v_and_b32 v{tB}, 6, v{tA}'); b.e(f'v_and_b32 v{tC}, 7, v{vLANE}')
    b.e(f'v_xor_b32 v{tB}, v{tB}, v{tC}')
    b.e('s_lshl_b32 s46, s3, 15'); b.e(f's_lshl_b32 s61, s{gCB}, 8'); b.e('s_or_b32 s46, s46, s61')
    b.e(f's_lshl_b32 s61, s{gPART}, 7'); b.e('s_or_b32 s46, s46, s61')
    b.e(f'v_lshl_add_u32 v{tA}, v{tA}, 11, s46'); b.e(f'v_lshl_add_u32 v{hDH}, v{tB}, 4, v{tA}')
    b.e(f'v_add_u32 v{hDH+1}, 16384, v{hDH}')
    for (d_, lo, nb) in ((G_X, 58, 2048*1024*2), (G_OUT, 56, 2048*1024*2)):
        b.e(f's_mov_b32 s{d_}, s{lo}'); b.e(f's_mov_b32 s{d_+1}, s{lo+1}'); b.e(f's_mov_b32 s{d_+2}, {nb}'); b.e(f's_mov_b32 s{d_+3}, 0x20000')
    b.e(f's_lshl_b32 s46, s{gRB}, 18'); b.e(f's_lshl_b32 s61, s{sWM}, 17'); b.e('s_or_b32 s46, s46, s61')
    b.e(f's_lshl_b32 s61, s{gCB}, 8'); b.e('s_or_b32 s46, s46, s61'); b.e('s_or_b32 s46, s46, s45')
    b.e(f'v_and_b32 v{tB}, 15, v{vLANE}'); b.e(f'v_lshl_add_u32 v{tB}, v{tB}, 11, s46')
    b.e(f'v_lshrrev_b32 v{tA}, 4, v{vLANE}')
    b.e(f'v_and_b32 v{tC}, 1, v{tA}'); b.e(f'v_lshl_add_u32 v{tB}, v{tC}, 5, v{tB}')
    b.e(f'v_lshrrev_b32 v{tC}, 1, v{tA}'); b.e(f'v_lshl_add_u32 v{hXO}, v{tC}, 4, v{tB}')
    b.e(f's_lshl_b32 s46, s{gRB}, 6'); b.e(f's_lshl_b32 s61, s{gCB}, 3'); b.e('s_or_b32 s46, s46, s61')
    b.e(f's_lshl_b32 s61, s{gPART}, 2'); b.e('s_or_b32 s46, s46, s61'); b.e(f's_or_b32 s46, s46, s{sWAVE}')
    b.e('s_xor_b32 s47, s46, 4')
    b.e('s_lshl_b32 s61, s46, 7'); b.e(f'v_mov_b32 v{hFS}, s61')
    b.e('s_lshl_b32 s61, s47, 7'); b.e(f'v_mov_b32 v{hFL}, s61')
    b.e('s_lshl_b32 s46, s46, 12'); b.e('s_lshl_b32 s47, s47, 12')
    b.e(f'v_lshl_add_u32 v{hPS}, v{vLANE}, 4, s46'); b.e(f'v_lshl_add_u32 v{hPL}, v{vLANE}, 4, s47')
    srd(b, G_P, 6, 7, PART_BYTES, PART_OFF)
    b.e(f'v_add_u32 v{hTS+2}, {BFLAG_REL-AFLAG_REL}, v{hTS+2}')
    b.e(f's_lshl_b32 s46, s{sWAVE}, 4'); b.e(f'v_readlane_b32 s47, v{hTS+3}, s46'); b.e(f's_add_u32 s47, s47, {BFLAG_REL-AFLAG_REL}')
    b.e(f'v_bfe_u32 v{tA}, v{vLANE}, 1, 3'); b.e(f'v_lshl_add_u32 v{hTS+3}, v{tA}, 9, s47')
    b.e(f'v_and_b32 v{tA}, 1, v{vLANE}'); b.e(f'v_lshl_add_u32 v{hTS+3}, v{tA}, 7, v{hTS+3}')
    if cfg.g2pf:
        b.e('s_mov_b32 s91, 0x20000'); b.e('s_mov_b32 s88, s68'); b.e('s_mov_b32 s89, s69'); b.e('s_mov_b32 s90, 0')
        b.e(f's_and_b32 s46, s{gRB}, 3'); b.e('s_lshl_b32 s46, s46, 13'); b.e('s_lshl_b32 s47, s3, 15'); b.e('s_or_b32 s46, s46, s47')
        b.e(f's_lshl_b32 s47, s{gCB}, 8'); b.e('s_or_b32 s46, s46, s47')
        b.e(f'v_min_u32 v{tA}, 7, v{vLANE}'); b.e(f'v_lshrrev_b32 v{tB}, 1, v{tA}'); b.e(f'v_lshl_add_u32 v13, v{tB}, 11, s46')
        b.e(f'v_and_b32 v{tB}, 1, v{tA}'); b.e(f'v_lshl_add_u32 v13, v{tB}, 7, v13')
        b.e(f's_lshl_b32 s46, s{gRB}, 13'); b.e('s_lshl_b32 s47, s3, 12'); b.e('s_or_b32 s46, s46, s47'); b.e(f's_lshl_b32 s47, s{gCB}, 9'); b.e('s_or_b32 s46, s46, s47')
        b.e(f'v_min_u32 v{tA}, 3, v{vLANE}'); b.e(f'v_lshl_add_u32 v43, v{tA}, 7, s46')
    b.e('s_mov_b32 s64, 0xffff0000'); b.e('s_mov_b32 s61, 32768'); b.e('s_mov_b32 s62, 65536'); b.e('s_mov_b32 s63, 98304')
    late = [x.text for x in b.ins]
    rowoff = ['0', 's61', 's62', 's63']
    VM2 = 8*(NS-2) + (2*(NS-1) if cfg.g2pf else 0); UN = 2*NS; LS = FS - NS; uexit = (LS - 1) % UN
    def gu_at(step): return UN*len([t_ for t_ in range(cfg.npeel, step) if t_ % UN == uexit])
    hooks = {}
    def hook(name, steps, opnd=None):
        for stp in steps:
            if stp % UN != uexit and stp % UN not in hooks and stp >= cfg.npeel and all(gu_at(stp) != gu_at(o_) for o_ in range(cfg.npeel + (stp - cfg.npeel) % UN, LS, UN) if o_ != stp):
                hooks[stp % UN] = (name, opnd or gu_at(stp)); return stp
        raise RuntimeError(name)
    hN = hook('nat', [NA-2], 's65')
    hC = hook('chk', range(NA-6, NA-9, -1))
    hA_ = hook('ask', range(hC-5, hC-8, -1))
    hF = hook('flg', range(7, 10))
    late.insert(len(late)-4, f's_mul_i32 s65, s{gPART}, {gu_at(hN)+1}'); late.insert(len(late)-4, 's_sub_u32 s65, s65, 1')
    def rec():
        if cfg.stamps != 7: return
        a.e('s_memrealtime s[86:87]'); a.e('s_waitcnt lgkmcnt(0)')
        a.e('v_mov_b32 v28, s86'); a.e(f'v_cmp_eq_u32 vcc, s88, v{vLANE}'); a.e('v_cndmask_b32 v29, v29, v28, vcc'); a.e('s_add_u32 s88, s88, 1')
    if cfg.stamps == 7: a.e('s_mov_b32 s88, 0')
    def full_step(u, wait, inloop, fill=(), head=(), post_vm=()):
        slot = u % NS; par = u & 1
        a.e(f's_waitcnt vmcnt({wait}) lgkmcnt(0)')
        if not (cfg.dbg2 & 2 and inloop): a.e('s_barrier')
        rec()
        for x in head: a.e(x)
        sched = {}
        for i, r in enumerate(reads((slot+1) % NS, par ^ 1) if not (cfg.dbg2 & 4 and inloop) else []): sched.setdefault((i*cfg.rsp)//24 + cfg.rd0, []).append(r)
        if cfg.dsp == 3 or fill or post_vm:
            dl_ = g2_dma(slot)
            if cfg.g2af: dl_ = [(x[0], x[1], []) for x in dl_[4:]] + dl_[:3] + [(dl_[3][0], dl_[3][1], dl_[7][2])]
            if cfg.g2af == 2: dl_ = [dl_[0], dl_[1], dl_[2], dl_[3]] + dl_[4:]
            for i, (pre, ins, post) in enumerate(dl_):
                p = cfg.d0 + 3*i
                for x in pre: sched.setdefault(p-1, []).append(x)
                if not (cfg.dbg2 & 1 and inloop): sched.setdefault(p, []).append(ins)
                for k_, x in enumerate(post): sched.setdefault(min(30, p + 1 + k_//2), []).append(x)
        else:
            for i, (pre, ins, post) in enumerate(g2_dma(slot)):
                p = cfg.d0 + 4*i
                for x in pre: sched.setdefault(p-1, []).append(x)
                sched.setdefault(p, []).append(ins)
            nx = g2_next()
            adv = [nx[0], nx[1], f's_lshl_b32 s89, s{gWO}, 17'] + nx[3:]
            pos = [cfg.d0+13, cfg.d0+14, cfg.d0+17, cfg.d0+17, cfg.d0+18, cfg.d0+18, cfg.d0+19, cfg.d0+19, cfg.d0+21, cfg.d0+22]
            for p_, x in zip(pos, adv): sched.setdefault(p_, []).append(x)
            sched.setdefault(cfg.d0+28, []).append(f's_mov_b32 s{gACT}, s89')
        pos_ = 0
        for k_, x in enumerate(fill):
            if not x.startswith('s_addc'):
                pos_ = (k_*22)//len(fill)
                if k_+1 < len(fill) and fill[k_+1].startswith('s_addc') and pos_ % 3 == 0: pos_ += 1
            sched.setdefault(pos_, []).append(x)
        for k_, x in enumerate(post_vm): sched.setdefault(24 + 2*k_, []).append(x)
        if cfg.g2pf and u >= 3:
            pf_ = [f's_add_u32 s86, s{gIDX}, {cfg.g2pf}', f'v_readlane_b32 s86, v{hSEQ}, s86', 's_lshl_b32 s87, s86, 17', 's_cmp_lt_u32 s86, 32',
                   's_cselect_b32 s88, s92, s68', 's_cselect_b32 s89, s93, s69', f's_cselect_b32 s90, s{gSZ0}, s{gSZ1}', 's_cselect_b32 s85, 0, 32',
                   's_sub_u32 s86, s86, s85', 's_lshl_b32 s86, s86, 16']
            for p_, x in zip((1, 2, 4, 4, 4, 5, 5, 5, 7, 8), pf_): sched.setdefault(p_, []).append(x)
            sched.setdefault(25, []).append('buffer_load_dword v37, v13, s[88:91], s86 offen')
            sched.setdefault(28, []).append(f'buffer_load_dword v37, v43, s[{G_A}:{G_A+3}], s87 offen')
        if inloop and u == uexit:
            sched.setdefault(31, []).append(f's_add_u32 s{gU}, s{gU}, {UN}')
            sched.setdefault(31, []).append(f's_cmp_ge_u32 s{gU}, {LS}')
        if inloop and u in hooks:
            sched.setdefault(31, []).append(f's_cmp_eq_u32 s{gU}, {hooks[u][1]}')
        i = 0
        for n in range(4):
            for m in range(4):
                for ks in range(2):
                    d = ACC + (n*4+m)*4
                    c = '0' if (u == 0 and not inloop and ks == 0) else f'v[{d}:{d+3}]'
                    a.e(f'{MF} v[{d}:{d+3}], v[{wreg(par,ks,n)}:{wreg(par,ks,n)+3}], v[{areg(par,ks,m)}:{areg(par,ks,m)+3}], {c}')
                    for x in sched.get(i, []): a.e(x)
                    i += 1
        if inloop and u in hooks:
            a.e(f's_cbranch_scc1 L2_b{hooks[u][0]}'); a.label(f'L2_bret{hooks[u][0]}')
    NPEEL = cfg.npeel
    assert uexit >= NPEEL or LS > UN
    nl_ = len(late)
    bst = [f'buffer_store_dwordx4 v[{XR+4*i_}:{XR+4*i_+3}], v{hO}, s[{S_O}:{S_O+3}], s67 offen offset:{i_*1024} sc1' for i_ in range(4)] + \
          [f'buffer_store_dwordx4 a[{4*m}:{4*m+3}], v{hO+1+(m>>1)}, s[{S_O}:{S_O+3}], s66 offen offset:{(m&1)*2048} sc1' for m in range(4)]
    q0 = [t_ for t_ in range(1, NS) for _ in range(4)]
    BP = cfg.bper
    assert 8 <= BP*3
    for u in range(NPEEL):
        last = max(i_ for i_, x in enumerate(q0) if x == u+1)
        full_step(u, len(q0) - 1 - last, False, fill=late[(u*nl_)//3:((u+1)*nl_)//3] if u < 3 else (), post_vm=bst[BP*u:BP*u+BP])
        q0 = q0[last+1:] + [u+NS]*8 + ['b']*len(bst[BP*u:BP*u+BP]) + (['p']*2 if cfg.g2pf and u >= 3 else [])
    if cfg.stamps == 10: a.e('s_memtime s[72:73]'); a.e('s_memrealtime s[76:77]')
    a.e('s_branch L2_uin')
    a.label('L2_bnat')
    a.e(f's_and_b32 s3, s{sWAVE}, 1'); a.e('s_mul_i32 s3, s3, -24576')
    for d in range(4):
        a.e(f'v_add_u32 v{hDW+d}, s3, v{hDW+d}'); a.e('s_add_u32 s3, s3, 8192')
    a.e('s_branch L2_bretnat')
    a.label('L2_bflg')
    a.e('s_mov_b64 exec, 1')
    a.e(f'buffer_store_dwordx2 v[{hTS}:{hTS+1}], v{hTS+2}, s[{G_F}:{G_F+3}], 0 offen sc1')
    a.e('s_mov_b64 exec, -1')
    a.e('s_branch L2_bretflg')
    a.label('L2_bask')
    a.e(f'buffer_load_dwordx2 v[{hBF}:{hBF+1}], v{hTS+3}, s[{G_F}:{G_F+3}], 0 offen sc1')
    a.e('s_branch L2_bretask')
    a.label('L2_bchk')
    a.e('s_mov_b32 s3, 0')
    a.label('L2_bspin')
    stamp_ok(a, hBF, 66); a.e('s_cbranch_scc1 L2_bretchk')
    a.e('s_add_u32 s3, s3, 1'); a.e('s_cmp_gt_u32 s3, 0x8000'); a.e('s_cbranch_scc1 L2_bretchk')
    a.e(f'buffer_load_dwordx2 v[{hBF}:{hBF+1}], v{hTS+3}, s[{G_F}:{G_F+3}], 0 offen sc1')
    a.e('s_waitcnt vmcnt(0)'); a.e('s_branch L2_bspin')
    a.label('L2_loop')
    for u in range(UN):
        if u == NPEEL: a.label('L2_uin')
        full_step(u, VM2, True)
        if u == uexit: a.e('s_cbranch_scc1 L2_half')
        if u == UN-1: a.e('s_branch L2_loop')
    a.label('L2_half')
    if cfg.stamps == 10: a.e('s_memtime s[74:75]'); a.e('s_memrealtime s[78:79]')
    q = []
    if cfg.g2pf: q += [('pf', 0)]*2
    for t in range(LS+1, FS): q += [('d', t)]*8 + ([('pf', 0)]*2 if cfg.g2pf else [])
    def wait_for(pred, extra=''):
        last = max([i for i, x in enumerate(q) if pred(x)], default=-1)
        a.e(f's_waitcnt vmcnt({min(len(q) - 1 - last, 63)}){extra}')
        del q[:last+1]
    def fload(): a.e(f'buffer_load_dwordx2 v[{hBF}:{hBF+1}], v{hFL}, s[{G_F}:{G_F+3}], 0 offen sc1')
    def pl():
        for k_ in range(4): a.e(f'buffer_load_dwordx4 v[{ACC+32+4*k_}:{ACC+32+4*k_+3}], v{hPL}, s[{G_P}:{G_P+3}], 0 offen offset:{k_*1024} sc1')
    for t in range(LS, TOT):
        hs = t - FS; slot = t % NS; par = t & 1
        nn = 4 if hs < 0 else 2
        if any(x == ('d', t+1) for x in q): wait_for(lambda x: x == ('d', t+1), ' lgkmcnt(0)')
        else: a.e('s_waitcnt lgkmcnt(0)')
        if t+1 < TOT: a.e('s_barrier')
        rec()
        sched = {}
        def add(i, x, tag=None): sched.setdefault(i, []).append((x, tag))
        if t + 1 < TOT:
            for i, r in enumerate(reads((slot+1) % NS, par ^ 1, 4 if t+1 < FS else 2)): add(i, r)
        extra = []
        if t + NS < TOT:
            for pre, ins, post in g2_dma(slot, compact=True):
                extra += [(x, None) for x in pre] + [(ins, ('d', t+NS))] + [(x, None) for x in (post if t+NS+1 < TOT else [])]
        if hs == max(HS-NS, 1):
            extra += [(f'buffer_load_dwordx4 v[{XR+4*m}:{XR+4*m+3}], v{hXO}, s[{G_X}:{G_X+3}], {rowoff[m]} offen', ('x', 0)) for m in range(4)]
        pub = []
        for k_ in range(4):
            c0 = ACC+32+4*k_; c1 = ACC+48+4*k_
            pub += [(f'v_cvt_pk_bf16_f32 v{c0}, v{c0}, v{c0+1}', None), (f'v_cvt_pk_bf16_f32 v{c0+1}, v{c0+2}, v{c0+3}', None),
                    (f'v_cvt_pk_bf16_f32 v{c0+2}, v{c1}, v{c1+1}', None), (f'v_cvt_pk_bf16_f32 v{c0+3}, v{c1+2}, v{c1+3}', None),
                    (f'buffer_store_dwordx4 v[{c0}:{c0+3}], v{hPS}, s[{G_P}:{G_P+3}], 0 offen offset:{k_*1024} sc1', ('s', 0))]
        if hs == 0 and not cfg.epub: extra += pub
        if hs == -1 and cfg.epub:
            assert not extra
            for k_, (x, tag) in enumerate(pub): add(20 + (k_*12)//len(pub), x, tag)
        for k_, (x, tag) in enumerate(extra): add((k_*8*nn)//max(len(extra), 1), x, tag)
        i = 0
        for n in ((2, 3, 0, 1) if (hs == -1 and cfg.epub) else range(nn)):
            for m in range(4):
                for ks in range(2):
                    d = ACC + (n*4+m)*4
                    a.e(f'{MF} v[{d}:{d+3}], v[{wreg(par,ks,n)}:{wreg(par,ks,n)+3}], v[{areg(par,ks,m)}:{areg(par,ks,m)+3}], v[{d}:{d+3}]')
                    for x, tag in sched.get(i, []):
                        a.e(x)
                        if tag: q.append(tag)
                    i += 1
        if hs == cfg.k2_flg:
            wait_for(lambda x: x[0] == 's')
            a.e('s_mov_b64 exec, 1')
            a.e(f'buffer_store_dwordx2 v[{hTS}:{hTS+1}], v{hFS}, s[{G_F}:{G_F+3}], 0 offen sc1'); q.append(('f', 0))
            a.e('s_mov_b64 exec, -1')
        if hs == HS-2:
            fload(); q.append(('p', 0))
        if hs == HS-1:
            wait_for(lambda x: x[0] == 'p')
    a.e('s_mov_b32 s3, 0')
    a.label('L2_chk')
    stamp_ok(a, hBF, 66); a.e('s_cbranch_scc1 L2_have')
    a.e('s_add_u32 s3, s3, 1'); a.e('s_cmp_gt_u32 s3, 0x40000'); a.e('s_cbranch_scc1 L2_have')
    fload(); a.e('s_waitcnt vmcnt(0)'); a.e('s_branch L2_chk')
    a.label('L2_have')
    rec()
    pl()
    st.at(7, 1)
    for m in range(4):
        Tm = FR + m*8; x = XR + 4*m
        for r in range(4):
            a.e(f'v_lshlrev_b32 v{Tm+2*r}, 16, v{x+r}'); a.e(f'v_and_b32 v{Tm+2*r+1}, s64, v{x+r}')
    for m in range(4):
        x = XR + 4*m; c0 = ACC + 4*m; c1 = ACC + 16 + 4*m; Tm = FR + m*8; pk = ACC + 32 + 4*m; U = FR + 32 + m*8
        a.e('s_waitcnt vmcnt(3)')
        for r in range(4):
            a.e(f'v_lshlrev_b32 v{U+2*r}, 16, v{pk+r}'); a.e(f'v_and_b32 v{U+2*r+1}, s64, v{pk+r}')
        for (c, p) in ((c0, U), (c1, U+4)):
            a.e(f'v_pk_add_f32 {P2(c)}, {P2(c)}, {P2(p)}'); a.e(f'v_pk_add_f32 {P2(c+2)}, {P2(c+2)}, {P2(p+2)}')
        for r in range(4): a.e(f'v_permlane16_swap_b32 v{c0+r}, v{c1+r}')
        a.e(f'v_pk_add_f32 {P2(c0)}, {P2(c0)}, {P2(Tm)}'); a.e(f'v_pk_add_f32 {P2(c0+2)}, {P2(c0+2)}, {P2(Tm+2)}')
        a.e(f'v_pk_add_f32 {P2(c1)}, {P2(c1)}, {P2(Tm+4)}'); a.e(f'v_pk_add_f32 {P2(c1+2)}, {P2(c1+2)}, {P2(Tm+6)}')
        a.e(f'v_cvt_pk_bf16_f32 v{x}, v{c0}, v{c0+1}'); a.e(f'v_cvt_pk_bf16_f32 v{x+1}, v{c0+2}, v{c0+3}')
        a.e(f'v_cvt_pk_bf16_f32 v{x+2}, v{c1}, v{c1+1}'); a.e(f'v_cvt_pk_bf16_f32 v{x+3}, v{c1+2}, v{c1+3}')
        a.e(f'buffer_store_dwordx4 v[{x}:{x+3}], v{hXO}, s[{G_OUT}:{G_OUT+3}], {rowoff[m]} offen' + ['', ' sc1', ' nt'][cfg.ost])
    if st.on:
        a.e('s_waitcnt vmcnt(0)'); st.at(3, 2)
    if cfg.stamps in (7, 8):
        a.e('s_waitcnt vmcnt(0)'); rec()
        srd(a, 92, 6, 7, 1 << 20, STAMP_OFF + (1 << 19))
        a.e('s_lshl_b32 s96, s2, 10'); a.e(f's_lshl_b32 s97, s{sWAVE}, 8'); a.e('s_add_u32 s96, s96, s97')
        a.e(f'v_lshl_add_u32 v{hT2}, v{vLANE}, 2, s96')
        a.e(f'buffer_store_dword v29, v{hT2}, s[92:95], 0 offen')
    if cfg.dbgout:
        a.e('s_waitcnt vmcnt(0)'); a.e('s_memrealtime s[76:77]'); a.e('s_memtime s[88:89]')
        a.e('s_load_dwordx2 s[92:93], s[0:1], 64'); a.e('s_waitcnt lgkmcnt(0)')
        a.e('s_mov_b32 s94, 256'); a.e('s_mov_b32 s95, 0x20000')
        a.e('s_and_b32 s96, s2, 0xfb'); a.e(f's_or_b32 s96, s96, s{sWAVE}'); a.e('s_cmp_lg_u32 s96, 0'); a.e('s_cbranch_scc1 L_end')
        a.e('s_lshl_b32 s96, s2, 3'); a.e(f'v_mov_b32 v{hT2}, s96')
        a.e('s_mov_b64 exec, 1')
        for i in range(1, 8):
            a.e(f's_sub_u32 s97, s{70+2*i}, s70'); a.e(f'v_mov_b32 v{hT2+1}, s97')
            a.e(f'buffer_store_dword v{hT2+1}, v{hT2}, s[92:95], 0 offen offset:{4*i}')
        a.e('s_sub_u32 s97, s88, s86'); a.e(f'v_mov_b32 v{hT2+1}, s97')
        a.e(f'buffer_store_dword v{hT2+1}, v{hT2}, s[92:95], 0 offen offset:0')
        a.e('s_branch L_end')
    st.flush(sWAVE, hT2, hT2+1)
    a.label('L_end')
    a.e('s_endpgm')
    return name

def build(cfg):
    a = Asm()
    a.e('.amdgcn_target "amdgcn-amd-amdhsa--gfx950"'); a.e('.text')
    name = gen(a, cfg)
    for x in a.ins:
        if x.kind == 'vmem' and x.lds: x.text = x.text.replace(' lds', ' sc1 lds')
    a.fix()
    head = open('cdna_kernels/' + NAME + '.s.ref').read().split('\n')
    hdr = [l for l in head[:13] if l.startswith(';') and '@launch' not in l and 'Override' not in l and 'grid=ceil' not in l]
    out = '\n'.join(hdr) + '\n; @launch grid=(256,1,1) block=(256,1,1) lds=163840\n' + a.text()
    out += f'''.section .rodata,"a"
.p2align 6
.amdhsa_kernel {name}
  .amdhsa_next_free_vgpr 512
  .amdhsa_next_free_sgpr 102
  .amdhsa_accum_offset 256
  .amdhsa_group_segment_fixed_size 0
  .amdhsa_kernarg_size 80
  .amdhsa_user_sgpr_count 2
  .amdhsa_user_sgpr_kernarg_segment_ptr 1
  .amdhsa_system_sgpr_workgroup_id_x 1
.end_amdhsa_kernel
'''
    return out

if __name__ == '__main__':
    cfg = Cfg()
    outp = sys.argv[1] if len(sys.argv) > 1 else 'cdna_kernels/' + NAME + '.s'
    for kv in sys.argv[2:]:
        k, v = kv.split('='); assert hasattr(cfg, k), k; setattr(cfg, k, int(v))
    open(outp, 'w').write(build(cfg))
    sys.path.insert(0, 'cdna_kernels')
    import subprocess, cdna_launch as cl
    h = cl.with_harness_metadata(open(outp).read(), NAME + '_kernel', 10, launch_lists=True)
    open('h.s', 'w').write(h)
    r = subprocess.run(['clang', '-x', 'assembler', '-target', 'amdgcn-amd-amdhsa', '-mcpu=gfx950', 'h.s', '-o', 'h.co'], capture_output=True, text=True)
    if r.returncode: print(r.stderr[:1500]); sys.exit(1)
    print('wrote', outp, 'check:', cl.address_register_problem('h.co', NAME + '_kernel', None))
```

```python
import sys
sys.path.insert(0, 'dev')
from asmlib import *

NAME = 'parallel_sum__sliding_local_dilated__glu_gated_bilinear__prompt'
XN_OFF = 0;            XN_BYTES = 32*128*1024
ACT2_OFF = 4 << 20;    ACT2_BYTES = 144*128*1024
PART_OFF = 24 << 20;   PART_BYTES = 1024*4096
FLAG_OFF = 32 << 20
PFLAG_REL = 0; XFLAG_REL = 256 << 10; AFLAG_REL = 512 << 10; BFLAG_REL = 640 << 10
STAMP_OFF = 40 << 20

class Cfg:
    stamps = 0
    pfd = 8; pf3n = 56; pf3w = 27; f0ne = 4; f0sl = 0
    k2_fs = 34; k2_flg = 2; k2_chk = 3
    g1sl = 0
    ncpf = 6
    pmap = 2
    mp = 3
    ms0 = 0
    ms1 = 0
    tr2 = 0
    g2pf = 0
    g2af = 0
    dbg2 = 0
    afirst = 1
    vsp = 4
    dbg = 0
    dsp = 3
    d0 = 1
    rd0 = 0
    rsp = 24
    pfx = 1
    hk = 0
    wlate = 0
    cpf2 = 0
    w0late = 0
    epub = 1
    ost = 0
    ilv = 0
    bper = 3
    npeel = 7
    fa_at = 2
    def __init__(self, **kw):
        for k, v in kw.items(): setattr(self, k, v)

def srd(a, d, lo, hi, nbytes, off=0):
    if off:
        a.e(f's_add_u32 s{d}, s{lo}, {off}'); a.e(f's_addc_u32 s{d+1}, s{hi}, 0')
    else:
        a.e(f's_mov_b32 s{d}, s{lo}'); a.e(f's_mov_b32 s{d+1}, s{hi}')
    a.e(f's_mov_b32 s{d+2}, {nbytes}'); a.e(f's_mov_b32 s{d+3}, 0x20000')

def code_pf(a, start, end, vlane, vtmp, vdum, spc, nins):
    a.e(f's_getpc_b64 s[{spc}:{spc+1}]')
    lab = f'Lpc_{start}'
    a.label(lab)
    a.e(f's_add_u32 s{spc}, s{spc}, {start}-{lab}')
    a.e(f's_addc_u32 s{spc+1}, s{spc+1}, 0')
    for i in range(nins):
        a.e(f'v_lshlrev_b32 v{vtmp}, 7, v{vlane}')
        if i: a.e(f'v_add_u32 v{vtmp}, {i*8192}, v{vtmp}')
        a.e(f'v_min_u32 v{vtmp}, {end}-{start}-4, v{vtmp}')
        a.e(f'global_load_dword v{vdum}, v{vtmp}, s[{spc}:{spc+1}]')

class Stamper:
    def __init__(self, a, on): self.a = a; self.on = on
    def at(self, i, mode=1):
        if self.on == mode or (self.on and i == 0): self.a.e(f's_memrealtime s[{70+2*i}:{71+2*i}]')
    def flush(self, wave, vt0, vt1):
        if not self.on: return
        a = self.a
        a.e('s_waitcnt lgkmcnt(0)')
        srd(a, 92, 6, 7, 1 << 20, STAMP_OFF)
        a.e('s_lshl_b32 s96, s2, 8'); a.e(f's_lshl_b32 s97, s{wave}, 6'); a.e('s_add_u32 s96, s96, s97')
        a.e(f'v_mov_b32 v{vt0}, s96')
        a.e('s_mov_b64 exec, 1')
        for i in range(8):
            a.e(f'v_mov_b32 v{vt1}, s{70+2*i}')
            a.e(f'buffer_store_dword v{vt1}, v{vt0}, s[92:95], 0 offen offset:{4*i}')
        a.e('s_mov_b64 exec, -1')

class LgkmTracker:
    def __init__(self, a): self.a = a; self.q = []
    def read(self, text):
        self.a.e(text); self.q.append(set(Ins(text).dst))
    def other(self): self.q.append(set())
    def need(self, regs):
        regs = set(regs); last = -1
        for i, d in enumerate(self.q):
            if d & regs: last = i
        if last < 0: return
        n = min(len(self.q) - 1 - last, 15)
        self.a.e(f's_waitcnt lgkmcnt({n})')
        self.q = self.q[len(self.q) - n:] if n else []
    def drain(self): self.q = []
    def state(self): return [tuple(sorted(x)) for x in self.q]

def P2(r): return f'v[{r}:{r+1}]'
def AR(r): return f'a[{r}:{r+3}]'
MF = 'v_mfma_f32_16x16x32_bf16'

L1_W = 65536; L1_HALO = 147456; L1_STAT = 151552
sT0 = 100; sCHK = 101; sWAVE = 51; BACK = 2500; WIN = 1 << 17

def stamp_ok(a, v, stmp):
    a.e(f'v_xor_b32 v{v+1}, v{v}, v{v+1}'); a.e(f'v_subrev_u32 v{v}, s{sT0}, v{v}')
    a.e(f'v_lshrrev_b32 v{v}, 17, v{v}')
    a.e(f'v_cmp_eq_u32 vcc, s{sCHK}, v{v+1}'); a.e(f'v_cmp_eq_u32 s[{stmp}:{stmp+1}], 0, v{v}')
    a.e(f's_and_b64 vcc, vcc, s[{stmp}:{stmp+1}]')
    a.e('s_cmp_eq_u64 vcc, exec')

def poll_masked(a, lab, v, vaddr, srd_, stmp, scnt, sleep):
    a.e(f's_mov_b32 s{scnt}, 0')
    a.label(lab)
    a.e(f'buffer_load_dwordx2 v[{v}:{v+1}], v{vaddr}, s[{srd_}:{srd_+3}], 0 offen sc1')
    a.e(f's_add_u32 s{scnt}, s{scnt}, 1')
    a.e('s_waitcnt vmcnt(0)')
    a.e(f'v_xor_b32 v{v+1}, v{v}, v{v+1}'); a.e(f'v_subrev_u32 v{v}, s{sT0}, v{v}')
    a.e(f'v_lshrrev_b32 v{v}, 17, v{v}')
    a.e(f'v_cmp_ne_u32 vcc, s{sCHK}, v{v+1}'); a.e(f'v_cmp_ne_u32 s[{stmp}:{stmp+1}], 0, v{v}')
    a.e(f's_or_b64 exec, vcc, s[{stmp}:{stmp+1}]')
    a.e(f's_cbranch_execz {lab}_done')
    if sleep: a.e(f's_sleep {sleep}')
    a.e(f's_cmp_lt_u32 s{scnt}, 0x8000'); a.e(f's_cbranch_scc1 {lab}')
    a.label(f'{lab}_done')
    a.e('s_mov_b64 exec, -1')

def gen(a, cfg):
    name = NAME + '_kernel'
    a.e(f'.globl {name}'); a.e('.p2align 8'); a.e(f'.type {name},@function'); a.label(name)
    st = Stamper(a, cfg.stamps)
    S_XN = 8; S_W = 12; S_O = 32
    sACT = 36; sWO = 37; sWS = 42; sM_ACT = 47; sM_W = 48; sM_H = 49; sCNT = 50; sWM = 52; sRB = 54; sJ = 55
    S_PF = 88; sPFO = 86; sPFS = 87
    vLANE = 1; vDA = 2; vDH = 3; vDW = 4
    vA = 9; vHA = 10; vGU = 11; vQa = 13; vQb = 15; vHW = 17; vPF = 19; vT = 20; vDUM = 31
    aBI = 200
    a.e('s_cmp_ge_u32 s2, 256'); a.e('s_cbranch_scc1 L_end')
    st.at(0)
    a.e('s_load_dwordx2 s[96:97], s[0:1], 0')
    a.e('s_load_dwordx2 s[4:5], s[0:1], 8')
    a.e('s_load_dwordx4 s[56:59], s[0:1], 32')
    a.e('s_load_dwordx2 s[6:7], s[0:1], 72')
    a.e('s_load_dwordx2 s[68:69], s[0:1], 48')
    a.e('s_load_dwordx2 s[92:93], s[0:1], 16')
    a.e('s_memrealtime s[60:61]')
    a.e(f'v_lshrrev_b32 v{vT}, 6, v0')
    a.e(f'v_and_b32 v{vLANE}, 63, v0')
    a.e(f'v_readfirstlane_b32 s{sWAVE}, v{vT}')
    a.e(f's_cmp_lg_u32 s{sWAVE}, 3'); a.e('s_cbranch_scc1 L1_nocpf0')
    code_pf(a, 'L1_nocpf0', 'L1_wn1', vLANE, 134, 135, 94, 1)
    a.label('L1_nocpf0')
    a.e(f'v_lshrrev_b32 v128, 3, v{vLANE}'); a.e(f'v_and_b32 v129, 7, v{vLANE}')
    if cfg.pmap == 0: a.e('s_mov_b32 s53, s2')
    elif cfg.pmap == 1: a.e('s_xor_b32 s53, s2, 1')
    else:
        a.e('s_and_b32 s53, s2, 7'); a.e('s_lshl_b32 s53, s53, 5'); a.e('s_lshr_b32 s3, s2, 3'); a.e('s_or_b32 s53, s53, s3')
    a.e('s_lshl_b32 s3, s53, 14')
    a.e('v_lshl_add_u32 v130, v128, 11, s3'); a.e(f'v_lshl_add_u32 v130, v{vT}, 9, v130'); a.e('v_lshl_add_u32 v130, v129, 4, v130')
    a.e('s_mov_b32 s98, 0x400000'); a.e('s_mov_b32 s99, 0x20000')
    a.e('s_waitcnt lgkmcnt(0)')
    for it in range(4): a.e(f'buffer_load_dwordx4 v[{32+4*it}:{35+4*it}], v130, s[96:99], 0 offen offset:{it*128}')
    a.e(f's_sub_u32 s{sT0}, s60, {BACK}')
    a.e(f's_not_b32 s{sCHK}, s61')
    a.e(f's_and_b32 s{sJ}, s2, 7'); a.e(f's_lshl_b32 s{sJ}, s{sJ}, 2')
    a.e('s_lshr_b32 s3, s2, 3')
    a.e(f's_lshr_b32 s{sRB}, s3, 2'); a.e('s_and_b32 s3, s3, 3'); a.e(f's_add_u32 s{sJ}, s{sJ}, s3')
    a.e(f's_lshr_b32 s{sWM}, s{sWAVE}, 1')
    a.e(f's_lshl_b32 s62, s{sJ}, 6'); a.e(f's_mul_i32 s63, s{sJ}, 224')
    a.e(f's_and_b32 s64, s{sJ}, 1'); a.e('s_lshl_b32 s64, s64, 1')
    a.e('s_movk_i32 s65, 6144'); a.e('s_movk_i32 s66, 7168')
    for w in (1, 2, 3):
        a.e(f's_cmp_eq_u32 s{sWAVE}, {w}'); a.e(f's_cbranch_scc1 L1_set{w}')
    for w in range(4):
        if w: a.label(f'L1_set{w}')
        t0, t1, t2, t3 = vT+1, vT+2, vT+3, vT+4
        if w < 3:
            a.e(f'v_mul_u32_u24 v{t0}, 21846, v{vLANE}'); a.e(f'v_lshrrev_b32 v{t0}, 16, v{t0}')
            a.e(f'v_mul_u32_u24 v{t1}, 3, v{t0}'); a.e(f'v_sub_u32 v{t1}, v{vLANE}, v{t1}')
            a.e(f's_lshl_b32 s60, s{sRB}, 2'); a.e(f'v_add_u32 v{t0}, s60, v{t0}')
            if w == 0:
                a.e(f'v_lshlrev_b32 v{t1}, 11, v{t1}'); a.e(f'v_add_u32 v{t1}, s62, v{t1}')
            else:
                a.e(f'v_lshlrev_b32 v{t1}, 7, v{t1}'); a.e(f'v_min_u32 v{t1}, 220, v{t1}'); a.e(f'v_add_u32 v{t1}, s63, v{t1}')
            a.e(f'v_mad_u32_u24 v{vPF}, v{t0}, s{65 if w == 0 else 66}, v{t1}')
            nl = 12
            a.e(f's_mov_b32 s{sPFS}, {32*(6144 if w == 0 else 7168)}'); a.e(f's_mov_b32 s{sPFO}, 0')
            srd(a, S_PF, *((4, 5, 1024*3072*2), (56, 57, 1024*3584*2), (58, 59, 1024*3584*2))[w])
        else:
            a.e(f'v_lshlrev_b32 v{vPF}, 7, v{vLANE}')
            nl = cfg.pf3n
            a.e(f's_mov_b32 s{sPFS}, {nl*128}'); a.e(f's_mov_b32 s{sPFO}, {(-(cfg.pf3w + cfg.pfd-3)*nl*128) & 0xffffffff}')
            a.e(f's_mul_i32 s60, s2, {224*128}')
            a.e(f's_add_u32 s{S_PF}, s68, s60'); a.e(f's_addc_u32 s{S_PF+1}, s69, 0')
            a.e(f's_mov_b32 s{S_PF+2}, {224*128}'); a.e(f's_mov_b32 s{S_PF+3}, 0x20000')
        a.e(f'v_mov_b32 v{t2}, 0x80000000')
        a.e(f'v_cmp_gt_u32 vcc, {nl}, v{vLANE}')
        a.e(f'v_cndmask_b32 v{vPF}, v{t2}, v{vPF}, vcc')
        for _ in range(cfg.f0ne if not cfg.pfx else cfg.pfx-1):
            a.e(f'buffer_load_dword v{vDUM}, v{vPF}, s[{S_PF}:{S_PF+3}], s{sPFO} offen'); a.e(f's_add_u32 s{sPFO}, s{sPFO}, s{sPFS}')
        for d in range(5):
            p = 5*w + d
            if p < 6: kind, pl, C, magic = 'q', p, 12, 5462
            elif p < 13: kind, pl, C, magic = 'g', p-6, 14, 4682
            else: kind, pl, C, magic = 'u', p-13, 14, 4682
            a.e(f'v_add_u32 v{t0}, {64*pl}, v{vLANE}')
            a.e(f'v_mul_u32_u24 v{t1}, {magic}, v{t0}')
            a.e(f'v_lshrrev_b32 v{t1}, 16, v{t1}')
            a.e(f'v_mul_u32_u24 v{t2}, {C}, v{t1}')
            a.e(f'v_sub_u32 v{t0}, v{t0}, v{t2}')
            if kind == 'q':
                a.e(f'v_lshrrev_b32 v{t2}, 1, v{t1}'); a.e(f'v_and_b32 v{t2}, 2, v{t2}')
                a.e(f'v_xor_b32 v{t0}, v{t0}, v{t2}')
                a.e(f'v_lshrrev_b32 v{t2}, 2, v{t0}'); a.e(f'v_lshlrev_b32 v{t2}, 11, v{t2}')
                a.e(f'v_and_b32 v{t0}, 3, v{t0}')
                a.e(f'v_lshl_add_u32 v{t0}, v{t0}, 4, v{t2}')
                a.e(f'v_add_u32 v{t0}, s62, v{t0}')
            else:
                a.e(f'v_add_u32 v{t0}, s64, v{t0}')
                a.e(f'v_subrev_u32 v{t2}, 14, v{t0}')
                a.e(f'v_min_u32 v{t0}, v{t0}, v{t2}')
                a.e(f'v_lshl_add_u32 v{t0}, v{t0}, 4, s63')
            a.e(f'v_and_b32 v{t2}, 3, v{t1}')
            a.e(f'v_bfe_u32 v{t3}, v{t1}, 2, 2')
            a.e(f'v_lshl_add_u32 v{t2}, v{t3}, 3, v{t2}')
            a.e(f'v_lshrrev_b32 v{t3}, 4, v{t1}')
            a.e(f'v_lshl_add_u32 v{t2}, v{t3}, 2, v{t2}')
            a.e(f'v_mad_u32_u24 v{vDW+d}, v{t2}, s{65 if kind == "q" else 66}, v{t0}')
            srd(a, S_W+4*d, *{'q': (4, 5, 1024*3072*2), 'g': (56, 57, 1024*3584*2), 'u': (58, 59, 1024*3584*2)}[kind])
            a.e(f's_mov_b32 s{sWS+d}, {32*(6144 if kind == "q" else 7168)}')
        if w < 3: a.e('s_branch L1_setdone')
    a.label('L1_setdone')
    srd(a, S_XN, 6, 7, XN_BYTES)
    srd(a, 96, 6, 7, 1 << 20, FLAG_OFF)
    a.e('v_lshrrev_b32 v131, 2, v129'); a.e(f'v_lshl_add_u32 v131, v{vT}, 3, v131'); a.e('v_lshlrev_b32 v131, 17, v131')
    a.e('v_and_b32 v132, 3, v129'); a.e('v_lshl_add_u32 v131, v132, 8, v131'); a.e('v_lshl_add_u32 v131, v128, 4, v131')
    a.e('s_lshr_b32 s60, s53, 1'); a.e('s_lshl_b32 s60, s60, 10'); a.e('s_and_b32 s61, s53, 1'); a.e('s_lshl_b32 s61, s61, 7'); a.e('s_add_u32 s60, s60, s61')
    a.e('v_add_u32 v131, s60, v131')
    a.e('v_lshlrev_b32 v132, 5, v128'); a.e(f'v_add_u32 v132, {L1_STAT}, v132'); a.e(f'v_lshl_add_u32 v133, v{vT}, 3, v132')
    a.e('s_mov_b32 s60, 0xffff0000'); a.e('s_mov_b32 s61, 262144'); a.e('s_mov_b32 s62, 524288'); a.e('s_mov_b32 s63, 786432')
    a.e('v_mov_b32 v120, 0x43800000'); a.e('v_mov_b32 v121, 0x3727c5ac'); a.e('v_mov_b32 v122, 0x3a800000')
    st.at(4, 2)
    a.e(f's_waitcnt vmcnt({cfg.f0ne if not cfg.pfx else cfg.pfx-1})')
    st.at(5, 2)
    if cfg.pfx:
        for _ in range(cfg.f0ne - (cfg.pfx-1)):
            a.e(f'buffer_load_dword v{vDUM}, v{vPF}, s[{S_PF}:{S_PF+3}], s{sPFO} offen'); a.e(f's_add_u32 s{sPFO}, s{sPFO}, s{sPFS}')
    if cfg.hk:
        a.e(f's_cmp_lg_u32 s{sWAVE}, 3'); a.e('s_cbranch_scc1 L1_hkd')
        code_pf(a, 'L1_polled', 'L_end', vLANE, 134, 135, 94, cfg.ncpf)
        a.e('s_mov_b32 s94, 0x200000'); a.e('s_mov_b32 s95, 0x20000')
        a.e('s_lshl_b32 s3, s2, 13'); a.e(f'v_lshlrev_b32 v134, 7, v{vLANE}')
        a.e('buffer_load_dword v135, v134, s[92:95], s3 offen')
        a.label('L1_hkd')
    X = 48; T = 80
    def red8(r):
        a.e(f'v_add_f32_dpp v{r}, v{r}, v{r} quad_perm:[1,0,3,2] row_mask:0xf bank_mask:0xf')
        a.e(f'v_add_f32_dpp v{r}, v{r}, v{r} quad_perm:[2,3,0,1] row_mask:0xf bank_mask:0xf')
        a.e(f'v_add_f32_dpp v{r}, v{r}, v{r} row_half_mirror row_mask:0xf bank_mask:0xf')
    def tree():
        for sp in (4, 2, 1):
            for i_ in range(sp): a.e(f'v_pk_add_f32 {P2(T+2*i_)}, {P2(T+2*i_)}, {P2(T+2*i_+2*sp)}')
    for i_ in range(16):
        a.e(f'v_lshlrev_b32 v{X+2*i_}, 16, v{32+i_}'); a.e(f'v_and_b32 v{X+2*i_+1}, s60, v{32+i_}')
    for i_ in range(8): a.e(f'v_pk_add_f32 {P2(T+2*i_)}, {P2(X+4*i_)}, {P2(X+4*i_+2)}')
    tree()
    a.e(f'v_add_f32 v{T}, v{T}, v{T+1}'); red8(T)
    a.e(f'v_mul_f32 v96, 0xbb800000, v{T}'); a.e('v_mov_b32 v97, v96')
    for i_ in range(16): a.e(f'v_pk_add_f32 {P2(X+2*i_)}, {P2(X+2*i_)}, v[96:97]')
    for i_ in range(8): a.e(f'v_pk_mul_f32 {P2(T+2*i_)}, {P2(X+4*i_)}, {P2(X+4*i_)}')
    for i_ in range(8): a.e(f'v_pk_fma_f32 {P2(T+2*i_)}, {P2(X+4*i_+2)}, {P2(X+4*i_+2)}, {P2(T+2*i_)}')
    tree()
    a.e(f'v_add_f32 v97, v{T}, v{T+1}'); red8(97)
    a.e('ds_write_b64 v133, v[96:97]')
    a.e('s_waitcnt lgkmcnt(0)'); a.e('s_barrier')
    st.at(6, 2)
    a.e('ds_read_b128 v[100:103], v132'); a.e('ds_read_b128 v[104:107], v132 offset:16')
    a.e('s_waitcnt lgkmcnt(0)')
    a.e('v_pk_add_f32 v[108:109], v[100:101], v[102:103]'); a.e('v_pk_add_f32 v[110:111], v[104:105], v[106:107]')
    a.e('v_pk_add_f32 v[108:109], v[108:109], v[110:111]')
    a.e('v_mul_f32 v108, 0x3e800000, v108')
    for r in (100, 102, 104, 106): a.e(f'v_sub_f32 v{r}, v{r}, v108')
    a.e('v_mul_f32 v110, v100, v100'); a.e('v_mul_f32 v111, v102, v102'); a.e('v_fmac_f32 v110, v104, v104'); a.e('v_fmac_f32 v111, v106, v106')
    a.e('v_add_f32 v110, v110, v111')
    a.e('v_fmac_f32 v109, v110, v120'); a.e('v_fmac_f32 v121, v109, v122')
    a.e('v_rsq_f32 v120, v121')
    a.e('v_sub_f32 v122, v108, v96'); a.e('v_mov_b32 v121, v120'); a.e('v_mul_f32 v122, v122, v120'); a.e('v_mov_b32 v123, v122')
    so_ = ['0', 's61', 's62', 's63']
    for it in range(4):
        for i_ in range(4*it, 4*it+4): a.e(f'v_pk_fma_f32 {P2(X+2*i_)}, {P2(X+2*i_)}, v[120:121], v[122:123]')
        for i_ in range(4*it, 4*it+4): a.e(f'v_cvt_pk_bf16_f32 v{32+i_}, v{X+2*i_}, v{X+2*i_+1}')
        a.e(f'buffer_store_dwordx4 v[{32+4*it}:{35+4*it}], v131, s[{S_XN}:{S_XN+3}], {so_[it]} offen sc1')
    st.at(7, 2)
    a.e(f's_lshl_b32 s{sM_ACT}, s{sWAVE}, 12')
    a.e(f's_mul_i32 s{sM_W}, s{sWAVE}, 5120'); a.e(f's_add_u32 s{sM_W}, s{sM_W}, {L1_W}')
    a.e(f's_lshl_b32 s{sM_H}, s{sWAVE}, 8'); a.e(f's_add_u32 s{sM_H}, s{sM_H}, {L1_HALO}')
    a.e(f's_mov_b32 s{sACT}, 0')
    for d in range(5): a.e(f's_mov_b32 s{sWO+d}, 0')
    def dma_list(slot):
        L = []
        for d in range(5):
            L.append((f's_add_u32 m0, s{sM_W}, {slot*20480 + d*1024}',
                      f'buffer_load_dwordx4 v{vDW+d}, s[{S_W+4*d}:{S_W+4*d+3}], s{sWO+d} offen lds',
                      f's_add_u32 s{sWO+d}, s{sWO+d}, s{sWS+d}'))
        for d in range(4):
            L.append((f's_add_u32 m0, s{sM_ACT}, {slot*16384}' if d == 0 else None,
                      f'buffer_load_dwordx4 v{vDA}, s[{S_XN}:{S_XN+3}], s{sACT} offen offset:{d*1024} lds', None))
        L.append((f's_add_u32 m0, s{sM_H}, {slot*1024}',
                  f'buffer_load_dword v{vDH}, s[{S_XN}:{S_XN+3}], s{sACT} offen lds', f's_add_u32 s{sACT}, s{sACT}, 131072'))
        L.append((None, f'buffer_load_dword v{vDUM}, v{vPF}, s[{S_PF}:{S_PF+3}], s{sPFO} offen', f's_add_u32 s{sPFO}, s{sPFO}, s{sPFS}'))
        return L
    def flat(dl): return [x for t_ in dl for x in t_ if x]
    VMW = 12
    if not cfg.wlate:
        for x in flat(dma_list(0)[:5] + dma_list(1)[:5]): a.e(x)
    latepf = [dma_list(0)[10]]*(cfg.pfd-1-cfg.f0ne)
    srd(a, S_O, 6, 7, ACT2_BYTES, ACT2_OFF)
    a.e(f's_lshl_b32 s60, s{sRB}, 14'); a.e(f's_lshl_b32 s61, s{sWAVE}, 12'); a.e('s_add_u32 s61, s61, s60')
    a.e(f'v_lshl_add_u32 v{vDA}, v{vLANE}, 4, s61')
    a.e('s_max_u32 s60, s60, 1024'); a.e('s_sub_u32 s60, s60, 1024')
    a.e(f's_lshl_b32 s61, s{sWAVE}, 8'); a.e('s_add_u32 s61, s61, s60')
    a.e(f'v_lshl_add_u32 v{vDH}, v{vLANE}, 2, s61')
    a.e(f's_lshl_b32 s60, s{sRB}, 5'); a.e('s_sub_u32 s60, s60, 2')
    a.e(f'v_min_u32 v134, 33, v{vLANE}'); a.e('v_add_u32 v134, s60, v134'); a.e('v_max_i32 v134, 0, v134'); a.e('v_lshlrev_b32 v134, 7, v134')
    a.e(f'v_add_u32 v134, {XFLAG_REL}, v134')
    a.e('s_lshl_b32 s60, s53, 7'); a.e(f's_add_u32 s60, s60, {XFLAG_REL}'); a.e('v_mov_b32 v135, s60')
    a.e(f's_add_u32 s60, s{sT0}, {BACK}'); a.e('v_mov_b32 v136, s60'); a.e(f'v_xor_b32 v137, s{sCHK}, v136')
    t0, t1, t2 = vT, vT+1, vT+2
    a.e(f's_lshl_b32 s60, s{sWM}, 13')
    a.e(f'v_lshl_add_u32 v{vA}, v{vLANE}, 4, s60')
    a.e(f'v_lshlrev_b32 v{vHA}, 4, v{vLANE}'); a.e(f'v_add_u32 v{vHA}, {L1_HALO}, v{vHA}')
    a.e(f'v_lshrrev_b32 v{t0}, 2, v{vLANE}')
    a.e(f'v_and_b32 v{t1}, 3, v{vLANE}'); a.e(f'v_lshlrev_b32 v{t1}, 3, v{t1}'); a.e(f'v_add_u32 v{t1}, {L1_W}, v{t1}')
    a.e(f'v_mul_u32_u24 v{t2}, 224, v{t0}'); a.e(f'v_add_u32 v{vGU}, v{t2}, v{t1}'); a.e(f'v_add_u32 v{vGU+1}, 40960, v{vGU}')
    a.e(f'v_mul_u32_u24 v{t2}, 192, v{t0}'); a.e(f'v_add_u32 v{t2}, v{t2}, v{t1}')
    a.e(f'v_lshlrev_b32 v{t0}, 1, v{vLANE}'); a.e(f'v_and_b32 v{t0}, 32, v{t0}')
    a.e(f'v_add_u32 v{vQa}, v{t2}, v{t0}'); a.e(f'v_sub_u32 v{vQb}, v{t2}, v{t0}')
    a.e(f'v_add_u32 v{vQa+1}, 40960, v{vQa}'); a.e(f'v_add_u32 v{vQb+1}, 40960, v{vQb}')
    a.e(f's_lshl_b32 s60, s{sWAVE}, 5'); a.e('s_add_u32 s60, s60, 64')
    a.e(f'v_xor_b32 v{t0}, s60, v{t0}')
    a.e(f'v_add_u32 v{vHW}, v{t2}, v{t0}'); a.e(f'v_add_u32 v{vHW+1}, 40960, v{vHW}')
    a.e(f's_mov_b32 s{sCNT}, 0')
    a.e(f's_waitcnt vmcnt({0 if cfg.wlate else 10})'); a.e('s_barrier')
    st.at(1, 2)
    a.e(f's_cmp_eq_u32 s{sWAVE}, 0'); a.e('s_cbranch_scc1 L1_pub')
    if cfg.hk: a.e('s_branch L1_consts')
    else:
        a.e(f's_cmp_eq_u32 s{sWAVE}, 2'); a.e('s_cbranch_scc1 L1_consts')
        a.e(f's_cmp_eq_u32 s{sWAVE}, 1'); a.e('s_cbranch_scc1 L1_wopf')
        code_pf(a, 'L1_polled', 'L_end', vLANE, 134, 135, 94, cfg.ncpf)
        a.e('s_branch L1_consts')
        a.label('L1_wopf')
        a.e('s_mov_b32 s94, 0x200000'); a.e('s_mov_b32 s95, 0x20000')
        a.e('s_lshl_b32 s60, s2, 13'); a.e(f'v_lshlrev_b32 v134, 7, v{vLANE}')
        a.e('buffer_load_dword v135, v134, s[92:95], s60 offen')
        a.e('s_branch L1_consts')
    a.label('L1_pub')
    a.e('s_mov_b64 exec, 1')
    a.e('buffer_store_dwordx2 v[136:137], v135, s[96:99], 0 offen sc1')
    a.e('s_mov_b64 exec, -1')
    a.label('L1_consts')
    if cfg.wlate:
        for x in flat(dma_list(0)[:5] + dma_list(1)[:5]): a.e(x)
    a.e(f'v_and_b32 v{t0}, 15, v{vLANE}'); a.e(f'v_lshrrev_b32 v{t1}, 4, v{vLANE}'); a.e(f'v_lshlrev_b32 v{t1}, 2, v{t1}')
    a.e(f'v_sub_u32 v{t0}, v{t0}, v{t1}')
    a.e(f'v_mov_b32 v{vT+3}, 0xf149f2ca')
    a.e(f's_or_b32 s60, s{sRB}, s{sWM}'); a.e('s_cmp_eq_u32 s60, 0'); a.e('s_cselect_b64 s[60:61], -1, 0')
    for isprev in range(2):
        for r in range(4):
            a.e(f'v_add_u32 v{t1}, {16*isprev - r}, v{t0}')
            a.e(f'v_and_b32 v{t2}, 0xfffffff1, v{t1}')
            a.e(f'v_cmp_eq_u32 vcc, 0, v{t2}')
            a.e(f'v_cndmask_b32_e64 v{vT+4}, v{vT+3}, 0, vcc')
            a.e(f'v_accvgpr_write_b32 a{aBI+4*isprev+r}, v{vT+4}')
            if isprev:
                a.e(f'v_cndmask_b32_e64 v{vT+4}, v{vT+4}, v{vT+3}, s[60:61]')
                a.e(f'v_accvgpr_write_b32 a{aBI+8+r}, v{vT+4}')
    a.e(f'v_mov_b32 v{vT+4}, 0x3f803f80')
    for r in range(4): a.e(f'v_accvgpr_write_b32 a{aBI+12+r}, v{vT+4}')
    a.e(f's_cmp_lg_u32 s{sWAVE}, 0'); a.e('s_cbranch_scc1 L1_polled')
    if cfg.mp & 1: poll_masked(a, 'L1_poll', 138, 134, 96, 60, 62, cfg.ms0)
    else:
        a.e('s_mov_b32 s62, 0')
        if cfg.f0sl: a.e(f's_sleep {cfg.f0sl}')
        a.label('L1_poll')
        a.e('buffer_load_dwordx2 v[138:139], v134, s[96:99], 0 offen sc1')
        a.e('s_add_u32 s62, s62, 1')
        a.e('s_waitcnt vmcnt(0)')
        stamp_ok(a, 138, 60); a.e('s_cbranch_scc1 L1_polled')
        a.e('s_cmp_lt_u32 s62, 0x8000'); a.e('s_cbranch_scc1 L1_poll')
    a.label('L1_polled')
    a.e('s_barrier')
    for x in flat(dma_list(0)[5:10] + dma_list(1)[5:10] + latepf): a.e(x)
    a.e(f's_and_b32 s60, s{sWAVE}, 1'); a.e('s_cmp_eq_u32 s60, 1'); a.e('s_cbranch_scc1 L1_wn1')

    NS = 5; FS = cfg.k2_fs; HS = 2*(36-FS); TOT = FS + HS; WB = NS*16384
    G_A = 8; G_W = 12; G_P = 16; G_X = 20; G_OUT = 24
    gACT = 36; gWO = 37; gM_A = 38; gM_W = 39; gU = 40; gPART = 41; gRB = 42; gCB = 43; gIDX = 53; gSZ0 = 54; gSZ1 = 55
    gM_H = 44; gKC = 45; gT1 = 46; gT2 = 47; G_F = 96
    hDA = 32; hDW = 33; hTS = 38; hSEQ = 42; hT = 44
    hA = 2; hW = 4; hXO = 12; hPS = 14; hPL = 15; hFS = 16; hFL = 17; hDH = 18; hWH = 20; hT2 = 24; hBF = 30; hO = 45
    XR = 48; ACC = 64; FR = 128
    NA = FS - 12
    def g2_next():
        return [f's_add_u32 s{gIDX}, s{gIDX}, 1',
                f'v_readlane_b32 s{gWO}, v{hSEQ}, s{gIDX}',
                f's_lshl_b32 s{gACT}, s{gWO}, 17',
                f's_cmp_lt_u32 s{gWO}, 32',
                f's_cselect_b32 s{G_W}, s92, s68', f's_cselect_b32 s{G_W+1}, s93, s69', f's_cselect_b32 s{G_W+2}, s{gSZ0}, s{gSZ1}',
                f's_cselect_b32 s60, 0, 32',
                f's_sub_u32 s{gWO}, s{gWO}, s60',
                f's_lshl_b32 s{gWO}, s{gWO}, 16']
    def g2_dma(slot, compact=False):
        L = []
        for d in range(2 if compact else 4):
            L.append(([f's_add_u32 m0, s{gM_H if compact else gM_W}, {slot*16384 + d*1024}'],
                      f'buffer_load_dwordx4 v{(hDH if compact else hDW)+d}, s[{G_W}:{G_W+3}], s{gWO} offen lds', []))
        for d in range(4):
            L.append(([f's_add_u32 m0, s{gM_A}, {slot*16384}'] if d == 0 else [],
                      f'buffer_load_dwordx4 v{hDA}, s[{G_A}:{G_A+3}], s{gACT} offen offset:{d*1024} lds', []))
        L[-1] = (L[-1][0], L[-1][1], g2_next())
        return L
    def g2_early(o):
        o.e('s_and_b32 s3, s2, 7'); o.e(f's_lshr_b32 s{gPART}, s3, 2'); o.e('s_and_b32 s3, s3, 3'); o.e('s_lshl_b32 s3, s3, 2')
        o.e('s_lshr_b32 s60, s2, 3'); o.e(f's_and_b32 s{gCB}, s60, 7'); o.e('s_lshr_b32 s60, s60, 3'); o.e(f's_add_u32 s{gRB}, s3, s60')
        o.e(f's_and_b32 s3, s{sWAVE}, 1')
        o.e(f's_mul_i32 s60, s{gPART}, {NA}')
        o.e(f'v_add_u32 v{hT}, s60, v{vLANE}'); o.e(f'v_add_u32 v{hT+1}, {2*NA-FS}, v{vLANE}')
        o.e(f'v_cmp_gt_u32 vcc, {NA}, v{vLANE}'); o.e(f'v_cndmask_b32 v{hT}, v{hT+1}, v{hT}, vcc')
        o.e(f'v_mul_u32_u24 v{hT+1}, 21846, v{hT}'); o.e(f'v_lshrrev_b32 v{hT+1}, 16, v{hT+1}')
        o.e(f'v_lshl_add_u32 v{hT}, v{hT+1}, 2, v{hT}')
        o.e(f's_lshl_b32 s60, s{sWM}, 2'); o.e('s_add_u32 s60, s60, 32'); o.e(f'v_add_u32 v{hT}, s60, v{hT}')
        o.e(f's_mul_i32 s60, s{gPART}, 24'); o.e(f's_add_u32 s60, s60, s{sWM}'); o.e(f's_sub_u32 s60, s60, {2*NA}')
        o.e(f'v_lshl_add_u32 v{hT+1}, v{vLANE}, 1, s60')
        o.e(f's_mul_i32 s60, s{sWM}, 7'); o.e(f's_sub_u32 s60, s60, {14*(NA+4)-35}')
        o.e(f'v_mul_u32_u24 v{hT+2}, 14, v{vLANE}'); o.e(f'v_add_u32 v{hT+2}, s60, v{hT+2}')
        o.e(f's_cmp_eq_u32 s{gPART}, 0'); o.e(f's_cselect_b32 s60, 63, {NA+4}')
        o.e(f'v_cmp_gt_u32 vcc, s60, v{vLANE}'); o.e(f'v_cndmask_b32 v{hT+1}, v{hT+2}, v{hT+1}, vcc')
        o.e(f'v_subrev_u32 v{hT+2}, {NA}, v{vLANE}'); o.e(f'v_cmp_gt_u32 vcc, 12, v{hT+2}')
        o.e(f'v_cndmask_b32 v{hSEQ}, v{hT}, v{hT+1}, vcc')
        o.e('s_lshl_b32 s60, s3, 12'); o.e(f's_lshl_b32 s61, s{gRB}, 13'); o.e('s_add_u32 s60, s60, s61')
        o.e(f'v_lshl_add_u32 v{hDA}, v{vLANE}, 4, s60')
        o.e(f's_lshl_b32 s{gM_A}, s{sWAVE}, 12'); o.e(f's_add_u32 s{gM_W}, s{gM_A}, {WB}')
        o.e(f'v_lshrrev_b32 v{hT}, 4, v{vLANE}'); o.e(f'v_and_b32 v{hT+1}, 15, v{vLANE}')
        o.e('s_lshl_b32 s60, s3, 15'); o.e(f's_lshl_b32 s61, s{gCB}, 8'); o.e('s_add_u32 s60, s60, s61')
        o.e(f'v_lshl_add_u32 v{hT+3}, v{hT}, 11, s60')
        o.e(f'v_lshlrev_b32 v{hT+2}, 1, v{hT}'); o.e(f'v_xor_b32 v{hT+2}, v{hT+2}, v{hT+1}')
        o.e(f'v_lshl_add_u32 v{hDW}, v{hT+2}, 4, v{hT+3}')
        o.e(f'v_xor_b32 v{hDW+1}, 128, v{hDW}'); o.e(f'v_add_u32 v{hDW+1}, 8192, v{hDW+1}')
        o.e(f'v_add_u32 v{hDW+2}, 16384, v{hDW}'); o.e(f'v_add_u32 v{hDW+3}, 16384, v{hDW+1}')
        o.e(f's_mov_b32 s{gSZ0}, {1024*1024*2}'); o.e(f's_mov_b32 s{gSZ1}, {3584*1024*2}'); o.e(f's_mov_b32 s{G_W+3}, 0x20000')
        srd(o, G_A, 6, 7, ACT2_BYTES, ACT2_OFF)
        o.e(f's_lshr_b32 s60, s{gRB}, 1'); o.e('s_lshl_b32 s60, s60, 14'); o.e(f's_and_b32 s61, s{gRB}, 1'); o.e('s_lshl_b32 s61, s61, 8')
        o.e('s_add_u32 s60, s60, s61'); o.e(f's_add_u32 s60, s60, {AFLAG_REL}')
        o.e(f'v_lshrrev_b32 v{hT}, 1, v{vLANE}'); o.e(f'v_lshl_add_u32 v{hTS+3}, v{hT}, 9, s60')
        o.e(f'v_and_b32 v{hT}, 1, v{vLANE}'); o.e(f'v_lshl_add_u32 v{hTS+3}, v{hT}, 7, v{hTS+3}')
        o.e(f's_mov_b32 s{gIDX}, -1')
        for x in g2_next(): o.e(x)
    def g2_wdma(o):
        for s_ in range(NS):
            d_ = g2_dma(s_)
            for pre, ins, post in d_[:4]:
                for x in pre: o.e(x)
                o.e(ins)
            for x in d_[7][2]: o.e(x)
    def g2_flagA(o, younger):
        o.e(f's_add_u32 s60, s{sT0}, {BACK}'); o.e(f'v_mov_b32 v{hTS}, s60'); o.e(f'v_xor_b32 v{hTS+1}, s{sCHK}, v{hTS}')
        o.e('s_lshl_b32 s60, s2, 2'); o.e(f's_add_u32 s60, s60, s{sWAVE}'); o.e('s_lshl_b32 s60, s60, 7'); o.e(f's_add_u32 s60, s60, {AFLAG_REL}')
        o.e(f'v_mov_b32 v{hTS+2}, s60')
        o.e(f's_waitcnt vmcnt({younger})')
        o.e('s_mov_b64 exec, 1')
        o.e(f'buffer_store_dwordx2 v[{hTS}:{hTS+1}], v{hTS+2}, s[{G_F}:{G_F+3}], 0 offen sc1')
        o.e('s_mov_b64 exec, -1')
        st.at(4, 3)
    def g2_poll_act(wn):
        st.at(4, 1); st.at(5, 3)
        if wn == 0:
            a.e(f's_cmp_lg_u32 s{sWAVE}, 0'); a.e(f's_cbranch_scc1 L2_aok')
            if cfg.mp & 2: poll_masked(a, 'L2_apoll', hT2, hTS+3, G_F, 60, 3, cfg.ms1)
            else:
                a.e('s_mov_b32 s3, 0')
                if cfg.g1sl: a.e(f's_sleep {cfg.g1sl}')
                a.label('L2_apoll')
                a.e(f'buffer_load_dwordx2 v[{hT2}:{hT2+1}], v{hTS+3}, s[{G_F}:{G_F+3}], 0 offen sc1')
                a.e('s_add_u32 s3, s3, 1')
                a.e('s_waitcnt vmcnt(0)')
                stamp_ok(a, hT2, 60); a.e('s_cbranch_scc1 L2_aok')
                a.e('s_sleep 4')
                a.e('s_cmp_lt_u32 s3, 0x8000'); a.e('s_cbranch_scc1 L2_apoll')
            a.label('L2_aok')
        a.e('s_barrier')
        st.at(5, 1); st.at(6, 3)
        for s_ in range(NS):
            a.e(f'v_readlane_b32 s60, v{hSEQ}, {s_}'); a.e('s_lshl_b32 s60, s60, 17')
            a.e(f's_add_u32 m0, s{gM_A}, {s_*16384}')
            for d in range(4): a.e(f'buffer_load_dwordx4 v{hDA}, s[{G_A}:{G_A+3}], s60 offen offset:{d*1024} lds')

    aACT = 0; aHA = 64; aHW = 88; aACC = 96; aW2 = 216
    for wn in range(2):
        if wn == 1: a.label('L1_wn1')
        if wn == 0:
            names = ['q0', 'q1', 'k0', 'k1', 'v0', 'v1', 'g0', 'g1', 'u0', 'u1']
            units = [('q', 0), ('q', 2), ('q', 4), ('q', 6), ('q', 8), ('q', 10), ('g', 0), ('g', 2), ('u', 0), ('u', 2)]
            order_v = ['g0', 'g1', 'u0', 'q0', 'k0', 'v0', 'v1']; order_a = ['q1', 'k1', 'u1']
        else:
            names = ['g2', 'u2', 'g3', 'u3', 'g6', 'g4', 'u4', 'g5', 'u5', 'u6']
            units = [(nm[0], 2*int(nm[1])) for nm in names]
            order_v = ['g2', 'g3', 'g4', 'g5', 'g6', 'u2', 'u3']; order_a = ['u4', 'u5', 'u6']
        acc = {}
        for i, nm in enumerate(order_v):
            for m in range(8): acc[(nm, m)] = ('v', 32 + (i*8+m)*4)
        for i, nm in enumerate(order_a):
            for m in range(8): acc[(nm, m)] = ('a', aACC + (i*8+m)*4)
        acc['halo'] = ('a', aACC + 96)
        def R(x): return f'{x[0]}[{x[1]}:{x[1]+3}]'
        def hreads(slot):
            return [f'ds_read_b128 {AR(aHA)}, v{vHA} offset:{slot*1024}'] + \
                   [f'ds_read_b64_tr_b16 a[{aHW+2*h}:{aHW+2*h+1}], v{vHW+(slot>>1)} offset:{(slot&1)*20480+h*3072}' for h in range(2)]
        def wfrag(slot, n, reg):
            kind, c0 = units[n]; out = []
            for h_ in range(2):
                if kind == 'q':
                    base = (vQa if c0 % 4 == 0 else vQb) + (slot >> 1); off = (slot & 1)*20480 + c0*16 + h_*3072
                else:
                    base = vGU + (slot >> 1); off = (slot & 1)*20480 + (6144 if kind == 'g' else 13312) + c0*16 + h_*3584
                out.append(f'ds_read_b64_tr_b16 a[{reg+2*h_}:{reg+2*h_+1}], v{base} offset:{off}')
            return out
        def wr(p, n, second): return aW2 + 8*((5*p + n) & 3) + 4*second
        def areg_(stage, m): return aACT + (stage & 1)*32 + 4*m
        tr = LgkmTracker(a)
        carry = flat(dma_list(2)[5:10] + dma_list(2)[:5] + dma_list(2)[10:] if cfg.afirst else dma_list(2))
        carry_last = -99
        def period(h, kind, side=None):
            nonlocal carry, carry_last
            p = h + 1
            first = kind != 'P'; second = kind != 'Q'
            g0 = 0 if h % 2 == 0 else 5
            gn = 5 - g0
            secs = [x for x in (0, 1) if (first if x == 0 else second)]
            mf = [(n, m, sec) for n in range(3) for m in range(8) for sec in secs]
            L = 8*len(secs); T0 = len(mf)
            mf += [(n, m, sec) for m in range(8) for n in (3, 4) for sec in secs]
            N = len(mf)
            gaps = [[] for _ in range(N)]
            def place(item, lo, hi, cap=1):
                for g in range(lo, hi+1):
                    if len(gaps[g]) < cap:
                        gaps[g].append(item); return g
                return None
            def wf(n):
                return (wfrag(h % 4, g0+n, wr(p, n, 0)) if first else []) + (wfrag((h+1) % 4, g0+n, wr(p, n, 1)) if second else [])
            for n, lst in ((0, wf(1)), (1, wf(2)), (2, wf(3) + wf(4))):
                for k_, r in enumerate(lst): gaps[n*L + k_].append(('r', r))
            if kind != 'Q':
                cur = 1; lastv = carry_last - (N if not first else N)
                for x in carry:
                    lo = cur; vs_ = cfg.vsp if kind == 'H' else 2
                    if x.startswith('buffer') and first: lo = max(lo, lastv + vs_)
                    if x.startswith('s_add_u32 m0') and first: lo = max(lo, lastv + vs_ - 2)
                    g = place(('x', x), lo, T0-5, 1 if first else 2); assert g is not None
                    if x.startswith('buffer'): lastv = g
                    cur = g + (1 if (first or x.startswith('s_add_u32 m0')) else 0)
                per = 2*len(secs)
                for m in range(8):
                    gaps[T0 + per*m + (per - 2 if first else 0)].append(('r', f'ds_read_b128 {AR(areg_(h+2, m))}, v{vA} offset:{((h+2) % 4)*16384 + m*1024}'))
                tail = wfrag((h+1) % 4, gn, wr(p+1, 0, 0)) + wfrag((h+2) % 4, gn, wr(p+1, 0, 1)) + hreads((h+2) % 4)
                for k_, r in enumerate(tail):
                    g = place(('r', r), T0 + (per*k_ if first else 2*k_), N-1, 1); assert g is not None
                dl_ = dma_list(h % 4)
                items = flat(dl_[5:10] + dl_[:5] + dl_[10:] if cfg.afirst else dl_)
                cur = T0
                hi = N-1 if not (kind == 'H' and h % 4 == 2) else N-4
                lastv = -99
                while items:
                    x = items[0]; lo = cur
                    if x.startswith('buffer') and first: lo = max(lo, lastv + cfg.vsp)
                    if x.startswith('s_add_u32 m0') and first: lo = max(lo, lastv + cfg.vsp - 2)
                    g = place(('x', x), lo, hi, 1)
                    if g is None: break
                    if x.startswith('buffer'): lastv = g
                    cur = g + 1; items.pop(0)
                carry_last = lastv + (80 - N)
                carry = items
                if kind == 'H' and h % 4 == 2:
                    gaps[N-3].append(('x', f's_add_u32 s{sCNT}, s{sCNT}, 1')); gaps[N-2].append(('x', f's_cmp_eq_u32 s{sCNT}, 8'))
                if kind == 'H' and h % 4 == 0:
                    gaps[T0-4].append(('x', f's_cmp_eq_u32 s{sCNT}, 7'))
                    for k_, r_ in enumerate((sM_W, sM_ACT, sM_H)): gaps[T0-3+k_].append(('x', f's_cselect_b32 s{r_}, 170000, s{r_}'))
            if side:
                for k_, x in enumerate(side):
                    gaps[min(N-1, 3 + (k_*(N-3))//len(side))].append(('w' if x.startswith('ds_write') else 'x', x))
            if kind == 'Q': mf = [(n, m, 0) for n in range(5) for m in range(8)]
            for i, (n, m, sec) in enumerate(mf):
                nm = names[g0+n]
                if kind != 'Q' and i == T0:
                    a.e(f's_waitcnt vmcnt({VMW-1+len(latepf) if kind == "P" else VMW}) lgkmcnt(0)'); tr.drain()
                    if not (cfg.dbg & 2 and kind == 'H'): a.e('s_barrier')
                    if cfg.stamps == 8:
                        a.e('s_memrealtime s[84:85]'); a.e('s_waitcnt lgkmcnt(0)')
                        if kind == 'P': a.e('s_mov_b32 s83, 0')
                        a.e('v_mov_b32 v28, s84'); a.e(f'v_cmp_eq_u32 vcc, s83, v{vLANE}'); a.e('v_cndmask_b32 v29, v29, v28, vcc'); a.e('s_add_u32 s83, s83, 1')
                wreg = AR(wr(p, n, sec)); areg = AR(areg_(h+sec, m))
                tr.need(regs_of(wreg) + regs_of(areg) + (regs_of(AR(wr(p, n, 1))) if (n > 0 and second) else []))
                d = R(acc[(nm, m)])
                c = '0' if (kind == 'P' or (kind == 'H0' and sec == 0)) else d
                a.e(f'{MF} {d}, {areg}, {wreg}, {c}' if nm[0] == 'v' else f'{MF} {d}, {wreg}, {areg}, {c}')
                for k_, x in gaps[i]:
                    if kind == 'H' and ((cfg.dbg & 1 and x.startswith('buffer_load')) or (cfg.dbg & 8 and x.startswith('s_add_u32') and 's50' not in x)): continue
                    if kind == 'H' and cfg.dbg & 4 and k_ == 'r': continue
                    if k_ == 'r': tr.read(x)
                    elif k_ == 'w': a.e(x); tr.other()
                    else: a.e(x)
                if kind != 'Q' and i == L + 5:
                    tr.need(regs_of(AR(aHA)) + regs_of(AR(aHW)))
                    d = R(acc['halo'])
                    a.e(f'{MF} {d}, {AR(aHW)}, {AR(aHA)}, {"0" if kind == "P" else d}')
        a.e(f's_waitcnt vmcnt({5 + len(latepf)})'); a.e('s_barrier')
        st.at(1, 1); st.at(2, 2)
        if st.on: a.e('s_waitcnt lgkmcnt(0)')
        for r in wfrag(0, 5, wr(0, 0, 1)) + [f'ds_read_b128 {AR(areg_(0, m))}, v{vA} offset:{m*1024}' for m in range(8)] + hreads(0): tr.read(r)
        period(-1, 'P'); period(0, 'H0')
        entry_state = tr.state(); entry_carry = list(carry)
        if cfg.stamps == 9: a.e('s_memtime s[72:73]'); a.e('s_memrealtime s[76:77]'); a.e('s_waitcnt lgkmcnt(0)'); tr.drain(); entry_state = None
        a.label(f'L1_loop{wn}')
        period(1, 'H'); period(2, 'H')
        exit_q = list(tr.q)
        a.e(f's_cbranch_scc1 L1_tail{wn}')
        period(3, 'H'); period(4, 'H')
        assert cfg.dbg or cfg.stamps == 9 or (tr.state() == entry_state and carry == entry_carry)
        if wn == 0 and cfg.cpf2:
            a.e(f's_add_u32 s60, s{sCNT}, s{sWAVE}'); a.e(f's_cmp_eq_u32 s60, {cfg.cpf2 + 2}'); a.e(f's_cbranch_scc0 L1_loop{wn}')
            a.e(f's_cmp_eq_u32 s{sWAVE}, 2'); a.e(f's_cbranch_scc0 L1_loop{wn}')
            code_pf(a, 'L1_tail0', 'L_end', vLANE, 28, vDUM, 94, 5)
        a.e(f's_branch L1_loop{wn}')
        a.label(f'L1_tail{wn}')
        if cfg.stamps == 9: a.e('s_memtime s[74:75]'); a.e('s_memrealtime s[78:79]'); a.e('s_waitcnt lgkmcnt(0)')
        tr.q = exit_q
        vO = vDA; vX = vDW
        def fetch(o, x, tmp):
            if x[0] == 'v': return x[1]
            for r in range(4): o.e(f'v_accvgpr_read_b32 v{tmp+r}, a{x[1]+r}')
            return tmp
        def hmul(o, g, u_, m, dst, tmp):
            gb = acc[(g, m)][1]; ub = fetch(o, acc[(u_, m)], tmp)
            o.e(f'v_pk_mul_f32 {P2(gb)}, {P2(gb)}, {P2(ub)}'); o.e(f'v_pk_mul_f32 {P2(gb+2)}, {P2(gb+2)}, {P2(ub+2)}')
            o.e(f'v_cvt_pk_bf16_f32 v{dst}, v{gb}, v{gb+1}'); o.e(f'v_cvt_pk_bf16_f32 v{dst+1}, v{gb+2}, v{gb+3}')
        def ostore(o, src, m, soff, n=4):
            op = {4: 'buffer_store_dwordx4', 2: 'buffer_store_dwordx2'}[n]
            o.e(f'{op} v[{src}:{src+n-1}], v{vO + (m >> 2)}, s[{S_O}:{S_O+3}], {soff} offen offset:{(m&3)*1024} sc1')
        def hblock(o, ga, ua, gb_, ub_, m, so, tmp):
            dst = acc[(ga, m)][1]
            hmul(o, ga, ua, m, dst, tmp); hmul(o, gb_, ub_, m, dst+2, tmp+4); ostore(o, dst, m, so)
        def attn1(o, q, kp, kc, v0w, v1w, bp, BI, Sx, Ox, dst):
            o.e(f'{MF} v[{Sx}:{Sx+3}], v[{kp}:{kp+3}], v[{q}:{q+3}], 0')
            o.e(f'{MF} v[{Sx+4}:{Sx+7}], v[{kc}:{kc+3}], v[{q}:{q+3}], 0')
            for r in (0, 2): o.e(f'v_pk_fma_f32 {P2(Sx+r)}, {P2(Sx+r)}, s[94:95], {P2(bp+r)}')
            for r in (0, 2): o.e(f'v_pk_fma_f32 {P2(Sx+4+r)}, {P2(Sx+4+r)}, s[94:95], {P2(BI+r)}')
            M = Sx + 8
            o.e(f'v_max3_f32 v{M}, v{Sx}, v{Sx+1}, v{Sx+2}'); o.e(f'v_max3_f32 v{M+1}, v{Sx+3}, v{Sx+4}, v{Sx+5}')
            o.e(f'v_max3_f32 v{M}, v{M}, v{Sx+6}, v{Sx+7}'); o.e(f'v_max_f32 v{M}, v{M}, v{M+1}')
            o.e(f'v_mov_b32 v{M+1}, v{M}')
            o.e(f'v_permlane32_swap_b32 v{M}, v{M+1}')
            o.e(f'v_max_f32 v{M}, v{M}, v{M+1}'); o.e(f'v_mov_b32 v{M+1}, v{M}')
            o.e(f'v_permlane16_swap_b32 v{M}, v{M+1}')
            o.e(f'v_max_f32 v{M}, v{M}, v{M+1}'); o.e(f'v_mov_b32 v{M+1}, v{M}')
            for r in (0, 2, 4, 6): o.e(f'v_pk_add_f32 {P2(Sx+r)}, {P2(Sx+r)}, {P2(M)} neg_lo:[0,1] neg_hi:[0,1]')
            for r in range(8): o.e(f'v_exp_f32 v{Sx+r}, v{Sx+r}')
            for r in range(4): o.e(f'v_cvt_pk_bf16_f32 v{Sx+12+r}, v{Sx+2*r}, v{Sx+2*r+1}')
            Pp = Sx + 12
            o.e(f'{MF} v[{Ox+8}:{Ox+11}], a[{aBI+12}:{aBI+15}], v[{Pp}:{Pp+3}], 0')
            o.e(f'{MF} v[{Ox}:{Ox+3}], v[{v0w}:{v0w+3}], v[{Pp}:{Pp+3}], 0')
            o.e(f'{MF} v[{Ox+4}:{Ox+7}], v[{v1w}:{v1w+3}], v[{Pp}:{Pp+3}], 0')
            o.e(f'v_rcp_f32 v{Ox+8}, v{Ox+8}')
            o.e(f'v_mov_b32 v{Ox+9}, v{Ox+8}')
            for r in (0, 2, 4, 6): o.e(f'v_pk_mul_f32 {P2(Ox+r)}, {P2(Ox+r)}, {P2(Ox+8)}')
            for r in range(4): o.e(f'v_cvt_pk_bf16_f32 v{dst+r}, v{Ox+2*r}, v{Ox+2*r+1}')
        def zipper(A, B):
            A = [x.text for x in A.ins]; B = [x.text for x in B.ins]
            for i_ in range(max(len(A), len(B))):
                if i_ < len(A): a.e(A[i_])
                if i_ < len(B): a.e(B[i_])
        o = Asm()
        o.e(f's_lshl_b32 s60, s{sRB}, 14'); o.e(f's_lshl_b32 s61, s{sWM}, 13'); o.e('s_add_u32 s60, s60, s61')
        o.e(f'v_lshl_add_u32 v{vO}, v{vLANE}, 4, s60'); o.e(f'v_add_u32 v{vO+1}, 4096, v{vO}')
        o.e(f's_mul_i32 s62, s{sJ}, 7'); o.e(f's_and_b32 s63, s{sJ}, 1'); o.e('s_add_u32 s62, s62, s63'); o.e('s_lshr_b32 s62, s62, 1')
        o.e('s_add_u32 s62, s62, 32'); o.e('s_lshl_b32 s62, s62, 17')
        o.e('s_add_u32 s64, s62, 131072'); o.e('s_add_u32 s65, s62, 262144')
        o.e(f's_lshl_b32 s60, s{sWM}, 14'); o.e('s_add_u32 s60, s60, 4096')
        o.e(f'v_lshl_add_u32 v{vX}, v{vLANE}, 4, s60')
        o.e(f'v_and_b32 v{vT}, 15, v{vLANE}'); o.e(f'v_lshrrev_b32 v{vT+1}, 4, v{vLANE}')
        o.e(f'v_lshl_add_u32 v{vX+1}, v{vT}, 5, s60'); o.e(f'v_lshl_add_u32 v{vX+1}, v{vT+1}, 3, v{vX+1}')
        o.e(f's_mul_i32 s60, s{sWM}, 40960'); o.e('s_sub_u32 s61, 40960, s60')
        o.e(f'v_lshl_add_u32 v{vX+2}, v{vLANE}, 4, s60')
        o.e(f'v_lshl_add_u32 v{vX+3}, v{vT+1}, 7, s61'); o.e(f'v_lshl_add_u32 v{vX+3}, v{vT}, 1, v{vX+3}')
        hb = fetch(o, acc['halo'], vT)
        o.e(f'v_cvt_pk_bf16_f32 v{vT+4}, v{hb}, v{hb+1}'); o.e(f'v_cvt_pk_bf16_f32 v{vT+5}, v{hb+2}, v{hb+3}')
        o.e(f'ds_write_b64 v{vX+2}, v[{vT+4}:{vT+5}] offset:{8*wn}')
        of = 1024 + wn*512
        o.e(f'ds_write_b16 v{vX+3}, v{vT+4} offset:{of}'); o.e(f'ds_write_b16_d16_hi v{vX+3}, v{vT+4} offset:{of+32}')
        o.e(f'ds_write_b16 v{vX+3}, v{vT+5} offset:{of+64}'); o.e(f'ds_write_b16_d16_hi v{vX+3}, v{vT+5} offset:{of+96}')
        o.e('s_mov_b32 s94, 0x3e8293ee'); o.e('s_mov_b32 s95, 0x3e8293ee')
        o.e(f's_lshl_b32 s67, s{sJ}, 17')
        if wn == 0:
            def packqk(o, n0, n1, m):
                d = acc[(n0, m)][1]
                b1 = fetch(o, acc[(n1, m)], vT + 4*(m & 1))
                o.e(f'v_cvt_pk_bf16_f32 v{d}, v{d}, v{d+1}'); o.e(f'v_cvt_pk_bf16_f32 v{d+1}, v{d+2}, v{d+3}')
                o.e(f'v_cvt_pk_bf16_f32 v{d+2}, v{b1}, v{b1+1}'); o.e(f'v_cvt_pk_bf16_f32 v{d+3}, v{b1+2}, v{b1+3}')
                return d
            PV0 = acc[('v0', 0)][1]; PV1 = acc[('v1', 0)][1]
            def packv(o, Pv, m, off):
                b_ = Pv + 4*m
                c1 = f'v_cvt_pk_bf16_f32 v{Pv+2+2*m}, v{b_}, v{b_+1}'; c2 = f'v_cvt_pk_bf16_f32 v{Pv+3+2*m}, v{b_+2}, v{b_+3}'
                for x in ((c2, c1) if m == 0 else (c1, c2)): o.e(x)
                if m >= 3: o.e(f'ds_write_b64 v{vX+1}, v[{Pv+2+2*m}:{Pv+3+2*m}] offset:{(m-3)*2048+off}')
            for m in range(3, 8):
                d = packqk(o, 'k0', 'k1', m); o.e(f'ds_write_b128 v{vX}, v[{d}:{d+3}] offset:{(m-3)*2048}')
            for m in range(4, 8):
                d = packqk(o, 'q0', 'q1', m); o.e(f'ds_write_b128 v{vX}, v[{d}:{d+3}] offset:{10240+(m-4)*1024}')
            for m in range(8): packv(o, PV0, m, 1024)
            for m in range(8): packv(o, PV1, m, 1536)
        else:
            o.e('s_add_u32 s66, s62, 393216'); o.e('s_sub_u32 s61, s62, 131072'); o.e('s_add_u32 s61, s61, 512')
            o.e('s_cmp_eq_u32 s63, 1'); o.e('s_cselect_b32 s66, s61, s66')
            for m in range(8): hblock(o, 'g2', 'u2', 'g3', 'u3', m, 's64', vT)
        period(31, 'Q', side=[x.text for x in o.ins])
        st.at(2, 1); st.at(1, 3)
        a.e('s_waitcnt lgkmcnt(0)'); a.e('s_barrier')
        if wn == 0:
            KP = PV0 + 18; BI = PV1 + 18
            a.e(f's_lshl_b32 s60, s{sWM}, 12'); a.e('s_add_u32 s60, s60, 4096')
            a.e(f'v_subrev_u32 v{vX}, s60, v{vX}'); a.e(f'v_subrev_u32 v{vX+1}, s60, v{vX+1}')
            a.e(f'ds_read_b128 v[{KP}:{KP+3}], v{vX}')
            a.e(f'ds_read_b64 v[{PV0}:{PV0+1}], v{vX+1} offset:1024')
            a.e(f'ds_read_b64 v[{PV1}:{PV1+1}], v{vX+1} offset:1536')
            for m in range(8): hblock(a, 'g0', 'u0', 'g1', 'u1', m, 's62', vT)
            st.at(3, 1); st.at(2, 3)
            for m in range(3): packqk(a, 'k0', 'k1', m)
            for m in range(4): packqk(a, 'q0', 'q1', m)
            for r in range(12): a.e(f'v_accvgpr_read_b32 v{BI+r}, a{aBI+r}')
            blk = [(acc[('q0', m)][1], acc[('k0', m-1)][1] if m else KP, acc[('k0', m)][1], PV0+2*m, PV1+2*m, BI+(8 if m == 0 else 4), BI) for m in range(4)]
            W1 = acc[('g1', 0)][1]; W2 = acc[('u0', 0)][1]
            mo = 0
        else:
            F = acc[('u2', 0)][1]
            KR = F; V0 = F + 20; V1 = F + 30; QR = F + 40; BI = F + 56
            for i_ in range(5):
                a.e(f'ds_read_b128 v[{KR+4*i_}:{KR+4*i_+3}], v{vX} offset:{i_*2048}')
                if i_: a.e(f'ds_read_b128 v[{QR+4*(i_-1)}:{QR+4*(i_-1)+3}], v{vX} offset:{10240+(i_-1)*1024}')
            for i_ in range(5):
                a.e(f'ds_read_b64 v[{V0+2*i_}:{V0+2*i_+1}], v{vX+1} offset:{i_*2048+1024}')
                a.e(f'ds_read_b64 v[{V1+2*i_}:{V1+2*i_+1}], v{vX+1} offset:{i_*2048+1536}')
            for m in range(8): hblock(a, 'g4', 'u4', 'g5', 'u5', m, 's65', vT)
            st.at(3, 1); st.at(2, 3)
            for r in range(8): a.e(f'v_accvgpr_read_b32 v{BI+r}, a{aBI+r}')
            blk = [(QR+4*i_, KR+4*i_, KR+4*i_+4, V0+2*i_, V1+2*i_, BI+4, BI) for i_ in range(4)]
            W1 = acc[('g3', 0)][1]; W2 = acc[('g5', 0)][1]
            mo = 4
        a.e('s_waitcnt lgkmcnt(0)')
        def pair(pr):
            A = Asm(); B = Asm()
            attn1(A, *blk[2*pr], W1, W1+16, XR+8*pr); attn1(B, *blk[2*pr+1], W2, W2+16, XR+8*pr+4)
            zipper(A, B)
        def halves():
            if wn == 1:
                for i_ in range(4):
                    d_ = acc[('g6', 2*i_)][1]
                    hmul(a, 'g6', 'u6', 2*i_, d_, vT); hmul(a, 'g6', 'u6', 2*i_+1, d_+2, vT+4)
                    a.e(f'v_permlane16_swap_b32 v{d_}, v{d_+2}'); a.e(f'v_permlane16_swap_b32 v{d_+1}, v{d_+3}')
                    for r in range(4): a.e(f'v_accvgpr_write_b32 a{4*i_+r}, v{d_+r}')
                a.e(f'v_lshrrev_b32 v{vT}, 4, v{vLANE}'); a.e(f'v_and_b32 v{vT+1}, 1, v{vT}'); a.e(f'v_lshrrev_b32 v{vT+2}, 1, v{vT}')
                a.e(f'v_lshlrev_b32 v{vT}, 8, v{vT}'); a.e(f'v_sub_u32 v{hO+1}, v{vO}, v{vT}')
                a.e(f'v_lshl_add_u32 v{hO+1}, v{vT+1}, 10, v{hO+1}'); a.e(f'v_lshl_add_u32 v{hO+1}, v{vT+2}, 8, v{hO+1}')
                a.e(f'v_add_u32 v{hO+2}, 4096, v{hO+1}')
            else:
                a.e('s_mov_b32 s66, 0x80000000'); a.e(f'v_mov_b32 v{hO+1}, v{vO}'); a.e(f'v_mov_b32 v{hO+2}, v{vO}')
        if cfg.tr2:
            g2_early(a)
            A = Asm(); B = Asm(); D = Asm(); Fl = Asm()
            attn1(A, *blk[0], W1, W1+16, XR); attn1(B, *blk[1], W2, W2+16, XR+4); g2_wdma(D); g2_flagA(Fl, cfg.tr2)
            za = [x.text for p_ in zip(A.ins, B.ins) for x in p_]; zd = [x.text for x in D.ins]
            cnt = 0; cut = 0
            for i_, x in enumerate(zd):
                if x.startswith('buffer'): cnt += 1
                if cnt == cfg.tr2: cut = i_ + 1; break
            k_ = 0
            for i_, x in enumerate(za):
                a.e(x)
                while k_ < cut and k_ < ((i_+1)*cut)//len(za): a.e(zd[k_]); k_ += 1
            for x in Fl.ins: a.e(x.text)
            A = Asm(); B = Asm()
            attn1(A, *blk[2], W1, W1+16, XR+8); attn1(B, *blk[3], W2, W2+16, XR+12)
            za = [x.text for p_ in zip(A.ins, B.ins) for x in p_]; n_ = len(zd) - cut
            for i_, x in enumerate(za):
                a.e(x)
                while k_ < len(zd) and k_ - cut < ((i_+1)*n_)//len(za): a.e(zd[k_]); k_ += 1
        else:
            pair(0)
            g2_flagA(a, 0)
            g2_early(a)
            st.at(3, 3)
            if cfg.ilv:
                A = Asm(); B = Asm(); D = Asm(); Z = Asm()
                attn1(A, *blk[2], W1, W1+16, XR+8); attn1(B, *blk[3], W2, W2+16, XR+12); g2_wdma(D)
                za = [x.text for p_ in zip(A.ins, B.ins) for x in p_]; zd = [x.text for x in D.ins]
                k_ = 0
                for i_, x in enumerate(za):
                    a.e(x)
                    while k_ < len(zd) and k_ < ((i_+1)*len(zd))//len(za): a.e(zd[k_]); k_ += 1
            else:
                g2_wdma(a)
                if wn == 0 and cfg.w0late:
                    a.e(f's_cmp_eq_u32 s{sWAVE}, 0'); a.e('s_cbranch_scc1 L2_skip1')
                pair(1)
                if wn == 0 and cfg.w0late: a.label('L2_skip1')
        halves()
        a.e(f'v_add_u32 v{hO}, {mo*1024}, v{vO}')
        g2_poll_act(wn)
        if wn == 0 and cfg.w0late:
            a.e(f's_cmp_lg_u32 s{sWAVE}, 0'); a.e('s_cbranch_scc1 L2_late')
            pair(1)
        if wn == 0: a.e('s_branch L2_late')

    a.label('L2_late')
    NB = 0
    a.e('s_load_dwordx2 s[56:57], s[0:1], 56')
    a.e('s_load_dwordx2 s[58:59], s[0:1], 0')
    a.e(f's_and_b32 s3, s{sWAVE}, 1')
    a.e(f's_mov_b32 s{gU}, 0')
    a.e(f's_lshl_b32 s60, s{sWM}, 12')
    a.e(f'v_lshl_add_u32 v{hA}, v{vLANE}, 4, s60'); a.e(f'v_add_u32 v{hA+1}, 65536, v{hA}')
    tA, tB, tC, tD = hT2, hT2+1, hT2+2, hT2+3
    a.e(f'v_lshrrev_b32 v{tA}, 2, v{vLANE}')
    a.e(f'v_and_b32 v{tB}, 7, v{tA}'); a.e(f'v_lshlrev_b32 v{tB}, 5, v{tB}')
    a.e(f'v_and_b32 v{tC}, 3, v{vLANE}'); a.e(f'v_lshlrev_b32 v{tC}, 3, v{tC}'); a.e(f'v_add_u32 v{tC}, {WB}, v{tC}')
    a.e(f'v_lshl_add_u32 v{hDH}, v{tA}, 8, v{tC}')
    a.e('s_lshl_b32 s60, s3, 6'); a.e(f's_lshl_b32 s{gKC}, s{gPART}, 7'); a.e(f's_add_u32 s{gKC}, s{gKC}, s60')
    for n in range(4):
        a.e(f's_xor_b32 s61, s{gKC}, {32*(n&1) + 128*(n>>1)}')
        a.e(f'v_xor_b32 v{tD}, s61, v{tB}')
        a.e(f'v_add_u32 v{hW+n}, v{tD}, v{hDH}'); a.e(f'v_add_u32 v{hW+4+n}, 65536, v{hW+n}')
    def areg(par, ks, m): return FR + par*64 + ks*16 + m*4
    def wreg(par, ks, n): return FR + par*64 + 32 + ks*16 + n*4
    def reads(slot, par, nn=4):
        hi = 1 if slot >= 4 else 0
        base = (slot & 3)*16384
        def ar_(ks, m): return [f'ds_read_b128 v[{areg(par,ks,m)}:{areg(par,ks,m)+3}], v{hA+hi} offset:{base + ks*8192 + m*1024}']
        def wr_(ks, n):
            if nn == 2: return [f'ds_read_b64_tr_b16 v[{wreg(par,ks,n)+2*h}:{wreg(par,ks,n)+2*h+1}], v{hWH+2*hi+n} offset:{base + ks*4096 + h*2048}' for h in range(2)]
            return [f'ds_read_b64_tr_b16 v[{wreg(par,ks,n)+2*h}:{wreg(par,ks,n)+2*h+1}], v{hW+4*hi+n} offset:{base + ks*8192 + h*4096}' for h in range(2)]
        L = wr_(0, 0) + ar_(0, 0) + wr_(1, 0) + ar_(1, 0)
        for m in range(1, 4): L += ar_(0, m) + ar_(1, m)
        for n in range(1, nn): L += wr_(0, n) + wr_(1, n)
        return L
    a.e(f's_waitcnt vmcnt({4*(NS-1) + NB})'); a.e('s_barrier')
    st.at(6, 1); st.at(7, 3)
    if st.on: a.e('s_waitcnt lgkmcnt(0)')
    for r in reads(0, 0): a.e(r)
    b = Asm()
    b.e(f's_lshl_b32 s{gM_H}, s{sWAVE}, 11'); b.e(f's_add_u32 s{gM_H}, s{gM_H}, {WB}')
    b.e(f'v_and_b32 v{tB}, 6, v{tA}'); b.e(f'v_lshlrev_b32 v{tB}, 4, v{tB}')
    b.e(f'v_lshl_add_u32 v{tC}, v{tA}, 7, v{tC}')
    b.e('s_lshl_b32 s46, s3, 6')
    for n in range(2):
        b.e(f's_or_b32 s61, s46, {32*n}')
        b.e(f'v_xor_b32 v{tD}, s61, v{tB}')
        b.e(f'v_add_u32 v{hWH+n}, v{tD}, v{tC}'); b.e(f'v_add_u32 v{hWH+2+n}, 65536, v{hWH+n}')
    b.e(f'v_lshrrev_b32 v{tA}, 3, v{vLANE}'); b.e(f'v_and_b32 v{tB}, 6, v{tA}'); b.e(f'v_and_b32 v{tC}, 7, v{vLANE}')
    b.e(f'v_xor_b32 v{tB}, v{tB}, v{tC}')
    b.e('s_lshl_b32 s46, s3, 15'); b.e(f's_lshl_b32 s61, s{gCB}, 8'); b.e('s_or_b32 s46, s46, s61')
    b.e(f's_lshl_b32 s61, s{gPART}, 7'); b.e('s_or_b32 s46, s46, s61')
    b.e(f'v_lshl_add_u32 v{tA}, v{tA}, 11, s46'); b.e(f'v_lshl_add_u32 v{hDH}, v{tB}, 4, v{tA}')
    b.e(f'v_add_u32 v{hDH+1}, 16384, v{hDH}')
    for (d_, lo, nb) in ((G_X, 58, 2048*1024*2), (G_OUT, 56, 2048*1024*2)):
        b.e(f's_mov_b32 s{d_}, s{lo}'); b.e(f's_mov_b32 s{d_+1}, s{lo+1}'); b.e(f's_mov_b32 s{d_+2}, {nb}'); b.e(f's_mov_b32 s{d_+3}, 0x20000')
    b.e(f's_lshl_b32 s46, s{gRB}, 18'); b.e(f's_lshl_b32 s61, s{sWM}, 17'); b.e('s_or_b32 s46, s46, s61')
    b.e(f's_lshl_b32 s61, s{gCB}, 8'); b.e('s_or_b32 s46, s46, s61'); b.e('s_or_b32 s46, s46, s45')
    b.e(f'v_and_b32 v{tB}, 15, v{vLANE}'); b.e(f'v_lshl_add_u32 v{tB}, v{tB}, 11, s46')
    b.e(f'v_lshrrev_b32 v{tA}, 4, v{vLANE}')
    b.e(f'v_and_b32 v{tC}, 1, v{tA}'); b.e(f'v_lshl_add_u32 v{tB}, v{tC}, 5, v{tB}')
    b.e(f'v_lshrrev_b32 v{tC}, 1, v{tA}'); b.e(f'v_lshl_add_u32 v{hXO}, v{tC}, 4, v{tB}')
    b.e(f's_lshl_b32 s46, s{gRB}, 6'); b.e(f's_lshl_b32 s61, s{gCB}, 3'); b.e('s_or_b32 s46, s46, s61')
    b.e(f's_lshl_b32 s61, s{gPART}, 2'); b.e('s_or_b32 s46, s46, s61'); b.e(f's_or_b32 s46, s46, s{sWAVE}')
    b.e('s_xor_b32 s47, s46, 4')
    b.e('s_lshl_b32 s61, s46, 7'); b.e(f'v_mov_b32 v{hFS}, s61')
    b.e('s_lshl_b32 s61, s47, 7'); b.e(f'v_mov_b32 v{hFL}, s61')
    b.e('s_lshl_b32 s46, s46, 12'); b.e('s_lshl_b32 s47, s47, 12')
    b.e(f'v_lshl_add_u32 v{hPS}, v{vLANE}, 4, s46'); b.e(f'v_lshl_add_u32 v{hPL}, v{vLANE}, 4, s47')
    srd(b, G_P, 6, 7, PART_BYTES, PART_OFF)
    b.e(f'v_add_u32 v{hTS+2}, {BFLAG_REL-AFLAG_REL}, v{hTS+2}')
    b.e(f's_lshl_b32 s46, s{sWAVE}, 4'); b.e(f'v_readlane_b32 s47, v{hTS+3}, s46'); b.e(f's_add_u32 s47, s47, {BFLAG_REL-AFLAG_REL}')
    b.e(f'v_bfe_u32 v{tA}, v{vLANE}, 1, 3'); b.e(f'v_lshl_add_u32 v{hTS+3}, v{tA}, 9, s47')
    b.e(f'v_and_b32 v{tA}, 1, v{vLANE}'); b.e(f'v_lshl_add_u32 v{hTS+3}, v{tA}, 7, v{hTS+3}')
    if cfg.g2pf:
        b.e('s_mov_b32 s91, 0x20000'); b.e('s_mov_b32 s88, s68'); b.e('s_mov_b32 s89, s69'); b.e('s_mov_b32 s90, 0')
        b.e(f's_and_b32 s46, s{gRB}, 3'); b.e('s_lshl_b32 s46, s46, 13'); b.e('s_lshl_b32 s47, s3, 15'); b.e('s_or_b32 s46, s46, s47')
        b.e(f's_lshl_b32 s47, s{gCB}, 8'); b.e('s_or_b32 s46, s46, s47')
        b.e(f'v_min_u32 v{tA}, 7, v{vLANE}'); b.e(f'v_lshrrev_b32 v{tB}, 1, v{tA}'); b.e(f'v_lshl_add_u32 v13, v{tB}, 11, s46')
        b.e(f'v_and_b32 v{tB}, 1, v{tA}'); b.e(f'v_lshl_add_u32 v13, v{tB}, 7, v13')
        b.e(f's_lshl_b32 s46, s{gRB}, 13'); b.e('s_lshl_b32 s47, s3, 12'); b.e('s_or_b32 s46, s46, s47'); b.e(f's_lshl_b32 s47, s{gCB}, 9'); b.e('s_or_b32 s46, s46, s47')
        b.e(f'v_min_u32 v{tA}, 3, v{vLANE}'); b.e(f'v_lshl_add_u32 v43, v{tA}, 7, s46')
    b.e('s_mov_b32 s64, 0xffff0000'); b.e('s_mov_b32 s61, 32768'); b.e('s_mov_b32 s62, 65536'); b.e('s_mov_b32 s63, 98304')
    late = [x.text for x in b.ins]
    rowoff = ['0', 's61', 's62', 's63']
    VM2 = 8*(NS-2) + (2*(NS-1) if cfg.g2pf else 0); UN = 2*NS; LS = FS - NS; uexit = (LS - 1) % UN
    def gu_at(step): return UN*len([t_ for t_ in range(cfg.npeel, step) if t_ % UN == uexit])
    hooks = {}
    def hook(name, steps, opnd=None):
        for stp in steps:
            if stp % UN != uexit and stp % UN not in hooks and stp >= cfg.npeel and all(gu_at(stp) != gu_at(o_) for o_ in range(cfg.npeel + (stp - cfg.npeel) % UN, LS, UN) if o_ != stp):
                hooks[stp % UN] = (name, opnd or gu_at(stp)); return stp
        raise RuntimeError(name)
    hN = hook('nat', [NA-2], 's65')
    hC = hook('chk', range(NA-6, NA-9, -1))
    hA_ = hook('ask', range(hC-5, hC-8, -1))
    hF = hook('flg', range(7, 10))
    late.insert(len(late)-4, f's_mul_i32 s65, s{gPART}, {gu_at(hN)+1}'); late.insert(len(late)-4, 's_sub_u32 s65, s65, 1')
    def rec():
        if cfg.stamps != 7: return
        a.e('s_memrealtime s[86:87]'); a.e('s_waitcnt lgkmcnt(0)')
        a.e('v_mov_b32 v28, s86'); a.e(f'v_cmp_eq_u32 vcc, s88, v{vLANE}'); a.e('v_cndmask_b32 v29, v29, v28, vcc'); a.e('s_add_u32 s88, s88, 1')
    if cfg.stamps == 7: a.e('s_mov_b32 s88, 0')
    def full_step(u, wait, inloop, fill=(), head=(), post_vm=()):
        slot = u % NS; par = u & 1
        a.e(f's_waitcnt vmcnt({wait}) lgkmcnt(0)')
        if not (cfg.dbg2 & 2 and inloop): a.e('s_barrier')
        rec()
        for x in head: a.e(x)
        sched = {}
        for i, r in enumerate(reads((slot+1) % NS, par ^ 1) if not (cfg.dbg2 & 4 and inloop) else []): sched.setdefault((i*cfg.rsp)//24 + cfg.rd0, []).append(r)
        if cfg.dsp == 3 or fill or post_vm:
            dl_ = g2_dma(slot)
            if cfg.g2af: dl_ = [(x[0], x[1], []) for x in dl_[4:]] + dl_[:3] + [(dl_[3][0], dl_[3][1], dl_[7][2])]
            if cfg.g2af == 2: dl_ = [dl_[0], dl_[1], dl_[2], dl_[3]] + dl_[4:]
            for i, (pre, ins, post) in enumerate(dl_):
                p = cfg.d0 + 3*i
                for x in pre: sched.setdefault(p-1, []).append(x)
                if not (cfg.dbg2 & 1 and inloop): sched.setdefault(p, []).append(ins)
                for k_, x in enumerate(post): sched.setdefault(min(30, p + 1 + k_//2), []).append(x)
        else:
            for i, (pre, ins, post) in enumerate(g2_dma(slot)):
                p = cfg.d0 + 4*i
                for x in pre: sched.setdefault(p-1, []).append(x)
                sched.setdefault(p, []).append(ins)
            nx = g2_next()
            adv = [nx[0], nx[1], f's_lshl_b32 s89, s{gWO}, 17'] + nx[3:]
            pos = [cfg.d0+13, cfg.d0+14, cfg.d0+17, cfg.d0+17, cfg.d0+18, cfg.d0+18, cfg.d0+19, cfg.d0+19, cfg.d0+21, cfg.d0+22]
            for p_, x in zip(pos, adv): sched.setdefault(p_, []).append(x)
            sched.setdefault(cfg.d0+28, []).append(f's_mov_b32 s{gACT}, s89')
        pos_ = 0
        for k_, x in enumerate(fill):
            if not x.startswith('s_addc'):
                pos_ = (k_*22)//len(fill)
                if k_+1 < len(fill) and fill[k_+1].startswith('s_addc') and pos_ % 3 == 0: pos_ += 1
            sched.setdefault(pos_, []).append(x)
        for k_, x in enumerate(post_vm): sched.setdefault(24 + 2*k_, []).append(x)
        if cfg.g2pf and u >= 3:
            pf_ = [f's_add_u32 s86, s{gIDX}, {cfg.g2pf}', f'v_readlane_b32 s86, v{hSEQ}, s86', 's_lshl_b32 s87, s86, 17', 's_cmp_lt_u32 s86, 32',
                   's_cselect_b32 s88, s92, s68', 's_cselect_b32 s89, s93, s69', f's_cselect_b32 s90, s{gSZ0}, s{gSZ1}', 's_cselect_b32 s85, 0, 32',
                   's_sub_u32 s86, s86, s85', 's_lshl_b32 s86, s86, 16']
            for p_, x in zip((1, 2, 4, 4, 4, 5, 5, 5, 7, 8), pf_): sched.setdefault(p_, []).append(x)
            sched.setdefault(25, []).append('buffer_load_dword v37, v13, s[88:91], s86 offen')
            sched.setdefault(28, []).append(f'buffer_load_dword v37, v43, s[{G_A}:{G_A+3}], s87 offen')
        if inloop and u == uexit:
            sched.setdefault(31, []).append(f's_add_u32 s{gU}, s{gU}, {UN}')
            sched.setdefault(31, []).append(f's_cmp_ge_u32 s{gU}, {LS}')
        if inloop and u in hooks:
            sched.setdefault(31, []).append(f's_cmp_eq_u32 s{gU}, {hooks[u][1]}')
        i = 0
        for n in range(4):
            for m in range(4):
                for ks in range(2):
                    d = ACC + (n*4+m)*4
                    c = '0' if (u == 0 and not inloop and ks == 0) else f'v[{d}:{d+3}]'
                    a.e(f'{MF} v[{d}:{d+3}], v[{wreg(par,ks,n)}:{wreg(par,ks,n)+3}], v[{areg(par,ks,m)}:{areg(par,ks,m)+3}], {c}')
                    for x in sched.get(i, []): a.e(x)
                    i += 1
        if inloop and u in hooks:
            a.e(f's_cbranch_scc1 L2_b{hooks[u][0]}'); a.label(f'L2_bret{hooks[u][0]}')
    NPEEL = cfg.npeel
    assert uexit >= NPEEL or LS > UN
    nl_ = len(late)
    bst = [f'buffer_store_dwordx4 v[{XR+4*i_}:{XR+4*i_+3}], v{hO}, s[{S_O}:{S_O+3}], s67 offen offset:{i_*1024} sc1' for i_ in range(4)] + \
          [f'buffer_store_dwordx4 a[{4*m}:{4*m+3}], v{hO+1+(m>>1)}, s[{S_O}:{S_O+3}], s66 offen offset:{(m&1)*2048} sc1' for m in range(4)]
    q0 = [t_ for t_ in range(1, NS) for _ in range(4)]
    BP = cfg.bper
    assert 8 <= BP*3
    for u in range(NPEEL):
        last = max(i_ for i_, x in enumerate(q0) if x == u+1)
        full_step(u, len(q0) - 1 - last, False, fill=late[(u*nl_)//3:((u+1)*nl_)//3] if u < 3 else (), post_vm=bst[BP*u:BP*u+BP])
        q0 = q0[last+1:] + [u+NS]*8 + ['b']*len(bst[BP*u:BP*u+BP]) + (['p']*2 if cfg.g2pf and u >= 3 else [])
    if cfg.stamps == 10: a.e('s_memtime s[72:73]'); a.e('s_memrealtime s[76:77]')
    a.e('s_branch L2_uin')
    a.label('L2_bnat')
    a.e(f's_and_b32 s3, s{sWAVE}, 1'); a.e('s_mul_i32 s3, s3, -24576')
    for d in range(4):
        a.e(f'v_add_u32 v{hDW+d}, s3, v{hDW+d}'); a.e('s_add_u32 s3, s3, 8192')
    a.e('s_branch L2_bretnat')
    a.label('L2_bflg')
    a.e('s_mov_b64 exec, 1')
    a.e(f'buffer_store_dwordx2 v[{hTS}:{hTS+1}], v{hTS+2}, s[{G_F}:{G_F+3}], 0 offen sc1')
    a.e('s_mov_b64 exec, -1')
    a.e('s_branch L2_bretflg')
    a.label('L2_bask')
    a.e(f'buffer_load_dwordx2 v[{hBF}:{hBF+1}], v{hTS+3}, s[{G_F}:{G_F+3}], 0 offen sc1')
    a.e('s_branch L2_bretask')
    a.label('L2_bchk')
    a.e('s_mov_b32 s3, 0')
    a.label('L2_bspin')
    stamp_ok(a, hBF, 66); a.e('s_cbranch_scc1 L2_bretchk')
    a.e('s_add_u32 s3, s3, 1'); a.e('s_cmp_gt_u32 s3, 0x8000'); a.e('s_cbranch_scc1 L2_bretchk')
    a.e(f'buffer_load_dwordx2 v[{hBF}:{hBF+1}], v{hTS+3}, s[{G_F}:{G_F+3}], 0 offen sc1')
    a.e('s_waitcnt vmcnt(0)'); a.e('s_branch L2_bspin')
    a.label('L2_loop')
    for u in range(UN):
        if u == NPEEL: a.label('L2_uin')
        full_step(u, VM2, True)
        if u == uexit: a.e('s_cbranch_scc1 L2_half')
        if u == UN-1: a.e('s_branch L2_loop')
    a.label('L2_half')
    if cfg.stamps == 10: a.e('s_memtime s[74:75]'); a.e('s_memrealtime s[78:79]')
    q = []
    if cfg.g2pf: q += [('pf', 0)]*2
    for t in range(LS+1, FS): q += [('d', t)]*8 + ([('pf', 0)]*2 if cfg.g2pf else [])
    def wait_for(pred, extra=''):
        last = max([i for i, x in enumerate(q) if pred(x)], default=-1)
        a.e(f's_waitcnt vmcnt({min(len(q) - 1 - last, 63)}){extra}')
        del q[:last+1]
    def fload(): a.e(f'buffer_load_dwordx2 v[{hBF}:{hBF+1}], v{hFL}, s[{G_F}:{G_F+3}], 0 offen sc1')
    def pl():
        for k_ in range(4): a.e(f'buffer_load_dwordx4 v[{ACC+32+4*k_}:{ACC+32+4*k_+3}], v{hPL}, s[{G_P}:{G_P+3}], 0 offen offset:{k_*1024} sc1')
    for t in range(LS, TOT):
        hs = t - FS; slot = t % NS; par = t & 1
        nn = 4 if hs < 0 else 2
        if any(x == ('d', t+1) for x in q): wait_for(lambda x: x == ('d', t+1), ' lgkmcnt(0)')
        else: a.e('s_waitcnt lgkmcnt(0)')
        if t+1 < TOT: a.e('s_barrier')
        rec()
        sched = {}
        def add(i, x, tag=None): sched.setdefault(i, []).append((x, tag))
        if t + 1 < TOT:
            for i, r in enumerate(reads((slot+1) % NS, par ^ 1, 4 if t+1 < FS else 2)): add(i, r)
        extra = []
        if t + NS < TOT:
            for pre, ins, post in g2_dma(slot, compact=True):
                extra += [(x, None) for x in pre] + [(ins, ('d', t+NS))] + [(x, None) for x in (post if t+NS+1 < TOT else [])]
        if hs == max(HS-NS, 1):
            extra += [(f'buffer_load_dwordx4 v[{XR+4*m}:{XR+4*m+3}], v{hXO}, s[{G_X}:{G_X+3}], {rowoff[m]} offen', ('x', 0)) for m in range(4)]
        pub = []
        for k_ in range(4):
            c0 = ACC+32+4*k_; c1 = ACC+48+4*k_
            pub += [(f'v_cvt_pk_bf16_f32 v{c0}, v{c0}, v{c0+1}', None), (f'v_cvt_pk_bf16_f32 v{c0+1}, v{c0+2}, v{c0+3}', None),
                    (f'v_cvt_pk_bf16_f32 v{c0+2}, v{c1}, v{c1+1}', None), (f'v_cvt_pk_bf16_f32 v{c0+3}, v{c1+2}, v{c1+3}', None),
                    (f'buffer_store_dwordx4 v[{c0}:{c0+3}], v{hPS}, s[{G_P}:{G_P+3}], 0 offen offset:{k_*1024} sc1', ('s', 0))]
        if hs == 0 and not cfg.epub: extra += pub
        if hs == -1 and cfg.epub:
            assert not extra
            for k_, (x, tag) in enumerate(pub): add(20 + (k_*12)//len(pub), x, tag)
        for k_, (x, tag) in enumerate(extra): add((k_*8*nn)//max(len(extra), 1), x, tag)
        i = 0
        for n in ((2, 3, 0, 1) if (hs == -1 and cfg.epub) else range(nn)):
            for m in range(4):
                for ks in range(2):
                    d = ACC + (n*4+m)*4
                    a.e(f'{MF} v[{d}:{d+3}], v[{wreg(par,ks,n)}:{wreg(par,ks,n)+3}], v[{areg(par,ks,m)}:{areg(par,ks,m)+3}], v[{d}:{d+3}]')
                    for x, tag in sched.get(i, []):
                        a.e(x)
                        if tag: q.append(tag)
                    i += 1
        if hs == cfg.k2_flg:
            wait_for(lambda x: x[0] == 's')
            a.e('s_mov_b64 exec, 1')
            a.e(f'buffer_store_dwordx2 v[{hTS}:{hTS+1}], v{hFS}, s[{G_F}:{G_F+3}], 0 offen sc1'); q.append(('f', 0))
            a.e('s_mov_b64 exec, -1')
        if hs == HS-2:
            fload(); q.append(('p', 0))
        if hs == HS-1:
            wait_for(lambda x: x[0] == 'p')
    a.e('s_mov_b32 s3, 0')
    a.label('L2_chk')
    stamp_ok(a, hBF, 66); a.e('s_cbranch_scc1 L2_have')
    a.e('s_add_u32 s3, s3, 1'); a.e('s_cmp_gt_u32 s3, 0x40000'); a.e('s_cbranch_scc1 L2_have')
    fload(); a.e('s_waitcnt vmcnt(0)'); a.e('s_branch L2_chk')
    a.label('L2_have')
    rec()
    pl()
    st.at(7, 1)
    for m in range(4):
        Tm = FR + m*8; x = XR + 4*m
        for r in range(4):
            a.e(f'v_lshlrev_b32 v{Tm+2*r}, 16, v{x+r}'); a.e(f'v_and_b32 v{Tm+2*r+1}, s64, v{x+r}')
    for m in range(4):
        x = XR + 4*m; c0 = ACC + 4*m; c1 = ACC + 16 + 4*m; Tm = FR + m*8; pk = ACC + 32 + 4*m; U = FR + 32 + m*8
        a.e('s_waitcnt vmcnt(3)')
        for r in range(4):
            a.e(f'v_lshlrev_b32 v{U+2*r}, 16, v{pk+r}'); a.e(f'v_and_b32 v{U+2*r+1}, s64, v{pk+r}')
        for (c, p) in ((c0, U), (c1, U+4)):
            a.e(f'v_pk_add_f32 {P2(c)}, {P2(c)}, {P2(p)}'); a.e(f'v_pk_add_f32 {P2(c+2)}, {P2(c+2)}, {P2(p+2)}')
        for r in range(4): a.e(f'v_permlane16_swap_b32 v{c0+r}, v{c1+r}')
        a.e(f'v_pk_add_f32 {P2(c0)}, {P2(c0)}, {P2(Tm)}'); a.e(f'v_pk_add_f32 {P2(c0+2)}, {P2(c0+2)}, {P2(Tm+2)}')
        a.e(f'v_pk_add_f32 {P2(c1)}, {P2(c1)}, {P2(Tm+4)}'); a.e(f'v_pk_add_f32 {P2(c1+2)}, {P2(c1+2)}, {P2(Tm+6)}')
        a.e(f'v_cvt_pk_bf16_f32 v{x}, v{c0}, v{c0+1}'); a.e(f'v_cvt_pk_bf16_f32 v{x+1}, v{c0+2}, v{c0+3}')
        a.e(f'v_cvt_pk_bf16_f32 v{x+2}, v{c1}, v{c1+1}'); a.e(f'v_cvt_pk_bf16_f32 v{x+3}, v{c1+2}, v{c1+3}')
        a.e(f'buffer_store_dwordx4 v[{x}:{x+3}], v{hXO}, s[{G_OUT}:{G_OUT+3}], {rowoff[m]} offen' + ['', ' sc1', ' nt'][cfg.ost])
    if st.on:
        a.e('s_waitcnt vmcnt(0)'); st.at(3, 2)
    if cfg.stamps in (7, 8):
        a.e('s_waitcnt vmcnt(0)'); rec()
        srd(a, 92, 6, 7, 1 << 20, STAMP_OFF + (1 << 19))
        a.e('s_lshl_b32 s96, s2, 10'); a.e(f's_lshl_b32 s97, s{sWAVE}, 8'); a.e('s_add_u32 s96, s96, s97')
        a.e(f'v_lshl_add_u32 v{hT2}, v{vLANE}, 2, s96')
        a.e(f'buffer_store_dword v29, v{hT2}, s[92:95], 0 offen')
    st.flush(sWAVE, hT2, hT2+1)
    a.label('L_end')
    a.e('s_endpgm')
    return name

def build(cfg):
    a = Asm()
    a.e('.amdgcn_target "amdgcn-amd-amdhsa--gfx950"'); a.e('.text')
    name = gen(a, cfg)
    for x in a.ins:
        if x.kind == 'vmem' and x.lds: x.text = x.text.replace(' lds', ' sc1 lds')
    a.fix()
    head = open('cdna_kernels/' + NAME + '.s.ref').read().split('\n')
    hdr = [l for l in head[:13] if l.startswith(';') and '@launch' not in l and 'Override' not in l and 'grid=ceil' not in l]
    out = '\n'.join(hdr) + '\n; @launch grid=(256,1,1) block=(256,1,1) lds=163840\n' + a.text()
    out += f'''.section .rodata,"a"
.p2align 6
.amdhsa_kernel {name}
  .amdhsa_next_free_vgpr 512
  .amdhsa_next_free_sgpr 102
  .amdhsa_accum_offset 256
  .amdhsa_group_segment_fixed_size 0
  .amdhsa_kernarg_size 80
  .amdhsa_user_sgpr_count 2
  .amdhsa_user_sgpr_kernarg_segment_ptr 1
  .amdhsa_system_sgpr_workgroup_id_x 1
.end_amdhsa_kernel
'''
    return out

if __name__ == '__main__':
    cfg = Cfg()
    outp = sys.argv[1] if len(sys.argv) > 1 else 'cdna_kernels/' + NAME + '.s'
    for kv in sys.argv[2:]:
        k, v = kv.split('='); assert hasattr(cfg, k), k; setattr(cfg, k, int(v))
    open(outp, 'w').write(build(cfg))
    sys.path.insert(0, 'cdna_kernels')
    import subprocess, cdna_launch as cl
    h = cl.with_harness_metadata(open(outp).read(), NAME + '_kernel', 10, launch_lists=True)
    open('h.s', 'w').write(h)
    r = subprocess.run(['clang', '-x', 'assembler', '-target', 'amdgcn-amd-amdhsa', '-mcpu=gfx950', 'h.s', '-o', 'h.co'], capture_output=True, text=True)
    if r.returncode: print(r.stderr[:1500]); sys.exit(1)
    print('wrote', outp, 'check:', cl.address_register_problem('h.co', NAME + '_kernel', None))
```
